```python
import torch

def _softmax(x, axis=-1):
    return torch.softmax(x, dim=axis)
def _gelu(x):
    return torch.nn.functional.gelu(x, approximate="tanh")
def _silu(x):
    return torch.nn.functional.silu(x)
def _sigmoid(x):
    return torch.sigmoid(x)
def _layernorm(x, axis=-1, eps=1e-5):
    m = x.mean(dim=axis, keepdim=True)
    v = x.var(dim=axis, keepdim=True, unbiased=False)
    return (x - m) / torch.sqrt(v + eps)
def _scatter_add(tgt, idx, src, axis=0):
    return tgt.clone().index_add_(axis, idx, src)
def _segment_sum(src, seg, n):
    out = torch.zeros((n,) + src.shape[1:], dtype=src.dtype)
    return out.index_add_(0, seg, src)
def _pad(x, pw):
    flat = tuple(v for pair in reversed(pw) for v in pair)
    return torch.nn.functional.pad(x, flat)

kernel_name = 'sequential_preLN__ssm_conv_s4__mixer_s_mlp__prompt'

def setup_inputs():

    _w = (lambda a: (lambda t: t.to(torch.bfloat16) if t.is_floating_point() else t)(torch.as_tensor(a)))
    def _A_setup():
        B, L, D, N = 1, 2048, 512, 128
        A_re = -(lambda _x: torch.exp(torch.as_tensor(_x)))((lambda *s: torch.randn(*s, dtype=torch.bfloat16) * 3.2)(D, N))
        A_im = torch.pi * (lambda *s: torch.randn(*s, dtype=torch.bfloat16) * 0.05)(D, N)
        B_re = (lambda *s: torch.randn(*s, dtype=torch.bfloat16) * 0.1)(D, N)
        B_im = (lambda *s: torch.randn(*s, dtype=torch.bfloat16) * 0.1)(D, N)
        C_re = (lambda *s: torch.randn(*s, dtype=torch.bfloat16) * 0.1)(D, N)
        C_im = (lambda *s: torch.randn(*s, dtype=torch.bfloat16) * 0.1)(D, N)
        log_dt = (lambda *s: torch.randn(*s, dtype=torch.bfloat16) * 0.05)(D) * 0.5 - 4.0
        Dskip = (lambda *s: torch.randn(*s, dtype=torch.bfloat16) * 0.05)(D)
        return {
            "u": _w((lambda *s: torch.randn(*s, dtype=torch.bfloat16) * 0.05)(B, L, D)),
            "A_re": _w(A_re),
            "A_im": _w(A_im),
            "B_re": _w(B_re),
            "B_im": _w(B_im),
            "C_re": _w(C_re),
            "C_im": _w(C_im),
            "log_dt": _w(log_dt),
            "Dskip": _w(Dskip),
        }
    _A_in = _A_setup()

    def _B_setup():
        B, S, D, F = 1, 2048, 512, 1792
        return {
            "x":  _w((lambda *s: torch.randn(*s, dtype=torch.bfloat16) * 0.05)(B, S, D)),
            "w1": _w((lambda *s: torch.randn(*s, dtype=torch.bfloat16) * 3.2)(D, D) * (D ** -0.5)),
            "w2": _w((lambda *s: torch.randn(*s, dtype=torch.bfloat16) * 3.2)(D, D) * (D ** -0.5)),
            "w3": _w((lambda *s: torch.randn(*s, dtype=torch.bfloat16) * 3.2)(D, F) * (D ** -0.5)),
            "w4": _w((lambda *s: torch.randn(*s, dtype=torch.bfloat16) * 1.6)(F, D) * (F ** -0.5)),
        }
    _B_in = _B_setup()

    return {
        "A_u": _A_in["u"],
        "A_A_re": _A_in["A_re"],
        "A_A_im": _A_in["A_im"],
        "A_B_re": _A_in["B_re"],
        "A_B_im": _A_in["B_im"],
        "A_C_re": _A_in["C_re"],
        "A_C_im": _A_in["C_im"],
        "A_log_dt": _A_in["log_dt"],
        "A_Dskip": _A_in["Dskip"],
        "B_x": _B_in["x"],
        "B_w1": _B_in["w1"],
        "B_w2": _B_in["w2"],
        "B_w3": _B_in["w3"],
        "B_w4": _B_in["w4"],
    }

def reference(A_u, A_A_re, A_A_im, A_B_re, A_B_im, A_C_re, A_C_im, A_log_dt, A_Dskip, B_x, B_w1, B_w2, B_w3, B_w4):
    def _A_ref(u, A_re, A_im, B_re, B_im, C_re, C_im, log_dt, Dskip):
        Bsz, L, D = u.shape
        dt = torch.exp(log_dt)[:, None]
        A = A_re + 1j * A_im
        Bc = B_re + 1j * B_im
        Cc = C_re + 1j * C_im
        logdA = dt * A
        dB = dt * Bc
        l = (lambda x, dt: x.to(dt))(torch.arange(L), A_re.dtype)
        P = torch.exp(logdA[:, :, None] * l[None, None, :])
        K = torch.einsum("dn,dnl,dn->dl", Cc, P, dB).real
        L2 = 2 * L
        Kp = _pad(K, ((0, 0), (0, L)))
        up = (lambda x, *d: x.permute(*d))(u, 0, 2, 1)
        up = _pad(up, ((0, 0), (0, 0), (0, L)))
        Kf = (lambda x, axes=(-2,-1): torch.fft.rfft2(x.float(), dim=axes))(Kp[:, None, :], axes=(-2, -1))
        Uf = (lambda x, axes=(-2,-1): torch.fft.rfft2(x.float(), dim=axes))(up[:, :, None, :], axes=(-2, -1))
        Yf = Uf * Kf[None, :, :, :]
        y = (lambda x, s, axes=(-2,-1): torch.fft.irfft2(x, s=s, dim=axes).to(torch.bfloat16))(Yf, (1, L2), axes=(-2, -1))[:, :, 0, :L]
        y = (lambda x, *d: x.permute(*d))(y, 0, 2, 1) + u * Dskip[None, None, :]
        return y

    def _B_ref(x, w1, w2, w3, w4):
        B, S, D = x.shape
        h = _gelu(_layernorm(x, axis=-1) @ w1)
        c = D // 4
        g0 = _pad(h[:, :, 0*c:1*c], ((0, 0), (1, 0), (0, 0)))[:, :S, :]
        g1 = _pad(h[:, :, 1*c:2*c], ((0, 0), (0, 1), (0, 0)))[:, 1:, :]
        g2 = _pad(h[:, :, 2*c:3*c], ((0, 0), (2, 0), (0, 0)))[:, :S, :]
        g3 = _pad(h[:, :, 3*c:   ], ((0, 0), (0, 2), (0, 0)))[:, 2:, :]
        hs = torch.concatenate([g0, g1, g2, g3], axis=-1) @ w2
        x1 = x + hs
        h2 = _gelu(_layernorm(x1, axis=-1) @ w3) @ w4
        return x1 + h2

    x = A_u
    h = x + _A_ref(_layernorm(x, axis=-1), A_A_re, A_A_im, A_B_re, A_B_im, A_C_re, A_C_im, A_log_dt, A_Dskip)
    h2 = h + _B_ref(_layernorm(h, axis=-1), B_w1, B_w2, B_w3, B_w4)
    return h2
```

```python
class Asm:
    def __init__(self):
        self.lines = []
        self.kernels = []
        self.uid = 0
    def __call__(self, s):
        for l in s.strip('\n').split('\n'):
            self.lines.append('    ' + l.strip())
    def label(self, l):
        self.lines.append(l + ':')
    def newlabel(self, p='L'):
        self.uid += 1
        return f'{p}_{self.uid}'
    def comment(self, s):
        self.lines.append('    ; ' + s)
    def begin_kernel(self, name):
        self.lines.append('.text')
        self.lines.append(f'.globl {name}')
        self.lines.append('.p2align 8')
        self.lines.append(f'.type {name},@function')
        self.lines.append(f'{name}:')
    def end_kernel(self, name, grid, block, lds, vgpr, sgpr=102, agpr=0):
        self.lines.append('    s_endpgm')
        accum = (vgpr + 3) // 4 * 4
        self.kernels.append((name, grid, block, lds, accum + agpr if agpr else vgpr, sgpr, accum))
    def text(self, header, order=None):
        out = [header.rstrip('\n')]
        ks = {k[0]: k for k in self.kernels}
        for name in (order or [k[0] for k in self.kernels]):
            _, g, b, lds, *_ = ks[name]
            out.append(f'; @launch kernel={name} grid=({g[0]},{g[1]},{g[2]}) block=({b[0]},{b[1]},{b[2]}) lds={lds}')
        out.append('.amdgcn_target "amdgcn-amd-amdhsa--gfx950"')
        out += self.lines
        out.append('.section .rodata,"a"')
        for name, g, b, lds, vgpr, sgpr, accum in self.kernels:
            out.append('.p2align 6')
            out.append(f'.amdhsa_kernel {name}')
            out.append(f'  .amdhsa_next_free_vgpr {vgpr}')
            out.append(f'  .amdhsa_next_free_sgpr {sgpr}')
            out.append(f'  .amdhsa_accum_offset {accum}')
            out.append('  .amdhsa_group_segment_fixed_size 0')
            out.append('  .amdhsa_kernarg_size 136')
            out.append('  .amdhsa_user_sgpr_count 2')
            out.append('  .amdhsa_user_sgpr_kernarg_segment_ptr 1')
            out.append('  .amdhsa_system_sgpr_workgroup_id_x 1')
            out.append('  .amdhsa_float_denorm_mode_32 3')
            out.append('  .amdhsa_float_denorm_mode_16_64 3')
            out.append('.end_amdhsa_kernel')
        return '\n'.join(out) + '\n'

HEADER = open('sequential_preLN__ssm_conv_s4__mixer_s_mlp__prompt.s.ref').read().split('; Override launch')[0]
```

```python
import sys, struct
from asmlib import *
from gen_ws import WS, MB

KA = dict(x=0, Are=8, Aim=16, Bre=24, Bim=32, Cre=40, Cim=48, ldt=56, Dsk=64, Bx=72, w1=80, w2=88, w3=96, w4=104, out=112, dbg=120, ws=128)

def f2u(f):
    return struct.unpack('<I', struct.pack('<f', f))[0]
def hx(f):
    return hex(f2u(f))

LOG2E = 1.4426950408889634
LOG2E_HI = struct.unpack('<f', struct.pack('<f', LOG2E))[0]
LOG2E_LO = LOG2E - LOG2E_HI
LN2 = 0.6931471805599453
INV2PI = 0.15915494309189535

a = Asm()

def ws_ptr(dst, wsreg, name, extra=0):
    off = WS[name] + extra
    a(f's_add_u32 s{dst}, s{wsreg}, {hex(off)}')
    a(f's_addc_u32 s{dst+1}, s{wsreg+1}, 0')

def row16_allreduce(v):
    for sh in (8, 4, 2, 1):
        a('s_nop 1')
        a(f'v_add_f32_dpp v{v}, v{v}, v{v} row_ror:{sh} row_mask:0xf bank_mask:0xf')

def unpack(dlo, dhi, src):
    a(f'v_lshlrev_b32 v{dlo}, 16, v{src}')
    a(f'v_and_b32 v{dhi}, 0xffff0000, v{src}')

STAMPS = False
SV = 124
def stamp_init():
    if not STAMPS: return
    a(f's_load_dwordx2 s[90:91], s[0:1], {KA["dbg"]}')
def stamp(wg_list, slot):
    if not STAMPS: return
    l = a.newlabel('STP')
    a('s_memtime s[92:93]')
    a('s_waitcnt lgkmcnt(0)')
    a('v_readfirstlane_b32 s95, v0')
    a('s_nop 3')
    a('s_cmp_lg_u32 s95, 0')
    a(f's_cbranch_scc1 {l}')
    for i, wg in enumerate(wg_list):
        l2 = a.newlabel('STQ')
        a(f's_cmp_lg_u32 s2, {wg}')
        a(f's_cbranch_scc1 {l2}')
        a(f'v_mov_b32 v{SV+1}, s92')
        a(f'v_mov_b32 v{SV}, {(i*16+slot)*4}')
        a(f'global_store_dword v{SV}, v{SV+1}, s[90:91]')
        a.label(l2)
    a.label(l)

TRACE = False
def trace_begin():
    if not TRACE: return
    a('s_memrealtime s[96:97]')
    a('s_getreg_b32 s98, hwreg(HW_REG_HW_ID)')
    a('s_getreg_b32 s99, hwreg(HW_REG_XCC_ID)')
def trace_end(kidx):
    if not TRACE: return
    l = a.newlabel('TRC')
    a('s_mov_b64 exec, -1')
    a('s_memrealtime s[100:101]')
    a('v_readfirstlane_b32 s95, v0')
    a('s_waitcnt lgkmcnt(0)')
    a('s_cmp_lg_u32 s95, 0')
    a(f's_cbranch_scc1 {l}')
    a(f'v_mov_b32 v{SV}, s96')
    a(f'v_mov_b32 v{SV+1}, s100')
    a(f'v_mov_b32 v{SV+2}, s98')
    a(f'v_mov_b32 v{SV+3}, s99')
    a('s_lshl_b32 s95, s2, 4')
    a(f's_add_u32 s95, s95, {hex(32*MB + kidx*65536)}')
    a(f'v_mov_b32 v{SV+4}, s95')
    a(f'global_store_dwordx4 v{SV+4}, v[{SV}:{SV+3}], s[4:5]')
    a.label(l)

def ln_scalars(S, Q, T):
    a(f'v_cvt_pk_bf16_f32 v{T}, v{S}, v{Q}')
    unpack(S, Q, T)
    a(f'v_add_f32 v{Q}, {hx(1e-5)}, v{Q}')
    a(f'v_cvt_pk_bf16_f32 v{T}, v{Q}, v{Q}')
    a(f'v_lshlrev_b32 v{Q}, 16, v{T}')
    a(f'v_sqrt_f32 v{Q}, v{Q}')
    a('s_nop 0')
    a(f'v_cvt_pk_bf16_f32 v{T}, v{Q}, v{Q}')
    a(f'v_lshlrev_b32 v{Q}, 16, v{T}')
    a(f'v_rcp_f32 v{Q}, v{Q}')
    a('s_nop 0')

def gen_k1():
    global SV
    SV = 88
    name = 'k1_kernel'
    SW = [0, 64, 82]
    a.begin_kernel(name)
    a(f"""
    s_cmp_ge_u32 s2, 338
    s_cbranch_scc1 K1_exit
    s_load_dwordx2 s[4:5], s[0:1], {KA['ws']}
    """)
    stamp_init(); stamp(SW, 0); trace_begin()
    a(f"""
    s_cmp_ge_u32 s2, 82
    s_cbranch_scc1 K1_kgen
    s_cmp_ge_u32 s2, 64
    s_cbranch_scc1 K1_colsum
    s_load_dwordx2 s[6:7], s[0:1], {KA['x']}
    v_lshrrev_b32 v1, 4, v0
    v_and_b32 v2, 15, v0             ; c
    s_lshl_b32 s3, s2, 5             ; t0
    v_add_u32 v3, s3, v1             ; token
    v_lshlrev_b32 v3, 10, v3
    v_lshl_add_u32 v3, v2, 4, v3
    v_mul_u32_u24 v4, 1056, v1
    v_lshl_add_u32 v4, v2, 4, v4
    s_waitcnt lgkmcnt(0)
    """)
    X = 8
    F = 24
    XOFF = 32 * 1056
    for i in range(4):
        a(f'global_load_dwordx4 v[{X+4*i}:{X+4*i+3}], v3, s[6:7] offset:{256*i}')
    ws_ptr(8, 4, 'UT'); ws_ptr(10, 4, 'XT')
    a("""
    v_bfe_u32 v5, v0, 2, 2
    v_mul_u32_u24 v5, 1056, v5
    v_lshrrev_b32 v6, 4, v0          ; 4w+g
    v_lshlrev_b32 v6, 5, v6
    v_and_b32 v7, 3, v0
    v_lshlrev_b32 v7, 3, v7
    v_add3_u32 v5, v5, v6, v7
    v_lshlrev_b32 v6, 12, v0
    s_lshl_b32 s3, s2, 6             ; t0*2
    v_add_u32 v6, s3, v6
    s_waitcnt vmcnt(0)
    """)
    stamp(SW, 1)
    for i in range(4):
        a(f'ds_write_b128 v4, v[{X+4*i}:{X+4*i+3}] offset:{XOFF+256*i}')
    for i in range(16):
        unpack(F+2*i, F+2*i+1, X+i)
    S = 56; Q = 58; T = 60; D = 62
    a(f'v_pk_add_f32 v[{S}:{S+1}], v[{F}:{F+1}], v[{F+2}:{F+3}]')
    for i in range(2, 16):
        a(f'v_pk_add_f32 v[{S}:{S+1}], v[{S}:{S+1}], v[{F+2*i}:{F+2*i+1}]')
    a(f'v_add_f32 v{S}, v{S}, v{S+1}')
    row16_allreduce(S)
    a(f'v_mul_f32 v{S}, {hx(1/512)}, v{S}')
    a(f'v_mov_b32 v{Q}, 0')
    a(f'v_mov_b32 v{Q+1}, 0')
    for i in range(16):
        a(f'v_pk_add_f32 v[{D+2*(i&1)}:{D+2*(i&1)+1}], v[{F+2*i}:{F+2*i+1}], v[{S}:{S+1}] op_sel_hi:[1,0] neg_lo:[0,1] neg_hi:[0,1]')
        a(f'v_pk_fma_f32 v[{Q}:{Q+1}], v[{D+2*(i&1)}:{D+2*(i&1)+1}], v[{D+2*(i&1)}:{D+2*(i&1)+1}], v[{Q}:{Q+1}]')
    a(f'v_add_f32 v{Q}, v{Q}, v{Q+1}')
    row16_allreduce(Q)
    a(f'v_mul_f32 v{Q}, {hx(1/512)}, v{Q}')
    ln_scalars(S, Q, T)
    for i in range(16):
        f0 = F+2*i
        a(f'v_pk_add_f32 v[{f0}:{f0+1}], v[{f0}:{f0+1}], v[{S}:{S+1}] op_sel_hi:[1,0] neg_lo:[0,1] neg_hi:[0,1]')
        a(f'v_cvt_pk_bf16_f32 v{T+(i&1)}, v{f0}, v{f0+1}')
        unpack(f0, f0+1, T+(i&1))
        a(f'v_pk_mul_f32 v[{f0}:{f0+1}], v[{f0}:{f0+1}], v[{Q}:{Q+1}] op_sel_hi:[1,0]')
        a(f'v_cvt_pk_bf16_f32 v{X+i}, v{f0}, v{f0+1}')
    for i in range(4):
        a(f'ds_write_b128 v4, v[{X+4*i}:{X+4*i+3}] offset:{256*i}')
    a('s_waitcnt lgkmcnt(0)')
    a('s_barrier')
    for arr in range(2):
        for tg in range(8):
            r = 24 + 16*arr + 2*tg
            a(f'ds_read_b64_tr_b16 v[{r}:{r+1}], v5 offset:{XOFF*arr + 4224*tg}')
    for arr in range(2):
        a(f's_waitcnt lgkmcnt({8 - 8*arr})')
        for j in range(4):
            r = 24 + 16*arr + 4*j
            a(f'global_store_dwordx4 v6, v[{r}:{r+3}], s[{8+2*arr}:{9+2*arr}] offset:{16*j}')
    stamp(SW, 2)
    a('s_branch K1_end')

    a.label('K1_colsum')
    a(f"""
    s_sub_u32 s3, s2, 64             ; 0..17 : 0..3 -> w1 ; 4..17 -> w3
    s_load_dwordx2 s[6:7], s[0:1], {KA['w1']}
    s_load_dwordx2 s[8:9], s[0:1], {KA['w3']}
    s_movk_i32 s10, 1024
    s_lshl_b32 s11, s3, 8
    s_cmp_lt_u32 s3, 4
    s_waitcnt lgkmcnt(0)
    s_cbranch_scc1 K1_cs_w1
    s_mov_b32 s6, s8
    s_mov_b32 s7, s9
    s_movk_i32 s10, 3584
    s_sub_u32 s11, s11, 1024
    """)
    a.label('K1_cs_w1')
    a("""
    v_lshrrev_b32 v1, 4, v0          ; rg 0..31
    v_and_b32 v2, 15, v0
    v_mul_lo_u32 v3, v1, s10
    v_lshl_add_u32 v3, v2, 4, v3
    v_add_u32 v3, s11, v3
    s_lshl_b32 s12, s10, 5           ; 32 rows
    """)
    for i in range(16):
        a(f'global_load_dwordx4 v[{8+4*i}:{11+4*i}], v3, s[6:7]')
        if i < 15:
            a('s_add_u32 s6, s6, s12')
            a('s_addc_u32 s7, s7, 0')
    AC = 76
    for j in range(8):
        a(f'v_mov_b32 v{AC+j}, 0')
    for i in range(16):
        a(f's_waitcnt vmcnt({15-i})')
        for j in range(4):
            unpack(84+2*(j&1), 85+2*(j&1), 8+4*i+j)
            a(f'v_pk_add_f32 v[{AC+2*j}:{AC+2*j+1}], v[{AC+2*j}:{AC+2*j+1}], v[{84+2*(j&1)}:{85+2*(j&1)}]')
    a(f"""
    v_lshlrev_b32 v4, 5, v0          ; rg*512 + c*32
    ds_write_b128 v4, v[{AC}:{AC+3}]
    ds_write_b128 v4, v[{AC+4}:{AC+7}] offset:16
    v_lshlrev_b32 v5, 2, v0
    s_waitcnt lgkmcnt(0)
    s_barrier
    v_cmp_gt_u32 vcc, 128, v0
    s_and_saveexec_b64 s[14:15], vcc
    s_cbranch_execz K1_end
    """)
    for i in range(32):
        a(f'ds_read_b32 v{8+i}, v5 offset:{512*i}')
    ws_ptr(8, 4, 'CS')
    a('s_lshl_b32 s3, s3, 9')
    a('v_add_u32 v5, s3, v5')
    a('s_waitcnt lgkmcnt(0)')
    for st in (16, 8, 4, 2, 1):
        for i in range(st):
            a(f'v_add_f32 v{8+i}, v{8+i}, v{8+i+st}')
    a('global_store_dword v5, v8, s[8:9]')
    a('s_branch K1_end')

    a.label('K1_kgen')
    a(f"""
    s_load_dwordx4 s[8:11], s[0:1], {KA['Are']}
    s_load_dwordx4 s[12:15], s[0:1], {KA['Bre']}
    s_load_dwordx4 s[16:19], s[0:1], {KA['Cre']}
    s_load_dwordx2 s[20:21], s[0:1], {KA['ldt']}
    s_sub_u32 s3, s2, 82
    s_lshl_b32 s3, s3, 1             ; d0
    v_lshrrev_b32 v1, 8, v0
    v_add_u32 v1, s3, v1             ; d
    v_lshrrev_b32 v2, 6, v0          ; wave
    v_and_b32 v3, 31, v0
    v_lshl_add_u32 v3, v2, 5, v3     ; (ch*128 + n)
    s_lshl_b32 s26, s3, 8
    v_lshlrev_b32 v14, 4, v3
    v_lshl_add_u32 v3, v3, 1, s26    ; d*256 + n*2
    v_lshlrev_b32 v4, 1, v1
    v_and_b32 v5, 15, v0             ; idx
    v_bfe_u32 v6, v0, 4, 2           ; nn
    s_waitcnt lgkmcnt(0)
    global_load_ushort v7, v4, s[20:21]
    global_load_ushort v8, v3, s[8:9]
    global_load_ushort v9, v3, s[10:11]
    global_load_ushort v10, v3, s[12:13]
    global_load_ushort v11, v3, s[14:15]
    global_load_ushort v12, v3, s[16:17]
    global_load_ushort v13, v3, s[18:19]
    """)
    ws_ptr(22, 4, 'KH'); ws_ptr(24, 4, 'KL')
    a("""
    v_lshrrev_b32 v40, 3, v5
    v_lshlrev_b32 v40, 7, v40
    v_and_or_b32 v32, v5, 7, v40
    v_bfe_u32 v40, v5, 2, 1
    v_lshlrev_b32 v40, 7, v40
    v_and_b32 v41, 3, v5
    v_lshl_add_u32 v40, v41, 1, v40
    v_add_u32 v40, 256, v40
    v_bfe_u32 v41, v5, 1, 2
    v_lshlrev_b32 v41, 7, v41
    v_and_b32 v33, 1, v5
    v_lshl_add_u32 v41, v33, 2, v41
    v_add_u32 v41, 512, v41
    v_cmp_gt_u32 vcc, 8, v5
    v_lshlrev_b32 v34, 7, v5
    v_add_u32 v34, 1024, v34
    v_cndmask_b32 v33, v41, v40, vcc
    v_lshlrev_b32 v35, 3, v5
    v_cvt_f32_u32 v32, v32
    v_cvt_f32_u32 v33, v33
    v_cvt_f32_u32 v34, v34
    v_cvt_f32_u32 v35, v35
    v_mul_u32_u24 v42, 3072, v2
    v_add_u32 v42, 4096, v42
    v_lshrrev_b32 v40, 1, v6
    v_lshlrev_b32 v40, 7, v40
    v_and_b32 v41, 1, v6
    v_lshl_add_u32 v40, v41, 2, v40
    v_lshl_add_u32 v40, v5, 3, v40
    v_lshl_add_u32 v36, v40, 2, v42
    v_lshlrev_b32 v40, 6, v6
    v_add_u32 v40, 256, v40
    v_lshl_add_u32 v41, v5, 2, v40
    v_lshl_add_u32 v40, v5, 1, v40
    v_cmp_gt_u32 vcc, 2, v6
    v_mov_b32 v43, 32
    s_nop 0
    v_cndmask_b32 v40, v40, v41, vcc
    v_cndmask_b32 v43, v43, 2, vcc
    v_lshl_add_u32 v37, v40, 2, v42
    v_lshl_add_u32 v38, v43, 2, v37
    v_lshlrev_b32 v40, 6, v6
    v_add_u32 v40, v40, v5
    v_add_u32 v40, 512, v40
    v_lshl_add_u32 v39, v40, 2, v42
    v_lshlrev_b32 v15, 9, v2
    v_lshl_add_u32 v15, v6, 4, v15
    """)
    stamp(SW, 1)
    a('s_waitcnt vmcnt(0)')
    a(f"""
    v_lshlrev_b32 v7, 16, v7
    v_mul_f32 v40, {hx(LOG2E_HI)}, v7
    s_mov_b32 s26, {hx(LOG2E_HI)}
    v_fma_f32 v41, v7, s26, -v40
    v_mov_b32 v43, {hx(LOG2E_LO)}
    v_fmac_f32 v41, v7, v43
    v_exp_f32 v40, v40
    v_mul_f32 v41, {hx(LN2)}, v41
    v_lshlrev_b32 v8, 16, v8
    v_fmac_f32 v40, v40, v41
    v_cvt_pk_bf16_f32 v40, v40, v40
    v_lshlrev_b32 v7, 16, v40         ; dt
    v_lshlrev_b32 v9, 16, v9
    v_lshlrev_b32 v10, 16, v10
    v_lshlrev_b32 v11, 16, v11
    v_lshlrev_b32 v12, 16, v12
    v_lshlrev_b32 v13, 16, v13
    v_mul_f32 v16, v7, v8
    v_mul_f32 v17, v7, v9
    v_mul_f32 v16, {hx(LOG2E)}, v16
    v_mul_f32 v17, {hx(INV2PI)}, v17
    v_mul_f32 v10, v7, v10
    v_mul_f32 v11, v7, v11
    v_mul_f32 v18, v12, v10
    v_mul_f32 v19, v12, v11
    v_fma_f32 v18, -v13, v11, v18
    v_fmac_f32 v19, v13, v10
    ds_write_b128 v14, v[16:19]
    """)
    ACC = 60
    for i in range(12):
        a(f'v_mov_b32 v{ACC+i}, 0')
    a('s_waitcnt lgkmcnt(0)')
    a('ds_read_b128 v[16:19], v15')
    a('ds_read_b128 v[24:27], v15 offset:64')
    a('s_mov_b32 s27, 0')
    def split(H, L, R, t):
        a(f'v_cvt_pk_bf16_f32 v{H}, v{R}, v{R+1}')
        a(f'v_lshlrev_b32 v{t}, 16, v{H}')
        a(f'v_and_b32 v{t+1}, 0xffff0000, v{H}')
        a(f'v_pk_add_f32 v[{t}:{t+1}], v[{R}:{R+1}], v[{t}:{t+1}] neg_lo:[0,1] neg_hi:[0,1]')
        a(f'v_cvt_pk_bf16_f32 v{L}, v{t}, v{t+1}')
    a.label('K1_loop')
    for u in range(4):
        P = 16 + 8*(u & 1)
        a(f's_waitcnt lgkmcnt({1})')
        a(f"""
        v_pk_mul_f32 v[44:45], v[{P}:{P+1}], v[34:35] op_sel:[0,1] op_sel_hi:[1,1]
        v_pk_mul_f32 v[46:47], v[{P}:{P+1}], v[32:33] op_sel:[0,0] op_sel_hi:[1,0]
        v_pk_mul_f32 v[48:49], v[{P}:{P+1}], v[32:33] op_sel:[0,1] op_sel_hi:[1,1]
        v_pk_mul_f32 v[50:51], v[{P}:{P+1}], v[34:35] op_sel:[0,0] op_sel_hi:[1,0]
        v_fract_f32 v45, v45
        v_fract_f32 v47, v47
        v_fract_f32 v49, v49
        v_fract_f32 v51, v51
        v_exp_f32 v44, v44
        v_cos_f32 v52, v45
        v_sin_f32 v53, v45
        v_exp_f32 v46, v46
        v_cos_f32 v54, v47
        v_sin_f32 v55, v47
        v_pk_mul_f32 v[52:53], v[52:53], v[44:45] op_sel_hi:[1,0]
        v_exp_f32 v48, v48
        v_cos_f32 v56, v49
        v_sin_f32 v57, v49
        v_pk_mul_f32 v[54:55], v[54:55], v[46:47] op_sel_hi:[1,0]
        v_pk_mul_f32 v[20:21], v[{P+2}:{P+3}], v[52:53] op_sel:[0,0] op_sel_hi:[0,1] neg_hi:[1,0]
        v_exp_f32 v50, v50
        v_cos_f32 v58, v51
        v_sin_f32 v59, v51
        v_pk_fma_f32 v[20:21], v[{P+2}:{P+3}], v[52:53], v[20:21] op_sel:[1,1,0] op_sel_hi:[1,0,1] neg_lo:[1,0,0] neg_hi:[1,0,0]
        v_pk_mul_f32 v[56:57], v[56:57], v[48:49] op_sel_hi:[1,0]
        v_pk_mul_f32 v[58:59], v[58:59], v[50:51] op_sel_hi:[1,0]
        ds_read_b128 v[{P}:{P+3}], v15 offset:{128+64*u}
        """)
        split(96+u, 100+u, 54, 44)
        split(120+u, 124+u, 20, 46)
        split(104+u, 108+u, 56, 48)
        split(112+u, 116+u, 58, 50)
    a('s_add_u32 s27, s27, 1')
    a('s_cmp_lt_u32 s27, 2')
    a('v_add_u32 v15, 256, v15')
    for t in range(3):
        a(f'v_mfma_f32_16x16x32_bf16 v[{60+4*t}:{63+4*t}], v[{96+8*t}:{99+8*t}], v[120:123], v[{60+4*t}:{63+4*t}]')
    for t in range(3):
        a(f'v_mfma_f32_16x16x32_bf16 v[{60+4*t}:{63+4*t}], v[{96+8*t}:{99+8*t}], v[124:127], v[{60+4*t}:{63+4*t}]')
    for t in range(3):
        a(f'v_mfma_f32_16x16x32_bf16 v[{60+4*t}:{63+4*t}], v[{100+8*t}:{103+8*t}], v[120:123], v[{60+4*t}:{63+4*t}]')
    a('s_cbranch_scc1 K1_loop')
    stamp(SW, 2)
    a(f"""
    v_and_b32 v8, 63, v0
    v_bfe_u32 v9, v0, 6, 2
    v_lshlrev_b32 v8, 5, v8
    v_lshl_add_u32 v8, v9, 3, v8      ; s0 = 32a+8q
    v_cmp_gt_u32 vcc, 256, v8
    v_cvt_f32_u32 v9, v8
    v_lshrrev_b32 v11, 8, v0
    v_mul_u32_u24 v11, 12288, v11
    v_add_u32 v11, 4096, v11
    v_lshl_add_u32 v10, v8, 2, v11
    v_subrev_u32 v11, {4*(0x4380-256)}, v11
    """)
    for p in range(4):
        a(f'v_add_f32 v12, {hx(7.0-2*p)}, v9')
        a(f'v_add_f32 v13, {hx(6.0-2*p)}, v9')
        a('v_cvt_pk_bf16_f32 v12, v12, v13')
        a('v_lshrrev_b32 v13, 16, v12')
        a('v_and_b32 v12, 0xffff, v12')
        a('v_lshl_add_u32 v12, v12, 2, v11')
        a('v_lshl_add_u32 v13, v13, 2, v11')
        a(f'v_add_u32 v14, {4*(7-2*p)}, v10')
        a(f'v_add_u32 v16, {4*(6-2*p)}, v10')
        a(f'v_cndmask_b32 v{24+2*p}, v12, v14, vcc')
        a(f'v_cndmask_b32 v{25+2*p}, v13, v16, vcc')
    for rr in range(4):
        a(f'ds_write_b32 v36, v{60+rr} offset:{4*rr}')
    for rr in range(4):
        a(f'ds_write_b32 v{37+(rr>>1)}, v{64+rr} offset:{4*(rr&1)}')
    for rr in range(4):
        a(f'ds_write_b32 v39, v{68+rr} offset:{64*rr}')
    a("""
    s_lshl_b32 s26, s3, 12
    v_lshl_add_u32 v12, v0, 4, s26    ; d0*4096 + tid*16
    s_waitcnt lgkmcnt(0)
    s_barrier
    """)
    for kk in range(8):
        for w in range(4):
            a(f'ds_read_b32 v{32+4*kk+w}, v{24+kk} offset:{3072*w}')
    a('s_waitcnt lgkmcnt(0)')
    for kk in range(8):
        b = 32+4*kk
        a(f'v_add_f32 v{b}, v{b}, v{b+1}')
        a(f'v_add_f32 v{b+2}, v{b+2}, v{b+3}')
    for kk in range(8):
        b = 32+4*kk
        a(f'v_add_f32 v{b}, v{b}, v{b+2}')
    for p in range(4):
        k0, k1 = 32+8*p, 36+8*p
        a(f'v_cvt_pk_bf16_f32 v{64+p}, v{k0}, v{k1}')
        unpack(14, 15, 64+p)
        a(f'v_sub_f32 v{k0}, v{k0}, v14')
        a(f'v_sub_f32 v{k1}, v{k1}, v15')
        a(f'v_cvt_pk_bf16_f32 v{68+p}, v{k0}, v{k1}')
    a('global_store_dwordx4 v12, v[64:67], s[22:23]')
    a('global_store_dwordx4 v12, v[68:71], s[24:25]')
    stamp(SW, 3)
    a.label('K1_end')
    trace_end(0)
    a.label('K1_exit')
    a.end_kernel(name, (338,1,1), (512,1,1), 67584, 128)

def gen_k2():
    global SV
    SV = 128
    name = 'k2_kernel'
    CHB = 45568; KOFF = 33280; RED = 2 * CHB
    a.begin_kernel(name)
    a(f"""
    s_cmp_ge_u32 s2, 256
    s_cbranch_scc1 K2_exit
    s_load_dwordx2 s[4:5], s[0:1], {KA['ws']}
    s_load_dwordx2 s[6:7], s[0:1], {KA['Dsk']}
    """)
    trace_begin()
    a(f"""
    v_lshrrev_b32 v1, 6, v0            ; wave
    v_and_b32 v2, 63, v0               ; lane
    v_readfirstlane_b32 s3, v1
    s_lshl_b32 s16, s2, 1              ; d0
    s_lshr_b32 s17, s3, 1              ; ch
    s_and_b32 s18, s3, 1
    s_add_u32 s19, s16, s17
    s_mul_i32 s20, s17, {CHB}
    s_waitcnt lgkmcnt(0)
    """)
    ws_ptr(8, 4, 'UT'); ws_ptr(10, 4, 'XT'); ws_ptr(12, 4, 'KH'); ws_ptr(22, 4, 'HT')
    a(f"""
    s_mov_b32 s14, {4*MB}
    s_mov_b32 s15, 0x00020000
    s_lshl_b32 s24, s18, 21
    s_lshl_b32 s25, s19, 12
    s_add_u32 s24, s24, s25
    s_mul_i32 s25, s18, 6144
    s_add_u32 s25, s25, s20
    s_add_u32 s25, s25, {KOFF+512}
    v_lshlrev_b32 v3, 4, v2
    """)
    for q in range(4):
        a('s_mov_b32 m0, s25')
        a('s_nop 0')
        a('buffer_load_dwordx4 v3, s[12:15], s24 offen lds')
        if q < 3:
            a('s_add_u32 s24, s24, 1024')
            a('s_add_u32 s25, s25, 1536')
    a(f"""
    s_lshl_b32 s26, s16, 12
    v_lshl_add_u32 v4, v0, 4, s26
    v_max_u32 v5, 1, v0
    v_subrev_u32 v5, 1, v5
    v_lshl_add_u32 v5, v5, 4, s26
    global_load_dwordx4 v[8:11], v5, s[8:9]
    global_load_dwordx4 v[12:15], v4, s[8:9]
    v_add_u32 v4, 4096, v4
    v_add_u32 v5, 4096, v5
    global_load_dwordx4 v[24:27], v5, s[8:9]
    global_load_dwordx4 v[28:31], v4, s[8:9]
    v_and_b32 v6, 31, v2               ; i / j / col
    v_lshrrev_b32 v7, 5, v2            ; kg
    v_lshlrev_b32 v40, 6, v6
    v_lshl_add_u32 v40, v7, 3, v40     ; (32i+4kg)*2
    s_lshl_b32 s27, s18, 11
    v_add_u32 v122, s27, v40
    s_lshl_b32 s26, s19, 12
    v_add_u32 v121, s26, v122
    global_load_dwordx2 v[112:113], v121, s[10:11]
    global_load_dwordx2 v[114:115], v121, s[10:11] offset:16
    global_load_dwordx2 v[116:117], v121, s[10:11] offset:32
    global_load_dwordx2 v[118:119], v121, s[10:11] offset:48
    s_lshl_b32 s26, s19, 1
    v_mov_b32 v42, s26
    global_load_ushort v125, v42, s[6:7]
    v_mov_b32 v48, 0
    v_mov_b32 v49, 0
    v_mov_b32 v50, 0
    v_mov_b32 v51, 0
    v_lshrrev_b32 v45, 5, v0
    v_mul_u32_u24 v45, 1536, v45
    v_and_b32 v46, 31, v0
    v_lshl_add_u32 v45, v46, 4, v45
    ds_write_b128 v45, v[48:51] offset:{KOFF}
    v_add_u32 v45, {CHB}, v45
    ds_write_b128 v45, v[48:51] offset:{KOFF}
    v_bfe_u32 v45, v0, 2, 3
    v_mul_u32_u24 v45, 4160, v45
    v_and_b32 v46, 3, v0
    v_lshl_add_u32 v45, v46, 4, v45
    ds_write_b128 v45, v[48:51]
    ds_write_b128 v45, v[48:51] offset:{CHB}
    v_lshlrev_b32 v45, 4, v0
    v_add_u32 v45, 64, v45
    v_cmp_eq_u32 vcc, 0, v0
    """)
    for ch in range(2):
        E = 8 + 16*ch
        a(f's_waitcnt vmcnt({7 - 2*ch})')
        for i in range(4):
            a(f'v_cndmask_b32 v{E+i}, v{E+i}, 0, vcc')
        for i in range(7):
            a(f'v_alignbit_b32 v{52+i}, v{E+i+1}, v{E+i}, 16')
        for i in range(6):
            a(f'v_alignbit_b32 v{60+i}, v{E+i+2}, v{E+i+1}, 16')
        for i in range(6):
            a(f'v_mov_b32 v{66+i}, v{E+i+1}')
        src = {7: E+4, 5: 68, 3: E+2, 1: 66, 0: 52, 2: 60, 4: 54, 6: 62}
        if ch == 1:
            a(f'v_add_u32 v45, {CHB}, v45')
        for c in range(8):
            r = src[c]
            a(f'ds_write_b128 v45, v[{r}:{r+3}] offset:{4160*c}')
    a(f"""
    v_and_b32 v45, 7, v6
    v_mul_u32_u24 v45, 4160, v45
    v_lshrrev_b32 v46, 3, v6
    v_lshl_add_u32 v45, v46, 4, v45
    v_lshlrev_b32 v46, 4, v7
    v_sub_u32 v45, v45, v46
    v_add_u32 v45, 32, v45
    v_add_u32 v126, s20, v45           ; vA'
    v_mul_u32_u24 v46, 1536, v7
    v_lshl_add_u32 v46, v6, 4, v46
    v_add_u32 v46, {KOFF + 512 - 16*63}, v46
    v_add_u32 v127, s20, v46           ; vB
    """)
    ACC = [72, 88]
    for i in range(32):
        a(f'v_mov_b32 v{72+i}, 0')
    a('s_waitcnt vmcnt(0) lgkmcnt(0)')
    a('s_barrier')
    a('s_cmp_eq_u32 s18, 1')
    a('s_cbranch_scc1 K2_roleB')
    def emit_units(units):
        def loads(u, setb):
            out = []; regs = []
            r = 8 + 24*setb if True else 0
            n = 0
            for (d, sl, tiles) in u:
                ra = r + 4*n; n += 1
                out.append(f'ds_read_b128 v[{ra}:{ra+3}], v126 offset:{64*d + 32*(1-sl)}')
                bs = []
                for T in tiles:
                    for arr in range(2):
                        rb = r + 4*n; n += 1
                        out.append(f'ds_read_b128 v[{rb}:{rb+3}], v127 offset:{sl*3072 + T*512 + 16*(63-d) + arr*6144}')
                        bs.append((T, rb))
                regs.append((ra, bs))
            assert n <= 6
            return out, regs
        cur_l, cur_r = loads(units[0], 0)
        for l in cur_l: a(l)
        for i, u in enumerate(units):
            if i + 1 < len(units):
                nl, nr = loads(units[i+1], (i+1) & 1)
                for l in nl: a(l)
                a(f's_waitcnt lgkmcnt({len(nl)})')
            else:
                a('s_waitcnt lgkmcnt(0)')
            for (ra, bs) in cur_r:
                for (T, rb) in bs:
                    c = ACC[T]
                    a(f'v_mfma_f32_32x32x16_bf16 v[{c}:{c+15}], v[{ra}:{ra+3}], v[{rb}:{rb+3}], v[{c}:{c+15}]')
            if i + 1 < len(units):
                cur_r = nr
    emit_units([[(d, sl, (0, 1))] for d in range(24) for sl in range(2)])
    a('s_nop 15')
    a('s_nop 3')
    a(f'v_lshlrev_b32 v123, 4, v0')
    a(f'v_add_u32 v123, {RED}, v123')
    for r4 in range(4):
        a(f'ds_write_b128 v123, v[{88+4*r4}:{91+4*r4}] offset:{4096*r4}')
    a('s_waitcnt lgkmcnt(0)')
    a('s_barrier')
    for r4 in range(4):
        a(f'ds_read_b128 v[{8+4*r4}:{11+4*r4}], v123 offset:{4096*r4 + 1024}')
    a('s_branch K2_fin')
    a.label('K2_roleB')
    emit_units([[(d, sl, (0, 1))] for d in range(24, 32) for sl in range(2)] +
               [[(d, 0, (1,)), (d, 1, (1,))] for d in range(32, 64)])
    a('s_nop 15')
    a('s_nop 3')
    a(f'v_lshlrev_b32 v123, 4, v0')
    a(f'v_add_u32 v123, {RED}, v123')
    for r4 in range(4):
        a(f'ds_write_b128 v123, v[{72+4*r4}:{75+4*r4}] offset:{4096*r4}')
    a('s_waitcnt lgkmcnt(0)')
    a('s_barrier')
    a('v_subrev_u32 v123, 1024, v123')
    for r4 in range(4):
        a(f'ds_read_b128 v[{8+4*r4}:{11+4*r4}], v123 offset:{4096*r4}')
    for i in range(16):
        a(f'v_mov_b32 v{72+i}, v{88+i}')
    a.label('K2_fin')
    a(f'v_add_u32 v122, s20, v122')
    for rq in range(4):
        a(f'ds_read_b64 v[{24+2*rq}:{25+2*rq}], v122 offset:{7*4160 + 64 + 16*rq}')
    a('v_lshlrev_b32 v124, 16, v125')
    a('s_waitcnt lgkmcnt(0)')
    for i in range(8):
        a(f'v_pk_add_f32 v[{72+2*i}:{73+2*i}], v[{72+2*i}:{73+2*i}], v[{8+2*i}:{9+2*i}]')
    for i in range(8):
        y = 72 + 2*i
        a(f'v_cvt_pk_bf16_f32 v32, v{y}, v{y+1}')
        unpack(y, y+1, 32)
        unpack(34, 35, 24+i)
        a('v_pk_mul_f32 v[34:35], v[34:35], v[124:125] op_sel_hi:[1,0]')
        a('v_cvt_pk_bf16_f32 v33, v34, v35')
        unpack(34, 35, 33)
        a(f'v_pk_add_f32 v[{y}:{y+1}], v[{y}:{y+1}], v[34:35]')
        a(f'v_cvt_pk_bf16_f32 v32, v{y}, v{y+1}')
        unpack(y, y+1, 32)
        unpack(34, 35, 112+i)
        a(f'v_pk_add_f32 v[{y}:{y+1}], v[{y}:{y+1}], v[34:35]')
        a(f'v_cvt_pk_bf16_f32 v{104+i}, v{y}, v{y+1}')
    for rq in range(4):
        a(f'global_store_dwordx2 v121, v[{104+2*rq}:{105+2*rq}], s[22:23] offset:{16*rq}')
    trace_end(1)
    a.label('K2_exit')
    a.end_kernel(name, (256,1,1), (256,1,1), RED + 16384, 136)

GC1 = 2 * 0.7978845608028654 * LOG2E
GC2 = GC1 * 0.044715

def dma_lane_off(dst, lane, rs_sgpr_or_imm, t1, t2):
    a(f'v_lshrrev_b32 v{t1}, 5, v{lane}')
    a(f'v_lshlrev_b32 v{t1}, 3, v{t1}')
    a(f'v_bfe_u32 v{t2}, v{lane}, 3, 2')
    a(f'v_add_u32 v{t1}, v{t1}, v{t2}')
    a(f'v_mul_u32_u24 v{dst}, {rs_sgpr_or_imm}, v{t1}')
    a(f'v_bfe_u32 v{t1}, v{lane}, 1, 2')
    a(f'v_bfe_u32 v{t2}, v{lane}, 4, 2')
    a(f'v_xor_b32 v{t1}, v{t1}, v{t2}')
    a(f'v_lshl_add_u32 v{dst}, v{t1}, 5, v{dst}')
    a(f'v_and_b32 v{t1}, 1, v{lane}')
    a(f'v_lshl_add_u32 v{dst}, v{t1}, 4, v{dst}')

def tr_lane_base(dst, fdst, lane, t1, t2):
    a(f'v_lshrrev_b32 v{t1}, 5, v{lane}')
    a(f'v_lshlrev_b32 v{t1}, 4, v{t1}')
    a(f'v_bfe_u32 v{t2}, v{lane}, 2, 3')
    a(f'v_add_u32 v{t1}, v{t1}, v{t2}')
    a(f'v_lshlrev_b32 v{dst}, 7, v{t1}')
    a(f'v_and_b32 v{t1}, 3, v{lane}')
    a(f'v_lshl_add_u32 v{dst}, v{t1}, 3, v{dst}')
    a(f'v_lshrrev_b32 v{fdst}, 1, v{t2}')

def gelu_pairs(zs, CK, T):
    for i, z in enumerate(zs):
        t = T + 2*(i & 1)
        a(f'v_pk_mul_f32 v[{t}:{t+1}], v[{z}:{z+1}], v[{z}:{z+1}]')
        a(f'v_pk_fma_f32 v[{t}:{t+1}], v[{t}:{t+1}], v[{CK}:{CK+1}], v[{CK}:{CK+1}] op_sel:[0,1,0] op_sel_hi:[1,1,0]')
        a(f'v_pk_mul_f32 v[{t}:{t+1}], v[{t}:{t+1}], v[{z}:{z+1}]')
        a(f'v_exp_f32 v{t}, -v{t}')
        a(f'v_exp_f32 v{t+1}, -v{t+1}')
        a('s_nop 0')
        a(f'v_pk_add_f32 v[{t}:{t+1}], v[{t}:{t+1}], v[{CK+2}:{CK+3}]')
        a(f'v_rcp_f32 v{t}, v{t}')
        a(f'v_rcp_f32 v{t+1}, v{t+1}')
        a('s_nop 0')
        a(f'v_pk_mul_f32 v[{z}:{z+1}], v[{z}:{z+1}], v[{t}:{t+1}]')

def round_pair(z, t):
    a(f'v_cvt_pk_bf16_f32 v{t}, v{z}, v{z+1}')
    unpack(z, z+1, t)

def gemm64_main(X, WF, ACC, vW, nsteps=16, st0=0):
    def loads(st, sb):
        for cb in range(4):
            for h in range(2):
                r = WF + 16*sb + 4*cb + 2*h
                a(f'ds_read_b64_tr_b16 v[{r}:{r+1}], v{vW+cb} offset:{(st0+st)*4096 + h*1024}')
    loads(0, 0)
    for st in range(nsteps):
        if st + 1 < nsteps:
            loads(st+1, (st+1) & 1)
            a('s_waitcnt lgkmcnt(8)')
        else:
            a('s_waitcnt lgkmcnt(0)')
        for cb in range(4):
            w = WF + 16*(st & 1) + 4*cb
            c = ACC + 4*cb
            a(f'v_mfma_f32_16x16x32_bf16 v[{c}:{c+3}], v[{w}:{w+3}], v[{X+4*st}:{X+4*st+3}], v[{c}:{c+3}]')

def dma_tile(srd, vOff, sOff, sM0, step_bytes, n=16):
    for ii in range(n):
        a(f's_mov_b32 m0, s{sM0}')
        a(f's_add_u32 s{sM0}, s{sM0}, 4096')
        a(f'buffer_load_dwordx4 v{vOff}, s[{srd}:{srd+3}], s{sOff} offen lds')
        if ii < n-1:
            a(f's_add_u32 s{sOff}, s{sOff}, {step_bytes}')

def mk_srd(dst, lo, nbytes):
    a(f's_mov_b32 s{dst}, s{lo}')
    a(f's_mov_b32 s{dst+1}, s{lo+1}')
    a(f's_mov_b32 s{dst+2}, {nbytes}')
    a(f's_mov_b32 s{dst+3}, 0x00020000')

def gen_k3():
    global SV
    SV = 160
    name = 'k3_kernel'
    a.begin_kernel(name)
    a(f"""
    s_cmp_ge_u32 s2, 256
    s_cbranch_scc1 K3_exit
    s_load_dwordx2 s[4:5], s[0:1], {KA['ws']}
    s_load_dwordx2 s[6:7], s[0:1], {KA['w1']}
    """)
    trace_begin()
    a(f"""
    v_lshrrev_b32 v1, 6, v0
    v_and_b32 v2, 63, v0
    v_readfirstlane_b32 s3, v1         ; wave
    s_bfe_u32 s16, s2, 0x30003
    s_and_b32 s17, s2, 7
    s_lshl_b32 s17, s17, 2
    s_lshr_b32 s19, s2, 6
    s_add_u32 s17, s17, s19
    s_lshr_b32 s18, s3, 1
    s_lshl_b32 s18, s18, 4
    s_and_b32 s19, s3, 1
    s_lshl_b32 s19, s19, 2
    s_add_u32 s18, s18, s19            ; krow0 = 16(w>>1)+4(w&1)
    """)
    dma_lane_off(3, 2, 4096, 5, 6)
    dma_lane_off(4, 2, 1024, 5, 6)
    a('s_waitcnt lgkmcnt(0)')
    ws_ptr(8, 4, 'HT')
    a(f"""
    s_mov_b32 s10, {2*MB}
    s_mov_b32 s11, 0x00020000
    """)
    mk_srd(12, 6, 512*1024)
    a(f"""
    s_lshl_b32 s20, s18, 12
    s_lshl_b32 s21, s17, 7
    s_add_u32 s20, s20, s21
    s_lshl_b32 s22, s3, 10             ; m0 = w*1024
    """)
    dma_tile(8, 3, 20, 22, 32*4096)
    a(f"""
    s_lshl_b32 s20, s18, 10
    s_lshl_b32 s21, s16, 7
    s_add_u32 s20, s20, s21            ; W1 soffset
    """)
    dma_tile(12, 4, 20, 22, 32*1024)
    ws_ptr(24, 4, 'HR'); ws_ptr(26, 4, 'G1'); ws_ptr(28, 4, 'CS'); ws_ptr(30, 4, 'ST1')
    tr_lane_base(5, 6, 2, 7, 8)
    a('v_xor_b32 v7, s3, v6')
    a('v_lshl_add_u32 v9, v7, 5, v5')
    for cb in range(4):
        a(f'v_xor_b32 v7, {cb}, v6')
        a(f'v_lshl_add_u32 v{10+cb}, v7, 5, v5')
        a(f'v_add_u32 v{10+cb}, 0x10000, v{10+cb}')
    a(f"""
    v_and_b32 v14, 15, v2
    v_lshrrev_b32 v15, 4, v2
    s_lshl_b32 s21, s17, 6
    s_lshl_b32 s23, s3, 4
    s_add_u32 s21, s21, s23
    v_add_u32 v14, s21, v14            ; token
    v_lshlrev_b32 v16, 3, v14
    v_lshlrev_b32 v14, 10, v14
    v_lshl_add_u32 v17, v15, 4, v14
    s_lshl_b32 s21, s16, 8
    v_lshl_add_u32 v18, v15, 4, s21
    """)
    CSR = 20
    for cb in range(4):
        a(f'global_load_dwordx4 v[{CSR+4*cb}:{CSR+4*cb+3}], v18, s[28:29] offset:{64*cb}')
    X = 64
    WF = 128
    ACC = 36
    GR = 52; SU = 56; ONE = 60
    for i in range(24):
        a(f'v_mov_b32 v{36+i}, 0')
    for i in range(4):
        a(f'v_mov_b32 v{ONE+i}, 0x3f803f80')
    a('s_waitcnt vmcnt(20)')
    a('s_barrier')
    for st in range(16):
        for h in range(2):
            a(f'ds_read_b64_tr_b16 v[{X+4*st+2*h}:{X+4*st+2*h+1}], v9 offset:{st*4096 + h*1024}')
    for st in range(16):
        a(f's_waitcnt lgkmcnt({min(15, 30-2*st)})')
        x = X + 4*st
        a(f'v_mfma_f32_16x16x32_bf16 v[{GR}:{GR+3}], v[{x}:{x+3}], v[{x}:{x+3}], v[{GR}:{GR+3}]')
        a(f'v_mfma_f32_16x16x32_bf16 v[{SU}:{SU+3}], v[{ONE}:{ONE+3}], v[{x}:{x+3}], v[{SU}:{SU+3}]')
    for j in range(8):
        l = a.newlabel('K3_hr')
        a(f's_cmp_lg_u32 s16, {j}')
        a(f's_cbranch_scc1 {l}')
        for st in (2*j, 2*j+1):
            a(f'global_store_dwordx4 v17, v[{X+4*st}:{X+4*st+3}], s[24:25] offset:{64*st}')
        a.label(l)
    a('s_waitcnt vmcnt(2)')
    a('s_barrier')
    gemm64_main(X, WF, ACC, 10)
    a(f"""
    v_and_b32 v7, 3, v2
    v_cmp_eq_u32 vcc, 1, v7
    v_cmp_eq_u32 s[32:33], 2, v7
    v_cmp_eq_u32 s[34:35], 3, v7
    v_and_b32 v8, 15, v2
    v_lshrrev_b32 v7, 2, v8
    v_cndmask_b32 v{GR}, v{GR}, v{GR+1}, vcc
    v_cndmask_b32 v{GR}, v{GR}, v{GR+2}, s[32:33]
    v_cndmask_b32 v{GR}, v{GR}, v{GR+3}, s[34:35]
    v_lshl_add_u32 v7, v7, 4, v8
    v_lshlrev_b32 v7, 2, v7
    ds_bpermute_b32 v{GR}, v7, v{GR}
    v_mul_f32 v{SU}, {hx(1/512)}, v{SU}          ; mean1
    s_waitcnt lgkmcnt(0)
    v_mul_f32 v{GR}, {hx(1/512)}, v{GR}
    v_fma_f32 v{GR}, -v{SU}, v{SU}, v{GR}        ; var1
    v_max_f32 v{GR}, 0, v{GR}
    v_mov_b32 v{SU+1}, v{SU}
    v_mov_b32 v{GR+1}, v{GR}
    """)
    ln_scalars(SU, GR, 7)
    a(f"""
    v_sub_f32 v{SU+1}, v{SU+1}, v{SU}
    v_mul_f32 v{SU+1}, v{SU+1}, v{GR}            ; mean2
    v_mul_f32 v{GR+1}, v{GR+1}, v{GR}
    v_mul_f32 v{GR+1}, v{GR+1}, v{GR}            ; var2
    """)
    ln_scalars(SU+1, GR+1, 7)
    a(f"""
    v_mul_f32 v{ONE}, v{GR}, v{GR+1}             ; alpha
    v_fma_f32 v{ONE+1}, v{GR}, v{SU}, v{SU+1}
    v_mul_f32 v{ONE+1}, v{ONE+1}, v{GR+1}        ; beta
    v_mov_b32 v{SU+2}, v{SU}
    v_mov_b32 v{SU+3}, v{GR}
    v_mov_b32 v128, {hx(GC1)}
    v_mov_b32 v129, {hx(GC2)}
    v_mov_b32 v130, 1.0
    v_mov_b32 v131, 1.0
    s_cmp_lg_u32 s16, 0
    s_cbranch_scc1 K3_nost
    v_cmp_gt_u32 vcc, 16, v2
    s_and_saveexec_b64 s[32:33], vcc
    global_store_dwordx2 v16, v[{SU+2}:{SU+3}], s[30:31]
    s_mov_b64 exec, s[32:33]
    """)
    a.label('K3_nost')
    for p in range(8):
        c = ACC + 2*p; cs = CSR + 2*p
        a(f'v_pk_mul_f32 v[{cs}:{cs+1}], v[{cs}:{cs+1}], v[{ONE}:{ONE+1}] op_sel:[0,1] op_sel_hi:[1,1]')
        a(f'v_pk_fma_f32 v[{c}:{c+1}], v[{c}:{c+1}], v[{ONE}:{ONE+1}], v[{cs}:{cs+1}] op_sel_hi:[1,0,1] neg_lo:[0,0,1] neg_hi:[0,0,1]')
        round_pair(c, 132 + (p & 1))
    gelu_pairs([ACC+2*p for p in range(8)], 128, 132)
    O = 136
    for p in range(8):
        a(f'v_cvt_pk_bf16_f32 v{O+p}, v{ACC+2*p}, v{ACC+2*p+1}')
    a(f"""
    v_and_b32 v7, 1, v15
    v_lshlrev_b32 v7, 5, v7
    v_lshrrev_b32 v8, 1, v15
    v_lshl_add_u32 v7, v8, 4, v7
    s_lshl_b32 s21, s16, 7
    v_add3_u32 v7, v7, v14, s21
    """)
    for P in range(2):
        o = O + 4*P
        a(f'v_permlane16_swap_b32 v{o}, v{o+2}')
        a(f'v_permlane16_swap_b32 v{o+1}, v{o+3}')
    a('s_nop 1')
    for P in range(2):
        o = O + 4*P
        a(f'global_store_dwordx4 v7, v[{o}:{o+3}], s[26:27] offset:{64*P}')
    trace_end(2)
    a.label('K3_exit')
    a.end_kernel(name, (256,1,1), (256,1,1), 131072, 168)

def gen_k4():
    global SV
    SV = 160
    name = 'k4_kernel'
    a.begin_kernel(name)
    a(f"""
    s_cmp_ge_u32 s2, 256
    s_cbranch_scc1 K4_exit
    s_load_dwordx2 s[4:5], s[0:1], {KA['ws']}
    s_load_dwordx2 s[6:7], s[0:1], {KA['w2']}
    """)
    trace_begin()
    a(f"""
    v_lshrrev_b32 v1, 6, v0
    v_and_b32 v2, 63, v0
    v_readfirstlane_b32 s3, v1
    s_bfe_u32 s16, s2, 0x30003
    s_and_b32 s17, s2, 7
    s_lshl_b32 s17, s17, 2
    s_lshr_b32 s19, s2, 6
    s_add_u32 s17, s17, s19
    s_lshr_b32 s18, s3, 1
    s_lshl_b32 s18, s18, 4
    s_and_b32 s19, s3, 1
    s_lshl_b32 s19, s19, 2
    s_add_u32 s18, s18, s19
    """)
    dma_lane_off(4, 2, 1024, 5, 6)
    a(f"""
    v_and_b32 v14, 15, v2
    v_lshrrev_b32 v15, 4, v2
    s_lshl_b32 s21, s17, 6
    s_lshl_b32 s23, s3, 4
    s_add_u32 s21, s21, s23
    v_add_u32 v14, s21, v14            ; token
    v_lshlrev_b32 v16, 3, v14
    v_lshlrev_b32 v19, 6, v14
    v_lshlrev_b32 v14, 10, v14
    v_lshl_add_u32 v17, v15, 4, v14
    v_subrev_u32 v52, 1024, v17
    v_add_u32 v53, 1024, v17
    v_subrev_u32 v54, 2048, v17
    v_add_u32 v55, 2048, v17
    s_waitcnt lgkmcnt(0)
    """)
    mk_srd(12, 6, 512*1024)
    ws_ptr(8, 4, 'G1')
    a(f"""
    s_mov_b32 s10, {2*MB}
    s_mov_b32 s11, 0x00020000
    s_lshl_b32 s22, s3, 10
    s_lshl_b32 s20, s18, 10
    s_lshl_b32 s21, s16, 7
    s_add_u32 s20, s20, s21
    """)
    X = 64; WF = 128; ACC = 36
    dma_tile(12, 4, 20, 22, 32*1024)
    for st in range(16):
        a(f'buffer_load_dwordx4 v[{X+4*st}:{X+4*st+3}], v{52+(st>>2)}, s[8:11], 0 offen offset:{64*st}')
    ws_ptr(24, 4, 'HR'); ws_ptr(26, 4, 'X1'); ws_ptr(28, 4, 'ST3'); ws_ptr(30, 4, 'ST1')
    a(f"""
    s_lshl_b32 s21, s16, 7
    v_lshl_add_u32 v18, v15, 3, v14
    v_add_u32 v18, s21, v18
    """)
    HRr = 20
    for cb in range(4):
        a(f'global_load_dwordx2 v[{HRr+2*cb}:{HRr+2*cb+1}], v18, s[24:25] offset:{32*cb}')
    a('global_load_dwordx2 v[28:29], v16, s[30:31]')
    tr_lane_base(5, 6, 2, 7, 8)
    for cb in range(4):
        a(f'v_xor_b32 v7, {cb}, v6')
        a(f'v_lshl_add_u32 v{10+cb}, v7, 5, v5')
    for i in range(16):
        a(f'v_mov_b32 v{ACC+i}, 0')
    a('s_waitcnt vmcnt(5)')
    a('s_barrier')
    gemm64_main(X, WF, ACC, 10)
    a('s_waitcnt vmcnt(0)')
    a('v_mov_b32 v56, 0')
    a('v_mov_b32 v57, 0')
    a('v_mov_b32 v58, 0')
    a('v_mov_b32 v59, 0')
    a('s_nop 4')
    O = 136
    for p in range(8):
        c = ACC + 2*p
        round_pair(c, 132)
        unpack(30, 31, HRr + p)
        a('v_pk_add_f32 v[30:31], v[30:31], v[28:29] op_sel_hi:[1,0] neg_lo:[0,1] neg_hi:[0,1]')
        round_pair(30, 133)
        a('v_pk_mul_f32 v[30:31], v[30:31], v[28:29] op_sel:[0,1] op_sel_hi:[1,1]')
        round_pair(30, 133)
        a(f'v_pk_add_f32 v[{c}:{c+1}], v[{c}:{c+1}], v[30:31]')
        a(f'v_cvt_pk_bf16_f32 v{O+p}, v{c}, v{c+1}')
        unpack(c, c+1, O+p)
        a(f'v_pk_add_f32 v[56:57], v[56:57], v[{c}:{c+1}]')
        a(f'v_pk_fma_f32 v[58:59], v[{c}:{c+1}], v[{c}:{c+1}], v[58:59]')
    a(f"""
    v_add_f32 v56, v56, v57
    v_add_f32 v57, v58, v59
    v_and_b32 v7, 1, v15
    v_lshlrev_b32 v7, 5, v7
    v_lshrrev_b32 v8, 1, v15
    v_lshl_add_u32 v7, v8, 4, v7
    s_lshl_b32 s21, s16, 7
    v_add3_u32 v7, v7, v14, s21
    v_mov_b32 v58, v56
    v_mov_b32 v59, v57
    """)
    for P in range(2):
        o = O + 4*P
        a(f'v_permlane16_swap_b32 v{o}, v{o+2}')
        a(f'v_permlane16_swap_b32 v{o+1}, v{o+3}')
    a('v_permlane16_swap_b32 v56, v58')
    a('v_permlane16_swap_b32 v57, v59')
    for P in range(2):
        o = O + 4*P
        a(f'global_store_dwordx4 v7, v[{o}:{o+3}], s[26:27] offset:{64*P}')
    a(f"""
    v_pk_add_f32 v[56:57], v[56:57], v[58:59]
    s_nop 0
    v_mov_b32 v58, v56
    v_mov_b32 v59, v57
    s_nop 1
    v_permlane32_swap_b32 v56, v58
    v_permlane32_swap_b32 v57, v59
    s_nop 1
    v_pk_add_f32 v[56:57], v[56:57], v[58:59]
    s_lshl_b32 s21, s16, 3
    v_add_u32 v19, s21, v19
    v_cmp_gt_u32 vcc, 16, v2
    s_and_saveexec_b64 s[32:33], vcc
    global_store_dwordx2 v19, v[56:57], s[28:29]
    s_mov_b64 exec, s[32:33]
    """)
    trace_end(3)
    a.label('K4_exit')
    a.end_kernel(name, (256,1,1), (256,1,1), 65536, 168)

def gen_k5():
    global SV
    SV = 16
    name = 'k5_kernel'
    a.begin_kernel(name)
    a(f"""
    s_cmp_ge_u32 s2, 256
    s_cbranch_scc1 K5_exit
    s_load_dwordx2 s[4:5], s[0:1], {KA['ws']}
    s_load_dwordx2 s[6:7], s[0:1], {KA['w3']}
    """)
    trace_begin()
    a(f"""
    v_lshrrev_b32 v1, 6, v0
    v_and_b32 v2, 63, v0
    v_readfirstlane_b32 s3, v1
    s_and_b32 s16, s2, 1
    s_lshl_b32 s16, s16, 3
    s_bfe_u32 s19, s2, 0x30003
    s_add_u32 s16, s16, s19
    s_bfe_u32 s17, s2, 0x20001
    s_lshl_b32 s17, s17, 2
    s_lshr_b32 s19, s2, 6
    s_add_u32 s17, s17, s19
    """)
    X = 16; ACC = 144; WF = 200
    for j in range(7):
        a(f'v_add_u32 v3, {64*j}, v2')
        a('v_mul_u32_u24 v4, 4682, v3')
        a('v_lshrrev_b32 v4, 16, v4')
        a('v_mul_u32_u24 v5, 14, v4')
        a('v_sub_u32 v5, v3, v5')
        a('v_and_b32 v6, 0x13, v4')
        a('v_bfe_u32 v7, v4, 2, 1')
        a('v_lshl_or_b32 v6, v7, 3, v6')
        a('v_bfe_u32 v7, v4, 3, 1')
        a('v_lshl_or_b32 v6, v7, 2, v6')
        a('v_mul_u32_u24 v6, 3584, v6')
        a(f'v_lshl_add_u32 v{WF+j}, v5, 4, v6')
    a(f"""
    v_and_b32 v14, 15, v2
    v_lshrrev_b32 v15, 4, v2
    s_lshl_b32 s21, s17, 7
    s_lshl_b32 s23, s3, 5
    s_add_u32 s21, s21, s23
    v_add_u32 v14, s21, v14
    v_lshlrev_b32 v13, 6, v14
    v_lshlrev_b32 v12, 10, v14
    v_lshl_add_u32 v12, v15, 4, v12
    v_add_u32 v11, 0x4000, v12         ; tt=1
    s_waitcnt lgkmcnt(0)
    """)
    mk_srd(12, 6, 512*3584)
    ws_ptr(8, 4, 'X1'); ws_ptr(24, 4, 'ST3'); ws_ptr(26, 4, 'HH'); ws_ptr(28, 4, 'CS', 2048)
    for tt in range(2):
        for q in range(4):
            r = ACC + 16*tt + 4*q
            a(f'global_load_dwordx4 v[{r}:{r+3}], v13, s[24:25] offset:{1024*tt + 16*q}')
    a(f"""
    s_mul_i32 s20, s3, {32*3584}
    s_mul_i32 s21, s16, 224
    s_add_u32 s20, s20, s21
    s_mul_i32 s22, s3, 7168
    """)
    for q in range(4):
        for j in range(7):
            a('s_mov_b32 m0, s22')
            a('s_add_u32 s22, s22, 1024')
            a(f'buffer_load_dwordx4 v{WF+j}, s[12:15], s20 offen lds')
        if q < 3:
            a(f's_add_u32 s20, s20, {4*32*3584}')
            a(f's_add_u32 s22, s22, {3*7168}')
        for st in range(4*q, 4*q+4):
            for tt in range(2):
                r = X + 64*tt + 4*st
                a(f'global_load_dwordx4 v[{r}:{r+3}], v{12-tt}, s[8:9] offset:{64*st}')
    a(f"""
    v_lshrrev_b32 v3, 5, v2
    v_lshlrev_b32 v3, 4, v3
    v_bfe_u32 v4, v2, 2, 3
    v_add_u32 v3, v3, v4
    v_mul_u32_u24 v3, 224, v3
    v_and_b32 v4, 3, v2
    v_lshl_add_u32 v9, v4, 3, v3
    v_add_u32 v10, {8*7168}, v9
    s_waitcnt vmcnt(60)
    """)
    for tt in range(2):
        b = ACC + 16*tt
        for i in (8, 4, 2):
            for j in range(0, i, 2):
                a(f'v_pk_add_f32 v[{b+j}:{b+j+1}], v[{b+j}:{b+j+1}], v[{b+j+i}:{b+j+i+1}]')
        a(f'v_mul_f32 v{b}, {hx(1/512)}, v{b}')
        a(f'v_mul_f32 v{b+1}, {hx(1/512)}, v{b+1}')
        a(f'v_fma_f32 v{b+1}, -v{b}, v{b}, v{b+1}')
        a(f'v_max_f32 v{b+1}, 0, v{b+1}')
        ln_scalars(b, b+1, 3)
        a(f'v_mov_b32 v{4+2*tt}, v{b+1}')
        a(f'v_mul_f32 v{5+2*tt}, v{b}, v{b+1}')
    for i in range(56):
        a(f'v_mov_b32 v{ACC+i}, 0')
    def loads(st, sb):
        for cb in range(7):
            for h in range(2):
                r = WF + 28*sb + 4*cb + 2*h
                a(f'ds_read_b64_tr_b16 v[{r}:{r+1}], v{9 + (st >> 3)} offset:{(st & 7)*7168 + h*1792 + 32*cb}')
    for q in range(4):
        a(f's_waitcnt vmcnt({15*(3-q)})')
        a('s_barrier')
        for st in range(4*q, 4*q+4):
            if st % 4 == 0:
                loads(st, st & 1)
            if st % 4 != 3:
                loads(st+1, (st+1) & 1)
                a('s_waitcnt lgkmcnt(14)')
            else:
                a('s_waitcnt lgkmcnt(0)')
            for cb in range(7):
                w = WF + 28*(st & 1) + 4*cb
                for tt in range(2):
                    c = ACC + 28*tt + 4*cb
                    x = X + 64*tt + 4*st
                    a(f'v_mfma_f32_16x16x32_bf16 v[{c}:{c+3}], v[{w}:{w+3}], v[{x}:{x+3}], v[{c}:{c+3}]')
    CSR = 16
    a(f"""
    s_mul_i32 s21, s16, 448
    v_lshl_add_u32 v8, v15, 4, s21
    """)
    for cb in range(7):
        a(f'global_load_dwordx4 v[{CSR+4*cb}:{CSR+4*cb+3}], v8, s[28:29] offset:{64*cb}')
    a(f"""
    v_mov_b32 v72, {hx(GC1)}
    v_mov_b32 v73, {hx(GC2)}
    v_mov_b32 v74, 1.0
    v_mov_b32 v75, 1.0
    v_mul_u32_u24 v8, 3584, v14
    s_mul_i32 s21, s16, 224
    v_add_u32 v8, s21, v8              ; token*3584 + n0*2
    v_and_b32 v3, 1, v15
    v_lshrrev_b32 v13, 1, v15
    v_lshlrev_b32 v13, 4, v13          ; (g>>1)*16 bytes
    v_lshl_add_u32 v12, v3, 5, v13
    v_add_u32 v12, v12, v8
    v_add_u32 v11, {16*3584}, v12      ; tt1
    v_mul_u32_u24 v3, {16*3584}, v3
    v_add3_u32 v10, v3, v13, v8
    s_waitcnt vmcnt(0)
    """)
    O = 80
    for tt in range(2):
        zs = []
        for p in range(14):
            c = ACC + 28*tt + 2*p; cs = CSR + 2*p; t = 44 + 2*(p & 1)
            a(f'v_pk_mul_f32 v[{t}:{t+1}], v[{cs}:{cs+1}], v[{4+2*tt}:{5+2*tt}] op_sel:[0,1] op_sel_hi:[1,1]')
            a(f'v_pk_fma_f32 v[{c}:{c+1}], v[{c}:{c+1}], v[{4+2*tt}:{5+2*tt}], v[{t}:{t+1}] op_sel_hi:[1,0,1] neg_lo:[0,0,1] neg_hi:[0,0,1]')
            round_pair(c, 48 + (p & 1))
            zs.append(c)
        gelu_pairs(zs, 72, 76)
        for p in range(14):
            d = O + 16*tt + p if p < 12 else 112 + 2*tt + (p - 12)
            a(f'v_cvt_pk_bf16_f32 v{d}, v{zs[p]}, v{zs[p]+1}')
        a('s_nop 1')
        for P in range(3):
            o = O + 16*tt + 4*P
            a(f'v_permlane16_swap_b32 v{o}, v{o+2}')
            a(f'v_permlane16_swap_b32 v{o+1}, v{o+3}')
        a('s_nop 1')
        for P in range(3):
            o = O + 16*tt + 4*P
            a(f'global_store_dwordx4 v{12-tt}, v[{o}:{o+3}], s[26:27] offset:{64*P}')
    a('v_permlane16_swap_b32 v112, v114')
    a('v_permlane16_swap_b32 v113, v115')
    a('s_nop 1')
    a('global_store_dwordx4 v10, v[112:115], s[26:27] offset:192')
    trace_end(4)
    a.label('K5_exit')
    a.end_kernel(name, (256,1,1), (256,1,1), 114688, 256)

def gen_k6():
    global SV
    SV = 232
    name = 'k6_kernel'
    a.begin_kernel(name)
    a(f"""
    s_cmp_ge_u32 s2, 256
    s_cbranch_scc1 K6_exit
    s_load_dwordx2 s[4:5], s[0:1], {KA['ws']}
    s_load_dwordx2 s[6:7], s[0:1], {KA['w4']}
    s_load_dwordx2 s[26:27], s[0:1], {KA['out']}
    """)
    trace_begin()
    a(f"""
    v_lshrrev_b32 v1, 6, v0
    v_and_b32 v2, 63, v0
    v_readfirstlane_b32 s3, v1
    s_bfe_u32 s16, s2, 0x30003
    s_and_b32 s17, s2, 7
    s_lshl_b32 s17, s17, 2
    s_lshr_b32 s19, s2, 6
    s_add_u32 s17, s17, s19
    s_lshr_b32 s18, s3, 1
    s_lshl_b32 s18, s18, 4
    s_and_b32 s19, s3, 1
    s_lshl_b32 s19, s19, 2
    s_add_u32 s18, s18, s19
    """)
    dma_lane_off(4, 2, 1024, 5, 6)
    a(f"""
    v_and_b32 v14, 15, v2
    v_lshrrev_b32 v15, 4, v2
    s_lshl_b32 s21, s17, 6
    s_lshl_b32 s23, s3, 4
    s_add_u32 s21, s21, s23
    v_add_u32 v14, s21, v14            ; token
    v_mul_u32_u24 v17, 3584, v14
    v_lshl_add_u32 v17, v15, 4, v17
    v_lshlrev_b32 v14, 10, v14
    s_lshl_b32 s21, s16, 7
    v_lshl_add_u32 v18, v15, 3, v14
    v_add_u32 v18, s21, v18
    s_waitcnt lgkmcnt(0)
    """)
    mk_srd(12, 6, 1792*1024)
    ws_ptr(8, 4, 'HH'); ws_ptr(24, 4, 'HR'); ws_ptr(28, 4, 'X1')
    for cb in range(4):
        a(f'global_load_dwordx2 v[{20+2*cb}:{21+2*cb}], v18, s[24:25] offset:{32*cb}')
    for cb in range(4):
        a(f'global_load_dwordx2 v[{28+2*cb}:{29+2*cb}], v18, s[28:29] offset:{32*cb}')
    a(f"""
    s_lshl_b32 s22, s3, 10
    s_lshl_b32 s20, s18, 10
    s_lshl_b32 s21, s16, 7
    s_add_u32 s20, s20, s21
    """)
    X = 64; WF = 192; ACC = 36
    def issue(c):
        slot = c & 3
        a(f's_lshl_b32 s22, s3, 10')
        if slot:
            a(f's_add_u32 s22, s22, {slot*32768}')
        for i in range(8):
            a('s_mov_b32 m0, s22')
            a('s_add_u32 s22, s22, 4096')
            a('buffer_load_dwordx4 v4, s[12:15], s20 offen lds')
            a(f's_add_u32 s20, s20, {32*1024}')
        for i in range(8):
            r = X + 32*slot + 4*i
            a(f'global_load_dwordx4 v[{r}:{r+3}], v17, s[8:9] offset:{512*c + 64*i}')
    for c in range(4):
        issue(c)
    tr_lane_base(5, 6, 2, 7, 8)
    for cb in range(4):
        a(f'v_xor_b32 v7, {cb}, v6')
        a(f'v_lshl_add_u32 v{52+cb}, v7, 5, v5')
        a(f'v_add_u32 v{56+cb}, 0x10000, v{52+cb}')
    for i in range(16):
        a(f'v_mov_b32 v{ACC+i}, 0')
    for c in range(7):
        slot = c & 3
        a(f's_waitcnt vmcnt({16*(min(7, c+4) - (c+1))})')
        a('s_barrier')
        gemm64_main(X + 32*slot, WF, ACC, 52 + 4*(slot >> 1), nsteps=8, st0=8*(slot & 1))
        if c + 4 < 7:
            a('s_barrier')
            issue(c + 4)
    a('s_nop 7')
    O = 224
    for p in range(8):
        c = ACC + 2*p
        round_pair(c, 60)
        unpack(62, 63, 28 + p)
        a(f'v_pk_add_f32 v[{c}:{c+1}], v[{c}:{c+1}], v[62:63]')
        round_pair(c, 60)
        unpack(62, 63, 20 + p)
        a(f'v_pk_add_f32 v[{c}:{c+1}], v[{c}:{c+1}], v[62:63]')
        a(f'v_cvt_pk_bf16_f32 v{O+p}, v{c}, v{c+1}')
    a(f"""
    v_and_b32 v7, 1, v15
    v_lshlrev_b32 v7, 5, v7
    v_lshrrev_b32 v8, 1, v15
    v_lshl_add_u32 v7, v8, 4, v7
    s_lshl_b32 s21, s16, 7
    v_add3_u32 v7, v7, v14, s21
    """)
    for P in range(2):
        o = O + 4*P
        a(f'v_permlane16_swap_b32 v{o}, v{o+2}')
        a(f'v_permlane16_swap_b32 v{o+1}, v{o+3}')
    a('s_nop 1')
    for P in range(2):
        o = O + 4*P
        a(f'global_store_dwordx4 v7, v[{o}:{o+3}], s[26:27] offset:{64*P}')
    trace_end(5)
    a.label('K6_exit')
    a.end_kernel(name, (256,1,1), (256,1,1), 131072, 240)

def main():
    gen_k1()
    gen_k2()
    gen_k3()
    gen_k4()
    gen_k5()
    gen_k6()

if __name__ == '__main__':
    out = sys.argv[1] if len(sys.argv) > 1 else 'k.s'
    if 'stamps' in sys.argv[2:]:
        STAMPS = True
    if 'trace' in sys.argv[2:]:
        TRACE = True
    main()
    open(out, 'w').write(a.text(HEADER))
```

```python
import sys, struct
from asmlib import *
from gen_ws import WS, MB

KA = dict(x=0, Are=8, Aim=16, Bre=24, Bim=32, Cre=40, Cim=48, ldt=56, Dsk=64, Bx=72, w1=80, w2=88, w3=96, w4=104, out=112, dbg=120, ws=128)

def f2u(f):
    return struct.unpack('<I', struct.pack('<f', f))[0]
def hx(f):
    return hex(f2u(f))

LOG2E = 1.4426950408889634
LOG2E_HI = struct.unpack('<f', struct.pack('<f', LOG2E))[0]
LOG2E_LO = LOG2E - LOG2E_HI
LN2 = 0.6931471805599453
INV2PI = 0.15915494309189535

a = Asm()

def ws_ptr(dst, wsreg, name, extra=0):
    off = WS[name] + extra
    a(f's_add_u32 s{dst}, s{wsreg}, {hex(off)}')
    a(f's_addc_u32 s{dst+1}, s{wsreg+1}, 0')

def row16_allreduce(v):
    for sh in (8, 4, 2, 1):
        a('s_nop 1')
        a(f'v_add_f32_dpp v{v}, v{v}, v{v} row_ror:{sh} row_mask:0xf bank_mask:0xf')

def unpack(dlo, dhi, src):
    a(f'v_lshlrev_b32 v{dlo}, 16, v{src}')
    a(f'v_and_b32 v{dhi}, 0xffff0000, v{src}')

STAMPS = False
PREFETCH = True
SV = 124
def stamp_init():
    if not STAMPS: return
    a(f's_load_dwordx2 s[90:91], s[0:1], {KA["dbg"]}')
def stamp(wg_list, slot):
    if not STAMPS: return
    l = a.newlabel('STP')
    a('s_memtime s[92:93]')
    a('s_waitcnt lgkmcnt(0)')
    a('v_readfirstlane_b32 s95, v0')
    a('s_nop 3')
    a('s_cmp_lg_u32 s95, 0')
    a(f's_cbranch_scc1 {l}')
    for i, wg in enumerate(wg_list):
        l2 = a.newlabel('STQ')
        a(f's_cmp_lg_u32 s2, {wg}')
        a(f's_cbranch_scc1 {l2}')
        a(f'v_mov_b32 v{SV+1}, s92')
        a(f'v_mov_b32 v{SV}, {(i*16+slot)*4}')
        a(f'global_store_dword v{SV}, v{SV+1}, s[90:91]')
        a.label(l2)
    a.label(l)

TRACE = False
def trace_begin():
    if not TRACE: return
    a('s_memrealtime s[96:97]')
    a('s_getreg_b32 s98, hwreg(HW_REG_HW_ID)')
    a('s_getreg_b32 s99, hwreg(HW_REG_XCC_ID)')
def trace_end(kidx):
    if not TRACE: return
    l = a.newlabel('TRC')
    a('s_mov_b64 exec, -1')
    a('s_memrealtime s[100:101]')
    a('v_readfirstlane_b32 s95, v0')
    a('s_waitcnt lgkmcnt(0)')
    a('s_cmp_lg_u32 s95, 0')
    a(f's_cbranch_scc1 {l}')
    a(f'v_mov_b32 v{SV}, s96')
    a(f'v_mov_b32 v{SV+1}, s100')
    a(f'v_mov_b32 v{SV+2}, s98')
    a(f'v_mov_b32 v{SV+3}, s99')
    a('s_lshl_b32 s95, s2, 4')
    a(f's_add_u32 s95, s95, {hex(32*MB + kidx*65536)}')
    a(f'v_mov_b32 v{SV+4}, s95')
    a(f'global_store_dwordx4 v{SV+4}, v[{SV}:{SV+3}], s[4:5]')
    a.label(l)

def l2_prefetch(sptr, total_bytes, vtmp, vdst, stmp):
    per = total_bytes // 32
    assert per % 4096 == 0
    a(f's_lshr_b32 s{stmp}, s2, 3')
    a(f's_mul_i32 s{stmp}, s{stmp}, {per}')
    a(f'v_lshl_add_u32 v{vtmp}, v0, 4, s{stmp}')
    for i in range(per // 4096):
        a(f'global_load_dwordx4 v[{vdst}:{vdst+3}], v{vtmp}, s[{sptr}:{sptr+1}]')
        if i < per // 4096 - 1:
            a(f's_add_u32 s{sptr}, s{sptr}, 4096')
            a(f's_addc_u32 s{sptr+1}, s{sptr+1}, 0')

def ln_scalars(S, Q, T):
    a(f'v_cvt_pk_bf16_f32 v{T}, v{S}, v{Q}')
    unpack(S, Q, T)
    a(f'v_add_f32 v{Q}, {hx(1e-5)}, v{Q}')
    a(f'v_cvt_pk_bf16_f32 v{T}, v{Q}, v{Q}')
    a(f'v_lshlrev_b32 v{Q}, 16, v{T}')
    a(f'v_sqrt_f32 v{Q}, v{Q}')
    a('s_nop 0')
    a(f'v_cvt_pk_bf16_f32 v{T}, v{Q}, v{Q}')
    a(f'v_lshlrev_b32 v{Q}, 16, v{T}')
    a(f'v_rcp_f32 v{Q}, v{Q}')
    a('s_nop 0')

def gen_k1():
    global SV
    SV = 88
    name = 'k1_kernel'
    SW = [0, 64, 82]
    a.begin_kernel(name)
    a(f"""
    s_cmp_ge_u32 s2, 338
    s_cbranch_scc1 K1_exit
    s_load_dwordx2 s[4:5], s[0:1], {KA['ws']}
    """)
    stamp_init(); stamp(SW, 0); trace_begin()
    a(f"""
    s_cmp_ge_u32 s2, 82
    s_cbranch_scc1 K1_kgen
    s_cmp_ge_u32 s2, 64
    s_cbranch_scc1 K1_colsum
    s_load_dwordx2 s[6:7], s[0:1], {KA['x']}
    v_lshrrev_b32 v1, 4, v0
    v_and_b32 v2, 15, v0             ; c
    s_lshl_b32 s3, s2, 5             ; t0
    v_add_u32 v3, s3, v1             ; token
    v_lshlrev_b32 v3, 10, v3
    v_lshl_add_u32 v3, v2, 4, v3
    v_mul_u32_u24 v4, 1056, v1
    v_lshl_add_u32 v4, v2, 4, v4
    s_waitcnt lgkmcnt(0)
    """)
    X = 8
    F = 24
    XOFF = 32 * 1056
    for i in range(4):
        a(f'global_load_dwordx4 v[{X+4*i}:{X+4*i+3}], v3, s[6:7] offset:{256*i}')
    ws_ptr(8, 4, 'UT'); ws_ptr(10, 4, 'XT')
    a("""
    v_bfe_u32 v5, v0, 2, 2
    v_mul_u32_u24 v5, 1056, v5
    v_lshrrev_b32 v6, 4, v0          ; 4w+g
    v_lshlrev_b32 v6, 5, v6
    v_and_b32 v7, 3, v0
    v_lshlrev_b32 v7, 3, v7
    v_add3_u32 v5, v5, v6, v7
    v_lshlrev_b32 v6, 12, v0
    s_lshl_b32 s3, s2, 6             ; t0*2
    v_add_u32 v6, s3, v6
    s_waitcnt vmcnt(0)
    """)
    stamp(SW, 1)
    for i in range(4):
        a(f'ds_write_b128 v4, v[{X+4*i}:{X+4*i+3}] offset:{XOFF+256*i}')
    for i in range(16):
        unpack(F+2*i, F+2*i+1, X+i)
    S = 56; Q = 58; T = 60; D = 62
    a(f'v_pk_add_f32 v[{S}:{S+1}], v[{F}:{F+1}], v[{F+2}:{F+3}]')
    for i in range(2, 16):
        a(f'v_pk_add_f32 v[{S}:{S+1}], v[{S}:{S+1}], v[{F+2*i}:{F+2*i+1}]')
    a(f'v_add_f32 v{S}, v{S}, v{S+1}')
    row16_allreduce(S)
    a(f'v_mul_f32 v{S}, {hx(1/512)}, v{S}')
    a(f'v_mov_b32 v{Q}, 0')
    a(f'v_mov_b32 v{Q+1}, 0')
    for i in range(16):
        a(f'v_pk_add_f32 v[{D+2*(i&1)}:{D+2*(i&1)+1}], v[{F+2*i}:{F+2*i+1}], v[{S}:{S+1}] op_sel_hi:[1,0] neg_lo:[0,1] neg_hi:[0,1]')
        a(f'v_pk_fma_f32 v[{Q}:{Q+1}], v[{D+2*(i&1)}:{D+2*(i&1)+1}], v[{D+2*(i&1)}:{D+2*(i&1)+1}], v[{Q}:{Q+1}]')
    a(f'v_add_f32 v{Q}, v{Q}, v{Q+1}')
    row16_allreduce(Q)
    a(f'v_mul_f32 v{Q}, {hx(1/512)}, v{Q}')
    ln_scalars(S, Q, T)
    for i in range(16):
        f0 = F+2*i
        a(f'v_pk_add_f32 v[{f0}:{f0+1}], v[{f0}:{f0+1}], v[{S}:{S+1}] op_sel_hi:[1,0] neg_lo:[0,1] neg_hi:[0,1]')
        a(f'v_cvt_pk_bf16_f32 v{T+(i&1)}, v{f0}, v{f0+1}')
        unpack(f0, f0+1, T+(i&1))
        a(f'v_pk_mul_f32 v[{f0}:{f0+1}], v[{f0}:{f0+1}], v[{Q}:{Q+1}] op_sel_hi:[1,0]')
        a(f'v_cvt_pk_bf16_f32 v{X+i}, v{f0}, v{f0+1}')
    for i in range(4):
        a(f'ds_write_b128 v4, v[{X+4*i}:{X+4*i+3}] offset:{256*i}')
    a('s_waitcnt lgkmcnt(0)')
    a('s_barrier')
    for arr in range(2):
        for tg in range(8):
            r = 24 + 16*arr + 2*tg
            a(f'ds_read_b64_tr_b16 v[{r}:{r+1}], v5 offset:{XOFF*arr + 4224*tg}')
    for arr in range(2):
        a(f's_waitcnt lgkmcnt({8 - 8*arr})')
        for j in range(4):
            r = 24 + 16*arr + 4*j
            a(f'global_store_dwordx4 v6, v[{r}:{r+3}], s[{8+2*arr}:{9+2*arr}] offset:{16*j}')
    stamp(SW, 2)
    a('s_branch K1_end')

    a.label('K1_colsum')
    a(f"""
    s_sub_u32 s3, s2, 64             ; 0..17 : 0..3 -> w1 ; 4..17 -> w3
    s_load_dwordx2 s[6:7], s[0:1], {KA['w1']}
    s_load_dwordx2 s[8:9], s[0:1], {KA['w3']}
    s_movk_i32 s10, 1024
    s_lshl_b32 s11, s3, 8
    s_cmp_lt_u32 s3, 4
    s_waitcnt lgkmcnt(0)
    s_cbranch_scc1 K1_cs_w1
    s_mov_b32 s6, s8
    s_mov_b32 s7, s9
    s_movk_i32 s10, 3584
    s_sub_u32 s11, s11, 1024
    """)
    a.label('K1_cs_w1')
    a("""
    v_lshrrev_b32 v1, 4, v0          ; rg 0..31
    v_and_b32 v2, 15, v0
    v_mul_lo_u32 v3, v1, s10
    v_lshl_add_u32 v3, v2, 4, v3
    v_add_u32 v3, s11, v3
    s_lshl_b32 s12, s10, 5           ; 32 rows
    """)
    for i in range(16):
        a(f'global_load_dwordx4 v[{8+4*i}:{11+4*i}], v3, s[6:7]')
        if i < 15:
            a('s_add_u32 s6, s6, s12')
            a('s_addc_u32 s7, s7, 0')
    AC = 76
    for j in range(8):
        a(f'v_mov_b32 v{AC+j}, 0')
    for i in range(16):
        a(f's_waitcnt vmcnt({15-i})')
        for j in range(4):
            unpack(84+2*(j&1), 85+2*(j&1), 8+4*i+j)
            a(f'v_pk_add_f32 v[{AC+2*j}:{AC+2*j+1}], v[{AC+2*j}:{AC+2*j+1}], v[{84+2*(j&1)}:{85+2*(j&1)}]')
    a(f"""
    v_lshlrev_b32 v4, 5, v0          ; rg*512 + c*32
    ds_write_b128 v4, v[{AC}:{AC+3}]
    ds_write_b128 v4, v[{AC+4}:{AC+7}] offset:16
    v_lshlrev_b32 v5, 2, v0
    s_waitcnt lgkmcnt(0)
    s_barrier
    v_cmp_gt_u32 vcc, 128, v0
    s_and_saveexec_b64 s[14:15], vcc
    s_cbranch_execz K1_end
    """)
    for i in range(32):
        a(f'ds_read_b32 v{8+i}, v5 offset:{512*i}')
    ws_ptr(8, 4, 'CS')
    a('s_lshl_b32 s3, s3, 9')
    a('v_add_u32 v5, s3, v5')
    a('s_waitcnt lgkmcnt(0)')
    for st in (16, 8, 4, 2, 1):
        for i in range(st):
            a(f'v_add_f32 v{8+i}, v{8+i}, v{8+i+st}')
    a('global_store_dword v5, v8, s[8:9]')
    a('s_branch K1_end')

    a.label('K1_kgen')
    a(f"""
    s_load_dwordx4 s[8:11], s[0:1], {KA['Are']}
    s_load_dwordx4 s[12:15], s[0:1], {KA['Bre']}
    s_load_dwordx4 s[16:19], s[0:1], {KA['Cre']}
    s_load_dwordx2 s[20:21], s[0:1], {KA['ldt']}
    s_sub_u32 s3, s2, 82
    s_lshl_b32 s3, s3, 1             ; d0
    v_lshrrev_b32 v1, 8, v0
    v_add_u32 v1, s3, v1             ; d
    v_lshrrev_b32 v2, 6, v0          ; wave
    v_and_b32 v3, 31, v0
    v_lshl_add_u32 v3, v2, 5, v3     ; (ch*128 + n)
    s_lshl_b32 s26, s3, 8
    v_lshlrev_b32 v14, 4, v3
    v_lshl_add_u32 v3, v3, 1, s26    ; d*256 + n*2
    v_lshlrev_b32 v4, 1, v1
    v_and_b32 v5, 15, v0             ; idx
    v_bfe_u32 v6, v0, 4, 2           ; nn
    s_waitcnt lgkmcnt(0)
    global_load_ushort v7, v4, s[20:21]
    global_load_ushort v8, v3, s[8:9]
    global_load_ushort v9, v3, s[10:11]
    global_load_ushort v10, v3, s[12:13]
    global_load_ushort v11, v3, s[14:15]
    global_load_ushort v12, v3, s[16:17]
    global_load_ushort v13, v3, s[18:19]
    """)
    ws_ptr(22, 4, 'KH'); ws_ptr(24, 4, 'KL')
    if PREFETCH:
        a(f"""
        s_load_dwordx4 s[28:31], s[0:1], {KA['w1']}
        s_load_dwordx4 s[32:35], s[0:1], {KA['w3']}
        s_sub_u32 s36, s2, 82
        s_mul_i32 s37, s36, 7168
        v_min_u32 v44, 447, v0
        v_lshl_add_u32 v44, v44, 4, s37
        s_lshl_b32 s37, s36, 11
        v_and_b32 v45, 127, v0
        v_lshl_add_u32 v45, v45, 4, s37
        s_waitcnt lgkmcnt(0)
        global_load_dwordx4 v[72:75], v44, s[34:35]
        global_load_dwordx4 v[76:79], v44, s[32:33]
        global_load_dwordx4 v[80:83], v45, s[30:31]
        global_load_dwordx4 v[84:87], v45, s[28:29]
        """)
    a("""
    v_lshrrev_b32 v40, 3, v5
    v_lshlrev_b32 v40, 7, v40
    v_and_or_b32 v32, v5, 7, v40
    v_bfe_u32 v40, v5, 2, 1
    v_lshlrev_b32 v40, 7, v40
    v_and_b32 v41, 3, v5
    v_lshl_add_u32 v40, v41, 1, v40
    v_add_u32 v40, 256, v40
    v_bfe_u32 v41, v5, 1, 2
    v_lshlrev_b32 v41, 7, v41
    v_and_b32 v33, 1, v5
    v_lshl_add_u32 v41, v33, 2, v41
    v_add_u32 v41, 512, v41
    v_cmp_gt_u32 vcc, 8, v5
    v_lshlrev_b32 v34, 7, v5
    v_add_u32 v34, 1024, v34
    v_cndmask_b32 v33, v41, v40, vcc
    v_lshlrev_b32 v35, 3, v5
    v_cvt_f32_u32 v32, v32
    v_cvt_f32_u32 v33, v33
    v_cvt_f32_u32 v34, v34
    v_cvt_f32_u32 v35, v35
    v_mul_u32_u24 v42, 3072, v2
    v_add_u32 v42, 4096, v42
    v_lshrrev_b32 v40, 1, v6
    v_lshlrev_b32 v40, 7, v40
    v_and_b32 v41, 1, v6
    v_lshl_add_u32 v40, v41, 2, v40
    v_lshl_add_u32 v40, v5, 3, v40
    v_lshl_add_u32 v36, v40, 2, v42
    v_lshlrev_b32 v40, 6, v6
    v_add_u32 v40, 256, v40
    v_lshl_add_u32 v41, v5, 2, v40
    v_lshl_add_u32 v40, v5, 1, v40
    v_cmp_gt_u32 vcc, 2, v6
    v_mov_b32 v43, 32
    s_nop 0
    v_cndmask_b32 v40, v40, v41, vcc
    v_cndmask_b32 v43, v43, 2, vcc
    v_lshl_add_u32 v37, v40, 2, v42
    v_lshl_add_u32 v38, v43, 2, v37
    v_lshlrev_b32 v40, 6, v6
    v_add_u32 v40, v40, v5
    v_add_u32 v40, 512, v40
    v_lshl_add_u32 v39, v40, 2, v42
    v_lshlrev_b32 v15, 9, v2
    v_lshl_add_u32 v15, v6, 4, v15
    """)
    stamp(SW, 1)
    a('s_waitcnt vmcnt(4)' if PREFETCH else 's_waitcnt vmcnt(0)')
    a(f"""
    v_lshlrev_b32 v7, 16, v7
    v_mul_f32 v40, {hx(LOG2E_HI)}, v7
    s_mov_b32 s26, {hx(LOG2E_HI)}
    v_fma_f32 v41, v7, s26, -v40
    v_mov_b32 v43, {hx(LOG2E_LO)}
    v_fmac_f32 v41, v7, v43
    v_exp_f32 v40, v40
    v_mul_f32 v41, {hx(LN2)}, v41
    v_lshlrev_b32 v8, 16, v8
    v_fmac_f32 v40, v40, v41
    v_cvt_pk_bf16_f32 v40, v40, v40
    v_lshlrev_b32 v7, 16, v40         ; dt
    v_lshlrev_b32 v9, 16, v9
    v_lshlrev_b32 v10, 16, v10
    v_lshlrev_b32 v11, 16, v11
    v_lshlrev_b32 v12, 16, v12
    v_lshlrev_b32 v13, 16, v13
    v_mul_f32 v16, v7, v8
    v_mul_f32 v17, v7, v9
    v_mul_f32 v16, {hx(LOG2E)}, v16
    v_mul_f32 v17, {hx(INV2PI)}, v17
    v_mul_f32 v10, v7, v10
    v_mul_f32 v11, v7, v11
    v_mul_f32 v18, v12, v10
    v_mul_f32 v19, v12, v11
    v_fma_f32 v18, -v13, v11, v18
    v_fmac_f32 v19, v13, v10
    ds_write_b128 v14, v[16:19]
    """)
    ACC = 60
    for i in range(12):
        a(f'v_mov_b32 v{ACC+i}, 0')
    a('s_waitcnt lgkmcnt(0)')
    a('ds_read_b128 v[16:19], v15')
    a('ds_read_b128 v[24:27], v15 offset:64')
    a('s_mov_b32 s27, 0')
    def split(H, L, R, t):
        a(f'v_cvt_pk_bf16_f32 v{H}, v{R}, v{R+1}')
        a(f'v_lshlrev_b32 v{t}, 16, v{H}')
        a(f'v_and_b32 v{t+1}, 0xffff0000, v{H}')
        a(f'v_pk_add_f32 v[{t}:{t+1}], v[{R}:{R+1}], v[{t}:{t+1}] neg_lo:[0,1] neg_hi:[0,1]')
        a(f'v_cvt_pk_bf16_f32 v{L}, v{t}, v{t+1}')
    a.label('K1_loop')
    for u in range(4):
        P = 16 + 8*(u & 1)
        a(f's_waitcnt lgkmcnt({1})')
        a(f"""
        v_pk_mul_f32 v[44:45], v[{P}:{P+1}], v[34:35] op_sel:[0,1] op_sel_hi:[1,1]
        v_pk_mul_f32 v[46:47], v[{P}:{P+1}], v[32:33] op_sel:[0,0] op_sel_hi:[1,0]
        v_pk_mul_f32 v[48:49], v[{P}:{P+1}], v[32:33] op_sel:[0,1] op_sel_hi:[1,1]
        v_pk_mul_f32 v[50:51], v[{P}:{P+1}], v[34:35] op_sel:[0,0] op_sel_hi:[1,0]
        v_fract_f32 v45, v45
        v_fract_f32 v47, v47
        v_fract_f32 v49, v49
        v_fract_f32 v51, v51
        v_exp_f32 v44, v44
        v_cos_f32 v52, v45
        v_sin_f32 v53, v45
        v_exp_f32 v46, v46
        v_cos_f32 v54, v47
        v_sin_f32 v55, v47
        v_pk_mul_f32 v[52:53], v[52:53], v[44:45] op_sel_hi:[1,0]
        v_exp_f32 v48, v48
        v_cos_f32 v56, v49
        v_sin_f32 v57, v49
        v_pk_mul_f32 v[54:55], v[54:55], v[46:47] op_sel_hi:[1,0]
        v_pk_mul_f32 v[20:21], v[{P+2}:{P+3}], v[52:53] op_sel:[0,0] op_sel_hi:[0,1] neg_hi:[1,0]
        v_exp_f32 v50, v50
        v_cos_f32 v58, v51
        v_sin_f32 v59, v51
        v_pk_fma_f32 v[20:21], v[{P+2}:{P+3}], v[52:53], v[20:21] op_sel:[1,1,0] op_sel_hi:[1,0,1] neg_lo:[1,0,0] neg_hi:[1,0,0]
        v_pk_mul_f32 v[56:57], v[56:57], v[48:49] op_sel_hi:[1,0]
        v_pk_mul_f32 v[58:59], v[58:59], v[50:51] op_sel_hi:[1,0]
        ds_read_b128 v[{P}:{P+3}], v15 offset:{128+64*u}
        """)
        split(96+u, 100+u, 54, 44)
        split(120+u, 124+u, 20, 46)
        split(104+u, 108+u, 56, 48)
        split(112+u, 116+u, 58, 50)
    a('s_add_u32 s27, s27, 1')
    a('s_cmp_lt_u32 s27, 2')
    a('v_add_u32 v15, 256, v15')
    for t in range(3):
        a(f'v_mfma_f32_16x16x32_bf16 v[{60+4*t}:{63+4*t}], v[{96+8*t}:{99+8*t}], v[120:123], v[{60+4*t}:{63+4*t}]')
    for t in range(3):
        a(f'v_mfma_f32_16x16x32_bf16 v[{60+4*t}:{63+4*t}], v[{96+8*t}:{99+8*t}], v[124:127], v[{60+4*t}:{63+4*t}]')
    for t in range(3):
        a(f'v_mfma_f32_16x16x32_bf16 v[{60+4*t}:{63+4*t}], v[{100+8*t}:{103+8*t}], v[120:123], v[{60+4*t}:{63+4*t}]')
    a('s_cbranch_scc1 K1_loop')
    stamp(SW, 2)
    a(f"""
    v_and_b32 v8, 63, v0
    v_bfe_u32 v9, v0, 6, 2
    v_lshlrev_b32 v8, 5, v8
    v_lshl_add_u32 v8, v9, 3, v8      ; s0 = 32a+8q
    v_cmp_gt_u32 vcc, 256, v8
    v_cvt_f32_u32 v9, v8
    v_lshrrev_b32 v11, 8, v0
    v_mul_u32_u24 v11, 12288, v11
    v_add_u32 v11, 4096, v11
    v_lshl_add_u32 v10, v8, 2, v11
    v_subrev_u32 v11, {4*(0x4380-256)}, v11
    """)
    for p in range(4):
        a(f'v_add_f32 v12, {hx(7.0-2*p)}, v9')
        a(f'v_add_f32 v13, {hx(6.0-2*p)}, v9')
        a('v_cvt_pk_bf16_f32 v12, v12, v13')
        a('v_lshrrev_b32 v13, 16, v12')
        a('v_and_b32 v12, 0xffff, v12')
        a('v_lshl_add_u32 v12, v12, 2, v11')
        a('v_lshl_add_u32 v13, v13, 2, v11')
        a(f'v_add_u32 v14, {4*(7-2*p)}, v10')
        a(f'v_add_u32 v16, {4*(6-2*p)}, v10')
        a(f'v_cndmask_b32 v{24+2*p}, v12, v14, vcc')
        a(f'v_cndmask_b32 v{25+2*p}, v13, v16, vcc')
    for rr in range(4):
        a(f'ds_write_b32 v36, v{60+rr} offset:{4*rr}')
    for rr in range(4):
        a(f'ds_write_b32 v{37+(rr>>1)}, v{64+rr} offset:{4*(rr&1)}')
    for rr in range(4):
        a(f'ds_write_b32 v39, v{68+rr} offset:{64*rr}')
    a("""
    s_lshl_b32 s26, s3, 12
    v_lshl_add_u32 v12, v0, 4, s26    ; d0*4096 + tid*16
    s_waitcnt lgkmcnt(0)
    s_barrier
    """)
    for kk in range(8):
        for w in range(4):
            a(f'ds_read_b32 v{32+4*kk+w}, v{24+kk} offset:{3072*w}')
    a('s_waitcnt lgkmcnt(0)')
    for kk in range(8):
        b = 32+4*kk
        a(f'v_add_f32 v{b}, v{b}, v{b+1}')
        a(f'v_add_f32 v{b+2}, v{b+2}, v{b+3}')
    for kk in range(8):
        b = 32+4*kk
        a(f'v_add_f32 v{b}, v{b}, v{b+2}')
    for p in range(4):
        k0, k1 = 32+8*p, 36+8*p
        a(f'v_cvt_pk_bf16_f32 v{64+p}, v{k0}, v{k1}')
        unpack(14, 15, 64+p)
        a(f'v_sub_f32 v{k0}, v{k0}, v14')
        a(f'v_sub_f32 v{k1}, v{k1}, v15')
        a(f'v_cvt_pk_bf16_f32 v{68+p}, v{k0}, v{k1}')
    a('global_store_dwordx4 v12, v[64:67], s[22:23]')
    a('global_store_dwordx4 v12, v[68:71], s[24:25]')
    stamp(SW, 3)
    a.label('K1_end')
    trace_end(0)
    a.label('K1_exit')
    a.end_kernel(name, (338,1,1), (512,1,1), 67584, 128)

def gen_k2():
    global SV
    SV = 128
    name = 'k2_kernel'
    CHB = 45568; KOFF = 33280; RED = 2 * CHB
    a.begin_kernel(name)
    a(f"""
    s_cmp_ge_u32 s2, 256
    s_cbranch_scc1 K2_exit
    s_load_dwordx2 s[4:5], s[0:1], {KA['ws']}
    s_load_dwordx2 s[6:7], s[0:1], {KA['Dsk']}
    s_load_dwordx4 s[40:43], s[0:1], {KA['w1']}
    s_load_dwordx2 s[44:45], s[0:1], {KA['w3']}
    """)
    trace_begin()
    a(f"""
    v_lshrrev_b32 v1, 6, v0            ; wave
    v_and_b32 v2, 63, v0               ; lane
    v_readfirstlane_b32 s3, v1
    s_lshl_b32 s16, s2, 1              ; d0
    s_lshr_b32 s17, s3, 1              ; ch
    s_and_b32 s18, s3, 1
    s_add_u32 s19, s16, s17
    s_mul_i32 s20, s17, {CHB}
    s_waitcnt lgkmcnt(0)
    """)
    ws_ptr(8, 4, 'UT'); ws_ptr(10, 4, 'XT'); ws_ptr(12, 4, 'KH'); ws_ptr(22, 4, 'HT')
    a(f"""
    s_mov_b32 s14, {4*MB}
    s_mov_b32 s15, 0x00020000
    s_lshl_b32 s24, s18, 21
    s_lshl_b32 s25, s19, 12
    s_add_u32 s24, s24, s25
    s_mul_i32 s25, s18, 6144
    s_add_u32 s25, s25, s20
    s_add_u32 s25, s25, {KOFF+512}
    v_lshlrev_b32 v3, 4, v2
    """)
    for q in range(4):
        a('s_mov_b32 m0, s25')
        a('s_nop 0')
        a('buffer_load_dwordx4 v3, s[12:15], s24 offen lds')
        if q < 3:
            a('s_add_u32 s24, s24, 1024')
            a('s_add_u32 s25, s25, 1536')
    a(f"""
    s_lshl_b32 s26, s16, 12
    v_lshl_add_u32 v4, v0, 4, s26
    v_max_u32 v5, 1, v0
    v_subrev_u32 v5, 1, v5
    v_lshl_add_u32 v5, v5, 4, s26
    global_load_dwordx4 v[8:11], v5, s[8:9]
    global_load_dwordx4 v[12:15], v4, s[8:9]
    v_add_u32 v4, 4096, v4
    v_add_u32 v5, 4096, v5
    global_load_dwordx4 v[24:27], v5, s[8:9]
    global_load_dwordx4 v[28:31], v4, s[8:9]
    v_and_b32 v6, 31, v2               ; i / j / col
    v_lshrrev_b32 v7, 5, v2            ; kg
    v_lshlrev_b32 v40, 6, v6
    v_lshl_add_u32 v40, v7, 3, v40     ; (32i+4kg)*2
    s_lshl_b32 s27, s18, 11
    v_add_u32 v122, s27, v40
    s_lshl_b32 s26, s19, 12
    v_add_u32 v121, s26, v122
    global_load_dwordx2 v[112:113], v121, s[10:11]
    global_load_dwordx2 v[114:115], v121, s[10:11] offset:16
    global_load_dwordx2 v[116:117], v121, s[10:11] offset:32
    global_load_dwordx2 v[118:119], v121, s[10:11] offset:48
    s_lshl_b32 s26, s19, 1
    v_mov_b32 v42, s26
    global_load_ushort v125, v42, s[6:7]
    v_mov_b32 v48, 0
    v_mov_b32 v49, 0
    v_mov_b32 v50, 0
    v_mov_b32 v51, 0
    v_lshrrev_b32 v45, 5, v0
    v_mul_u32_u24 v45, 1536, v45
    v_and_b32 v46, 31, v0
    v_lshl_add_u32 v45, v46, 4, v45
    ds_write_b128 v45, v[48:51] offset:{KOFF}
    v_add_u32 v45, {CHB}, v45
    ds_write_b128 v45, v[48:51] offset:{KOFF}
    v_bfe_u32 v45, v0, 2, 3
    v_mul_u32_u24 v45, 4160, v45
    v_and_b32 v46, 3, v0
    v_lshl_add_u32 v45, v46, 4, v45
    ds_write_b128 v45, v[48:51]
    ds_write_b128 v45, v[48:51] offset:{CHB}
    v_lshlrev_b32 v45, 4, v0
    v_add_u32 v45, 64, v45
    v_cmp_eq_u32 vcc, 0, v0
    """)
    for ch in range(2):
        E = 8 + 16*ch
        a(f's_waitcnt vmcnt({7 - 2*ch})')
        for i in range(4):
            a(f'v_cndmask_b32 v{E+i}, v{E+i}, 0, vcc')
        for i in range(7):
            a(f'v_alignbit_b32 v{52+i}, v{E+i+1}, v{E+i}, 16')
        for i in range(6):
            a(f'v_alignbit_b32 v{60+i}, v{E+i+2}, v{E+i+1}, 16')
        for i in range(6):
            a(f'v_mov_b32 v{66+i}, v{E+i+1}')
        src = {7: E+4, 5: 68, 3: E+2, 1: 66, 0: 52, 2: 60, 4: 54, 6: 62}
        if ch == 1:
            a(f'v_add_u32 v45, {CHB}, v45')
        for c in range(8):
            r = src[c]
            a(f'ds_write_b128 v45, v[{r}:{r+3}] offset:{4160*c}')
    a(f"""
    v_and_b32 v45, 7, v6
    v_mul_u32_u24 v45, 4160, v45
    v_lshrrev_b32 v46, 3, v6
    v_lshl_add_u32 v45, v46, 4, v45
    v_lshlrev_b32 v46, 4, v7
    v_sub_u32 v45, v45, v46
    v_add_u32 v45, 32, v45
    v_add_u32 v126, s20, v45           ; vA'
    v_mul_u32_u24 v46, 1536, v7
    v_lshl_add_u32 v46, v6, 4, v46
    v_add_u32 v46, {KOFF + 512 - 16*63}, v46
    v_add_u32 v127, s20, v46           ; vB
    """)
    ACC = [72, 88]
    for i in range(32):
        a(f'v_mov_b32 v{72+i}, 0')
    a('s_waitcnt vmcnt(0) lgkmcnt(0)')
    a('s_barrier')
    if PREFETCH:
        l2_prefetch(40, 512*1024, 60, 64, 28)
        l2_prefetch(42, 512*1024, 61, 64, 28)
        l2_prefetch(44, 512*3584, 62, 64, 28)
    a('s_cmp_eq_u32 s18, 1')
    a('s_cbranch_scc1 K2_roleB')
    def emit_units(units):
        def loads(u, setb):
            out = []; regs = []
            r = 8 + 24*setb if True else 0
            n = 0
            for (d, sl, tiles) in u:
                ra = r + 4*n; n += 1
                out.append(f'ds_read_b128 v[{ra}:{ra+3}], v126 offset:{64*d + 32*(1-sl)}')
                bs = []
                for T in tiles:
                    for arr in range(2):
                        rb = r + 4*n; n += 1
                        out.append(f'ds_read_b128 v[{rb}:{rb+3}], v127 offset:{sl*3072 + T*512 + 16*(63-d) + arr*6144}')
                        bs.append((T, rb))
                regs.append((ra, bs))
            assert n <= 6
            return out, regs
        cur_l, cur_r = loads(units[0], 0)
        for l in cur_l: a(l)
        for i, u in enumerate(units):
            if i + 1 < len(units):
                nl, nr = loads(units[i+1], (i+1) & 1)
                for l in nl: a(l)
                a(f's_waitcnt lgkmcnt({len(nl)})')
            else:
                a('s_waitcnt lgkmcnt(0)')
            for (ra, bs) in cur_r:
                for (T, rb) in bs:
                    c = ACC[T]
                    a(f'v_mfma_f32_32x32x16_bf16 v[{c}:{c+15}], v[{ra}:{ra+3}], v[{rb}:{rb+3}], v[{c}:{c+15}]')
            if i + 1 < len(units):
                cur_r = nr
    emit_units([[(d, sl, (0, 1))] for d in range(24) for sl in range(2)])
    a('s_nop 15')
    a('s_nop 3')
    a(f'v_lshlrev_b32 v123, 4, v0')
    a(f'v_add_u32 v123, {RED}, v123')
    for r4 in range(4):
        a(f'ds_write_b128 v123, v[{88+4*r4}:{91+4*r4}] offset:{4096*r4}')
    a('s_waitcnt lgkmcnt(0)')
    a('s_barrier')
    for r4 in range(4):
        a(f'ds_read_b128 v[{8+4*r4}:{11+4*r4}], v123 offset:{4096*r4 + 1024}')
    a('s_branch K2_fin')
    a.label('K2_roleB')
    emit_units([[(d, sl, (0, 1))] for d in range(24, 32) for sl in range(2)] +
               [[(d, 0, (1,)), (d, 1, (1,))] for d in range(32, 64)])
    a('s_nop 15')
    a('s_nop 3')
    a(f'v_lshlrev_b32 v123, 4, v0')
    a(f'v_add_u32 v123, {RED}, v123')
    for r4 in range(4):
        a(f'ds_write_b128 v123, v[{72+4*r4}:{75+4*r4}] offset:{4096*r4}')
    a('s_waitcnt lgkmcnt(0)')
    a('s_barrier')
    a('v_subrev_u32 v123, 1024, v123')
    for r4 in range(4):
        a(f'ds_read_b128 v[{8+4*r4}:{11+4*r4}], v123 offset:{4096*r4}')
    for i in range(16):
        a(f'v_mov_b32 v{72+i}, v{88+i}')
    a.label('K2_fin')
    a(f'v_add_u32 v122, s20, v122')
    for rq in range(4):
        a(f'ds_read_b64 v[{24+2*rq}:{25+2*rq}], v122 offset:{7*4160 + 64 + 16*rq}')
    a('v_lshlrev_b32 v124, 16, v125')
    a('s_waitcnt lgkmcnt(0)')
    for i in range(8):
        a(f'v_pk_add_f32 v[{72+2*i}:{73+2*i}], v[{72+2*i}:{73+2*i}], v[{8+2*i}:{9+2*i}]')
    for i in range(8):
        y = 72 + 2*i
        a(f'v_cvt_pk_bf16_f32 v32, v{y}, v{y+1}')
        unpack(y, y+1, 32)
        unpack(34, 35, 24+i)
        a('v_pk_mul_f32 v[34:35], v[34:35], v[124:125] op_sel_hi:[1,0]')
        a('v_cvt_pk_bf16_f32 v33, v34, v35')
        unpack(34, 35, 33)
        a(f'v_pk_add_f32 v[{y}:{y+1}], v[{y}:{y+1}], v[34:35]')
        a(f'v_cvt_pk_bf16_f32 v32, v{y}, v{y+1}')
        unpack(y, y+1, 32)
        unpack(34, 35, 112+i)
        a(f'v_pk_add_f32 v[{y}:{y+1}], v[{y}:{y+1}], v[34:35]')
        a(f'v_cvt_pk_bf16_f32 v{104+i}, v{y}, v{y+1}')
    for rq in range(4):
        a(f'global_store_dwordx2 v121, v[{104+2*rq}:{105+2*rq}], s[22:23] offset:{16*rq}')
    trace_end(1)
    a.label('K2_exit')
    a.end_kernel(name, (256,1,1), (256,1,1), RED + 16384, 136)

GC1 = 2 * 0.7978845608028654 * LOG2E
GC2 = GC1 * 0.044715

def dma_lane_off(dst, lane, rs_sgpr_or_imm, t1, t2):
    a(f'v_lshrrev_b32 v{t1}, 5, v{lane}')
    a(f'v_lshlrev_b32 v{t1}, 3, v{t1}')
    a(f'v_bfe_u32 v{t2}, v{lane}, 3, 2')
    a(f'v_add_u32 v{t1}, v{t1}, v{t2}')
    a(f'v_mul_u32_u24 v{dst}, {rs_sgpr_or_imm}, v{t1}')
    a(f'v_bfe_u32 v{t1}, v{lane}, 1, 2')
    a(f'v_bfe_u32 v{t2}, v{lane}, 4, 2')
    a(f'v_xor_b32 v{t1}, v{t1}, v{t2}')
    a(f'v_lshl_add_u32 v{dst}, v{t1}, 5, v{dst}')
    a(f'v_and_b32 v{t1}, 1, v{lane}')
    a(f'v_lshl_add_u32 v{dst}, v{t1}, 4, v{dst}')

def tr_lane_base(dst, fdst, lane, t1, t2):
    a(f'v_lshrrev_b32 v{t1}, 5, v{lane}')
    a(f'v_lshlrev_b32 v{t1}, 4, v{t1}')
    a(f'v_bfe_u32 v{t2}, v{lane}, 2, 3')
    a(f'v_add_u32 v{t1}, v{t1}, v{t2}')
    a(f'v_lshlrev_b32 v{dst}, 7, v{t1}')
    a(f'v_and_b32 v{t1}, 3, v{lane}')
    a(f'v_lshl_add_u32 v{dst}, v{t1}, 3, v{dst}')
    a(f'v_lshrrev_b32 v{fdst}, 1, v{t2}')

def gelu_pairs(zs, CK, T):
    for i, z in enumerate(zs):
        t = T + 2*(i & 1)
        a(f'v_pk_mul_f32 v[{t}:{t+1}], v[{z}:{z+1}], v[{z}:{z+1}]')
        a(f'v_pk_fma_f32 v[{t}:{t+1}], v[{t}:{t+1}], v[{CK}:{CK+1}], v[{CK}:{CK+1}] op_sel:[0,1,0] op_sel_hi:[1,1,0]')
        a(f'v_pk_mul_f32 v[{t}:{t+1}], v[{t}:{t+1}], v[{z}:{z+1}]')
        a(f'v_exp_f32 v{t}, -v{t}')
        a(f'v_exp_f32 v{t+1}, -v{t+1}')
        a('s_nop 0')
        a(f'v_pk_add_f32 v[{t}:{t+1}], v[{t}:{t+1}], v[{CK+2}:{CK+3}]')
        a(f'v_rcp_f32 v{t}, v{t}')
        a(f'v_rcp_f32 v{t+1}, v{t+1}')
        a('s_nop 0')
        a(f'v_pk_mul_f32 v[{z}:{z+1}], v[{z}:{z+1}], v[{t}:{t+1}]')

def round_pair(z, t):
    a(f'v_cvt_pk_bf16_f32 v{t}, v{z}, v{z+1}')
    unpack(z, z+1, t)

def gemm64_main(X, WF, ACC, vW, nsteps=16, st0=0):
    def loads(st, sb):
        for cb in range(4):
            for h in range(2):
                r = WF + 16*sb + 4*cb + 2*h
                a(f'ds_read_b64_tr_b16 v[{r}:{r+1}], v{vW+cb} offset:{(st0+st)*4096 + h*1024}')
    loads(0, 0)
    for st in range(nsteps):
        if st + 1 < nsteps:
            loads(st+1, (st+1) & 1)
            a('s_waitcnt lgkmcnt(8)')
        else:
            a('s_waitcnt lgkmcnt(0)')
        for cb in range(4):
            w = WF + 16*(st & 1) + 4*cb
            c = ACC + 4*cb
            a(f'v_mfma_f32_16x16x32_bf16 v[{c}:{c+3}], v[{w}:{w+3}], v[{X+4*st}:{X+4*st+3}], v[{c}:{c+3}]')

def dma_tile(srd, vOff, sOff, sM0, step_bytes, n=16):
    for ii in range(n):
        a(f's_mov_b32 m0, s{sM0}')
        a(f's_add_u32 s{sM0}, s{sM0}, 4096')
        a(f'buffer_load_dwordx4 v{vOff}, s[{srd}:{srd+3}], s{sOff} offen lds')
        if ii < n-1:
            a(f's_add_u32 s{sOff}, s{sOff}, {step_bytes}')

def mk_srd(dst, lo, nbytes):
    a(f's_mov_b32 s{dst}, s{lo}')
    a(f's_mov_b32 s{dst+1}, s{lo+1}')
    a(f's_mov_b32 s{dst+2}, {nbytes}')
    a(f's_mov_b32 s{dst+3}, 0x00020000')

def gen_k3():
    global SV
    SV = 160
    name = 'k3_kernel'
    a.begin_kernel(name)
    a(f"""
    s_cmp_ge_u32 s2, 256
    s_cbranch_scc1 K3_exit
    s_load_dwordx2 s[4:5], s[0:1], {KA['ws']}
    s_load_dwordx2 s[6:7], s[0:1], {KA['w1']}
    """)
    trace_begin()
    a(f"""
    v_lshrrev_b32 v1, 6, v0
    v_and_b32 v2, 63, v0
    v_readfirstlane_b32 s3, v1         ; wave
    s_bfe_u32 s16, s2, 0x30003
    s_and_b32 s17, s2, 7
    s_lshl_b32 s17, s17, 2
    s_lshr_b32 s19, s2, 6
    s_add_u32 s17, s17, s19
    s_lshr_b32 s18, s3, 1
    s_lshl_b32 s18, s18, 4
    s_and_b32 s19, s3, 1
    s_lshl_b32 s19, s19, 2
    s_add_u32 s18, s18, s19            ; krow0 = 16(w>>1)+4(w&1)
    """)
    dma_lane_off(3, 2, 4096, 5, 6)
    dma_lane_off(4, 2, 1024, 5, 6)
    a('s_waitcnt lgkmcnt(0)')
    ws_ptr(8, 4, 'HT')
    a(f"""
    s_mov_b32 s10, {2*MB}
    s_mov_b32 s11, 0x00020000
    """)
    mk_srd(12, 6, 512*1024)
    a(f"""
    s_lshl_b32 s20, s18, 12
    s_lshl_b32 s21, s17, 7
    s_add_u32 s20, s20, s21
    s_lshl_b32 s22, s3, 10             ; m0 = w*1024
    """)
    dma_tile(8, 3, 20, 22, 32*4096)
    a(f"""
    s_lshl_b32 s20, s18, 10
    s_lshl_b32 s21, s16, 7
    s_add_u32 s20, s20, s21            ; W1 soffset
    """)
    dma_tile(12, 4, 20, 22, 32*1024)
    ws_ptr(24, 4, 'HR'); ws_ptr(26, 4, 'G1'); ws_ptr(28, 4, 'CS'); ws_ptr(30, 4, 'ST1')
    tr_lane_base(5, 6, 2, 7, 8)
    a('v_xor_b32 v7, s3, v6')
    a('v_lshl_add_u32 v9, v7, 5, v5')
    for cb in range(4):
        a(f'v_xor_b32 v7, {cb}, v6')
        a(f'v_lshl_add_u32 v{10+cb}, v7, 5, v5')
        a(f'v_add_u32 v{10+cb}, 0x10000, v{10+cb}')
    a(f"""
    v_and_b32 v14, 15, v2
    v_lshrrev_b32 v15, 4, v2
    s_lshl_b32 s21, s17, 6
    s_lshl_b32 s23, s3, 4
    s_add_u32 s21, s21, s23
    v_add_u32 v14, s21, v14            ; token
    v_lshlrev_b32 v16, 3, v14
    v_lshlrev_b32 v14, 10, v14
    v_lshl_add_u32 v17, v15, 4, v14
    s_lshl_b32 s21, s16, 8
    v_lshl_add_u32 v18, v15, 4, s21
    """)
    CSR = 20
    for cb in range(4):
        a(f'global_load_dwordx4 v[{CSR+4*cb}:{CSR+4*cb+3}], v18, s[28:29] offset:{64*cb}')
    X = 64
    WF = 128
    ACC = 36
    GR = 52; SU = 56; ONE = 60
    for i in range(24):
        a(f'v_mov_b32 v{36+i}, 0')
    for i in range(4):
        a(f'v_mov_b32 v{ONE+i}, 0x3f803f80')
    a('s_waitcnt vmcnt(20)')
    a('s_barrier')
    for st in range(16):
        for h in range(2):
            a(f'ds_read_b64_tr_b16 v[{X+4*st+2*h}:{X+4*st+2*h+1}], v9 offset:{st*4096 + h*1024}')
    for st in range(16):
        a(f's_waitcnt lgkmcnt({min(15, 30-2*st)})')
        x = X + 4*st
        a(f'v_mfma_f32_16x16x32_bf16 v[{GR}:{GR+3}], v[{x}:{x+3}], v[{x}:{x+3}], v[{GR}:{GR+3}]')
        a(f'v_mfma_f32_16x16x32_bf16 v[{SU}:{SU+3}], v[{ONE}:{ONE+3}], v[{x}:{x+3}], v[{SU}:{SU+3}]')
    for j in range(8):
        l = a.newlabel('K3_hr')
        a(f's_cmp_lg_u32 s16, {j}')
        a(f's_cbranch_scc1 {l}')
        for st in (2*j, 2*j+1):
            a(f'global_store_dwordx4 v17, v[{X+4*st}:{X+4*st+3}], s[24:25] offset:{64*st}')
        a.label(l)
    a('s_waitcnt vmcnt(2)')
    a('s_barrier')
    gemm64_main(X, WF, ACC, 10)
    a(f"""
    v_and_b32 v7, 3, v2
    v_cmp_eq_u32 vcc, 1, v7
    v_cmp_eq_u32 s[32:33], 2, v7
    v_cmp_eq_u32 s[34:35], 3, v7
    v_and_b32 v8, 15, v2
    v_lshrrev_b32 v7, 2, v8
    v_cndmask_b32 v{GR}, v{GR}, v{GR+1}, vcc
    v_cndmask_b32 v{GR}, v{GR}, v{GR+2}, s[32:33]
    v_cndmask_b32 v{GR}, v{GR}, v{GR+3}, s[34:35]
    v_lshl_add_u32 v7, v7, 4, v8
    v_lshlrev_b32 v7, 2, v7
    ds_bpermute_b32 v{GR}, v7, v{GR}
    v_mul_f32 v{SU}, {hx(1/512)}, v{SU}          ; mean1
    s_waitcnt lgkmcnt(0)
    v_mul_f32 v{GR}, {hx(1/512)}, v{GR}
    v_fma_f32 v{GR}, -v{SU}, v{SU}, v{GR}        ; var1
    v_max_f32 v{GR}, 0, v{GR}
    v_mov_b32 v{SU+1}, v{SU}
    v_mov_b32 v{GR+1}, v{GR}
    """)
    ln_scalars(SU, GR, 7)
    a(f"""
    v_sub_f32 v{SU+1}, v{SU+1}, v{SU}
    v_mul_f32 v{SU+1}, v{SU+1}, v{GR}            ; mean2
    v_mul_f32 v{GR+1}, v{GR+1}, v{GR}
    v_mul_f32 v{GR+1}, v{GR+1}, v{GR}            ; var2
    """)
    ln_scalars(SU+1, GR+1, 7)
    a(f"""
    v_mul_f32 v{ONE}, v{GR}, v{GR+1}             ; alpha
    v_fma_f32 v{ONE+1}, v{GR}, v{SU}, v{SU+1}
    v_mul_f32 v{ONE+1}, v{ONE+1}, v{GR+1}        ; beta
    v_mov_b32 v{SU+2}, v{SU}
    v_mov_b32 v{SU+3}, v{GR}
    v_mov_b32 v128, {hx(GC1)}
    v_mov_b32 v129, {hx(GC2)}
    v_mov_b32 v130, 1.0
    v_mov_b32 v131, 1.0
    s_cmp_lg_u32 s16, 0
    s_cbranch_scc1 K3_nost
    v_cmp_gt_u32 vcc, 16, v2
    s_and_saveexec_b64 s[32:33], vcc
    global_store_dwordx2 v16, v[{SU+2}:{SU+3}], s[30:31]
    s_mov_b64 exec, s[32:33]
    """)
    a.label('K3_nost')
    for p in range(8):
        c = ACC + 2*p; cs = CSR + 2*p
        a(f'v_pk_mul_f32 v[{cs}:{cs+1}], v[{cs}:{cs+1}], v[{ONE}:{ONE+1}] op_sel:[0,1] op_sel_hi:[1,1]')
        a(f'v_pk_fma_f32 v[{c}:{c+1}], v[{c}:{c+1}], v[{ONE}:{ONE+1}], v[{cs}:{cs+1}] op_sel_hi:[1,0,1] neg_lo:[0,0,1] neg_hi:[0,0,1]')
        round_pair(c, 132 + (p & 1))
    gelu_pairs([ACC+2*p for p in range(8)], 128, 132)
    O = 136
    for p in range(8):
        a(f'v_cvt_pk_bf16_f32 v{O+p}, v{ACC+2*p}, v{ACC+2*p+1}')
    a(f"""
    v_and_b32 v7, 1, v15
    v_lshlrev_b32 v7, 5, v7
    v_lshrrev_b32 v8, 1, v15
    v_lshl_add_u32 v7, v8, 4, v7
    s_lshl_b32 s21, s16, 7
    v_add3_u32 v7, v7, v14, s21
    """)
    for P in range(2):
        o = O + 4*P
        a(f'v_permlane16_swap_b32 v{o}, v{o+2}')
        a(f'v_permlane16_swap_b32 v{o+1}, v{o+3}')
    a('s_nop 1')
    for P in range(2):
        o = O + 4*P
        a(f'global_store_dwordx4 v7, v[{o}:{o+3}], s[26:27] offset:{64*P}')
    trace_end(2)
    a.label('K3_exit')
    a.end_kernel(name, (256,1,1), (256,1,1), 131072, 168)

class Ring:
    def __init__(self, TT, NT, nch, nslots, a_rs, w_rs, wfmt, vAsrc, vWsrc, vAr, vWr, FB, ACC, rot=False, shifts=None, vTmp=None):
        self.__dict__.update(locals())
        self.ABY = 4 * TT * 16 * 256
        self.WBY = 128 * (128 if wfmt == 128 else 224)
        self.SLOT = self.ABY + self.WBY
        self.na = TT * 4
        self.nw = 4 if wfmt == 128 else 7
    def setup_addrs(self, t1, t2, t3):
        r = self
        a(f'v_lshrrev_b32 v{t1}, 4, v2')
        a(f'v_and_b32 v{t2}, 15, v2')
        a(f'v_xor_b32 v{t2}, v{t2}, v{t1}')
        a(f'v_mul_u32_u24 v{t1}, {r.a_rs}, v{t1}')
        a(f'v_add_u32 v{t1}, v{t1}, v{r.vTmp}')
        for i in range(4):
            a(f'v_xor_b32 v{t3}, {4*i}, v{t2}')
            a(f'v_lshl_add_u32 v{r.vAsrc+i}, v{t3}, 4, v{t1}')
        a(f'v_and_b32 v{t1}, 15, v2')
        a(f'v_lshrrev_b32 v{t2}, 4, v2')
        a(f'v_xor_b32 v{t2}, v{t2}, v{t1}')
        a(f'v_lshlrev_b32 v{t1}, 8, v{t1}')
        a(f's_mul_i32 s21, s3, {r.TT*4096}')
        a(f'v_add_u32 v{t1}, s21, v{t1}')
        for i in range(4):
            a(f'v_xor_b32 v{t3}, {4*i}, v{t2}')
            a(f'v_lshl_add_u32 v{r.vAr+i}, v{t3}, 4, v{t1}')
        if r.wfmt == 128:
            dma_lane_off(r.vWsrc, 2, r.w_rs, t1, t2)
            tr_lane_base(t1, t2, 2, t3, r.vWr)
            for cb in range(4):
                a(f'v_xor_b32 v{t3}, {cb}, v{t2}')
                a(f'v_lshl_add_u32 v{r.vWr+cb}, v{t3}, 5, v{t1}')
                a(f'v_add_u32 v{r.vWr+cb}, {r.ABY}, v{r.vWr+cb}')
        else:
            for j in range(7):
                a(f'v_add_u32 v{t1}, {64*j}, v2')
                a(f'v_mul_u32_u24 v{t2}, 4682, v{t1}')
                a(f'v_lshrrev_b32 v{t2}, 16, v{t2}')
                a(f'v_mul_u32_u24 v{t3}, 14, v{t2}')
                a(f'v_sub_u32 v{t1}, v{t1}, v{t3}')
                a(f'v_and_b32 v{t3}, 0x13, v{t2}')
                a(f'v_bfe_u32 v{r.vWsrc+j}, v{t2}, 2, 1')
                a(f'v_lshl_or_b32 v{t3}, v{r.vWsrc+j}, 3, v{t3}')
                a(f'v_bfe_u32 v{r.vWsrc+j}, v{t2}, 3, 1')
                a(f'v_lshl_or_b32 v{t3}, v{r.vWsrc+j}, 2, v{t3}')
                a(f'v_mul_u32_u24 v{t3}, {r.w_rs}, v{t3}')
                a(f'v_lshl_add_u32 v{r.vWsrc+j}, v{t1}, 4, v{t3}')
            a(f'v_lshrrev_b32 v{t1}, 5, v2')
            a(f'v_lshlrev_b32 v{t1}, 4, v{t1}')
            a(f'v_bfe_u32 v{t2}, v2, 2, 3')
            a(f'v_add_u32 v{t1}, v{t1}, v{t2}')
            a(f'v_mul_u32_u24 v{t1}, 224, v{t1}')
            a(f'v_and_b32 v{t2}, 3, v2')
            a(f'v_lshl_add_u32 v{r.vWr}, v{t2}, 3, v{t1}')
            a(f'v_add_u32 v{r.vWr}, {r.ABY}, v{r.vWr}')
    def issue(self, c):
        r = self
        slot = c % r.nslots
        base = slot * r.SLOT
        if r.rot:
            a(f's_mul_i32 s35, s34, {128*r.w_rs}')
            a('s_add_u32 s35, s35, s20')
            a('s_lshl_b32 s36, s34, 8')
        else:
            a(f's_add_u32 s35, s20, {c*128*r.w_rs}')
            a(f's_movk_i32 s36, {c*256}')
        if r.wfmt == 128:
            a(f's_lshl_b32 s22, s3, 10')
            a(f's_add_u32 s22, s22, {base + r.ABY}')
            for i in range(4):
                a('s_mov_b32 m0, s22')
                a('s_add_u32 s22, s22, 4096')
                a(f'buffer_load_dwordx4 v{r.vWsrc}, s[12:15], s35 offen lds')
                if i < 3: a(f's_add_u32 s35, s35, {32*r.w_rs}')
        else:
            a(f's_mul_i32 s22, s3, 7168')
            a(f's_add_u32 s22, s22, {base + r.ABY}')
            for j in range(7):
                a('s_mov_b32 m0, s22')
                a('s_add_u32 s22, s22, 1024')
                a(f'buffer_load_dwordx4 v{r.vWsrc+j}, s[12:15], s35 offen lds')
        a(f's_mul_i32 s22, s3, {r.TT*4096}')
        if base: a(f's_add_u32 s22, s22, {base}')
        for i in range(r.na):
            a('s_mov_b32 m0, s22')
            a('s_add_u32 s22, s22, 1024')
            if r.shifts:
                off = (4*i + r.shifts[c]) * r.a_rs
                if off >= 0:
                    a(f'v_add_u32 v{r.vTmp}, {off}, v{r.vAsrc+(i&3)}')
                else:
                    a(f'v_subrev_u32 v{r.vTmp}, {-off}, v{r.vAsrc+(i&3)}')
                a(f'buffer_load_dwordx4 v{r.vTmp}, s[8:11], s36 offen lds')
            else:
                a(f'buffer_load_dwordx4 v{r.vAsrc+(i&3)}, s[8:11], s36 offen lds')
                if i < r.na-1: a(f's_add_u32 s36, s36, {4*r.a_rs}')
        if r.rot:
            a('s_add_u32 s34, s34, 1')
            a(f's_cmp_eq_u32 s34, {r.nch}')
            a('s_cselect_b32 s34, 0, s34')
    def compute(self, c):
        r = self
        base = (c % r.nslots) * r.SLOT
        FS = 4*(r.TT + r.NT)
        hi = base >= 32768
        def loads(st, sb):
            f = r.FB + FS*sb
            for tt in range(r.TT):
                a(f'ds_read_b128 v[{f+4*tt}:{f+4*tt+3}], v{r.vAr+st} offset:{r.cur + tt*4096}')
            for cb in range(r.NT):
                for h in range(2):
                    d = f + 4*r.TT + 4*cb + 2*h
                    if r.wfmt == 128:
                        a(f'ds_read_b64_tr_b16 v[{d}:{d+1}], v{r.vWr+cb} offset:{r.cur + st*4096 + h*1024}')
                    else:
                        a(f'ds_read_b64_tr_b16 v[{d}:{d+1}], v{r.vWr} offset:{r.cur + st*7168 + h*1792 + 32*cb}')
        nl = r.TT + 2*r.NT
        loads(0, 0)
        for st in range(4):
            if st < 3:
                loads(st+1, (st+1) & 1)
                a(f's_waitcnt lgkmcnt({min(15, nl)})')
            else:
                a('s_waitcnt lgkmcnt(0)')
            f = r.FB + FS*(st & 1)
            for cb in range(r.NT):
                w = f + 4*r.TT + 4*cb
                for tt in range(r.TT):
                    cc = r.ACC + 4*r.NT*tt + 4*cb
                    a(f'v_mfma_f32_16x16x32_bf16 v[{cc}:{cc+3}], v[{w}:{w+3}], v[{f+4*tt}:{f+4*tt+3}], v[{cc}:{cc+3}]')
    def bump(self, delta):
        r = self
        regs = [r.vAr+i for i in range(4)] + ([r.vWr+i for i in range(4)] if r.wfmt == 128 else [r.vWr])
        for v in regs:
            if delta > 0: a(f'v_add_u32 v{v}, {delta}, v{v}')
            else: a(f'v_subrev_u32 v{v}, {-delta}, v{v}')
    def run(self):
        r = self
        per = r.na + r.nw
        regbase = 0
        for c in range(r.nch):
            issued = min(r.nch, c + r.nslots)
            a(f's_waitcnt vmcnt({min(63, per*(issued - (c+1)))})')
            a('s_barrier')
            stamp([0,100,255], 1 + c)
            base = (c % r.nslots) * r.SLOT
            want = (base // 32768) * 32768 if r.SLOT * r.nslots > 65536 else 0
            if want != regbase:
                r.bump(want - regbase); regbase = want
            r.cur = base - regbase
            r.compute(c)
            if c + r.nslots < r.nch:
                a('s_barrier')
                r.issue(c + r.nslots)

def wave_krow(dst):
    a(f"""
    s_lshr_b32 s{dst}, s3, 1
    s_lshl_b32 s{dst}, s{dst}, 4
    s_and_b32 s19, s3, 1
    s_lshl_b32 s19, s19, 2
    s_add_u32 s{dst}, s{dst}, s19
    """)

MAP64 = """
    s_bfe_u32 s16, s2, 0x30003
    s_and_b32 s17, s2, 7
    s_lshl_b32 s17, s17, 2
    s_lshr_b32 s19, s2, 6
    s_add_u32 s17, s17, s19
"""

def gen_k4():
    global SV
    SV = 144
    name = 'k4_kernel'
    a.begin_kernel(name)
    a(f"""
    s_cmp_ge_u32 s2, 256
    s_cbranch_scc1 K4_exit
    s_load_dwordx2 s[4:5], s[0:1], {KA['ws']}
    s_load_dwordx2 s[6:7], s[0:1], {KA['w2']}
    """)
    trace_begin(); stamp_init(); stamp([0,100,255], 0)
    a(f"""
    v_lshrrev_b32 v1, 6, v0
    v_and_b32 v2, 63, v0
    v_readfirstlane_b32 s3, v1
    {MAP64}
    """)
    wave_krow(18)
    ACC = 36; FB = 64
    R = Ring(TT=1, NT=4, nch=4, nslots=4, a_rs=1024, w_rs=1024, wfmt=128, vAsrc=52, vWsrc=4, vAr=56, vWr=10, FB=FB, ACC=ACC,
             shifts=[-1, 1, -2, 2], vTmp=9)
    a(f"""
    v_and_b32 v14, 15, v2
    v_lshrrev_b32 v15, 4, v2
    s_lshl_b32 s21, s17, 6
    s_lshl_b32 s23, s3, 4
    s_add_u32 s21, s21, s23
    v_add_u32 v14, s21, v14            ; token
    v_lshlrev_b32 v16, 3, v14
    v_lshlrev_b32 v19, 6, v14
    v_lshlrev_b32 v14, 10, v14
    s_lshl_b32 s21, s21, 10
    v_mov_b32 v9, s21
    """)
    R.setup_addrs(5, 6, 7)
    a('s_waitcnt lgkmcnt(0)')
    mk_srd(12, 6, 512*1024)
    ws_ptr(8, 4, 'G1')
    ws_ptr(24, 4, 'HR'); ws_ptr(26, 4, 'X1'); ws_ptr(28, 4, 'ST3'); ws_ptr(30, 4, 'ST1')
    a(f"""
    s_mov_b32 s10, {2*MB}
    s_mov_b32 s11, 0x00020000
    s_lshl_b32 s20, s18, 10
    s_lshl_b32 s21, s16, 7
    s_add_u32 s20, s20, s21
    v_lshl_add_u32 v18, v15, 3, v14
    v_add_u32 v18, s21, v18
    """)
    HRr = 20
    for cb in range(4):
        a(f'global_load_dwordx2 v[{HRr+2*cb}:{HRr+2*cb+1}], v18, s[24:25] offset:{32*cb}')
    a('global_load_dwordx2 v[28:29], v16, s[30:31]')
    for c in range(4):
        R.issue(c)
    for i in range(16):
        a(f'v_mov_b32 v{ACC+i}, 0')
    R.run()
    a('v_mov_b32 v60, 0')
    a('v_mov_b32 v61, 0')
    a('v_mov_b32 v62, 0')
    a('v_mov_b32 v63, 0')
    a('s_nop 4')
    O = 136
    for p in range(8):
        c = ACC + 2*p
        round_pair(c, 132)
        unpack(30, 31, HRr + p)
        a('v_pk_add_f32 v[30:31], v[30:31], v[28:29] op_sel_hi:[1,0] neg_lo:[0,1] neg_hi:[0,1]')
        round_pair(30, 133)
        a('v_pk_mul_f32 v[30:31], v[30:31], v[28:29] op_sel:[0,1] op_sel_hi:[1,1]')
        round_pair(30, 133)
        a(f'v_pk_add_f32 v[{c}:{c+1}], v[{c}:{c+1}], v[30:31]')
        a(f'v_cvt_pk_bf16_f32 v{O+p}, v{c}, v{c+1}')
        unpack(c, c+1, O+p)
        a(f'v_pk_add_f32 v[60:61], v[60:61], v[{c}:{c+1}]')
        a(f'v_pk_fma_f32 v[62:63], v[{c}:{c+1}], v[{c}:{c+1}], v[62:63]')
    a(f"""
    v_add_f32 v60, v60, v61
    v_add_f32 v61, v62, v63
    v_and_b32 v7, 1, v15
    v_lshlrev_b32 v7, 5, v7
    v_lshrrev_b32 v8, 1, v15
    v_lshl_add_u32 v7, v8, 4, v7
    s_lshl_b32 s21, s16, 7
    v_add3_u32 v7, v7, v14, s21
    v_mov_b32 v62, v60
    v_mov_b32 v63, v61
    """)
    for P in range(2):
        o = O + 4*P
        a(f'v_permlane16_swap_b32 v{o}, v{o+2}')
        a(f'v_permlane16_swap_b32 v{o+1}, v{o+3}')
    a('v_permlane16_swap_b32 v60, v62')
    a('v_permlane16_swap_b32 v61, v63')
    for P in range(2):
        o = O + 4*P
        a(f'global_store_dwordx4 v7, v[{o}:{o+3}], s[26:27] offset:{64*P}')
    a(f"""
    v_pk_add_f32 v[60:61], v[60:61], v[62:63]
    s_nop 0
    v_mov_b32 v62, v60
    v_mov_b32 v63, v61
    s_nop 1
    v_permlane32_swap_b32 v60, v62
    v_permlane32_swap_b32 v61, v63
    s_nop 1
    v_pk_add_f32 v[60:61], v[60:61], v[62:63]
    s_lshl_b32 s21, s16, 3
    v_add_u32 v19, s21, v19
    v_cmp_gt_u32 vcc, 16, v2
    s_and_saveexec_b64 s[32:33], vcc
    global_store_dwordx2 v19, v[60:61], s[28:29]
    s_mov_b64 exec, s[32:33]
    """)
    trace_end(3)
    a.label('K4_exit')
    a.end_kernel(name, (256,1,1), (256,1,1), 131072, 152)

def gen_k5():
    global SV
    SV = 200
    name = 'k5_kernel'
    a.begin_kernel(name)
    a(f"""
    s_cmp_ge_u32 s2, 256
    s_cbranch_scc1 K5_exit
    s_load_dwordx2 s[4:5], s[0:1], {KA['ws']}
    s_load_dwordx2 s[6:7], s[0:1], {KA['w3']}
    s_load_dwordx2 s[40:41], s[0:1], {KA['w4']}
    """)
    trace_begin(); stamp_init(); stamp([0,100,255], 0)
    a(f"""
    v_lshrrev_b32 v1, 6, v0
    v_and_b32 v2, 63, v0
    v_readfirstlane_b32 s3, v1
    s_bfe_u32 s16, s2, 0x40003
    s_and_b32 s17, s2, 7
    s_lshl_b32 s17, s17, 1
    s_lshr_b32 s19, s2, 7
    s_add_u32 s17, s17, s19
    """)
    ACC = 144; FB = 64
    R = Ring(TT=2, NT=7, nch=4, nslots=2, a_rs=1024, w_rs=3584, wfmt=224, vAsrc=16, vWsrc=20, vAr=28, vWr=32, FB=FB, ACC=ACC, vTmp=9)
    a(f"""
    v_and_b32 v14, 15, v2
    v_lshrrev_b32 v15, 4, v2
    s_lshl_b32 s21, s17, 7
    s_lshl_b32 s23, s3, 5
    s_add_u32 s21, s21, s23
    v_add_u32 v14, s21, v14
    v_lshlrev_b32 v13, 6, v14
    s_lshl_b32 s21, s21, 10
    v_mov_b32 v9, s21
    """)
    R.setup_addrs(3, 4, 5)
    a('s_waitcnt lgkmcnt(0)')
    mk_srd(12, 6, 512*3584)
    ws_ptr(8, 4, 'X1'); ws_ptr(24, 4, 'ST3'); ws_ptr(26, 4, 'HH'); ws_ptr(28, 4, 'CS', 2048)
    a(f"""
    s_mov_b32 s10, {2*MB}
    s_mov_b32 s11, 0x00020000
    s_mul_i32 s20, s3, {32*3584}
    s_mul_i32 s21, s16, 224
    s_add_u32 s20, s20, s21
    s_mul_i32 s21, s16, 448
    v_lshl_add_u32 v8, v15, 4, s21
    """)
    for tt in range(2):
        for q in range(4):
            r = ACC + 16*tt + 4*q
            a(f'global_load_dwordx4 v[{r}:{r+3}], v13, s[24:25] offset:{1024*tt + 16*q}')
    CSR = 36
    for cb in range(7):
        a(f'global_load_dwordx4 v[{CSR+4*cb}:{CSR+4*cb+3}], v8, s[28:29] offset:{64*cb}')
    R.issue(0); R.issue(1)
    a('s_waitcnt vmcnt(37)')
    for tt in range(2):
        b = ACC + 16*tt
        for i in (8, 4, 2):
            for j in range(0, i, 2):
                a(f'v_pk_add_f32 v[{b+j}:{b+j+1}], v[{b+j}:{b+j+1}], v[{b+j+i}:{b+j+i+1}]')
        a(f'v_mul_f32 v{b}, {hx(1/512)}, v{b}')
        a(f'v_mul_f32 v{b+1}, {hx(1/512)}, v{b+1}')
        a(f'v_fma_f32 v{b+1}, -v{b}, v{b}, v{b+1}')
        a(f'v_max_f32 v{b+1}, 0, v{b+1}')
        ln_scalars(b, b+1, 3)
        a(f'v_mov_b32 v{4+2*tt}, v{b+1}')
        a(f'v_mul_f32 v{5+2*tt}, v{b}, v{b+1}')
    for i in range(56):
        a(f'v_mov_b32 v{ACC+i}, 0')
    R.run()
    stamp([0,100,255], 6)
    if PREFETCH:
        l2_prefetch(40, 1792*1024, 16, 136, 21)
    a(f"""
    v_mov_b32 v72, {hx(GC1)}
    v_mov_b32 v73, {hx(GC2)}
    v_mov_b32 v74, 1.0
    v_mov_b32 v75, 1.0
    v_mul_u32_u24 v8, 3584, v14
    s_mul_i32 s21, s16, 224
    v_add_u32 v8, s21, v8              ; token*3584 + n0*2
    v_and_b32 v3, 1, v15
    v_lshrrev_b32 v13, 1, v15
    v_lshlrev_b32 v13, 4, v13          ; (g>>1)*16 bytes
    v_lshl_add_u32 v12, v3, 5, v13
    v_add_u32 v12, v12, v8
    v_add_u32 v11, {16*3584}, v12      ; tt1
    v_mul_u32_u24 v3, {16*3584}, v3
    v_add3_u32 v10, v3, v13, v8
    """)
    O = 80
    for tt in range(2):
        zs = []
        for p in range(14):
            c = ACC + 28*tt + 2*p; cs = CSR + 2*p; t = 64 + 2*(p & 1)
            a(f'v_pk_mul_f32 v[{t}:{t+1}], v[{cs}:{cs+1}], v[{4+2*tt}:{5+2*tt}] op_sel:[0,1] op_sel_hi:[1,1]')
            a(f'v_pk_fma_f32 v[{c}:{c+1}], v[{c}:{c+1}], v[{4+2*tt}:{5+2*tt}], v[{t}:{t+1}] op_sel_hi:[1,0,1] neg_lo:[0,0,1] neg_hi:[0,0,1]')
            round_pair(c, 68 + (p & 1))
            zs.append(c)
        gelu_pairs(zs, 72, 76)
        for p in range(14):
            d = O + 16*tt + p if p < 12 else 112 + 2*tt + (p - 12)
            a(f'v_cvt_pk_bf16_f32 v{d}, v{zs[p]}, v{zs[p]+1}')
        a('s_nop 1')
        for P in range(3):
            o = O + 16*tt + 4*P
            a(f'v_permlane16_swap_b32 v{o}, v{o+2}')
            a(f'v_permlane16_swap_b32 v{o+1}, v{o+3}')
        a('s_nop 1')
        for P in range(3):
            o = O + 16*tt + 4*P
            a(f'global_store_dwordx4 v{12-tt}, v[{o}:{o+3}], s[26:27] offset:{64*P}')
    a('v_permlane16_swap_b32 v112, v114')
    a('v_permlane16_swap_b32 v113, v115')
    a('s_nop 1')
    a('global_store_dwordx4 v10, v[112:115], s[26:27] offset:192')
    stamp([0,100,255], 7)
    a('s_waitcnt vmcnt(0)')
    stamp([0,100,255], 8)
    trace_end(4)
    a.label('K5_exit')
    a.end_kernel(name, (256,1,1), (256,1,1), 2*R.SLOT, 208)

def gen_k6():
    global SV
    SV = 144
    name = 'k6_kernel'
    a.begin_kernel(name)
    a(f"""
    s_cmp_ge_u32 s2, 256
    s_cbranch_scc1 K6_exit
    s_load_dwordx2 s[4:5], s[0:1], {KA['ws']}
    s_load_dwordx2 s[6:7], s[0:1], {KA['w4']}
    s_load_dwordx2 s[26:27], s[0:1], {KA['out']}
    """)
    trace_begin(); stamp_init(); stamp([0,100,255], 0)
    a(f"""
    v_lshrrev_b32 v1, 6, v0
    v_and_b32 v2, 63, v0
    v_readfirstlane_b32 s3, v1
    {MAP64}
    """)
    wave_krow(18)
    ACC = 36; FB = 64
    R = Ring(TT=1, NT=4, nch=14, nslots=4, a_rs=3584, w_rs=1024, wfmt=128, vAsrc=52, vWsrc=4, vAr=56, vWr=10, FB=FB, ACC=ACC, rot=True, vTmp=9)
    a(f"""
    v_and_b32 v14, 15, v2
    v_lshrrev_b32 v15, 4, v2
    s_lshl_b32 s21, s17, 6
    s_lshl_b32 s23, s3, 4
    s_add_u32 s21, s21, s23
    v_add_u32 v14, s21, v14            ; token
    s_mul_i32 s21, s21, 3584
    v_mov_b32 v9, s21
    v_lshlrev_b32 v14, 10, v14
    s_lshl_b32 s21, s16, 7
    v_lshl_add_u32 v18, v15, 3, v14
    v_add_u32 v18, s21, v18
    s_lshl_b32 s34, s17, 1
    s_add_u32 s34, s34, s16
    s_mul_hi_u32 s35, s34, 0x24924925
    s_mul_i32 s35, s35, 7
    s_sub_u32 s34, s34, s35
    s_lshl_b32 s34, s34, 1
    """)
    R.setup_addrs(5, 6, 7)
    a('s_waitcnt lgkmcnt(0)')
    mk_srd(12, 6, 1792*1024)
    ws_ptr(8, 4, 'HH'); ws_ptr(24, 4, 'HR'); ws_ptr(28, 4, 'X1')
    a(f"""
    s_mov_b32 s10, {2048*3584}
    s_mov_b32 s11, 0x00020000
    s_lshl_b32 s20, s18, 10
    s_lshl_b32 s21, s16, 7
    s_add_u32 s20, s20, s21
    """)
    for cb in range(4):
        a(f'global_load_dwordx2 v[{20+2*cb}:{21+2*cb}], v18, s[24:25] offset:{32*cb}')
    for cb in range(4):
        a(f'global_load_dwordx2 v[{28+2*cb}:{29+2*cb}], v18, s[28:29] offset:{32*cb}')
    for c in range(4):
        R.issue(c)
    for i in range(16):
        a(f'v_mov_b32 v{ACC+i}, 0')
    R.run()
    stamp([0,100,255], 15)
    a('s_nop 7')
    O = 136
    for p in range(8):
        c = ACC + 2*p
        round_pair(c, 60)
        unpack(62, 63, 28 + p)
        a(f'v_pk_add_f32 v[{c}:{c+1}], v[{c}:{c+1}], v[62:63]')
        round_pair(c, 60)
        unpack(62, 63, 20 + p)
        a(f'v_pk_add_f32 v[{c}:{c+1}], v[{c}:{c+1}], v[62:63]')
        a(f'v_cvt_pk_bf16_f32 v{O+p}, v{c}, v{c+1}')
    a(f"""
    v_and_b32 v7, 1, v15
    v_lshlrev_b32 v7, 5, v7
    v_lshrrev_b32 v8, 1, v15
    v_lshl_add_u32 v7, v8, 4, v7
    s_lshl_b32 s21, s16, 7
    v_add3_u32 v7, v7, v14, s21
    """)
    for P in range(2):
        o = O + 4*P
        a(f'v_permlane16_swap_b32 v{o}, v{o+2}')
        a(f'v_permlane16_swap_b32 v{o+1}, v{o+3}')
    a('s_nop 1')
    for P in range(2):
        o = O + 4*P
        a(f'global_store_dwordx4 v7, v[{o}:{o+3}], s[26:27] offset:{64*P}')
    trace_end(5)
    a.label('K6_exit')
    a.end_kernel(name, (256,1,1), (256,1,1), 4*R.SLOT, 152)

def main():
    gen_k1()
    gen_k2()
    gen_k3()
    gen_k4()
    gen_k5()
    gen_k6()

if __name__ == '__main__':
    out = sys.argv[1] if len(sys.argv) > 1 else 'k.s'
    if 'stamps' in sys.argv[2:]:
        STAMPS = True
    if 'trace' in sys.argv[2:]:
        TRACE = True
    main()
    open(out, 'w').write(a.text(HEADER))
```

```python
import sys, struct
from asmlib import *
from gen_ws import WS, MB

KA = dict(x=0, Are=8, Aim=16, Bre=24, Bim=32, Cre=40, Cim=48, ldt=56, Dsk=64, Bx=72, w1=80, w2=88, w3=96, w4=104, out=112, dbg=120, ws=128)

def f2u(f):
    return struct.unpack('<I', struct.pack('<f', f))[0]
def hx(f):
    return hex(f2u(f))

LOG2E = 1.4426950408889634
LOG2E_HI = struct.unpack('<f', struct.pack('<f', LOG2E))[0]
LOG2E_LO = LOG2E - LOG2E_HI
LN2 = 0.6931471805599453
INV2PI = 0.15915494309189535

a = Asm()

def ws_ptr(dst, wsreg, name, extra=0):
    off = WS[name] + extra
    a(f's_add_u32 s{dst}, s{wsreg}, {hex(off)}')
    a(f's_addc_u32 s{dst+1}, s{wsreg+1}, 0')

def row16_allreduce(v):
    for sh in (8, 4, 2, 1):
        a('s_nop 1')
        a(f'v_add_f32_dpp v{v}, v{v}, v{v} row_ror:{sh} row_mask:0xf bank_mask:0xf')

def unpack(dlo, dhi, src):
    a(f'v_lshlrev_b32 v{dlo}, 16, v{src}')
    a(f'v_and_b32 v{dhi}, 0xffff0000, v{src}')

STAMPS = False
PREFETCH = True
LA5 = int([x[3:] for x in sys.argv if x.startswith('l5_')][0]) if any(x.startswith('l5_') for x in sys.argv) else 2
LA6 = int([x[3:] for x in sys.argv if x.startswith('l6_')][0]) if any(x.startswith('l6_') for x in sys.argv) else 3
LA0 = int([x[3:] for x in sys.argv if x.startswith('lb_')][0]) if any(x.startswith('lb_') for x in sys.argv) else 2
LA_DEF = int([x[2:] for x in sys.argv if x.startswith('la')][0]) if any(x.startswith('la') for x in sys.argv) else 2
PF2 = 'pf2' in sys.argv
PF5 = 'nopf5' not in sys.argv
SV = 124
def stamp_init():
    if not STAMPS: return
    a(f's_load_dwordx2 s[90:91], s[0:1], {KA["dbg"]}')
def stamp(wg_list, slot):
    if not STAMPS: return
    l = a.newlabel('STP')
    a('s_memtime s[92:93]')
    a('s_waitcnt lgkmcnt(0)')
    a('v_readfirstlane_b32 s95, v0')
    a('s_nop 3')
    a('s_cmp_lg_u32 s95, 0')
    a(f's_cbranch_scc1 {l}')
    for i, wg in enumerate(wg_list):
        l2 = a.newlabel('STQ')
        a(f's_cmp_lg_u32 s2, {wg}')
        a(f's_cbranch_scc1 {l2}')
        a(f'v_mov_b32 v{SV+1}, s92')
        a(f'v_mov_b32 v{SV}, {(i*16+slot+16)*4}')
        a(f'global_store_dword v{SV}, v{SV+1}, s[90:91]')
        a.label(l2)
    a.label(l)

TRACE = False
GST = False
def gstamp(slot):
    if not GST: return
    l = a.newlabel('GST')
    a('s_memrealtime s[92:93]')
    a('v_readfirstlane_b32 s95, v0')
    a('s_waitcnt lgkmcnt(0)')
    a('s_cmp_lg_u32 s95, 0')
    a(f's_cbranch_scc1 {l}')
    a(f'v_mov_b32 v{SV+1}, s92')
    a('s_lshl_b32 s95, s2, 6')
    a(f's_add_u32 s95, s95, {40*MB + slot*4}')
    a(f'v_mov_b32 v{SV}, s95')
    a(f'global_store_dword v{SV}, v{SV+1}, s[4:5]')
    a.label(l)
def trace_begin():
    if not TRACE: return
    a('s_memrealtime s[96:97]')
    a('s_getreg_b32 s98, hwreg(HW_REG_HW_ID)')
    a('s_getreg_b32 s99, hwreg(HW_REG_XCC_ID)')
def trace_end(kidx):
    if not TRACE: return
    l = a.newlabel('TRC')
    a('s_mov_b64 exec, -1')
    a('s_memrealtime s[100:101]')
    a('v_readfirstlane_b32 s95, v0')
    a('s_waitcnt lgkmcnt(0)')
    a('s_cmp_lg_u32 s95, 0')
    a(f's_cbranch_scc1 {l}')
    a(f'v_mov_b32 v{SV}, s96')
    a(f'v_mov_b32 v{SV+1}, s100')
    a(f'v_mov_b32 v{SV+2}, s98')
    a(f'v_mov_b32 v{SV+3}, s99')
    a('s_lshl_b32 s95, s2, 4')
    a(f's_add_u32 s95, s95, {hex(32*MB + kidx*65536)}')
    a(f'v_mov_b32 v{SV+4}, s95')
    a(f'global_store_dwordx4 v{SV+4}, v[{SV}:{SV+3}], s[4:5]')
    a.label(l)

def l2_prefetch(sptr, total_bytes, vtmp, vdst, stmp):
    per = total_bytes // 32
    assert per % 4096 == 0
    a(f's_lshr_b32 s{stmp}, s2, 3')
    a(f's_mul_i32 s{stmp}, s{stmp}, {per}')
    a(f'v_lshl_add_u32 v{vtmp}, v0, 4, s{stmp}')
    for i in range(per // 4096):
        a(f'global_load_dwordx4 v[{vdst}:{vdst+3}], v{vtmp}, s[{sptr}:{sptr+1}]')
        if i < per // 4096 - 1:
            a(f's_add_u32 s{sptr}, s{sptr}, 4096')
            a(f's_addc_u32 s{sptr+1}, s{sptr+1}, 0')

CODEPF = 'nocpf' not in sys.argv
def code_prefetch(first_label, last_label, vt, vdst, sp):
    if not CODEPF: return
    l = a.newlabel('CPF')
    a(f's_getpc_b64 s[{sp}:{sp+1}]')
    a.label(l)
    a(f's_add_u32 s{sp}, s{sp}, {first_label}-{l}')
    a(f's_addc_u32 s{sp+1}, s{sp+1}, 0')
    a(f's_bfe_u32 s{sp+2}, s2, 0x50003')
    a(f's_lshl_b32 s{sp+2}, s{sp+2}, 10')
    a(f'v_and_b32 v{vt}, 63, v0')
    a(f'v_lshl_add_u32 v{vt}, v{vt}, 4, s{sp+2}')
    a(f'v_min_u32 v{vt}, {last_label}-{first_label}-16, v{vt}')
    a(f'global_load_dwordx4 v[{vdst}:{vdst+3}], v{vt}, s[{sp}:{sp+1}]')

def ln_scalars(S, Q, T):
    a(f'v_cvt_pk_bf16_f32 v{T}, v{S}, v{Q}')
    unpack(S, Q, T)
    a(f'v_add_f32 v{Q}, {hx(1e-5)}, v{Q}')
    a(f'v_cvt_pk_bf16_f32 v{T}, v{Q}, v{Q}')
    a(f'v_lshlrev_b32 v{Q}, 16, v{T}')
    a(f'v_sqrt_f32 v{Q}, v{Q}')
    a('s_nop 0')
    a(f'v_cvt_pk_bf16_f32 v{T}, v{Q}, v{Q}')
    a(f'v_lshlrev_b32 v{Q}, 16, v{T}')
    a(f'v_rcp_f32 v{Q}, v{Q}')
    a('s_nop 0')

def gen_k1():
    global SV
    SV = 96
    name = 'k1_kernel'
    SW = [0, 64, 82]
    a.begin_kernel(name)
    a(f"""
    s_cmp_ge_u32 s2, 274
    s_cbranch_scc1 K1_exit
    s_load_dwordx2 s[4:5], s[0:1], {KA['ws']}
    """)
    stamp_init(); stamp(SW, 0); trace_begin()
    a(f"""
    s_cmp_lt_u32 s2, 256
    s_cbranch_scc1 K1_kgen
    """)

    a(f"""
    s_sub_u32 s3, s2, 256            ; 0..17 : 0..3 -> w1 ; 4..17 -> w3
    s_load_dwordx2 s[6:7], s[0:1], {KA['w1']}
    s_load_dwordx2 s[8:9], s[0:1], {KA['w3']}
    s_movk_i32 s10, 1024
    s_lshl_b32 s11, s3, 8
    s_cmp_lt_u32 s3, 4
    s_waitcnt lgkmcnt(0)
    s_cbranch_scc1 K1_cs_w1
    s_mov_b32 s6, s8
    s_mov_b32 s7, s9
    s_movk_i32 s10, 3584
    s_sub_u32 s11, s11, 1024
    """)
    a.label('K1_cs_w1')
    a("""
    v_lshrrev_b32 v1, 4, v0          ; rg 0..31
    v_and_b32 v2, 15, v0
    v_mul_lo_u32 v3, v1, s10
    v_lshl_add_u32 v3, v2, 4, v3
    v_add_u32 v3, s11, v3
    s_lshl_b32 s12, s10, 5           ; 32 rows
    """)
    for i in range(16):
        a(f'global_load_dwordx4 v[{8+4*i}:{11+4*i}], v3, s[6:7]')
        if i < 15:
            a('s_add_u32 s6, s6, s12')
            a('s_addc_u32 s7, s7, 0')
    AC = 76
    for j in range(8):
        a(f'v_mov_b32 v{AC+j}, 0')
    for i in range(16):
        a(f's_waitcnt vmcnt({15-i})')
        for j in range(4):
            unpack(84+2*(j&1), 85+2*(j&1), 8+4*i+j)
            a(f'v_pk_add_f32 v[{AC+2*j}:{AC+2*j+1}], v[{AC+2*j}:{AC+2*j+1}], v[{84+2*(j&1)}:{85+2*(j&1)}]')
    a(f"""
    v_lshlrev_b32 v4, 5, v0          ; rg*512 + c*32
    ds_write_b128 v4, v[{AC}:{AC+3}]
    ds_write_b128 v4, v[{AC+4}:{AC+7}] offset:16
    v_lshlrev_b32 v5, 2, v0
    s_waitcnt lgkmcnt(0)
    s_barrier
    v_cmp_gt_u32 vcc, 128, v0
    s_and_saveexec_b64 s[14:15], vcc
    s_cbranch_execz K1_end
    """)
    for i in range(32):
        a(f'ds_read_b32 v{8+i}, v5 offset:{512*i}')
    ws_ptr(8, 4, 'CS')
    a('s_lshl_b32 s3, s3, 9')
    a('v_add_u32 v5, s3, v5')
    a('s_waitcnt lgkmcnt(0)')
    for st in (16, 8, 4, 2, 1):
        for i in range(st):
            a(f'v_add_f32 v{8+i}, v{8+i}, v{8+i+st}')
    a('global_store_dword v5, v8, s[8:9]')
    a('s_branch K1_end')

    a.label('K1_kgen')
    a(f"""
    s_load_dwordx4 s[8:11], s[0:1], {KA['Are']}
    s_load_dwordx4 s[12:15], s[0:1], {KA['Bre']}
    s_load_dwordx4 s[16:19], s[0:1], {KA['Cre']}
    s_load_dwordx2 s[20:21], s[0:1], {KA['ldt']}
    s_load_dwordx2 s[6:7], s[0:1], {KA['x']}
    s_lshl_b32 s3, s2, 1             ; d0
    v_lshrrev_b32 v1, 8, v0
    v_add_u32 v1, s3, v1             ; d
    v_lshrrev_b32 v2, 6, v0          ; wave
    v_and_b32 v3, 31, v0
    v_lshl_add_u32 v3, v2, 5, v3     ; (ch*128 + n)
    s_lshl_b32 s26, s3, 8
    v_lshlrev_b32 v14, 4, v3
    v_lshl_add_u32 v3, v3, 1, s26    ; d*256 + n*2
    v_lshlrev_b32 v4, 1, v1
    v_and_b32 v5, 15, v0             ; idx
    v_bfe_u32 v6, v0, 4, 2           ; nn
    s_lshl_b32 s26, s2, 13
    v_lshl_add_u32 v92, v0, 4, s26   ; (8wg + wave)*1024 + lane*16
    s_waitcnt lgkmcnt(0)
    global_load_ushort v7, v4, s[20:21]
    global_load_ushort v8, v3, s[8:9]
    global_load_ushort v9, v3, s[10:11]
    global_load_ushort v10, v3, s[12:13]
    global_load_ushort v11, v3, s[14:15]
    global_load_ushort v12, v3, s[16:17]
    global_load_ushort v13, v3, s[18:19]
    global_load_dwordx4 v[76:79], v92, s[6:7]
    """)
    ws_ptr(22, 4, 'KH'); ws_ptr(24, 4, 'KL')
    if PREFETCH:
        a(f"""
        s_load_dwordx4 s[28:31], s[0:1], {KA['w1']}
        s_load_dwordx4 s[32:35], s[0:1], {KA['w3']}
        s_mov_b32 s36, s2
        s_mul_i32 s37, s36, 7168
        v_min_u32 v44, 447, v0
        v_lshl_add_u32 v44, v44, 4, s37
        s_lshl_b32 s37, s36, 11
        v_and_b32 v45, 127, v0
        v_lshl_add_u32 v45, v45, 4, s37
        s_waitcnt lgkmcnt(0)
        global_load_dwordx4 v[72:75], v44, s[34:35]
        global_load_dwordx4 v[72:75], v44, s[32:33]
        global_load_dwordx4 v[72:75], v45, s[30:31]
        global_load_dwordx4 v[72:75], v45, s[28:29]
        """)
    code_prefetch('k2_kernel', 'k4_kernel', 44, 72, 36)
    a("""
    v_lshrrev_b32 v40, 3, v5
    v_lshlrev_b32 v40, 7, v40
    v_and_or_b32 v32, v5, 7, v40
    v_bfe_u32 v40, v5, 2, 1
    v_lshlrev_b32 v40, 7, v40
    v_and_b32 v41, 3, v5
    v_lshl_add_u32 v40, v41, 1, v40
    v_add_u32 v40, 256, v40
    v_bfe_u32 v41, v5, 1, 2
    v_lshlrev_b32 v41, 7, v41
    v_and_b32 v33, 1, v5
    v_lshl_add_u32 v41, v33, 2, v41
    v_add_u32 v41, 512, v41
    v_cmp_gt_u32 vcc, 8, v5
    v_lshlrev_b32 v34, 7, v5
    v_add_u32 v34, 1024, v34
    v_cndmask_b32 v33, v41, v40, vcc
    v_lshlrev_b32 v35, 3, v5
    v_cvt_f32_u32 v32, v32
    v_cvt_f32_u32 v33, v33
    v_cvt_f32_u32 v34, v34
    v_cvt_f32_u32 v35, v35
    v_mul_u32_u24 v42, 3072, v2
    v_add_u32 v42, 4096, v42
    v_lshrrev_b32 v40, 1, v6
    v_lshlrev_b32 v40, 7, v40
    v_and_b32 v41, 1, v6
    v_lshl_add_u32 v40, v41, 2, v40
    v_lshl_add_u32 v40, v5, 3, v40
    v_lshl_add_u32 v36, v40, 2, v42
    v_lshlrev_b32 v40, 6, v6
    v_add_u32 v40, 256, v40
    v_lshl_add_u32 v41, v5, 2, v40
    v_lshl_add_u32 v40, v5, 1, v40
    v_cmp_gt_u32 vcc, 2, v6
    v_mov_b32 v43, 32
    s_nop 0
    v_cndmask_b32 v40, v40, v41, vcc
    v_cndmask_b32 v43, v43, 2, vcc
    v_lshl_add_u32 v37, v40, 2, v42
    v_lshl_add_u32 v38, v43, 2, v37
    v_lshlrev_b32 v40, 6, v6
    v_add_u32 v40, v40, v5
    v_add_u32 v40, 512, v40
    v_lshl_add_u32 v39, v40, 2, v42
    v_lshlrev_b32 v15, 9, v2
    v_lshl_add_u32 v15, v6, 4, v15
    """)
    stamp(SW, 1)
    a(f's_waitcnt vmcnt({5 + CODEPF})')
    a(f"""
    v_lshlrev_b32 v7, 16, v7
    v_mul_f32 v40, {hx(LOG2E_HI)}, v7
    s_mov_b32 s26, {hx(LOG2E_HI)}
    v_fma_f32 v41, v7, s26, -v40
    v_mov_b32 v43, {hx(LOG2E_LO)}
    v_fmac_f32 v41, v7, v43
    v_exp_f32 v40, v40
    v_mul_f32 v41, {hx(LN2)}, v41
    v_lshlrev_b32 v8, 16, v8
    v_fmac_f32 v40, v40, v41
    v_cvt_pk_bf16_f32 v40, v40, v40
    v_lshlrev_b32 v7, 16, v40         ; dt
    v_lshlrev_b32 v9, 16, v9
    v_lshlrev_b32 v10, 16, v10
    v_lshlrev_b32 v11, 16, v11
    v_lshlrev_b32 v12, 16, v12
    v_lshlrev_b32 v13, 16, v13
    v_mul_f32 v16, v7, v8
    v_mul_f32 v17, v7, v9
    v_mul_f32 v16, {hx(LOG2E)}, v16
    v_mul_f32 v17, {hx(INV2PI)}, v17
    v_mul_f32 v10, v7, v10
    v_mul_f32 v11, v7, v11
    v_mul_f32 v18, v12, v10
    v_mul_f32 v19, v12, v11
    v_fma_f32 v18, -v13, v11, v18
    v_fmac_f32 v19, v13, v10
    ds_write_b128 v14, v[16:19]
    """)
    def ln_block():
        LB = 32768
        F = 80
        ws_ptr(28, 4, 'UT'); ws_ptr(30, 4, 'XT')
        a(f"""
        v_and_b32 v95, 63, v0
        v_mul_u32_u24 v28, 1056, v2
        v_lshl_add_u32 v28, v95, 4, v28
        ds_write_b128 v28, v[76:79] offset:{LB+8448}
        """)
        for i in range(4):
            unpack(F+2*i, F+2*i+1, 76+i)
        def wave_allreduce(v, t):
            row16_allreduce(v)
            a(f'v_mov_b32 v{t}, v{v}')
            a('s_nop 1')
            a(f'v_permlane16_swap_b32 v{v}, v{t}')
            a('s_nop 1')
            a(f'v_add_f32 v{v}, v{v}, v{t}')
            a(f'v_mov_b32 v{t}, v{v}')
            a('s_nop 1')
            a(f'v_permlane32_swap_b32 v{v}, v{t}')
            a('s_nop 1')
            a(f'v_add_f32 v{v}, v{v}, v{t}')
        a(f"""
        v_pk_add_f32 v[88:89], v[{F}:{F+1}], v[{F+2}:{F+3}]
        v_pk_add_f32 v[90:91], v[{F+4}:{F+5}], v[{F+6}:{F+7}]
        v_pk_add_f32 v[88:89], v[88:89], v[90:91]
        v_add_f32 v88, v88, v89
        """)
        wave_allreduce(88, 89)
        a(f'v_mul_f32 v88, {hx(1/512)}, v88')
        a('v_mov_b32 v90, 0')
        a('v_mov_b32 v91, 0')
        for i in range(4):
            a(f'v_pk_add_f32 v[92:93], v[{F+2*i}:{F+2*i+1}], v[88:89] op_sel_hi:[1,0] neg_lo:[0,1] neg_hi:[0,1]')
            a('v_pk_fma_f32 v[90:91], v[92:93], v[92:93], v[90:91]')
        a('v_add_f32 v90, v90, v91')
        wave_allreduce(90, 91)
        a(f'v_mul_f32 v90, {hx(1/512)}, v90')
        ln_scalars(88, 90, 92)
        for i in range(4):
            f0 = F+2*i
            a(f'v_pk_add_f32 v[{f0}:{f0+1}], v[{f0}:{f0+1}], v[88:89] op_sel_hi:[1,0] neg_lo:[0,1] neg_hi:[0,1]')
            a(f'v_cvt_pk_bf16_f32 v92, v{f0}, v{f0+1}')
            unpack(f0, f0+1, 92)
            a(f'v_pk_mul_f32 v[{f0}:{f0+1}], v[{f0}:{f0+1}], v[90:91] op_sel_hi:[1,0]')
            a(f'v_cvt_pk_bf16_f32 v{76+i}, v{f0}, v{f0+1}')
        a(f"""
        ds_write_b128 v28, v[76:79] offset:{LB}
        v_bfe_u32 v28, v0, 2, 2
        v_mul_u32_u24 v28, 1056, v28
        v_lshrrev_b32 v29, 4, v0
        v_lshlrev_b32 v29, 5, v29
        v_and_b32 v95, 3, v0
        v_lshlrev_b32 v95, 3, v95
        v_add3_u32 v28, v28, v29, v95
        v_lshrrev_b32 v94, 1, v0
        v_lshlrev_b32 v94, 13, v94
        v_and_b32 v95, 1, v0
        v_lshl_add_u32 v94, v95, 4, v94
        s_lshl_b32 s26, s2, 5
        v_add_u32 v94, s26, v94
        s_waitcnt lgkmcnt(0)
        s_barrier
        ds_read_b64_tr_b16 v[76:77], v28 offset:{LB}
        ds_read_b64_tr_b16 v[78:79], v28 offset:{LB+4224}
        ds_read_b64_tr_b16 v[80:81], v28 offset:{LB+8448}
        ds_read_b64_tr_b16 v[82:83], v28 offset:{LB+8448+4224}
        s_waitcnt lgkmcnt(2)
        global_store_dwordx4 v94, v[76:79], s[28:29]
        s_waitcnt lgkmcnt(0)
        global_store_dwordx4 v94, v[80:83], s[30:31]
        """)
    ACC = 60
    for i in range(12):
        a(f'v_mov_b32 v{ACC+i}, 0')
    a('s_waitcnt lgkmcnt(0)')
    a('ds_read_b128 v[16:19], v15')
    a('ds_read_b128 v[24:27], v15 offset:64')
    a('s_mov_b32 s27, 0')
    def split(H, L, R, t):
        a(f'v_cvt_pk_bf16_f32 v{H}, v{R}, v{R+1}')
        a(f'v_lshlrev_b32 v{t}, 16, v{H}')
        a(f'v_and_b32 v{t+1}, 0xffff0000, v{H}')
        a(f'v_pk_add_f32 v[{t}:{t+1}], v[{R}:{R+1}], v[{t}:{t+1}] neg_lo:[0,1] neg_hi:[0,1]')
        a(f'v_cvt_pk_bf16_f32 v{L}, v{t}, v{t+1}')
    for it in range(2):
        for u in range(4):
            P = 16 + 8*(u & 1)
            a(f's_waitcnt lgkmcnt({1})')
            a(f"""
            v_pk_mul_f32 v[44:45], v[{P}:{P+1}], v[34:35] op_sel:[0,1] op_sel_hi:[1,1]
            v_pk_mul_f32 v[46:47], v[{P}:{P+1}], v[32:33] op_sel:[0,0] op_sel_hi:[1,0]
            v_pk_mul_f32 v[48:49], v[{P}:{P+1}], v[32:33] op_sel:[0,1] op_sel_hi:[1,1]
            v_pk_mul_f32 v[50:51], v[{P}:{P+1}], v[34:35] op_sel:[0,0] op_sel_hi:[1,0]
            v_fract_f32 v45, v45
            v_fract_f32 v47, v47
            v_fract_f32 v49, v49
            v_fract_f32 v51, v51
            v_exp_f32 v44, v44
            v_cos_f32 v52, v45
            v_sin_f32 v53, v45
            v_exp_f32 v46, v46
            v_cos_f32 v54, v47
            v_sin_f32 v55, v47
            v_pk_mul_f32 v[52:53], v[52:53], v[44:45] op_sel_hi:[1,0]
            v_exp_f32 v48, v48
            v_cos_f32 v56, v49
            v_sin_f32 v57, v49
            v_pk_mul_f32 v[54:55], v[54:55], v[46:47] op_sel_hi:[1,0]
            v_pk_mul_f32 v[20:21], v[{P+2}:{P+3}], v[52:53] op_sel:[0,0] op_sel_hi:[0,1] neg_hi:[1,0]
            v_exp_f32 v50, v50
            v_cos_f32 v58, v51
            v_sin_f32 v59, v51
            v_pk_fma_f32 v[20:21], v[{P+2}:{P+3}], v[52:53], v[20:21] op_sel:[1,1,0] op_sel_hi:[1,0,1] neg_lo:[1,0,0] neg_hi:[1,0,0]
            v_pk_mul_f32 v[56:57], v[56:57], v[48:49] op_sel_hi:[1,0]
            v_pk_mul_f32 v[58:59], v[58:59], v[50:51] op_sel_hi:[1,0]
            ds_read_b128 v[{P}:{P+3}], v15 offset:{128+64*u}
            """)
            split(96+u, 100+u, 54, 44)
            split(120+u, 124+u, 20, 46)
            split(104+u, 108+u, 56, 48)
            split(112+u, 116+u, 58, 50)
        a('s_nop 1')
        a('v_add_u32 v15, 256, v15')
        for t in range(3):
            a(f'v_mfma_f32_16x16x32_bf16 v[{60+4*t}:{63+4*t}], v[{96+8*t}:{99+8*t}], v[120:123], v[{60+4*t}:{63+4*t}]')
        for t in range(3):
            a(f'v_mfma_f32_16x16x32_bf16 v[{60+4*t}:{63+4*t}], v[{96+8*t}:{99+8*t}], v[124:127], v[{60+4*t}:{63+4*t}]')
        for t in range(3):
            a(f'v_mfma_f32_16x16x32_bf16 v[{60+4*t}:{63+4*t}], v[{100+8*t}:{103+8*t}], v[120:123], v[{60+4*t}:{63+4*t}]')
        if it == 0:
            a(f's_waitcnt vmcnt({4 + CODEPF})')
            a('s_waitcnt lgkmcnt(0)')
            ln_block()
    a('s_waitcnt lgkmcnt(0)')
    a(f"""
    v_and_b32 v8, 63, v0
    v_bfe_u32 v9, v0, 6, 2
    v_lshlrev_b32 v8, 5, v8
    v_lshl_add_u32 v8, v9, 3, v8      ; s0 = 32a+8q
    v_cmp_gt_u32 vcc, 256, v8
    v_cvt_f32_u32 v9, v8
    v_lshrrev_b32 v11, 8, v0
    v_mul_u32_u24 v11, 12288, v11
    v_add_u32 v11, 4096, v11
    v_lshl_add_u32 v10, v8, 2, v11
    v_subrev_u32 v11, {4*(0x4380-256)}, v11
    """)
    for p in range(4):
        a(f'v_add_f32 v12, {hx(7.0-2*p)}, v9')
        a(f'v_add_f32 v13, {hx(6.0-2*p)}, v9')
        a('v_cvt_pk_bf16_f32 v12, v12, v13')
        a('v_lshrrev_b32 v13, 16, v12')
        a('v_and_b32 v12, 0xffff, v12')
        a('v_lshl_add_u32 v12, v12, 2, v11')
        a('v_lshl_add_u32 v13, v13, 2, v11')
        a(f'v_add_u32 v14, {4*(7-2*p)}, v10')
        a(f'v_add_u32 v16, {4*(6-2*p)}, v10')
        a(f'v_cndmask_b32 v{24+2*p}, v12, v14, vcc')
        a(f'v_cndmask_b32 v{25+2*p}, v13, v16, vcc')
    for rr in range(4):
        a(f'ds_write_b32 v36, v{60+rr} offset:{4*rr}')
    for rr in range(4):
        a(f'ds_write_b32 v{37+(rr>>1)}, v{64+rr} offset:{4*(rr&1)}')
    for rr in range(4):
        a(f'ds_write_b32 v39, v{68+rr} offset:{64*rr}')
    a("""
    s_lshl_b32 s26, s3, 12
    v_lshl_add_u32 v12, v0, 4, s26    ; d0*4096 + tid*16
    s_waitcnt lgkmcnt(0)
    s_barrier
    """)
    for kk in range(8):
        for w in range(4):
            a(f'ds_read_b32 v{32+4*kk+w}, v{24+kk} offset:{3072*w}')
    a('s_waitcnt lgkmcnt(0)')
    for kk in range(8):
        b = 32+4*kk
        a(f'v_add_f32 v{b}, v{b}, v{b+1}')
        a(f'v_add_f32 v{b+2}, v{b+2}, v{b+3}')
    for kk in range(8):
        b = 32+4*kk
        a(f'v_add_f32 v{b}, v{b}, v{b+2}')
    for p in range(4):
        k0, k1 = 32+8*p, 36+8*p
        a(f'v_cvt_pk_bf16_f32 v{64+p}, v{k0}, v{k1}')
        unpack(14, 15, 64+p)
        a(f'v_sub_f32 v{k0}, v{k0}, v14')
        a(f'v_sub_f32 v{k1}, v{k1}, v15')
        a(f'v_cvt_pk_bf16_f32 v{68+p}, v{k0}, v{k1}')
    a('global_store_dwordx4 v12, v[64:67], s[22:23]')
    a('global_store_dwordx4 v12, v[68:71], s[24:25]')
    a.label('K1_end')
    trace_end(0)
    a.label('K1_exit')
    a.end_kernel(name, (274,1,1), (512,1,1), 51200, 128)

def gen_k2():
    global SV
    SV = 128
    name = 'k2_kernel'
    CHB = 45568; KOFF = 33280; RED = 2 * CHB
    a.begin_kernel(name)
    a(f"""
    s_cmp_ge_u32 s2, 256
    s_cbranch_scc1 K2_exit
    s_load_dwordx2 s[4:5], s[0:1], {KA['ws']}
    s_load_dwordx2 s[6:7], s[0:1], {KA['Dsk']}
    s_load_dwordx4 s[40:43], s[0:1], {KA['w1']}
    s_load_dwordx2 s[44:45], s[0:1], {KA['w3']}
    """)
    trace_begin()
    a(f"""
    v_lshrrev_b32 v1, 6, v0            ; wave
    v_and_b32 v2, 63, v0               ; lane
    v_readfirstlane_b32 s3, v1
    s_lshl_b32 s16, s2, 1              ; d0
    s_lshr_b32 s17, s3, 1              ; ch
    s_and_b32 s18, s3, 1
    s_add_u32 s19, s16, s17
    s_mul_i32 s20, s17, {CHB}
    s_waitcnt lgkmcnt(0)
    """)
    ws_ptr(8, 4, 'UT'); ws_ptr(10, 4, 'XT'); ws_ptr(12, 4, 'KH'); ws_ptr(22, 4, 'HT')
    a(f"""
    s_mov_b32 s14, {4*MB}
    s_mov_b32 s15, 0x00020000
    s_lshl_b32 s24, s18, 21
    s_lshl_b32 s25, s19, 12
    s_add_u32 s24, s24, s25
    s_mul_i32 s25, s18, 6144
    s_add_u32 s25, s25, s20
    s_add_u32 s25, s25, {KOFF+512}
    v_lshlrev_b32 v3, 4, v2
    """)
    for q in range(4):
        a('s_mov_b32 m0, s25')
        a('s_nop 0')
        a('buffer_load_dwordx4 v3, s[12:15], s24 offen lds')
        if q < 3:
            a('s_add_u32 s24, s24, 1024')
            a('s_add_u32 s25, s25, 1536')
    a(f"""
    s_lshl_b32 s26, s2, 13
    v_lshrrev_b32 v57, 1, v0
    v_and_b32 v56, 1, v0               ; ch
    v_lshl_add_u32 v4, v0, 4, s26
    v_mul_u32_u24 v58, {CHB}, v56
    v_cmp_eq_u32 s[58:59], 0, v57
    v_subrev_u32 v5, 32, v4
    v_add_u32 v59, 4096, v5
    v_cndmask_b32 v5, v5, v4, s[58:59]
    global_load_dwordx4 v[8:11], v5, s[8:9]
    global_load_dwordx4 v[12:15], v4, s[8:9]
    v_add_u32 v4, 4096, v4
    global_load_dwordx4 v[24:27], v59, s[8:9]
    global_load_dwordx4 v[28:31], v4, s[8:9]
    v_lshl_add_u32 v120, v57, 4, v58
    v_add_u32 v120, 64, v120
    v_and_b32 v6, 31, v2
    v_lshrrev_b32 v7, 5, v2
    v_lshlrev_b32 v40, 6, v6
    v_lshl_add_u32 v40, v7, 3, v40
    s_lshl_b32 s27, s18, 11
    v_add_u32 v122, s27, v40
    s_lshl_b32 s26, s18, 5
    v_add_u32 v121, s26, v6
    v_lshlrev_b32 v121, 7, v121
    v_lshl_add_u32 v121, v7, 3, v121
    s_lshl_b32 s26, s2, 13
    s_lshl_b32 s27, s17, 4
    s_add_u32 s26, s26, s27
    v_add_u32 v121, s26, v121
    global_load_dwordx2 v[112:113], v121, s[10:11]
    global_load_dwordx2 v[114:115], v121, s[10:11] offset:32
    global_load_dwordx2 v[116:117], v121, s[10:11] offset:64
    global_load_dwordx2 v[118:119], v121, s[10:11] offset:96
    s_lshl_b32 s26, s19, 1
    v_mov_b32 v42, s26
    global_load_ushort v125, v42, s[6:7]
    v_mov_b32 v48, 0
    v_mov_b32 v49, 0
    v_mov_b32 v50, 0
    v_mov_b32 v51, 0
    v_lshrrev_b32 v45, 5, v0
    v_mul_u32_u24 v45, 1536, v45
    v_and_b32 v46, 31, v0
    v_lshl_add_u32 v45, v46, 4, v45
    ds_write_b128 v45, v[48:51] offset:{KOFF}
    v_add_u32 v45, {CHB}, v45
    ds_write_b128 v45, v[48:51] offset:{KOFF}
    v_bfe_u32 v45, v0, 2, 3
    v_mul_u32_u24 v45, 4160, v45
    v_and_b32 v46, 3, v0
    v_lshl_add_u32 v45, v46, 4, v45
    ds_write_b128 v45, v[48:51]
    ds_write_b128 v45, v[48:51] offset:{CHB}
    """)
    for ch in range(2):
        E = 8 + 16*ch
        a(f's_waitcnt vmcnt({7 - 2*ch})')
        if ch == 0:
            for i in range(4):
                a(f'v_cndmask_b32 v{E+i}, v{E+i}, 0, s[58:59]')
        for i in range(7):
            a(f'v_alignbit_b32 v{52+i}, v{E+i+1}, v{E+i}, 16')
        for i in range(6):
            a(f'v_alignbit_b32 v{60+i}, v{E+i+2}, v{E+i+1}, 16')
        for i in range(6):
            a(f'v_mov_b32 v{66+i}, v{E+i+1}')
        src = {7: E+4, 5: 68, 3: E+2, 1: 66, 0: 52, 2: 60, 4: 54, 6: 62}
        for c in range(8):
            r = src[c]
            a(f'ds_write_b128 v120, v[{r}:{r+3}] offset:{4160*c + 2048*ch}')
    a(f"""
    v_and_b32 v45, 7, v6
    v_mul_u32_u24 v45, 4160, v45
    v_lshrrev_b32 v46, 3, v6
    v_lshl_add_u32 v45, v46, 4, v45
    v_lshlrev_b32 v46, 4, v7
    v_sub_u32 v45, v45, v46
    v_add_u32 v45, 32, v45
    v_add_u32 v126, s20, v45           ; vA'
    v_mul_u32_u24 v46, 1536, v7
    v_lshl_add_u32 v46, v6, 4, v46
    v_add_u32 v46, {KOFF + 512 - 16*63}, v46
    v_add_u32 v127, s20, v46           ; vB
    """)
    ACC = [72, 88]
    for i in range(32):
        a(f'v_mov_b32 v{72+i}, 0')
    a('s_waitcnt vmcnt(0) lgkmcnt(0)')
    a('s_barrier')
    code_prefetch('k4_kernel', 'k6_kernel', 60, 64, 28)
    if PF2:
        l2_prefetch(40, 512*1024, 60, 64, 28)
        l2_prefetch(42, 512*1024, 61, 64, 28)
        l2_prefetch(44, 512*3584, 62, 64, 28)
    a('s_cmp_eq_u32 s18, 1')
    a('s_cbranch_scc1 K2_roleB')
    def emit_units(units):
        def loads(u, setb):
            out = []; regs = []
            r = 8 + 24*setb if True else 0
            n = 0
            for (d, sl, tiles) in u:
                ra = r + 4*n; n += 1
                out.append(f'ds_read_b128 v[{ra}:{ra+3}], v126 offset:{64*d + 32*(1-sl)}')
                bs = []
                for T in tiles:
                    for arr in range(2):
                        rb = r + 4*n; n += 1
                        out.append(f'ds_read_b128 v[{rb}:{rb+3}], v127 offset:{sl*3072 + T*512 + 16*(63-d) + arr*6144}')
                        bs.append((T, rb))
                regs.append((ra, bs))
            assert n <= 6
            return out, regs
        cur_l, cur_r = loads(units[0], 0)
        for l in cur_l: a(l)
        for i, u in enumerate(units):
            if i + 1 < len(units):
                nl, nr = loads(units[i+1], (i+1) & 1)
                for l in nl: a(l)
                a(f's_waitcnt lgkmcnt({len(nl)})')
            else:
                a('s_waitcnt lgkmcnt(0)')
            for (ra, bs) in cur_r:
                for (T, rb) in bs:
                    c = ACC[T]
                    a(f'v_mfma_f32_32x32x16_bf16 v[{c}:{c+15}], v[{ra}:{ra+3}], v[{rb}:{rb+3}], v[{c}:{c+15}]')
            if i + 1 < len(units):
                cur_r = nr
    emit_units([[(d, sl, (0, 1))] for d in range(24) for sl in range(2)])
    a('s_nop 15')
    a('s_nop 3')
    a(f'v_lshlrev_b32 v123, 4, v0')
    a(f'v_add_u32 v123, {RED}, v123')
    for r4 in range(4):
        a(f'ds_write_b128 v123, v[{88+4*r4}:{91+4*r4}] offset:{4096*r4}')
    a('s_waitcnt lgkmcnt(0)')
    a('s_barrier')
    for r4 in range(4):
        a(f'ds_read_b128 v[{8+4*r4}:{11+4*r4}], v123 offset:{4096*r4 + 1024}')
    a('s_branch K2_fin')
    a.label('K2_roleB')
    emit_units([[(d, sl, (0, 1))] for d in range(24, 32) for sl in range(2)] +
               [[(d, 0, (1,)), (d, 1, (1,))] for d in range(32, 64)])
    a('s_nop 15')
    a('s_nop 3')
    a(f'v_lshlrev_b32 v123, 4, v0')
    a(f'v_add_u32 v123, {RED}, v123')
    for r4 in range(4):
        a(f'ds_write_b128 v123, v[{72+4*r4}:{75+4*r4}] offset:{4096*r4}')
    a('s_waitcnt lgkmcnt(0)')
    a('s_barrier')
    a('v_subrev_u32 v123, 1024, v123')
    for r4 in range(4):
        a(f'ds_read_b128 v[{8+4*r4}:{11+4*r4}], v123 offset:{4096*r4}')
    for i in range(16):
        a(f'v_mov_b32 v{72+i}, v{88+i}')
    a.label('K2_fin')
    a(f'v_add_u32 v122, s20, v122')
    for rq in range(4):
        a(f'ds_read_b64 v[{24+2*rq}:{25+2*rq}], v122 offset:{7*4160 + 64 + 16*rq}')
    a('v_lshlrev_b32 v124, 16, v125')
    a('s_waitcnt lgkmcnt(0)')
    for i in range(8):
        a(f'v_pk_add_f32 v[{72+2*i}:{73+2*i}], v[{72+2*i}:{73+2*i}], v[{8+2*i}:{9+2*i}]')
    for i in range(8):
        y = 72 + 2*i
        a(f'v_cvt_pk_bf16_f32 v32, v{y}, v{y+1}')
        unpack(y, y+1, 32)
        unpack(34, 35, 24+i)
        a('v_pk_mul_f32 v[34:35], v[34:35], v[124:125] op_sel_hi:[1,0]')
        a('v_cvt_pk_bf16_f32 v33, v34, v35')
        unpack(34, 35, 33)
        a(f'v_pk_add_f32 v[{y}:{y+1}], v[{y}:{y+1}], v[34:35]')
        a(f'v_cvt_pk_bf16_f32 v32, v{y}, v{y+1}')
        unpack(y, y+1, 32)
        unpack(34, 35, 112+i)
        a(f'v_pk_add_f32 v[{y}:{y+1}], v[{y}:{y+1}], v[34:35]')
        a(f'v_cvt_pk_bf16_f32 v{104+i}, v{y}, v{y+1}')
    a(f"""
    s_lshl_b32 s26, s3, 11
    s_add_u32 s26, s26, {RED + 16384}
    v_lshlrev_b32 v120, 6, v6
    v_lshl_add_u32 v120, v7, 3, v120
    v_add_u32 v120, s26, v120
    v_lshl_add_u32 v123, v2, 4, s26
    s_lshl_b32 s26, s19, 12
    s_lshl_b32 s27, s18, 11
    s_add_u32 s26, s26, s27
    v_lshl_add_u32 v121, v2, 4, s26
    """)
    for rq in range(4):
        a(f'ds_write_b64 v120, v[{104+2*rq}:{105+2*rq}] offset:{16*rq}')
    a('s_waitcnt lgkmcnt(0)')
    a('ds_read_b128 v[8:11], v123')
    a('ds_read_b128 v[12:15], v123 offset:1024')
    a('s_waitcnt lgkmcnt(0)')
    a('global_store_dwordx4 v121, v[8:11], s[22:23]')
    a('global_store_dwordx4 v121, v[12:15], s[22:23] offset:1024')
    trace_end(1)
    a.label('K2_exit')
    a.end_kernel(name, (256,1,1), (256,1,1), RED + 16384 + 8192, 136)

GC1 = 2 * 0.7978845608028654 * LOG2E
GC2 = GC1 * 0.044715

def dma_lane_off(dst, lane, rs_sgpr_or_imm, t1, t2):
    a(f'v_lshrrev_b32 v{t1}, 5, v{lane}')
    a(f'v_lshlrev_b32 v{t1}, 3, v{t1}')
    a(f'v_bfe_u32 v{t2}, v{lane}, 3, 2')
    a(f'v_add_u32 v{t1}, v{t1}, v{t2}')
    a(f'v_mul_u32_u24 v{dst}, {rs_sgpr_or_imm}, v{t1}')
    a(f'v_bfe_u32 v{t1}, v{lane}, 1, 2')
    a(f'v_bfe_u32 v{t2}, v{lane}, 4, 2')
    a(f'v_xor_b32 v{t1}, v{t1}, v{t2}')
    a(f'v_lshl_add_u32 v{dst}, v{t1}, 5, v{dst}')
    a(f'v_and_b32 v{t1}, 1, v{lane}')
    a(f'v_lshl_add_u32 v{dst}, v{t1}, 4, v{dst}')

def tr_lane_base(dst, fdst, lane, t1, t2):
    a(f'v_lshrrev_b32 v{t1}, 5, v{lane}')
    a(f'v_lshlrev_b32 v{t1}, 4, v{t1}')
    a(f'v_bfe_u32 v{t2}, v{lane}, 2, 3')
    a(f'v_add_u32 v{t1}, v{t1}, v{t2}')
    a(f'v_lshlrev_b32 v{dst}, 7, v{t1}')
    a(f'v_and_b32 v{t1}, 3, v{lane}')
    a(f'v_lshl_add_u32 v{dst}, v{t1}, 3, v{dst}')
    a(f'v_lshrrev_b32 v{fdst}, 1, v{t2}')

def gelu_pairs(zs, CK, T, G=4):
    for i0 in range(0, len(zs), G):
        grp = list(enumerate(zs[i0:i0+G]))
        for i, z in grp:
            a(f'v_pk_mul_f32 v[{T+2*i}:{T+2*i+1}], v[{z}:{z+1}], v[{z}:{z+1}]')
        for i, z in grp:
            t = T+2*i
            a(f'v_pk_fma_f32 v[{t}:{t+1}], v[{t}:{t+1}], v[{CK}:{CK+1}], v[{CK}:{CK+1}] op_sel:[0,1,0] op_sel_hi:[1,1,0]')
        for i, z in grp:
            t = T+2*i
            a(f'v_pk_mul_f32 v[{t}:{t+1}], v[{t}:{t+1}], v[{z}:{z+1}]')
        for i, z in grp:
            t = T+2*i
            a(f'v_exp_f32 v{t}, -v{t}')
            a(f'v_exp_f32 v{t+1}, -v{t+1}')
        if len(grp) < 2: a('s_nop 0')
        for i, z in grp:
            t = T+2*i
            a(f'v_pk_add_f32 v[{t}:{t+1}], v[{t}:{t+1}], v[{CK+2}:{CK+3}]')
        for i, z in grp:
            t = T+2*i
            a(f'v_rcp_f32 v{t}, v{t}')
            a(f'v_rcp_f32 v{t+1}, v{t+1}')
        if len(grp) < 2: a('s_nop 0')
        for i, z in grp:
            t = T+2*i
            a(f'v_pk_mul_f32 v[{z}:{z+1}], v[{z}:{z+1}], v[{t}:{t+1}]')

def affine_round(zs, css, AB, T, G=4):
    for i0 in range(0, len(zs), G):
        grp = list(enumerate(zip(zs[i0:i0+G], css[i0:i0+G])))
        for i, (z, cs) in grp:
            a(f'v_pk_mul_f32 v[{T+2*i}:{T+2*i+1}], v[{cs}:{cs+1}], v[{AB}:{AB+1}] op_sel:[0,1] op_sel_hi:[1,1]')
        for i, (z, cs) in grp:
            a(f'v_pk_fma_f32 v[{z}:{z+1}], v[{z}:{z+1}], v[{AB}:{AB+1}], v[{T+2*i}:{T+2*i+1}] op_sel_hi:[1,0,1] neg_lo:[0,0,1] neg_hi:[0,0,1]')
        for i, (z, cs) in grp:
            a(f'v_cvt_pk_bf16_f32 v{T+2*i}, v{z}, v{z+1}')
        for i, (z, cs) in grp:
            unpack(z, z+1, T+2*i)

def round_pair(z, t):
    a(f'v_cvt_pk_bf16_f32 v{t}, v{z}, v{z+1}')
    unpack(z, z+1, t)

def gemm64_main(X, WF, ACC, vW, nsteps=16, st0=0):
    def loads(st, sb):
        for cb in range(4):
            for h in range(2):
                r = WF + 16*sb + 4*cb + 2*h
                a(f'ds_read_b64_tr_b16 v[{r}:{r+1}], v{vW+cb} offset:{(st0+st)*4096 + h*1024}')
    loads(0, 0)
    for st in range(nsteps):
        if st + 1 < nsteps:
            loads(st+1, (st+1) & 1)
            a('s_waitcnt lgkmcnt(8)')
        else:
            a('s_waitcnt lgkmcnt(0)')
        for cb in range(4):
            w = WF + 16*(st & 1) + 4*cb
            c = ACC + 4*cb
            a(f'v_mfma_f32_16x16x32_bf16 v[{c}:{c+3}], v[{w}:{w+3}], v[{X+4*st}:{X+4*st+3}], v[{c}:{c+3}]')

def dma_tile(srd, vOff, sOff, sM0, step_bytes, n=16):
    for ii in range(n):
        a(f's_mov_b32 m0, s{sM0}')
        a(f's_add_u32 s{sM0}, s{sM0}, 4096')
        a(f'buffer_load_dwordx4 v{vOff}, s[{srd}:{srd+3}], s{sOff} offen lds')
        if ii < n-1:
            a(f's_add_u32 s{sOff}, s{sOff}, {step_bytes}')

def mk_srd(dst, lo, nbytes):
    a(f's_mov_b32 s{dst}, s{lo}')
    a(f's_mov_b32 s{dst+1}, s{lo+1}')
    a(f's_mov_b32 s{dst+2}, {nbytes}')
    a(f's_mov_b32 s{dst+3}, 0x00020000')

def gen_k3():
    global SV
    SV = 160
    name = 'k3_kernel'
    a.begin_kernel(name)
    a(f"""
    s_cmp_ge_u32 s2, 256
    s_cbranch_scc1 K3_exit
    s_load_dwordx2 s[4:5], s[0:1], {KA['ws']}
    s_load_dwordx2 s[6:7], s[0:1], {KA['w1']}
    """)
    trace_begin()
    a(f"""
    v_lshrrev_b32 v1, 6, v0
    v_and_b32 v2, 63, v0
    v_readfirstlane_b32 s3, v1         ; wave
    s_bfe_u32 s16, s2, 0x30003
    s_and_b32 s17, s2, 7
    s_lshl_b32 s17, s17, 2
    s_lshr_b32 s19, s2, 6
    s_add_u32 s17, s17, s19
    s_lshr_b32 s18, s3, 1
    s_lshl_b32 s18, s18, 4
    s_and_b32 s19, s3, 1
    s_lshl_b32 s19, s19, 2
    s_add_u32 s18, s18, s19            ; krow0 = 16(w>>1)+4(w&1)
    """)
    dma_lane_off(3, 2, 4096, 5, 6)
    dma_lane_off(4, 2, 1024, 5, 6)
    a('s_waitcnt lgkmcnt(0)')
    ws_ptr(8, 4, 'HT')
    a(f"""
    s_mov_b32 s10, {2*MB}
    s_mov_b32 s11, 0x00020000
    """)
    mk_srd(12, 6, 512*1024)
    a(f"""
    s_lshl_b32 s20, s18, 12
    s_lshl_b32 s21, s17, 7
    s_add_u32 s20, s20, s21
    s_lshl_b32 s22, s3, 10             ; m0 = w*1024
    """)
    dma_tile(8, 3, 20, 22, 32*4096)
    a(f"""
    s_lshl_b32 s20, s18, 10
    s_lshl_b32 s21, s16, 7
    s_add_u32 s20, s20, s21            ; W1 soffset
    """)
    dma_tile(12, 4, 20, 22, 32*1024)
    ws_ptr(24, 4, 'HR'); ws_ptr(26, 4, 'G1'); ws_ptr(28, 4, 'CS'); ws_ptr(30, 4, 'ST1')
    tr_lane_base(5, 6, 2, 7, 8)
    a('v_xor_b32 v7, s3, v6')
    a('v_lshl_add_u32 v9, v7, 5, v5')
    for cb in range(4):
        a(f'v_xor_b32 v7, {cb}, v6')
        a(f'v_lshl_add_u32 v{10+cb}, v7, 5, v5')
        a(f'v_add_u32 v{10+cb}, 0x10000, v{10+cb}')
    a(f"""
    v_and_b32 v14, 15, v2
    v_lshrrev_b32 v15, 4, v2
    s_lshl_b32 s21, s17, 6
    s_lshl_b32 s23, s3, 4
    s_add_u32 s21, s21, s23
    v_add_u32 v14, s21, v14            ; token
    v_lshlrev_b32 v16, 3, v14
    v_lshlrev_b32 v14, 10, v14
    s_lshl_b32 s23, s21, 10
    v_lshl_add_u32 v17, v2, 4, s23
    s_lshl_b32 s21, s16, 8
    v_lshl_add_u32 v18, v15, 4, s21
    """)
    CSR = 20
    for cb in range(4):
        a(f'global_load_dwordx4 v[{CSR+4*cb}:{CSR+4*cb+3}], v18, s[28:29] offset:{64*cb}')
    X = 64
    WF = 128
    ACC = 36
    GR = 52; SU = 56; ONE = 60
    for i in range(24):
        a(f'v_mov_b32 v{36+i}, 0')
    for i in range(4):
        a(f'v_mov_b32 v{ONE+i}, 0x3f803f80')
    a('s_waitcnt vmcnt(20)')
    a('s_barrier')
    for st in range(16):
        for h in range(2):
            a(f'ds_read_b64_tr_b16 v[{X+4*st+2*h}:{X+4*st+2*h+1}], v9 offset:{st*4096 + h*1024}')
    for st in range(16):
        a(f's_waitcnt lgkmcnt({min(15, 30-2*st)})')
        x = X + 4*st
        a(f'v_mfma_f32_16x16x32_bf16 v[{GR}:{GR+3}], v[{x}:{x+3}], v[{x}:{x+3}], v[{GR}:{GR+3}]')
        a(f'v_mfma_f32_16x16x32_bf16 v[{SU}:{SU+3}], v[{ONE}:{ONE+3}], v[{x}:{x+3}], v[{SU}:{SU+3}]')
    for j in range(8):
        l = a.newlabel('K3_hr')
        a(f's_cmp_lg_u32 s16, {j}')
        a(f's_cbranch_scc1 {l}')
        a(f'v_add_u32 v17, {2048*j}, v17')
        for st in (2*j, 2*j+1):
            a(f'global_store_dwordx4 v17, v[{X+4*st}:{X+4*st+3}], s[24:25] offset:{1024*(st&1)}')
        a.label(l)
    a('s_waitcnt vmcnt(2)')
    a('s_barrier')
    gemm64_main(X, WF, ACC, 10)
    a(f"""
    v_and_b32 v7, 3, v2
    v_cmp_eq_u32 vcc, 1, v7
    v_cmp_eq_u32 s[32:33], 2, v7
    v_cmp_eq_u32 s[34:35], 3, v7
    v_and_b32 v8, 15, v2
    v_lshrrev_b32 v7, 2, v8
    v_cndmask_b32 v{GR}, v{GR}, v{GR+1}, vcc
    v_cndmask_b32 v{GR}, v{GR}, v{GR+2}, s[32:33]
    v_cndmask_b32 v{GR}, v{GR}, v{GR+3}, s[34:35]
    v_lshl_add_u32 v7, v7, 4, v8
    v_lshlrev_b32 v7, 2, v7
    ds_bpermute_b32 v{GR}, v7, v{GR}
    v_mul_f32 v{SU}, {hx(1/512)}, v{SU}          ; mean1
    s_waitcnt lgkmcnt(0)
    v_mul_f32 v{GR}, {hx(1/512)}, v{GR}
    v_fma_f32 v{GR}, -v{SU}, v{SU}, v{GR}        ; var1
    v_max_f32 v{GR}, 0, v{GR}
    v_mov_b32 v{SU+1}, v{SU}
    v_mov_b32 v{GR+1}, v{GR}
    """)
    ln_scalars(SU, GR, 7)
    a(f"""
    v_sub_f32 v{SU+1}, v{SU+1}, v{SU}
    v_mul_f32 v{SU+1}, v{SU+1}, v{GR}            ; mean2
    v_mul_f32 v{GR+1}, v{GR+1}, v{GR}
    v_mul_f32 v{GR+1}, v{GR+1}, v{GR}            ; var2
    """)
    ln_scalars(SU+1, GR+1, 7)
    a(f"""
    v_mul_f32 v{ONE}, v{GR}, v{GR+1}             ; alpha
    v_fma_f32 v{ONE+1}, v{GR}, v{SU}, v{SU+1}
    v_mul_f32 v{ONE+1}, v{ONE+1}, v{GR+1}        ; beta
    v_mov_b32 v{SU+2}, v{SU}
    v_mov_b32 v{SU+3}, v{GR}
    v_mov_b32 v128, {hx(GC1)}
    v_mov_b32 v129, {hx(GC2)}
    v_mov_b32 v130, 1.0
    v_mov_b32 v131, 1.0
    s_cmp_lg_u32 s16, 0
    s_cbranch_scc1 K3_nost
    v_cmp_gt_u32 vcc, 16, v2
    s_and_saveexec_b64 s[32:33], vcc
    global_store_dwordx2 v16, v[{SU+2}:{SU+3}], s[30:31]
    s_mov_b64 exec, s[32:33]
    """)
    a.label('K3_nost')
    affine_round([ACC+2*p for p in range(8)], [CSR+2*p for p in range(8)], ONE, 144)
    gelu_pairs([ACC+2*p for p in range(8)], 128, 144)
    O = 136
    for p in range(8):
        a(f'v_cvt_pk_bf16_f32 v{O+p}, v{ACC+2*p}, v{ACC+2*p+1}')
    a(f"""
    v_and_b32 v7, 1, v15
    v_lshrrev_b32 v8, 1, v15
    v_lshl_add_u32 v7, v7, 1, v8
    v_and_b32 v8, 15, v2
    v_lshl_add_u32 v7, v7, 4, v8
    s_lshl_b32 s21, s16, 11
    s_add_u32 s21, s21, s23
    v_lshl_add_u32 v7, v7, 4, s21
    """)
    for P in range(2):
        o = O + 4*P
        a(f'v_permlane16_swap_b32 v{o}, v{o+2}')
        a(f'v_permlane16_swap_b32 v{o+1}, v{o+3}')
    a('s_nop 1')
    for P in range(2):
        o = O + 4*P
        a(f'global_store_dwordx4 v7, v[{o}:{o+3}], s[26:27] offset:{1024*P}')
    trace_end(2)
    a.label('K3_exit')
    a.end_kernel(name, (256,1,1), (256,1,1), 131072, 168)

class Ring:
    def __init__(self, TT, NT, nch, nslots, a_rs, w_rs, wfmt, vAsrc, vWsrc, vAr, vWr, FB, ACC, rot=False, shifts=None, vTmp=None):
        self.__dict__.update(locals())
        self.ABY = 4 * TT * 16 * 256
        self.WBY = 128 * (128 if wfmt == 128 else 224)
        self.SLOT = self.ABY + self.WBY
        self.na = TT * 4
        self.nw = 4 if wfmt == 128 else 7
    def setup_addrs(self, t1, t2, t3):
        r = self
        a(f'v_lshrrev_b32 v{t1}, 4, v2')
        a(f'v_and_b32 v{t2}, 15, v2')
        a(f'v_xor_b32 v{t2}, v{t2}, v{t1}')
        a(f'v_mul_u32_u24 v{t1}, {r.a_rs}, v{t1}')
        a(f'v_add_u32 v{t1}, v{t1}, v{r.vTmp}')
        for i in range(4):
            a(f'v_xor_b32 v{t3}, {4*i}, v{t2}')
            a(f'v_lshl_add_u32 v{r.vAsrc+i}, v{t3}, 4, v{t1}')
        a(f'v_and_b32 v{t1}, 15, v2')
        a(f'v_lshrrev_b32 v{t2}, 4, v2')
        a(f'v_xor_b32 v{t2}, v{t2}, v{t1}')
        a(f'v_lshlrev_b32 v{t1}, 8, v{t1}')
        a(f's_mul_i32 s21, s3, {r.TT*4096}')
        a(f'v_add_u32 v{t1}, s21, v{t1}')
        for i in range(4):
            a(f'v_xor_b32 v{t3}, {4*i}, v{t2}')
            a(f'v_lshl_add_u32 v{r.vAr+i}, v{t3}, 4, v{t1}')
        if r.wfmt == 128:
            dma_lane_off(r.vWsrc, 2, r.w_rs, t1, t2)
            tr_lane_base(t1, t2, 2, t3, r.vWr)
            for cb in range(4):
                a(f'v_xor_b32 v{t3}, {cb}, v{t2}')
                a(f'v_lshl_add_u32 v{r.vWr+cb}, v{t3}, 5, v{t1}')
                a(f'v_add_u32 v{r.vWr+cb}, {r.ABY}, v{r.vWr+cb}')
        else:
            for j in range(7):
                a(f'v_add_u32 v{t1}, {64*j}, v2')
                a(f'v_mul_u32_u24 v{t2}, 4682, v{t1}')
                a(f'v_lshrrev_b32 v{t2}, 16, v{t2}')
                a(f'v_mul_u32_u24 v{t3}, 14, v{t2}')
                a(f'v_sub_u32 v{t1}, v{t1}, v{t3}')
                a(f'v_and_b32 v{t3}, 0x13, v{t2}')
                a(f'v_bfe_u32 v{r.vWsrc+j}, v{t2}, 2, 1')
                a(f'v_lshl_or_b32 v{t3}, v{r.vWsrc+j}, 3, v{t3}')
                a(f'v_bfe_u32 v{r.vWsrc+j}, v{t2}, 3, 1')
                a(f'v_lshl_or_b32 v{t3}, v{r.vWsrc+j}, 2, v{t3}')
                a(f'v_mul_u32_u24 v{t3}, {r.w_rs}, v{t3}')
                a(f'v_lshl_add_u32 v{r.vWsrc+j}, v{t1}, 4, v{t3}')
            a(f'v_lshrrev_b32 v{t1}, 5, v2')
            a(f'v_lshlrev_b32 v{t1}, 4, v{t1}')
            a(f'v_bfe_u32 v{t2}, v2, 2, 3')
            a(f'v_add_u32 v{t1}, v{t1}, v{t2}')
            a(f'v_mul_u32_u24 v{t1}, 224, v{t1}')
            a(f'v_and_b32 v{t2}, 3, v2')
            a(f'v_lshl_add_u32 v{r.vWr}, v{t2}, 3, v{t1}')
            a(f'v_add_u32 v{r.vWr}, {r.ABY}, v{r.vWr}')
    def issue_groups(self, c):
        r = self
        G = []
        slot = c % r.nslots
        base = slot * r.SLOT
        pre = []
        if r.rot:
            pre += [f's_mul_i32 s35, s34, {128*r.w_rs}', 's_add_u32 s35, s35, s20', 's_lshl_b32 s36, s34, 8']
        else:
            pre += [f's_add_u32 s35, s20, {c*128*r.w_rs}', f's_movk_i32 s36, {c*256}']
        if r.wfmt == 128:
            pre += [f's_lshl_b32 s22, s3, 10', f's_add_u32 s22, s22, {base + r.ABY}']
            for i in range(4):
                g = ['s_mov_b32 m0, s22', 's_add_u32 s22, s22, 4096', f'buffer_load_dwordx4 v{r.vWsrc}, s[12:15], s35 offen lds']
                if i < 3: g.append(f's_add_u32 s35, s35, {32*r.w_rs}')
                G.append(pre + g); pre = []
        else:
            pre += [f's_mul_i32 s22, s3, 7168', f's_add_u32 s22, s22, {base + r.ABY}']
            for j in range(7):
                G.append(pre + ['s_mov_b32 m0, s22', 's_add_u32 s22, s22, 1024', f'buffer_load_dwordx4 v{r.vWsrc+j}, s[12:15], s35 offen lds']); pre = []
        pre = [f's_mul_i32 s22, s3, {r.TT*4096}']
        if base: pre.append(f's_add_u32 s22, s22, {base}')
        for i in range(r.na):
            g = ['s_mov_b32 m0, s22', 's_add_u32 s22, s22, 1024']
            if r.shifts:
                off = (4*i + r.shifts[c]) * r.a_rs
                if off >= 0: g.append(f'v_add_u32 v{r.vTmp}, {off}, v{r.vAsrc+(i&3)}')
                else: g.append(f'v_subrev_u32 v{r.vTmp}, {-off}, v{r.vAsrc+(i&3)}')
                g.append(f'buffer_load_dwordx4 v{r.vTmp}, s[8:11], s36 offen lds')
            else:
                g.append(f'buffer_load_dwordx4 v{r.vAsrc+(i&3)}, s[8:11], s36 offen lds')
                if i < r.na-1: g.append(f's_add_u32 s36, s36, {4*r.a_rs}')
            if i == r.na-1 and r.rot:
                g += ['s_add_u32 s34, s34, 1', f's_cmp_eq_u32 s34, {r.nch}', 's_cselect_b32 s34, 0, s34']
            G.append(pre + g); pre = []
        return G
    def issue(self, c):
        for g in self.issue_groups(c):
            for l in g: a(l)
    def compute(self, c, fillers):
        r = self
        FS = 4*(r.TT + r.NT)
        def loads(st, sb):
            f = r.FB + FS*sb
            for tt in range(r.TT):
                a(f'ds_read_b128 v[{f+4*tt}:{f+4*tt+3}], v{r.vAr+st} offset:{r.cur + tt*4096}')
            for cb in range(r.NT):
                for h in range(2):
                    d = f + 4*r.TT + 4*cb + 2*h
                    if r.wfmt == 128:
                        a(f'ds_read_b64_tr_b16 v[{d}:{d+1}], v{r.vWr+cb} offset:{r.cur + st*4096 + h*1024}')
                    else:
                        a(f'ds_read_b64_tr_b16 v[{d}:{d+1}], v{r.vWr} offset:{r.cur + st*7168 + h*1792 + 32*cb}')
        nl = r.TT + 2*r.NT
        nm = 4 * r.NT * r.TT
        fillers = list(fillers)
        every = max(1, nm // (len(fillers) + 1)) if fillers else 0
        loads(0, 0)
        loads(1, 1)
        for _ in range(min(2, len(fillers))):
            for l in fillers.pop(0): a(l)
        m = 0
        for st in range(4):
            a(f's_waitcnt lgkmcnt({min(15, nl) if st < 3 else 0})')
            f = r.FB + FS*(st & 1)
            for cb in range(r.NT):
                w = f + 4*r.TT + 4*cb
                for tt in range(r.TT):
                    cc = r.ACC + 4*r.NT*tt + 4*cb
                    a(f'v_mfma_f32_16x16x32_bf16 v[{cc}:{cc+3}], v[{w}:{w+3}], v[{f+4*tt}:{f+4*tt+3}], v[{cc}:{cc+3}]')
                    m += 1
                    if fillers and m % every == 0:
                        for l in fillers.pop(0): a(l)
            if st + 2 < 4:
                loads(st+2, st & 1)
        for g in fillers:
            for l in g: a(l)
    def bump(self, delta):
        r = self
        regs = [r.vAr+i for i in range(4)] + ([r.vWr+i for i in range(4)] if r.wfmt == 128 else [r.vWr])
        for v in regs:
            if delta > 0: a(f'v_add_u32 v{v}, {delta}, v{v}')
            else: a(f'v_subrev_u32 v{v}, {-delta}, v{v}')
    def prologue(self):
        r = self
        r.ahead = r.nslots if r.nch <= r.nslots else r.nslots - 1
        for c in range(min(r.nch, r.ahead)):
            r.issue(c)
    def run(self):
        r = self
        per = r.na + r.nw
        regbase = 0
        for c in range(r.nch):
            issued = min(r.nch, c + r.ahead)
            a(f's_waitcnt vmcnt({min(63, per*(issued - (c+1)))})')
            a('s_barrier')
            stamp([0,100,255], 1 + c)
            base = (c % r.nslots) * r.SLOT
            want = (base // 32768) * 32768 if r.SLOT * r.nslots > 65536 else 0
            if want != regbase:
                r.bump(want - regbase); regbase = want
            r.cur = base - regbase
            fill = r.issue_groups(c + r.ahead) if c + r.ahead < r.nch else []
            r.compute(c, fill)

class Ring3:
    def __init__(self, TT, NT, KC, nch, nslots, a_rs, w_rs, wfmt, FB, ACC, vAr, vWr, rot=False, shifts=None, LA=LA_DEF):
        self.__dict__.update(locals())
        self.RB = 64 * KC
        self.AW = TT * 16 * self.RB
        self.ABY = 4 * self.AW
        self.WBY = 32 * KC * (128 if wfmt == 128 else 224)
        self.SLOT = self.ABY + self.WBY
        self.na = self.AW // 1024
        self.nw = 4 if (wfmt == 128 or KC == 2) else 7
        self.rows_per = 1024 // self.RB
    def loader(self, tag):
        r = self
        vA, vW, vT = 8, 12, 24
        t1, t2, t3 = 3, 4, 5
        nv = 4 if r.KC == 4 else 2
        sh = 4 if r.KC == 4 else 3
        a(f'v_lshrrev_b32 v{t1}, {sh}, v2')
        a(f'v_mul_u32_u24 v{t1}, {r.a_rs}, v{t1}')
        a(f'v_add_u32 v{t1}, s38, v{t1}')
        a(f'v_and_b32 v{t2}, {(1 << sh) - 1}, v2')
        a(f'v_lshrrev_b32 v{t3}, 4, v2')
        a(f'v_xor_b32 v{t2}, v{t2}, v{t3}')
        for i in range(nv):
            a(f'v_xor_b32 v{t3}, {4*i}, v{t2}')
            a(f'v_lshl_add_u32 v{vA+i}, v{t3}, 4, v{t1}')
        if r.wfmt == 128:
            dma_lane_off(vW, 2, r.w_rs, t1, t2)
        else:
            assert r.KC == 2
            for i in range(4):
                a(f's_add_u32 s{60+i}, s3, {4*i}')
                a(f's_min_u32 s{60+i}, s{60+i}, 13')
                a(f's_cmp_ge_u32 s{60+i}, 7')
                a('s_cselect_b32 s21, 7, 0')
                a(f's_cselect_b32 s22, {32*r.w_rs}, 0')
                a(f's_sub_u32 s21, s{60+i}, s21')
                a('s_lshl_b32 s21, s21, 6')
                a(f'v_add_u32 v{t1}, s21, v2')
                a(f'v_mul_u32_u24 v{t2}, 4682, v{t1}')
                a(f'v_lshrrev_b32 v{t2}, 16, v{t2}')
                a(f'v_mul_u32_u24 v{t3}, 14, v{t2}')
                a(f'v_sub_u32 v{t1}, v{t1}, v{t3}')
                a(f'v_and_b32 v{t3}, 0x13, v{t2}')
                a(f'v_bfe_u32 v{vW+i}, v{t2}, 2, 1')
                a(f'v_lshl_or_b32 v{t3}, v{vW+i}, 3, v{t3}')
                a(f'v_bfe_u32 v{vW+i}, v{t2}, 3, 1')
                a(f'v_lshl_or_b32 v{t3}, v{vW+i}, 2, v{t3}')
                a(f'v_mul_u32_u24 v{t3}, {r.w_rs}, v{t3}')
                a(f'v_lshl_add_u32 v{vW+i}, v{t1}, 4, v{t3}')
                a(f'v_add_u32 v{vW+i}, s22, v{vW+i}')
                a(f's_lshl_b32 s{60+i}, s{60+i}, 10')
        def issue(c):
            base = (c % r.nslots) * r.SLOT
            if r.rot:
                a(f's_mul_i32 s35, s34, {32*r.KC*r.w_rs}')
                a('s_add_u32 s35, s35, s20')
                a(f's_mul_i32 s36, s34, {r.RB}')
            else:
                a(f's_add_u32 s35, s20, {c*32*r.KC*r.w_rs}')
                a(f's_movk_i32 s36, {c*r.RB}')
            a(f's_mul_i32 s22, s3, {r.AW}')
            if base: a(f's_add_u32 s22, s22, {base}')
            for i in range(r.na):
                a('s_mov_b32 m0, s22')
                a('s_add_u32 s22, s22, 1024')
                if r.shifts:
                    off = (r.rows_per*i + r.shifts[c]) * r.a_rs
                    if off >= 0: a(f'v_add_u32 v{vT}, {off}, v{vA+(i % nv)}')
                    else: a(f'v_subrev_u32 v{vT}, {-off}, v{vA+(i % nv)}')
                    a(f'buffer_load_dwordx4 v{vT}, s[8:11], s36 offen lds')
                else:
                    a(f'buffer_load_dwordx4 v{vA+(i % nv)}, s[8:11], s36 offen lds')
                    if i < r.na-1: a(f's_add_u32 s36, s36, {r.rows_per*r.a_rs}')
            if r.wfmt == 128:
                a(f's_lshl_b32 s22, s3, 10')
                a(f's_add_u32 s22, s22, {base + r.ABY}')
                for i in range(4):
                    a('s_mov_b32 m0, s22')
                    a('s_add_u32 s22, s22, 4096')
                    a(f'buffer_load_dwordx4 v{vW}, s[12:15], s35 offen lds')
                    if i < 3: a(f's_add_u32 s35, s35, {32*r.w_rs}')
            else:
                for i in range(4):
                    a(f's_add_u32 s22, s{60+i}, {base + r.ABY}')
                    a('s_mov_b32 m0, s22')
                    a('s_nop 0')
                    a(f'buffer_load_dwordx4 v{vW+i}, s[12:15], s35 offen lds')
            if r.rot:
                a('s_add_u32 s34, s34, 1')
                a(f's_cmp_eq_u32 s34, {r.nch}')
                a('s_cselect_b32 s34, 0, s34')
        per = r.na + r.nw
        issued = 0
        LA = r.LA
        for c in range(min(r.nch, LA0)):
            issue(c); issued += 1
        for c in range(r.nch):
            a(f's_waitcnt vmcnt({min(63, per*(issued - (c+1)))})')
            a('s_barrier')
            lim = min(r.nch - 1, c + LA, max(r.nslots - 1, c - 2 + r.nslots))
            while issued <= lim:
                issue(issued); issued += 1
    def comp_setup(self, t1, t2, t3):
        r = self
        a(f'v_and_b32 v{t1}, 15, v2')
        a(f'v_lshrrev_b32 v{t2}, 4, v2')
        if r.KC == 4:
            a(f'v_xor_b32 v{t2}, v{t2}, v{t1}')
        else:
            a(f'v_lshrrev_b32 v{t3}, 1, v{t1}')
            a(f'v_xor_b32 v{t2}, v{t2}, v{t3}')
        a(f'v_mul_u32_u24 v{t1}, {r.RB}, v{t1}')
        a(f's_mul_i32 s21, s3, {r.AW}')
        a(f'v_add_u32 v{t1}, s21, v{t1}')
        for i in range(r.KC):
            a(f'v_xor_b32 v{t3}, {4*i}, v{t2}')
            a(f'v_lshl_add_u32 v{r.vAr+i}, v{t3}, 4, v{t1}')
        if r.wfmt == 128:
            tr_lane_base(t1, t2, 2, t3, r.vWr)
            for cb in range(4):
                a(f'v_xor_b32 v{t3}, {cb}, v{t2}')
                a(f'v_lshl_add_u32 v{r.vWr+cb}, v{t3}, 5, v{t1}')
                a(f'v_add_u32 v{r.vWr+cb}, {r.ABY}, v{r.vWr+cb}')
        else:
            a(f'v_lshrrev_b32 v{t1}, 5, v2')
            a(f'v_lshlrev_b32 v{t1}, 4, v{t1}')
            a(f'v_bfe_u32 v{t2}, v2, 2, 3')
            a(f'v_add_u32 v{t1}, v{t1}, v{t2}')
            a(f'v_mul_u32_u24 v{t1}, 224, v{t1}')
            a(f'v_and_b32 v{t2}, 3, v2')
            a(f'v_lshl_add_u32 v{r.vWr}, v{t2}, 3, v{t1}')
            a(f'v_add_u32 v{r.vWr}, {r.ABY}, v{r.vWr}')
    def compute(self):
        r = self
        FS = 4*(r.TT + r.NT)
        nl = r.TT + 2*r.NT
        total = r.KC * r.nch
        state = dict(regbase=0)
        regs = [r.vAr+i for i in range(r.KC)] + ([r.vWr+i for i in range(4)] if r.wfmt == 128 else [r.vWr])
        def loads(s):
            c, st = divmod(s, r.KC)
            base = (c % r.nslots) * r.SLOT
            if st == 0:
                a('s_barrier')
                stamp([0,100,255], min(15, 1 + c))
                want = (base // 16384) * 16384
                d = want - state['regbase']
                if d:
                    for v in regs:
                        if d > 0: a(f'v_add_u32 v{v}, {d}, v{v}')
                        else: a(f'v_subrev_u32 v{v}, {-d}, v{v}')
                    state['regbase'] = want
            cur = base - state['regbase']
            f = r.FB + FS*(s & 1)
            for tt in range(r.TT):
                a(f'ds_read_b128 v[{f+4*tt}:{f+4*tt+3}], v{r.vAr+st} offset:{cur + tt*16*r.RB}')
            for cb in range(r.NT):
                for h in range(2):
                    d = f + 4*r.TT + 4*cb + 2*h
                    if r.wfmt == 128:
                        a(f'ds_read_b64_tr_b16 v[{d}:{d+1}], v{r.vWr+cb} offset:{cur + st*4096 + h*1024}')
                    else:
                        a(f'ds_read_b64_tr_b16 v[{d}:{d+1}], v{r.vWr} offset:{cur + st*7168 + h*1792 + 32*cb}')
        loads(0); loads(1)
        for s_ in range(total):
            a(f's_waitcnt lgkmcnt({min(15, nl) if s_ < total-1 else 0})')
            f = r.FB + FS*(s_ & 1)
            for cb in range(r.NT):
                w = f + 4*r.TT + 4*cb
                for tt in range(r.TT):
                    cc = r.ACC + 4*r.NT*tt + 4*cb
                    a(f'v_mfma_f32_16x16x32_bf16 v[{cc}:{cc+3}], v[{w}:{w+3}], v[{f+4*tt}:{f+4*tt+3}], v[{cc}:{cc+3}]')
            if s_ + 2 < total:
                loads(s_ + 2)

class Ring4:
    def __init__(self, TT, NT, nch, nslots, w_rs, wfmt, FB, ACC, vWr, X, XW, rot=False, LA=2):
        self.__dict__.update(locals())
        self.KC = 4
        self.SLOT = 128 * (128 if wfmt == 128 else 224)
        self.nw = 4 if wfmt == 128 else 7
    def loader(self):
        r = self
        vW = 12
        t1, t2, t3 = 3, 4, 5
        if r.wfmt == 128:
            dma_lane_off(vW, 2, r.w_rs, t1, t2)
        else:
            for j in range(7):
                a(f'v_add_u32 v{t1}, {64*j}, v2')
                a(f'v_mul_u32_u24 v{t2}, 4682, v{t1}')
                a(f'v_lshrrev_b32 v{t2}, 16, v{t2}')
                a(f'v_mul_u32_u24 v{t3}, 14, v{t2}')
                a(f'v_sub_u32 v{t1}, v{t1}, v{t3}')
                a(f'v_and_b32 v{t3}, 0x13, v{t2}')
                a(f'v_bfe_u32 v{vW+j}, v{t2}, 2, 1')
                a(f'v_lshl_or_b32 v{t3}, v{vW+j}, 3, v{t3}')
                a(f'v_bfe_u32 v{vW+j}, v{t2}, 3, 1')
                a(f'v_lshl_or_b32 v{t3}, v{vW+j}, 2, v{t3}')
                a(f'v_mul_u32_u24 v{t3}, {r.w_rs}, v{t3}')
                a(f'v_lshl_add_u32 v{vW+j}, v{t1}, 4, v{t3}')
        def issue(c):
            base = (c % r.nslots) * r.SLOT
            if r.rot:
                a(f's_mul_i32 s35, s34, {128*r.w_rs}')
                a('s_add_u32 s35, s35, s20')
            else:
                a(f's_add_u32 s35, s20, {c*128*r.w_rs}')
            if r.wfmt == 128:
                a(f's_lshl_b32 s22, s3, 10')
                if base: a(f's_add_u32 s22, s22, {base}')
                for i in range(4):
                    a('s_mov_b32 m0, s22')
                    a('s_add_u32 s22, s22, 4096')
                    a(f'buffer_load_dwordx4 v{vW}, s[12:15], s35 offen lds')
                    if i < 3: a(f's_add_u32 s35, s35, {32*r.w_rs}')
            else:
                a(f's_mul_i32 s22, s3, 7168')
                if base: a(f's_add_u32 s22, s22, {base}')
                for j in range(7):
                    a('s_mov_b32 m0, s22')
                    a('s_add_u32 s22, s22, 1024')
                    a(f'buffer_load_dwordx4 v{vW+j}, s[12:15], s35 offen lds')
            if r.rot:
                a('s_add_u32 s34, s34, 1')
                a(f's_cmp_eq_u32 s34, {r.nch}')
                a('s_cselect_b32 s34, 0, s34')
        per = r.nw
        issued = 0
        for c in range(min(r.nch, r.LA)):
            issue(c); issued += 1
        for c in range(r.nch):
            a(f's_waitcnt vmcnt({min(63, per*(issued - (c+1)))})')
            a('s_barrier')
            lim = min(r.nch - 1, c + r.LA, max(r.nslots - 1, c - 2 + r.nslots))
            while issued <= lim:
                issue(issued); issued += 1
    def comp_setup(self, t1, t2, t3):
        r = self
        if r.wfmt == 128:
            tr_lane_base(t1, t2, 2, t3, r.vWr)
            for cb in range(4):
                a(f'v_xor_b32 v{t3}, {cb}, v{t2}')
                a(f'v_lshl_add_u32 v{r.vWr+cb}, v{t3}, 5, v{t1}')
        else:
            a(f'v_lshrrev_b32 v{t1}, 5, v2')
            a(f'v_lshlrev_b32 v{t1}, 4, v{t1}')
            a(f'v_bfe_u32 v{t2}, v2, 2, 3')
            a(f'v_add_u32 v{t1}, v{t1}, v{t2}')
            a(f'v_mul_u32_u24 v{t1}, 224, v{t1}')
            a(f'v_and_b32 v{t2}, 3, v2')
            a(f'v_lshl_add_u32 v{r.vWr}, v{t2}, 3, v{t1}')
    def compute(self, aload, extra_vm=0):
        r = self
        FS = 4*r.NT
        nl = 2*r.NT
        total = 4 * r.nch
        state = dict(regbase=0)
        regs = [r.vWr+i for i in range(4)] if r.wfmt == 128 else [r.vWr]
        def loads(s):
            c, st = divmod(s, 4)
            base = (c % r.nslots) * r.SLOT
            if st == 0:
                a('s_barrier')
                want = (base // 32768) * 32768
                d = want - state['regbase']
                if d:
                    for v in regs:
                        if d > 0: a(f'v_add_u32 v{v}, {d}, v{v}')
                        else: a(f'v_subrev_u32 v{v}, {-d}, v{v}')
                    state['regbase'] = want
            cur = base - state['regbase']
            f = r.FB + FS*(s & 1)
            for cb in range(r.NT):
                for h in range(2):
                    d = f + 4*cb + 2*h
                    if r.wfmt == 128:
                        a(f'ds_read_b64_tr_b16 v[{d}:{d+1}], v{r.vWr+cb} offset:{cur + st*4096 + h*1024}')
                    else:
                        a(f'ds_read_b64_tr_b16 v[{d}:{d+1}], v{r.vWr} offset:{cur + st*7168 + h*1792 + 32*cb}')
        loads(0); loads(1)
        for s_ in range(total):
            issued_steps = min(total, s_ + r.XW)
            a(f's_waitcnt vmcnt({min(63, r.TT*(issued_steps - (s_+1)))}) lgkmcnt({min(15, nl) if s_ < total-1 else 0})')
            f = r.FB + FS*(s_ & 1)
            for cb in range(r.NT):
                w = f + 4*cb
                for tt in range(r.TT):
                    cc = r.ACC + 4*r.NT*tt + 4*cb
                    x = r.X + 4*(r.TT*(s_ % r.XW) + tt)
                    a(f'v_mfma_f32_16x16x32_bf16 v[{cc}:{cc+3}], v[{w}:{w+3}], v[{x}:{x+3}], v[{cc}:{cc+3}]')
            if s_ + 2 < total:
                loads(s_ + 2)
            if s_ + r.XW < total:
                aload(s_ + r.XW)

def store_tile64(O, vtok_row, sptr, scol, vt, lds_base_sgpr):
    a(f'v_and_b32 v{vt}, 15, v2')
    a(f'v_mul_u32_u24 v{vt}, 144, v{vt}')
    a(f'v_lshrrev_b32 v{vt+1}, 4, v2')
    a(f'v_lshl_add_u32 v{vt}, v{vt+1}, 3, v{vt}')
    a(f'v_add_u32 v{vt}, s{lds_base_sgpr}, v{vt}')
    for cb in range(4):
        a(f'ds_write_b64 v{vt}, v[{O+2*cb}:{O+2*cb+1}] offset:{32*cb}')
    a(f'v_lshrrev_b32 v{vt+1}, 3, v2')
    a(f'v_and_b32 v{vt+2}, 7, v2')
    a(f'v_mul_u32_u24 v{vt}, 144, v{vt+1}')
    a(f'v_lshl_add_u32 v{vt}, v{vt+2}, 4, v{vt}')
    a(f'v_add_u32 v{vt}, s{lds_base_sgpr}, v{vt}')
    a(f'v_lshlrev_b32 v{vt+1}, 10, v{vt+1}')
    a(f'v_lshl_add_u32 v{vt+1}, v{vt+2}, 4, v{vt+1}')
    a(f'v_add_u32 v{vt+1}, s{vtok_row}, v{vt+1}')
    a(f'v_add_u32 v{vt+1}, s{scol}, v{vt+1}')
    a(f'v_add_u32 v{vt+2}, 8192, v{vt+1}')
    a('s_waitcnt lgkmcnt(0)')
    a(f'ds_read_b128 v[{O}:{O+3}], v{vt}')
    a(f'ds_read_b128 v[{O+4}:{O+7}], v{vt} offset:{8*144}')
    a('s_waitcnt lgkmcnt(1)')
    a(f'global_store_dwordx4 v{vt+1}, v[{O}:{O+3}], s[{sptr}:{sptr+1}]')
    a('s_waitcnt lgkmcnt(0)')
    a(f'global_store_dwordx4 v{vt+2}, v[{O+4}:{O+7}], s[{sptr}:{sptr+1}]')

def wave_krow(dst):
    a(f"""
    s_lshr_b32 s{dst}, s3, 1
    s_lshl_b32 s{dst}, s{dst}, 4
    s_and_b32 s19, s3, 1
    s_lshl_b32 s19, s19, 2
    s_add_u32 s{dst}, s{dst}, s19
    """)

MAP64 = """
    s_bfe_u32 s16, s2, 0x30003
    s_and_b32 s17, s2, 7
    s_lshl_b32 s17, s17, 2
    s_lshr_b32 s19, s2, 6
    s_add_u32 s17, s17, s19
"""

def fra_epi_off(dst, t):
    a(f'v_lshrrev_b32 v{dst}, 1, v15')
    a(f'v_lshlrev_b32 v{dst}, 8, v{dst}')
    a(f'v_and_b32 v{t}, 15, v2')
    a(f'v_lshl_add_u32 v{dst}, v{t}, 4, v{dst}')
    a(f'v_and_b32 v{t}, 1, v15')
    a(f'v_lshl_add_u32 v{dst}, v{t}, 3, v{dst}')
    a('s_lshl_b32 s21, s16, 11')
    a('s_add_u32 s21, s21, s38')
    a(f'v_add_u32 v{dst}, s21, v{dst}')

def fra_store_off(dst, t):
    a(f"""
    v_and_b32 v{dst}, 1, v15
    v_lshrrev_b32 v{t}, 1, v15
    v_lshl_add_u32 v{dst}, v{dst}, 1, v{t}
    v_and_b32 v{t}, 15, v2
    v_lshl_add_u32 v{dst}, v{dst}, 4, v{t}
    s_lshl_b32 s21, s16, 11
    s_add_u32 s21, s21, s38
    v_lshl_add_u32 v{dst}, v{dst}, 4, s21
    """)

def gen_k4():
    global SV
    SV = 176
    name = 'k4_kernel'
    a.begin_kernel(name)
    a(f"""
    s_cmp_ge_u32 s2, 256
    s_cbranch_scc1 K4_exit
    s_load_dwordx2 s[4:5], s[0:1], {KA['ws']}
    s_load_dwordx2 s[6:7], s[0:1], {KA['w2']}
    """)
    trace_begin()
    a(f"""
    v_lshrrev_b32 v1, 6, v0
    v_and_b32 v2, 63, v0
    v_readfirstlane_b32 s24, v1
    s_and_b32 s3, s24, 3
    {MAP64}
    """)
    wave_krow(18)
    ACC = 36; FB = 64; X = 96
    R = Ring4(TT=1, NT=4, nch=4, nslots=4, w_rs=1024, wfmt=128, FB=FB, ACC=ACC, vWr=10, X=X, XW=16, LA=LA5)
    a(f"""
    s_lshl_b32 s39, s17, 6
    s_lshl_b32 s23, s3, 4
    s_add_u32 s39, s39, s23
    s_lshl_b32 s38, s39, 10
    s_lshl_b32 s20, s18, 10
    s_lshl_b32 s37, s16, 7
    s_add_u32 s20, s20, s37
    s_cmp_ge_u32 s24, 4
    s_cbranch_scc1 K4_loader
    v_and_b32 v14, 15, v2
    v_lshrrev_b32 v15, 4, v2
    v_add_u32 v14, s39, v14            ; token
    v_lshlrev_b32 v16, 3, v14
    v_lshlrev_b32 v19, 6, v14
    """)
    for q, sh in enumerate([-1, 1, -2, 2]):
        a(f'v_add_u32 v5, {sh}, v14')
        a('v_ashrrev_i32 v6, 4, v5')
        a('v_lshlrev_b32 v6, 14, v6')
        a('v_and_b32 v5, 15, v5')
        a('v_lshl_add_u32 v6, v5, 4, v6')
        a('v_lshl_add_u32 v6, v15, 8, v6')
        a(f'v_add_u32 v{52+q}, {4096*q}, v6')
    fra_epi_off(18, 5)
    a('s_waitcnt lgkmcnt(0)')
    ws_ptr(8, 4, 'G1')
    a(f's_mov_b32 s10, {2*MB}')
    a('s_mov_b32 s11, 0x00020000')
    ws_ptr(24, 4, 'HR'); ws_ptr(26, 4, 'X1'); ws_ptr(28, 4, 'ST3'); ws_ptr(30, 4, 'ST1')
    HRr = 20
    for cb in range(4):
        a(f'global_load_dwordx2 v[{HRr+2*cb}:{HRr+2*cb+1}], v18, s[24:25] offset:{512*cb}')
    a('global_load_dwordx2 v[28:29], v16, s[30:31]')
    for st in range(16):
        a(f'buffer_load_dwordx4 v[{X+4*st}:{X+4*st+3}], v{52+(st>>2)}, s[8:11], 0 offen offset:{1024*(st&3)}')
    R.comp_setup(5, 6, 7)
    for i in range(16):
        a(f'v_mov_b32 v{ACC+i}, 0')
    R.compute(None)
    a('v_mov_b32 v60, 0')
    a('v_mov_b32 v61, 0')
    a('v_mov_b32 v62, 0')
    a('v_mov_b32 v63, 0')
    a('s_nop 4')
    O = 168
    for p in range(8):
        c = ACC + 2*p
        round_pair(c, 164)
        unpack(30, 31, HRr + p)
        a('v_pk_add_f32 v[30:31], v[30:31], v[28:29] op_sel_hi:[1,0] neg_lo:[0,1] neg_hi:[0,1]')
        round_pair(30, 165)
        a('v_pk_mul_f32 v[30:31], v[30:31], v[28:29] op_sel:[0,1] op_sel_hi:[1,1]')
        round_pair(30, 165)
        a(f'v_pk_add_f32 v[{c}:{c+1}], v[{c}:{c+1}], v[30:31]')
        a(f'v_cvt_pk_bf16_f32 v{O+p}, v{c}, v{c+1}')
        unpack(c, c+1, O+p)
        a(f'v_pk_add_f32 v[60:61], v[60:61], v[{c}:{c+1}]')
        a(f'v_pk_fma_f32 v[62:63], v[{c}:{c+1}], v[{c}:{c+1}], v[62:63]')
    a('v_add_f32 v60, v60, v61')
    a('v_add_f32 v61, v62, v63')
    fra_store_off(7, 8)
    a('v_mov_b32 v62, v60')
    a('v_mov_b32 v63, v61')
    for P in range(2):
        o = O + 4*P
        a(f'v_permlane16_swap_b32 v{o}, v{o+2}')
        a(f'v_permlane16_swap_b32 v{o+1}, v{o+3}')
    a('v_permlane16_swap_b32 v60, v62')
    a('v_permlane16_swap_b32 v61, v63')
    for P in range(2):
        o = O + 4*P
        a(f'global_store_dwordx4 v7, v[{o}:{o+3}], s[26:27] offset:{1024*P}')
    a(f"""
    v_pk_add_f32 v[60:61], v[60:61], v[62:63]
    s_nop 0
    v_mov_b32 v62, v60
    v_mov_b32 v63, v61
    s_nop 1
    v_permlane32_swap_b32 v60, v62
    v_permlane32_swap_b32 v61, v63
    s_nop 1
    v_pk_add_f32 v[60:61], v[60:61], v[62:63]
    s_lshl_b32 s21, s16, 3
    v_add_u32 v19, s21, v19
    v_cmp_gt_u32 vcc, 16, v2
    s_and_saveexec_b64 s[32:33], vcc
    global_store_dwordx2 v19, v[60:61], s[28:29]
    s_mov_b64 exec, s[32:33]
    """)
    trace_end(3)
    a('s_endpgm')
    a.label('K4_loader')
    a('s_waitcnt lgkmcnt(0)')
    mk_srd(12, 6, 512*1024)
    R.loader()
    code_prefetch('k5_kernel', 'K_code_end', 30, 32, 40)
    a.label('K4_exit')
    a.end_kernel(name, (256,1,1), (512,1,1), 65536, 184)

def gen_k5():
    global SV
    SV = 200
    name = 'k5_kernel'
    a.begin_kernel(name)
    a(f"""
    s_cmp_ge_u32 s2, 256
    s_cbranch_scc1 K5_exit
    s_load_dwordx2 s[4:5], s[0:1], {KA['ws']}
    s_load_dwordx2 s[6:7], s[0:1], {KA['w3']}
    s_load_dwordx2 s[40:41], s[0:1], {KA['w4']}
    """)
    trace_begin()
    a(f"""
    v_lshrrev_b32 v1, 6, v0
    v_and_b32 v2, 63, v0
    v_readfirstlane_b32 s24, v1
    s_and_b32 s3, s24, 3
    s_bfe_u32 s16, s2, 0x40003
    s_and_b32 s17, s2, 7
    s_lshl_b32 s17, s17, 1
    s_lshr_b32 s19, s2, 7
    s_add_u32 s17, s17, s19
    """)
    ACC = 144; FB = 16; X = 72; XW = 8
    R = Ring4(TT=2, NT=7, nch=4, nslots=4, w_rs=3584, wfmt=224, FB=FB, ACC=ACC, vWr=10, X=X, XW=XW, LA=LA5)
    a(f"""
    s_lshl_b32 s39, s17, 7
    s_lshl_b32 s23, s3, 5
    s_add_u32 s39, s39, s23
    s_lshl_b32 s38, s39, 10
    s_mul_i32 s20, s3, {32*3584}
    s_mul_i32 s37, s16, 224
    s_add_u32 s20, s20, s37
    s_cmp_ge_u32 s24, 4
    s_cbranch_scc1 K5_loader
    v_and_b32 v14, 15, v2
    v_lshrrev_b32 v15, 4, v2
    v_add_u32 v14, s39, v14
    v_lshlrev_b32 v13, 6, v14
    s_mul_i32 s21, s16, 448
    v_lshl_add_u32 v8, v15, 4, s21
    v_lshl_add_u32 v11, v2, 4, s38
    v_add_u32 v12, 0x4000, v11         ; tt1
    s_waitcnt lgkmcnt(0)
    """)
    SV = 232
    gstamp(0)
    ws_ptr(8, 4, 'X1'); ws_ptr(24, 4, 'ST3'); ws_ptr(26, 4, 'HH'); ws_ptr(28, 4, 'CS', 2048)
    for tt in range(2):
        for q in range(4):
            r = ACC + 16*tt + 4*q
            a(f'global_load_dwordx4 v[{r}:{r+3}], v13, s[24:25] offset:{1024*tt + 16*q}')
    CSR = 204
    for cb in range(7):
        a(f'global_load_dwordx4 v[{CSR+4*cb}:{CSR+4*cb+3}], v8, s[28:29] offset:{64*cb}')
    def aload(st):
        if st % 4 == 0 and st:
            a('s_add_u32 s8, s8, 4096')
            a('s_addc_u32 s9, s9, 0')
        for tt in range(2):
            x = X + 4*(2*(st % XW) + tt)
            a(f'global_load_dwordx4 v[{x}:{x+3}], v{11+tt}, s[8:9] offset:{1024*(st&3)}')
    for st in range(XW):
        aload(st)
    gstamp(1)
    R.comp_setup(3, 4, 5)
    a(f's_waitcnt vmcnt({7 + 2*XW})')
    for tt in range(2):
        b = ACC + 16*tt
        for i in (8, 4, 2):
            for j in range(0, i, 2):
                a(f'v_pk_add_f32 v[{b+j}:{b+j+1}], v[{b+j}:{b+j+1}], v[{b+j+i}:{b+j+i+1}]')
        a(f'v_mul_f32 v{b}, {hx(1/512)}, v{b}')
        a(f'v_mul_f32 v{b+1}, {hx(1/512)}, v{b+1}')
        a(f'v_fma_f32 v{b+1}, -v{b}, v{b}, v{b+1}')
        a(f'v_max_f32 v{b+1}, 0, v{b+1}')
        ln_scalars(b, b+1, 3)
        a(f'v_mov_b32 v{4+2*tt}, v{b+1}')
        a(f'v_mul_f32 v{5+2*tt}, v{b}, v{b+1}')
    for i in range(56):
        a(f'v_mov_b32 v{ACC+i}, 0')
    gstamp(2)
    R.compute(aload)
    gstamp(3)
    a(f"""
    v_mov_b32 v72, {hx(GC1)}
    v_mov_b32 v73, {hx(GC2)}
    v_mov_b32 v74, 1.0
    v_mov_b32 v75, 1.0
    s_mul_i32 s21, s39, 3584
    s_mul_i32 s22, s16, 3584
    s_add_u32 s21, s21, s22
    v_and_b32 v3, 1, v15
    v_lshrrev_b32 v13, 1, v15
    v_and_b32 v8, 15, v2
    v_lshl_add_u32 v8, v8, 4, s21
    v_lshl_add_u32 v12, v3, 1, v13
    v_lshl_add_u32 v12, v12, 8, v8
    v_add_u32 v11, 57344, v12          ; tt1
    v_mul_u32_u24 v3, 57344, v3
    v_lshl_add_u32 v10, v13, 8, v8
    v_add_u32 v10, v10, v3
    """)
    O = 80
    for tt in range(2):
        zs = [ACC + 28*tt + 2*p for p in range(14)]
        affine_round(zs, [CSR + 2*p for p in range(14)], 4+2*tt, 64)
        gelu_pairs(zs, 72, 64)
        for p in range(14):
            d = O + 16*tt + p if p < 12 else 112 + 2*tt + (p - 12)
            a(f'v_cvt_pk_bf16_f32 v{d}, v{zs[p]}, v{zs[p]+1}')
        a('s_nop 1')
        for P in range(3):
            o = O + 16*tt + 4*P
            a(f'v_permlane16_swap_b32 v{o}, v{o+2}')
            a(f'v_permlane16_swap_b32 v{o+1}, v{o+3}')
        a('s_nop 1')
        for P in range(3):
            o = O + 16*tt + 4*P
            a(f'global_store_dwordx4 v{12-tt}, v[{o}:{o+3}], s[26:27] offset:{1024*P}')
    a('v_permlane16_swap_b32 v112, v114')
    a('v_permlane16_swap_b32 v113, v115')
    a('s_nop 1')
    a('global_store_dwordx4 v10, v[112:115], s[26:27] offset:3072')
    gstamp(4)
    if GST: a('s_waitcnt vmcnt(0)')
    gstamp(5)
    trace_end(4)
    a('s_endpgm')
    a.label('K5_loader')
    a('s_waitcnt lgkmcnt(0)')
    mk_srd(12, 6, 512*3584)
    R.loader()
    if PF5:
        a('v_and_b32 v0, 255, v0')
        l2_prefetch(40, 1792*1024, 24, 28, 21)
    a.label('K5_exit')
    a.end_kernel(name, (256,1,1), (512,1,1), 4*R.SLOT, 240)

def gen_k6():
    global SV
    SV = 176
    name = 'k6_kernel'
    a.begin_kernel(name)
    a(f"""
    s_cmp_ge_u32 s2, 256
    s_cbranch_scc1 K6_exit
    s_load_dwordx2 s[4:5], s[0:1], {KA['ws']}
    s_load_dwordx2 s[6:7], s[0:1], {KA['w4']}
    s_load_dwordx2 s[26:27], s[0:1], {KA['out']}
    """)
    trace_begin()
    a(f"""
    v_lshrrev_b32 v1, 6, v0
    v_and_b32 v2, 63, v0
    v_readfirstlane_b32 s24, v1
    s_and_b32 s3, s24, 3
    {MAP64}
    """)
    wave_krow(18)
    ACC = 36; FB = 64; X = 96; XW = 16
    R = Ring4(TT=1, NT=4, nch=14, nslots=8, w_rs=1024, wfmt=128, FB=FB, ACC=ACC, vWr=10, X=X, XW=XW, rot=True, LA=LA6)
    a(f"""
    s_lshl_b32 s39, s17, 6
    s_lshl_b32 s23, s3, 4
    s_add_u32 s39, s39, s23
    s_lshl_b32 s38, s39, 10
    s_lshl_b32 s20, s18, 10
    s_lshl_b32 s37, s16, 7
    s_add_u32 s20, s20, s37
    s_lshl_b32 s34, s17, 1
    s_add_u32 s34, s34, s16
    s_mul_hi_u32 s35, s34, 0x24924925
    s_mul_i32 s35, s35, 7
    s_sub_u32 s34, s34, s35
    s_lshl_b32 s34, s34, 1
    s_cmp_ge_u32 s24, 4
    s_cbranch_scc1 K6_loader
    v_lshrrev_b32 v15, 4, v2
    s_mul_i32 s21, s39, 3584
    v_lshl_add_u32 v17, v2, 4, s21
    s_lshl_b32 s36, s34, 12
    """)
    fra_epi_off(18, 5)
    a('s_waitcnt lgkmcnt(0)')
    ws_ptr(8, 4, 'HH'); ws_ptr(24, 4, 'HR'); ws_ptr(28, 4, 'X1')
    a(f's_mov_b32 s10, {2048*3584}')
    a('s_mov_b32 s11, 0x00020000')
    for cb in range(4):
        a(f'global_load_dwordx2 v[{20+2*cb}:{21+2*cb}], v18, s[24:25] offset:{512*cb}')
    for cb in range(4):
        a(f'global_load_dwordx2 v[{28+2*cb}:{29+2*cb}], v18, s[28:29] offset:{512*cb}')
    def aload(st):
        x = X + 4*(st % XW)
        a(f'buffer_load_dwordx4 v[{x}:{x+3}], v17, s[8:11], s36 offen offset:{1024*(st&3)}')
        if st % 4 == 3:
            a('s_add_u32 s36, s36, 4096')
            a('s_cmp_eq_u32 s36, 57344')
            a('s_cselect_b32 s36, 0, s36')
    for st in range(XW):
        aload(st)
    R.comp_setup(5, 6, 7)
    for i in range(16):
        a(f'v_mov_b32 v{ACC+i}, 0')
    R.compute(aload)
    a('s_nop 7')
    O = 168
    for p in range(8):
        c = ACC + 2*p
        round_pair(c, 60)
        unpack(62, 63, 28 + p)
        a(f'v_pk_add_f32 v[{c}:{c+1}], v[{c}:{c+1}], v[62:63]')
        round_pair(c, 60)
        unpack(62, 63, 20 + p)
        a(f'v_pk_add_f32 v[{c}:{c+1}], v[{c}:{c+1}], v[62:63]')
        a(f'v_cvt_pk_bf16_f32 v{O+p}, v{c}, v{c+1}')
    a(f's_mul_i32 s21, s3, 2560')
    a(f's_add_u32 s21, s21, {8*R.SLOT}')
    store_tile64(O, 38, 26, 37, 64, 21)
    trace_end(5)
    a('s_endpgm')
    a.label('K6_loader')
    a('s_waitcnt lgkmcnt(0)')
    mk_srd(12, 6, 1792*1024)
    R.loader()
    a.label('K6_exit')
    a.end_kernel(name, (256,1,1), (512,1,1), 8*R.SLOT + 10240, 184)
    a.label('K_code_end')

def main():
    gen_k1()
    gen_k2()
    gen_k3()
    gen_k4()
    gen_k5()
    gen_k6()

if __name__ == '__main__':
    out = sys.argv[1] if len(sys.argv) > 1 else 'k.s'
    if 'stamps' in sys.argv[2:]:
        STAMPS = True
    if 'trace' in sys.argv[2:]:
        TRACE = True
    if 'gst' in sys.argv[2:]:
        GST = True
    main()
    open(out, 'w').write(a.text(HEADER))
```

```python
import sys, struct
from asmlib import *
from gen_ws import WS, MB

KA = dict(x=0, Are=8, Aim=16, Bre=24, Bim=32, Cre=40, Cim=48, ldt=56, Dsk=64, Bx=72, w1=80, w2=88, w3=96, w4=104, out=112, dbg=120, ws=128)

def f2u(f):
    return struct.unpack('<I', struct.pack('<f', f))[0]
def hx(f):
    return hex(f2u(f))

LOG2E = 1.4426950408889634
LOG2E_HI = struct.unpack('<f', struct.pack('<f', LOG2E))[0]
LOG2E_LO = LOG2E - LOG2E_HI
LN2 = 0.6931471805599453
INV2PI = 0.15915494309189535

a = Asm()

def ws_ptr(dst, wsreg, name, extra=0):
    off = WS[name] + extra
    a(f's_add_u32 s{dst}, s{wsreg}, {hex(off)}')
    a(f's_addc_u32 s{dst+1}, s{wsreg+1}, 0')

def row16_allreduce(v):
    for sh in (8, 4, 2, 1):
        a('s_nop 1')
        a(f'v_add_f32_dpp v{v}, v{v}, v{v} row_ror:{sh} row_mask:0xf bank_mask:0xf')

def unpack(dlo, dhi, src):
    a(f'v_lshlrev_b32 v{dlo}, 16, v{src}')
    a(f'v_and_b32 v{dhi}, 0xffff0000, v{src}')

STAMPS = False
PREFETCH = True
NOPF2 = 'nopf2' in sys.argv
PF2W3 = 'pf2w3' in sys.argv
PF4 = 'pf4' in sys.argv
LA5 = int([x[3:] for x in sys.argv if x.startswith('l5_')][0]) if any(x.startswith('l5_') for x in sys.argv) else 2
LA6 = int([x[3:] for x in sys.argv if x.startswith('l6_')][0]) if any(x.startswith('l6_') for x in sys.argv) else 3
LA0 = int([x[3:] for x in sys.argv if x.startswith('lb_')][0]) if any(x.startswith('lb_') for x in sys.argv) else 2
LA_DEF = int([x[2:] for x in sys.argv if x.startswith('la')][0]) if any(x.startswith('la') for x in sys.argv) else 2
PF2 = 'pf2' in sys.argv
PF5 = 'nopf5' not in sys.argv
SV = 124
def stamp_init():
    if not STAMPS: return
    a(f's_load_dwordx2 s[90:91], s[0:1], {KA["dbg"]}')
def stamp(wg_list, slot):
    if not STAMPS: return
    l = a.newlabel('STP')
    a('s_memtime s[92:93]')
    a('s_waitcnt lgkmcnt(0)')
    a('v_readfirstlane_b32 s95, v0')
    a('s_nop 3')
    a('s_cmp_lg_u32 s95, 0')
    a(f's_cbranch_scc1 {l}')
    for i, wg in enumerate(wg_list):
        l2 = a.newlabel('STQ')
        a(f's_cmp_lg_u32 s2, {wg}')
        a(f's_cbranch_scc1 {l2}')
        a(f'v_mov_b32 v{SV+1}, s92')
        a(f'v_mov_b32 v{SV}, {(i*16+slot+16)*4}')
        a(f'global_store_dword v{SV}, v{SV+1}, s[90:91]')
        a.label(l2)
    a.label(l)

TRACE = False
GST = False
def gstamp(slot):
    if not GST: return
    l = a.newlabel('GST')
    a('s_memrealtime s[92:93]')
    a('v_readfirstlane_b32 s95, v0')
    a('s_waitcnt lgkmcnt(0)')
    a('s_cmp_lg_u32 s95, 0')
    a(f's_cbranch_scc1 {l}')
    a(f'v_mov_b32 v{SV+1}, s92')
    a('s_lshl_b32 s95, s2, 6')
    a(f's_add_u32 s95, s95, {40*MB + slot*4}')
    a(f'v_mov_b32 v{SV}, s95')
    a(f'global_store_dword v{SV}, v{SV+1}, s[4:5]')
    a.label(l)
def trace_begin():
    if not TRACE: return
    a('s_memrealtime s[96:97]')
    a('s_getreg_b32 s98, hwreg(HW_REG_HW_ID)')
    a('s_getreg_b32 s99, hwreg(HW_REG_XCC_ID)')
def trace_end(kidx):
    if not TRACE: return
    l = a.newlabel('TRC')
    a('s_mov_b64 exec, -1')
    a('s_memrealtime s[100:101]')
    a('v_readfirstlane_b32 s95, v0')
    a('s_waitcnt lgkmcnt(0)')
    a('s_cmp_lg_u32 s95, 0')
    a(f's_cbranch_scc1 {l}')
    a(f'v_mov_b32 v{SV}, s96')
    a(f'v_mov_b32 v{SV+1}, s100')
    a(f'v_mov_b32 v{SV+2}, s98')
    a(f'v_mov_b32 v{SV+3}, s99')
    a('s_lshl_b32 s95, s2, 4')
    a(f's_add_u32 s95, s95, {hex(32*MB + kidx*65536)}')
    a(f'v_mov_b32 v{SV+4}, s95')
    a(f'global_store_dwordx4 v{SV+4}, v[{SV}:{SV+3}], s[4:5]')
    a.label(l)

def l2_prefetch(sptr, total_bytes, vtmp, vdst, stmp):
    per = total_bytes // 32
    assert per % 4096 == 0
    a(f's_lshr_b32 s{stmp}, s2, 3')
    a(f's_mul_i32 s{stmp}, s{stmp}, {per}')
    a(f'v_lshl_add_u32 v{vtmp}, v0, 4, s{stmp}')
    for i in range(per // 4096):
        a(f'global_load_dwordx4 v[{vdst}:{vdst+3}], v{vtmp}, s[{sptr}:{sptr+1}]')
        if i < per // 4096 - 1:
            a(f's_add_u32 s{sptr}, s{sptr}, 4096')
            a(f's_addc_u32 s{sptr+1}, s{sptr+1}, 0')

CODEPF = 'nocpf' not in sys.argv
def code_prefetch(first_label, last_label, vt, vdst, sp):
    if not CODEPF: return
    l = a.newlabel('CPF')
    a(f's_getpc_b64 s[{sp}:{sp+1}]')
    a.label(l)
    a(f's_add_u32 s{sp}, s{sp}, {first_label}-{l}')
    a(f's_addc_u32 s{sp+1}, s{sp+1}, 0')
    a(f's_bfe_u32 s{sp+2}, s2, 0x50003')
    a(f's_lshl_b32 s{sp+2}, s{sp+2}, 10')
    a(f'v_and_b32 v{vt}, 63, v0')
    a(f'v_lshl_add_u32 v{vt}, v{vt}, 4, s{sp+2}')
    a(f'v_min_u32 v{vt}, {last_label}-{first_label}-16, v{vt}')
    a(f'global_load_dwordx4 v[{vdst}:{vdst+3}], v{vt}, s[{sp}:{sp+1}]')

def ln_scalars(S, Q, T):
    a(f'v_cvt_pk_bf16_f32 v{T}, v{S}, v{Q}')
    unpack(S, Q, T)
    a(f'v_add_f32 v{Q}, {hx(1e-5)}, v{Q}')
    a(f'v_cvt_pk_bf16_f32 v{T}, v{Q}, v{Q}')
    a(f'v_lshlrev_b32 v{Q}, 16, v{T}')
    a(f'v_sqrt_f32 v{Q}, v{Q}')
    a('s_nop 0')
    a(f'v_cvt_pk_bf16_f32 v{T}, v{Q}, v{Q}')
    a(f'v_lshlrev_b32 v{Q}, 16, v{T}')
    a(f'v_rcp_f32 v{Q}, v{Q}')
    a('s_nop 0')

def gen_k1():
    global SV
    SV = 96
    name = 'k1_kernel'
    SW = [0, 64, 82]
    a.begin_kernel(name)
    a(f"""
    s_cmp_ge_u32 s2, 274
    s_cbranch_scc1 K1_exit
    s_load_dwordx2 s[4:5], s[0:1], {KA['ws']}
    """)
    stamp_init(); stamp(SW, 0); trace_begin()
    a(f"""
    s_cmp_lt_u32 s2, 256
    s_cbranch_scc1 K1_kgen
    """)

    a(f"""
    s_sub_u32 s3, s2, 256            ; 0..17 : 0..3 -> w1 ; 4..17 -> w3
    s_load_dwordx2 s[6:7], s[0:1], {KA['w1']}
    s_load_dwordx2 s[8:9], s[0:1], {KA['w3']}
    s_movk_i32 s10, 1024
    s_lshl_b32 s11, s3, 8
    s_cmp_lt_u32 s3, 4
    s_waitcnt lgkmcnt(0)
    s_cbranch_scc1 K1_cs_w1
    s_mov_b32 s6, s8
    s_mov_b32 s7, s9
    s_movk_i32 s10, 3584
    s_sub_u32 s11, s11, 1024
    """)
    a.label('K1_cs_w1')
    a("""
    v_lshrrev_b32 v1, 4, v0          ; rg 0..31
    v_and_b32 v2, 15, v0
    v_mul_lo_u32 v3, v1, s10
    v_lshl_add_u32 v3, v2, 4, v3
    v_add_u32 v3, s11, v3
    s_lshl_b32 s12, s10, 5           ; 32 rows
    """)
    for i in range(16):
        a(f'global_load_dwordx4 v[{8+4*i}:{11+4*i}], v3, s[6:7]')
        if i < 15:
            a('s_add_u32 s6, s6, s12')
            a('s_addc_u32 s7, s7, 0')
    AC = 76
    for j in range(8):
        a(f'v_mov_b32 v{AC+j}, 0')
    for i in range(16):
        a(f's_waitcnt vmcnt({15-i})')
        for j in range(4):
            unpack(84+2*(j&1), 85+2*(j&1), 8+4*i+j)
            a(f'v_pk_add_f32 v[{AC+2*j}:{AC+2*j+1}], v[{AC+2*j}:{AC+2*j+1}], v[{84+2*(j&1)}:{85+2*(j&1)}]')
    a(f"""
    v_lshlrev_b32 v4, 5, v0          ; rg*512 + c*32
    ds_write_b128 v4, v[{AC}:{AC+3}]
    ds_write_b128 v4, v[{AC+4}:{AC+7}] offset:16
    v_lshlrev_b32 v5, 2, v0
    s_waitcnt lgkmcnt(0)
    s_barrier
    v_cmp_gt_u32 vcc, 128, v0
    s_and_saveexec_b64 s[14:15], vcc
    s_cbranch_execz K1_end
    """)
    for i in range(32):
        a(f'ds_read_b32 v{8+i}, v5 offset:{512*i}')
    ws_ptr(8, 4, 'CS')
    a('s_lshl_b32 s3, s3, 9')
    a('v_add_u32 v5, s3, v5')
    a('s_waitcnt lgkmcnt(0)')
    for st in (16, 8, 4, 2, 1):
        for i in range(st):
            a(f'v_add_f32 v{8+i}, v{8+i}, v{8+i+st}')
    a('global_store_dword v5, v8, s[8:9]')
    a('s_branch K1_end')

    a.label('K1_kgen')
    a(f"""
    s_load_dwordx4 s[8:11], s[0:1], {KA['Are']}
    s_load_dwordx4 s[12:15], s[0:1], {KA['Bre']}
    s_load_dwordx4 s[16:19], s[0:1], {KA['Cre']}
    s_load_dwordx2 s[20:21], s[0:1], {KA['ldt']}
    s_load_dwordx2 s[6:7], s[0:1], {KA['x']}
    s_lshl_b32 s3, s2, 1             ; d0
    v_lshrrev_b32 v1, 8, v0
    v_add_u32 v1, s3, v1             ; d
    v_lshrrev_b32 v2, 6, v0          ; wave
    v_and_b32 v3, 31, v0
    v_lshl_add_u32 v3, v2, 5, v3     ; (ch*128 + n)
    s_lshl_b32 s26, s3, 8
    v_lshlrev_b32 v14, 4, v3
    v_lshl_add_u32 v3, v3, 1, s26    ; d*256 + n*2
    v_lshlrev_b32 v4, 1, v1
    v_and_b32 v5, 15, v0             ; idx
    v_bfe_u32 v6, v0, 4, 2           ; nn
    s_lshl_b32 s26, s2, 13
    v_lshl_add_u32 v92, v0, 4, s26   ; (8wg + wave)*1024 + lane*16
    s_waitcnt lgkmcnt(0)
    global_load_ushort v7, v4, s[20:21]
    global_load_ushort v8, v3, s[8:9]
    global_load_ushort v9, v3, s[10:11]
    global_load_ushort v10, v3, s[12:13]
    global_load_ushort v11, v3, s[14:15]
    global_load_ushort v12, v3, s[16:17]
    global_load_ushort v13, v3, s[18:19]
    global_load_dwordx4 v[76:79], v92, s[6:7]
    """)
    ws_ptr(22, 4, 'KH'); ws_ptr(24, 4, 'KL')
    if PREFETCH:
        a(f"""
        s_load_dwordx4 s[28:31], s[0:1], {KA['w1']}
        s_load_dwordx4 s[32:35], s[0:1], {KA['w3']}
        s_mov_b32 s36, s2
        s_mul_i32 s37, s36, 7168
        v_min_u32 v44, 447, v0
        v_lshl_add_u32 v44, v44, 4, s37
        s_lshl_b32 s37, s36, 11
        v_and_b32 v45, 127, v0
        v_lshl_add_u32 v45, v45, 4, s37
        s_waitcnt lgkmcnt(0)
        global_load_dwordx4 v[72:75], v44, s[34:35]
        global_load_dwordx4 v[72:75], v44, s[32:33]
        global_load_dwordx4 v[72:75], v45, s[30:31]
        global_load_dwordx4 v[72:75], v45, s[28:29]
        """)
    code_prefetch('k2_kernel', 'k4_kernel', 44, 72, 36)
    a("""
    v_lshrrev_b32 v40, 3, v5
    v_lshlrev_b32 v40, 7, v40
    v_and_or_b32 v32, v5, 7, v40
    v_bfe_u32 v40, v5, 2, 1
    v_lshlrev_b32 v40, 7, v40
    v_and_b32 v41, 3, v5
    v_lshl_add_u32 v40, v41, 1, v40
    v_add_u32 v40, 256, v40
    v_bfe_u32 v41, v5, 1, 2
    v_lshlrev_b32 v41, 7, v41
    v_and_b32 v33, 1, v5
    v_lshl_add_u32 v41, v33, 2, v41
    v_add_u32 v41, 512, v41
    v_cmp_gt_u32 vcc, 8, v5
    v_lshlrev_b32 v34, 7, v5
    v_add_u32 v34, 1024, v34
    v_cndmask_b32 v33, v41, v40, vcc
    v_lshlrev_b32 v35, 3, v5
    v_cvt_f32_u32 v32, v32
    v_cvt_f32_u32 v33, v33
    v_cvt_f32_u32 v34, v34
    v_cvt_f32_u32 v35, v35
    v_mul_u32_u24 v42, 3072, v2
    v_add_u32 v42, 4096, v42
    v_lshrrev_b32 v40, 1, v6
    v_lshlrev_b32 v40, 7, v40
    v_and_b32 v41, 1, v6
    v_lshl_add_u32 v40, v41, 2, v40
    v_lshl_add_u32 v40, v5, 3, v40
    v_lshl_add_u32 v36, v40, 2, v42
    v_lshlrev_b32 v40, 6, v6
    v_add_u32 v40, 256, v40
    v_lshl_add_u32 v41, v5, 2, v40
    v_lshl_add_u32 v40, v5, 1, v40
    v_cmp_gt_u32 vcc, 2, v6
    v_mov_b32 v43, 32
    s_nop 0
    v_cndmask_b32 v40, v40, v41, vcc
    v_cndmask_b32 v43, v43, 2, vcc
    v_lshl_add_u32 v37, v40, 2, v42
    v_lshl_add_u32 v38, v43, 2, v37
    v_lshlrev_b32 v40, 6, v6
    v_add_u32 v40, v40, v5
    v_add_u32 v40, 512, v40
    v_lshl_add_u32 v39, v40, 2, v42
    v_lshlrev_b32 v15, 9, v2
    v_lshl_add_u32 v15, v6, 4, v15
    """)
    stamp(SW, 1)
    a(f's_waitcnt vmcnt({5 + CODEPF})')
    a(f"""
    v_lshlrev_b32 v7, 16, v7
    v_mul_f32 v40, {hx(LOG2E_HI)}, v7
    s_mov_b32 s26, {hx(LOG2E_HI)}
    v_fma_f32 v41, v7, s26, -v40
    v_mov_b32 v43, {hx(LOG2E_LO)}
    v_fmac_f32 v41, v7, v43
    v_exp_f32 v40, v40
    v_mul_f32 v41, {hx(LN2)}, v41
    v_lshlrev_b32 v8, 16, v8
    v_fmac_f32 v40, v40, v41
    v_cvt_pk_bf16_f32 v40, v40, v40
    v_lshlrev_b32 v7, 16, v40         ; dt
    v_lshlrev_b32 v9, 16, v9
    v_lshlrev_b32 v10, 16, v10
    v_lshlrev_b32 v11, 16, v11
    v_lshlrev_b32 v12, 16, v12
    v_lshlrev_b32 v13, 16, v13
    v_mul_f32 v16, v7, v8
    v_mul_f32 v17, v7, v9
    v_mul_f32 v16, {hx(LOG2E)}, v16
    v_mul_f32 v17, {hx(INV2PI)}, v17
    v_mul_f32 v10, v7, v10
    v_mul_f32 v11, v7, v11
    v_mul_f32 v18, v12, v10
    v_mul_f32 v19, v12, v11
    v_fma_f32 v18, -v13, v11, v18
    v_fmac_f32 v19, v13, v10
    ds_write_b128 v14, v[16:19]
    """)
    def ln_block():
        LB = 32768
        F = 80
        ws_ptr(28, 4, 'UT'); ws_ptr(30, 4, 'XT')
        a(f"""
        v_and_b32 v95, 63, v0
        v_mul_u32_u24 v28, 1056, v2
        v_lshl_add_u32 v28, v95, 4, v28
        ds_write_b128 v28, v[76:79] offset:{LB+8448}
        """)
        for i in range(4):
            unpack(F+2*i, F+2*i+1, 76+i)
        def wave_allreduce(v, t):
            row16_allreduce(v)
            a(f'v_mov_b32 v{t}, v{v}')
            a('s_nop 1')
            a(f'v_permlane16_swap_b32 v{v}, v{t}')
            a('s_nop 1')
            a(f'v_add_f32 v{v}, v{v}, v{t}')
            a(f'v_mov_b32 v{t}, v{v}')
            a('s_nop 1')
            a(f'v_permlane32_swap_b32 v{v}, v{t}')
            a('s_nop 1')
            a(f'v_add_f32 v{v}, v{v}, v{t}')
        a(f"""
        v_pk_add_f32 v[88:89], v[{F}:{F+1}], v[{F+2}:{F+3}]
        v_pk_add_f32 v[90:91], v[{F+4}:{F+5}], v[{F+6}:{F+7}]
        v_pk_add_f32 v[88:89], v[88:89], v[90:91]
        v_add_f32 v88, v88, v89
        """)
        wave_allreduce(88, 89)
        a(f'v_mul_f32 v88, {hx(1/512)}, v88')
        a('v_mov_b32 v90, 0')
        a('v_mov_b32 v91, 0')
        for i in range(4):
            a(f'v_pk_add_f32 v[92:93], v[{F+2*i}:{F+2*i+1}], v[88:89] op_sel_hi:[1,0] neg_lo:[0,1] neg_hi:[0,1]')
            a('v_pk_fma_f32 v[90:91], v[92:93], v[92:93], v[90:91]')
        a('v_add_f32 v90, v90, v91')
        wave_allreduce(90, 91)
        a(f'v_mul_f32 v90, {hx(1/512)}, v90')
        ln_scalars(88, 90, 92)
        for i in range(4):
            f0 = F+2*i
            a(f'v_pk_add_f32 v[{f0}:{f0+1}], v[{f0}:{f0+1}], v[88:89] op_sel_hi:[1,0] neg_lo:[0,1] neg_hi:[0,1]')
            a(f'v_cvt_pk_bf16_f32 v92, v{f0}, v{f0+1}')
            unpack(f0, f0+1, 92)
            a(f'v_pk_mul_f32 v[{f0}:{f0+1}], v[{f0}:{f0+1}], v[90:91] op_sel_hi:[1,0]')
            a(f'v_cvt_pk_bf16_f32 v{76+i}, v{f0}, v{f0+1}')
        a(f"""
        ds_write_b128 v28, v[76:79] offset:{LB}
        v_bfe_u32 v28, v0, 2, 2
        v_mul_u32_u24 v28, 1056, v28
        v_lshrrev_b32 v29, 4, v0
        v_lshlrev_b32 v29, 5, v29
        v_and_b32 v95, 3, v0
        v_lshlrev_b32 v95, 3, v95
        v_add3_u32 v28, v28, v29, v95
        v_lshrrev_b32 v94, 1, v0
        v_lshlrev_b32 v94, 13, v94
        v_and_b32 v95, 1, v0
        v_lshl_add_u32 v94, v95, 4, v94
        s_lshl_b32 s26, s2, 5
        v_add_u32 v94, s26, v94
        s_waitcnt lgkmcnt(0)
        s_barrier
        ds_read_b64_tr_b16 v[76:77], v28 offset:{LB}
        ds_read_b64_tr_b16 v[78:79], v28 offset:{LB+4224}
        ds_read_b64_tr_b16 v[80:81], v28 offset:{LB+8448}
        ds_read_b64_tr_b16 v[82:83], v28 offset:{LB+8448+4224}
        s_waitcnt lgkmcnt(2)
        global_store_dwordx4 v94, v[76:79], s[28:29]
        s_waitcnt lgkmcnt(0)
        global_store_dwordx4 v94, v[80:83], s[30:31]
        """)
    ACC = 60
    for i in range(12):
        a(f'v_mov_b32 v{ACC+i}, 0')
    a('s_waitcnt lgkmcnt(0)')
    a('ds_read_b128 v[16:19], v15')
    a('ds_read_b128 v[24:27], v15 offset:64')
    a('s_mov_b32 s27, 0')
    def split(H, L, R, t):
        a(f'v_cvt_pk_bf16_f32 v{H}, v{R}, v{R+1}')
        a(f'v_lshlrev_b32 v{t}, 16, v{H}')
        a(f'v_and_b32 v{t+1}, 0xffff0000, v{H}')
        a(f'v_pk_add_f32 v[{t}:{t+1}], v[{R}:{R+1}], v[{t}:{t+1}] neg_lo:[0,1] neg_hi:[0,1]')
        a(f'v_cvt_pk_bf16_f32 v{L}, v{t}, v{t+1}')
    for it in range(2):
        for u in range(4):
            P = 16 + 8*(u & 1)
            a(f's_waitcnt lgkmcnt({1})')
            a(f"""
            v_pk_mul_f32 v[44:45], v[{P}:{P+1}], v[34:35] op_sel:[0,1] op_sel_hi:[1,1]
            v_pk_mul_f32 v[46:47], v[{P}:{P+1}], v[32:33] op_sel:[0,0] op_sel_hi:[1,0]
            v_pk_mul_f32 v[48:49], v[{P}:{P+1}], v[32:33] op_sel:[0,1] op_sel_hi:[1,1]
            v_pk_mul_f32 v[50:51], v[{P}:{P+1}], v[34:35] op_sel:[0,0] op_sel_hi:[1,0]
            v_fract_f32 v45, v45
            v_fract_f32 v47, v47
            v_fract_f32 v49, v49
            v_fract_f32 v51, v51
            v_exp_f32 v44, v44
            v_cos_f32 v52, v45
            v_sin_f32 v53, v45
            v_exp_f32 v46, v46
            v_cos_f32 v54, v47
            v_sin_f32 v55, v47
            v_pk_mul_f32 v[52:53], v[52:53], v[44:45] op_sel_hi:[1,0]
            v_exp_f32 v48, v48
            v_cos_f32 v56, v49
            v_sin_f32 v57, v49
            v_pk_mul_f32 v[54:55], v[54:55], v[46:47] op_sel_hi:[1,0]
            v_pk_mul_f32 v[20:21], v[{P+2}:{P+3}], v[52:53] op_sel:[0,0] op_sel_hi:[0,1] neg_hi:[1,0]
            v_exp_f32 v50, v50
            v_cos_f32 v58, v51
            v_sin_f32 v59, v51
            v_pk_fma_f32 v[20:21], v[{P+2}:{P+3}], v[52:53], v[20:21] op_sel:[1,1,0] op_sel_hi:[1,0,1] neg_lo:[1,0,0] neg_hi:[1,0,0]
            v_pk_mul_f32 v[56:57], v[56:57], v[48:49] op_sel_hi:[1,0]
            v_pk_mul_f32 v[58:59], v[58:59], v[50:51] op_sel_hi:[1,0]
            ds_read_b128 v[{P}:{P+3}], v15 offset:{128+64*u}
            """)
            split(96+u, 100+u, 54, 44)
            split(120+u, 124+u, 20, 46)
            split(104+u, 108+u, 56, 48)
            split(112+u, 116+u, 58, 50)
        a('s_nop 1')
        a('v_add_u32 v15, 256, v15')
        for t in range(3):
            a(f'v_mfma_f32_16x16x32_bf16 v[{60+4*t}:{63+4*t}], v[{96+8*t}:{99+8*t}], v[120:123], v[{60+4*t}:{63+4*t}]')
        for t in range(3):
            a(f'v_mfma_f32_16x16x32_bf16 v[{60+4*t}:{63+4*t}], v[{96+8*t}:{99+8*t}], v[124:127], v[{60+4*t}:{63+4*t}]')
        for t in range(3):
            a(f'v_mfma_f32_16x16x32_bf16 v[{60+4*t}:{63+4*t}], v[{100+8*t}:{103+8*t}], v[120:123], v[{60+4*t}:{63+4*t}]')
        if it == 0:
            a(f's_waitcnt vmcnt({4 + CODEPF})')
            a('s_waitcnt lgkmcnt(0)')
            ln_block()
    a('s_waitcnt lgkmcnt(0)')
    a(f"""
    v_and_b32 v8, 63, v0
    v_bfe_u32 v9, v0, 6, 2
    v_lshlrev_b32 v8, 5, v8
    v_lshl_add_u32 v8, v9, 3, v8      ; s0 = 32a+8q
    v_cmp_gt_u32 vcc, 256, v8
    v_cvt_f32_u32 v9, v8
    v_lshrrev_b32 v11, 8, v0
    v_mul_u32_u24 v11, 12288, v11
    v_add_u32 v11, 4096, v11
    v_lshl_add_u32 v10, v8, 2, v11
    v_subrev_u32 v11, {4*(0x4380-256)}, v11
    """)
    for p in range(4):
        a(f'v_add_f32 v12, {hx(7.0-2*p)}, v9')
        a(f'v_add_f32 v13, {hx(6.0-2*p)}, v9')
        a('v_cvt_pk_bf16_f32 v12, v12, v13')
        a('v_lshrrev_b32 v13, 16, v12')
        a('v_and_b32 v12, 0xffff, v12')
        a('v_lshl_add_u32 v12, v12, 2, v11')
        a('v_lshl_add_u32 v13, v13, 2, v11')
        a(f'v_add_u32 v14, {4*(7-2*p)}, v10')
        a(f'v_add_u32 v16, {4*(6-2*p)}, v10')
        a(f'v_cndmask_b32 v{24+2*p}, v12, v14, vcc')
        a(f'v_cndmask_b32 v{25+2*p}, v13, v16, vcc')
    for rr in range(4):
        a(f'ds_write_b32 v36, v{60+rr} offset:{4*rr}')
    for rr in range(4):
        a(f'ds_write_b32 v{37+(rr>>1)}, v{64+rr} offset:{4*(rr&1)}')
    for rr in range(4):
        a(f'ds_write_b32 v39, v{68+rr} offset:{64*rr}')
    a("""
    s_lshl_b32 s26, s3, 12
    v_lshl_add_u32 v12, v0, 4, s26    ; d0*4096 + tid*16
    s_waitcnt lgkmcnt(0)
    s_barrier
    """)
    for kk in range(8):
        for w in range(4):
            a(f'ds_read_b32 v{32+4*kk+w}, v{24+kk} offset:{3072*w}')
    a('s_waitcnt lgkmcnt(0)')
    for kk in range(8):
        b = 32+4*kk
        a(f'v_add_f32 v{b}, v{b}, v{b+1}')
        a(f'v_add_f32 v{b+2}, v{b+2}, v{b+3}')
    for kk in range(8):
        b = 32+4*kk
        a(f'v_add_f32 v{b}, v{b}, v{b+2}')
    for p in range(4):
        k0, k1 = 32+8*p, 36+8*p
        a(f'v_cvt_pk_bf16_f32 v{64+p}, v{k0}, v{k1}')
        unpack(14, 15, 64+p)
        a(f'v_sub_f32 v{k0}, v{k0}, v14')
        a(f'v_sub_f32 v{k1}, v{k1}, v15')
        a(f'v_cvt_pk_bf16_f32 v{68+p}, v{k0}, v{k1}')
    a('global_store_dwordx4 v12, v[64:67], s[22:23]')
    a('global_store_dwordx4 v12, v[68:71], s[24:25]')
    a.label('K1_end')
    trace_end(0)
    a.label('K1_exit')
    a.end_kernel(name, (274,1,1), (512,1,1), 51200, 128)

def gen_k2():
    global SV
    SV = 128
    name = 'k2_kernel'
    CHB = 45568; KOFF = 33280; RED = 2 * CHB
    a.begin_kernel(name)
    a(f"""
    s_cmp_ge_u32 s2, 256
    s_cbranch_scc1 K2_exit
    s_load_dwordx2 s[4:5], s[0:1], {KA['ws']}
    s_load_dwordx2 s[6:7], s[0:1], {KA['Dsk']}
    s_load_dwordx4 s[40:43], s[0:1], {KA['w1']}
    s_load_dwordx2 s[44:45], s[0:1], {KA['w3']}
    """)
    trace_begin()
    a(f"""
    v_lshrrev_b32 v1, 6, v0            ; wave
    v_and_b32 v2, 63, v0               ; lane
    v_readfirstlane_b32 s30, v1
    s_and_b32 s3, s30, 3
    s_lshl_b32 s16, s2, 1              ; d0
    s_lshr_b32 s17, s3, 1              ; ch
    s_and_b32 s18, s3, 1
    s_add_u32 s19, s16, s17
    s_mul_i32 s20, s17, {CHB}
    s_lshl_b32 s26, s2, 13
    v_lshrrev_b32 v57, 1, v0           ; tau
    v_and_b32 v56, 1, v0               ; ch
    v_lshl_add_u32 v4, v0, 4, s26
    v_mul_u32_u24 v58, {CHB}, v56
    v_cmp_eq_u32 s[58:59], 0, v57
    v_subrev_u32 v5, 32, v4
    v_lshl_add_u32 v120, v57, 4, v58
    v_cndmask_b32 v5, v5, v4, s[58:59]
    v_add_u32 v120, 64, v120
    s_waitcnt lgkmcnt(0)
    """)
    ws_ptr(8, 4, 'UT')
    a("""
    global_load_dwordx4 v[8:11], v5, s[8:9]
    global_load_dwordx4 v[12:15], v4, s[8:9]
    s_cmp_ge_u32 s30, 4
    s_cbranch_scc1 K2_helper
    """)
    ws_ptr(10, 4, 'XT'); ws_ptr(22, 4, 'HT')
    a(f"""
    v_and_b32 v6, 31, v2
    v_lshrrev_b32 v7, 5, v2
    v_lshlrev_b32 v40, 6, v6
    v_lshl_add_u32 v40, v7, 3, v40
    s_lshl_b32 s27, s18, 11
    v_add_u32 v122, s27, v40
    s_lshl_b32 s26, s18, 5
    v_add_u32 v121, s26, v6
    v_lshlrev_b32 v121, 7, v121
    v_lshl_add_u32 v121, v7, 3, v121
    s_lshl_b32 s26, s2, 13
    s_lshl_b32 s27, s17, 4
    s_add_u32 s26, s26, s27
    v_add_u32 v121, s26, v121
    global_load_dwordx2 v[112:113], v121, s[10:11]
    global_load_dwordx2 v[114:115], v121, s[10:11] offset:32
    global_load_dwordx2 v[116:117], v121, s[10:11] offset:64
    global_load_dwordx2 v[118:119], v121, s[10:11] offset:96
    s_lshl_b32 s26, s19, 1
    v_mov_b32 v42, s26
    global_load_ushort v125, v42, s[6:7]
    v_and_b32 v45, 7, v6
    v_mul_u32_u24 v45, 4160, v45
    v_lshrrev_b32 v46, 3, v6
    v_lshl_add_u32 v45, v46, 4, v45
    v_lshlrev_b32 v46, 4, v7
    v_sub_u32 v45, v45, v46
    v_add_u32 v45, 32, v45
    v_add_u32 v126, s20, v45           ; vA'
    v_mul_u32_u24 v46, 1536, v7
    v_lshl_add_u32 v46, v6, 4, v46
    v_add_u32 v46, {KOFF + 512 - 16*63}, v46
    v_add_u32 v127, s20, v46           ; vB
    s_branch K2_copies
    """)
    a.label('K2_helper')
    ws_ptr(12, 4, 'KH')
    a(f"""
    s_mov_b32 s14, {4*MB}
    s_mov_b32 s15, 0x00020000
    s_lshl_b32 s24, s18, 21
    s_lshl_b32 s25, s19, 12
    s_add_u32 s24, s24, s25
    s_mul_i32 s25, s18, 6144
    s_add_u32 s25, s25, s20
    s_add_u32 s25, s25, {KOFF+512}
    v_lshlrev_b32 v3, 4, v2
    """)
    for q in range(4):
        a('s_mov_b32 m0, s25')
        a('s_nop 0')
        a('buffer_load_dwordx4 v3, s[12:15], s24 offen lds')
        if q < 3:
            a('s_add_u32 s24, s24, 1024')
            a('s_add_u32 s25, s25, 1536')
    a(f"""
    v_mov_b32 v48, 0
    v_mov_b32 v49, 0
    v_mov_b32 v50, 0
    v_mov_b32 v51, 0
    v_bfe_u32 v45, v0, 5, 3
    v_mul_u32_u24 v45, 1536, v45
    v_and_b32 v46, 31, v0
    v_lshl_add_u32 v45, v46, 4, v45
    ds_write_b128 v45, v[48:51] offset:{KOFF}
    v_add_u32 v45, {CHB}, v45
    ds_write_b128 v45, v[48:51] offset:{KOFF}
    v_bfe_u32 v45, v0, 2, 3
    v_mul_u32_u24 v45, 4160, v45
    v_and_b32 v46, 3, v0
    v_lshl_add_u32 v45, v46, 4, v45
    ds_write_b128 v45, v[48:51]
    ds_write_b128 v45, v[48:51] offset:{CHB}
    """)
    a.label('K2_copies')
    E = 8
    a('s_waitcnt vmcnt(4)')
    for i in range(4):
        a(f'v_cndmask_b32 v{E+i}, v{E+i}, 0, s[58:59]')
    for i in range(7):
        a(f'v_alignbit_b32 v{52+i}, v{E+i+1}, v{E+i}, 16')
    for i in range(6):
        a(f'v_alignbit_b32 v{60+i}, v{E+i+2}, v{E+i+1}, 16')
    for i in range(6):
        a(f'v_mov_b32 v{66+i}, v{E+i+1}')
    src = {7: E+4, 5: 68, 3: E+2, 1: 66, 0: 52, 2: 60, 4: 54, 6: 62}
    for c in range(8):
        r = src[c]
        a(f'ds_write_b128 v120, v[{r}:{r+3}] offset:{4160*c}')
    ACC = [72, 88]
    for i in range(32):
        a(f'v_mov_b32 v{72+i}, 0')
    a('s_waitcnt vmcnt(0) lgkmcnt(0)')
    a('s_barrier')
    a('s_cmp_lt_u32 s30, 4')
    a('s_cbranch_scc1 K2_main')
    code_prefetch('k4_kernel', 'k6_kernel', 60, 64, 28)
    if not NOPF2:
        a('v_and_b32 v0, 255, v0')
        l2_prefetch(40, 512*1024, 60, 64, 28)
        l2_prefetch(42, 512*1024, 61, 64, 28)
        if PF2W3:
            l2_prefetch(44, 512*3584, 62, 64, 28)
    a('s_endpgm')
    a.label('K2_main')
    a('s_cmp_eq_u32 s18, 1')
    a('s_cbranch_scc1 K2_roleB')
    def emit_units(units):
        def loads(u, setb):
            out = []; regs = []
            r = 8 + 24*setb if True else 0
            n = 0
            for (d, sl, tiles) in u:
                ra = r + 4*n; n += 1
                out.append(f'ds_read_b128 v[{ra}:{ra+3}], v126 offset:{64*d + 32*(1-sl)}')
                bs = []
                for T in tiles:
                    for arr in range(2):
                        rb = r + 4*n; n += 1
                        out.append(f'ds_read_b128 v[{rb}:{rb+3}], v127 offset:{sl*3072 + T*512 + 16*(63-d) + arr*6144}')
                        bs.append((T, rb))
                regs.append((ra, bs))
            assert n <= 6
            return out, regs
        cur_l, cur_r = loads(units[0], 0)
        for l in cur_l: a(l)
        for i, u in enumerate(units):
            if i + 1 < len(units):
                nl, nr = loads(units[i+1], (i+1) & 1)
                for l in nl: a(l)
                a(f's_waitcnt lgkmcnt({len(nl)})')
            else:
                a('s_waitcnt lgkmcnt(0)')
            for (ra, bs) in cur_r:
                for (T, rb) in bs:
                    c = ACC[T]
                    a(f'v_mfma_f32_32x32x16_bf16 v[{c}:{c+15}], v[{ra}:{ra+3}], v[{rb}:{rb+3}], v[{c}:{c+15}]')
            if i + 1 < len(units):
                cur_r = nr
    emit_units([[(d, sl, (0, 1))] for d in range(24) for sl in range(2)])
    a('s_nop 15')
    a('s_nop 3')
    a(f'v_lshlrev_b32 v123, 4, v0')
    a(f'v_add_u32 v123, {RED}, v123')
    for r4 in range(4):
        a(f'ds_write_b128 v123, v[{88+4*r4}:{91+4*r4}] offset:{4096*r4}')
    a('s_waitcnt lgkmcnt(0)')
    a('s_barrier')
    for r4 in range(4):
        a(f'ds_read_b128 v[{8+4*r4}:{11+4*r4}], v123 offset:{4096*r4 + 1024}')
    a('s_branch K2_fin')
    a.label('K2_roleB')
    emit_units([[(d, sl, (0, 1))] for d in range(24, 32) for sl in range(2)] +
               [[(d, 0, (1,)), (d, 1, (1,))] for d in range(32, 64)])
    a('s_nop 15')
    a('s_nop 3')
    a(f'v_lshlrev_b32 v123, 4, v0')
    a(f'v_add_u32 v123, {RED}, v123')
    for r4 in range(4):
        a(f'ds_write_b128 v123, v[{72+4*r4}:{75+4*r4}] offset:{4096*r4}')
    a('s_waitcnt lgkmcnt(0)')
    a('s_barrier')
    a('v_subrev_u32 v123, 1024, v123')
    for r4 in range(4):
        a(f'ds_read_b128 v[{8+4*r4}:{11+4*r4}], v123 offset:{4096*r4}')
    for i in range(16):
        a(f'v_mov_b32 v{72+i}, v{88+i}')
    a.label('K2_fin')
    a(f'v_add_u32 v122, s20, v122')
    for rq in range(4):
        a(f'ds_read_b64 v[{24+2*rq}:{25+2*rq}], v122 offset:{7*4160 + 64 + 16*rq}')
    a('v_lshlrev_b32 v124, 16, v125')
    a('s_waitcnt lgkmcnt(0)')
    for i in range(8):
        a(f'v_pk_add_f32 v[{72+2*i}:{73+2*i}], v[{72+2*i}:{73+2*i}], v[{8+2*i}:{9+2*i}]')
    for i in range(8):
        y = 72 + 2*i
        a(f'v_cvt_pk_bf16_f32 v32, v{y}, v{y+1}')
        unpack(y, y+1, 32)
        unpack(34, 35, 24+i)
        a('v_pk_mul_f32 v[34:35], v[34:35], v[124:125] op_sel_hi:[1,0]')
        a('v_cvt_pk_bf16_f32 v33, v34, v35')
        unpack(34, 35, 33)
        a(f'v_pk_add_f32 v[{y}:{y+1}], v[{y}:{y+1}], v[34:35]')
        a(f'v_cvt_pk_bf16_f32 v32, v{y}, v{y+1}')
        unpack(y, y+1, 32)
        unpack(34, 35, 112+i)
        a(f'v_pk_add_f32 v[{y}:{y+1}], v[{y}:{y+1}], v[34:35]')
        a(f'v_cvt_pk_bf16_f32 v{104+i}, v{y}, v{y+1}')
    a(f"""
    s_lshl_b32 s26, s3, 11
    s_add_u32 s26, s26, {RED + 16384}
    v_lshlrev_b32 v120, 6, v6
    v_lshl_add_u32 v120, v7, 3, v120
    v_add_u32 v120, s26, v120
    v_lshl_add_u32 v123, v2, 4, s26
    s_lshl_b32 s26, s19, 12
    s_lshl_b32 s27, s18, 11
    s_add_u32 s26, s26, s27
    v_lshl_add_u32 v121, v2, 4, s26
    """)
    for rq in range(4):
        a(f'ds_write_b64 v120, v[{104+2*rq}:{105+2*rq}] offset:{16*rq}')
    a('s_waitcnt lgkmcnt(0)')
    a('ds_read_b128 v[8:11], v123')
    a('ds_read_b128 v[12:15], v123 offset:1024')
    a('s_waitcnt lgkmcnt(0)')
    a('global_store_dwordx4 v121, v[8:11], s[22:23]')
    a('global_store_dwordx4 v121, v[12:15], s[22:23] offset:1024')
    trace_end(1)
    a.label('K2_exit')
    a.end_kernel(name, (256,1,1), (512,1,1), RED + 16384 + 8192, 128+8)

GC1 = 2 * 0.7978845608028654 * LOG2E
GC2 = GC1 * 0.044715

def dma_lane_off(dst, lane, rs_sgpr_or_imm, t1, t2):
    a(f'v_lshrrev_b32 v{t1}, 5, v{lane}')
    a(f'v_lshlrev_b32 v{t1}, 3, v{t1}')
    a(f'v_bfe_u32 v{t2}, v{lane}, 3, 2')
    a(f'v_add_u32 v{t1}, v{t1}, v{t2}')
    a(f'v_mul_u32_u24 v{dst}, {rs_sgpr_or_imm}, v{t1}')
    a(f'v_bfe_u32 v{t1}, v{lane}, 1, 2')
    a(f'v_bfe_u32 v{t2}, v{lane}, 4, 2')
    a(f'v_xor_b32 v{t1}, v{t1}, v{t2}')
    a(f'v_lshl_add_u32 v{dst}, v{t1}, 5, v{dst}')
    a(f'v_and_b32 v{t1}, 1, v{lane}')
    a(f'v_lshl_add_u32 v{dst}, v{t1}, 4, v{dst}')

def tr_lane_base(dst, fdst, lane, t1, t2):
    a(f'v_lshrrev_b32 v{t1}, 5, v{lane}')
    a(f'v_lshlrev_b32 v{t1}, 4, v{t1}')
    a(f'v_bfe_u32 v{t2}, v{lane}, 2, 3')
    a(f'v_add_u32 v{t1}, v{t1}, v{t2}')
    a(f'v_lshlrev_b32 v{dst}, 7, v{t1}')
    a(f'v_and_b32 v{t1}, 3, v{lane}')
    a(f'v_lshl_add_u32 v{dst}, v{t1}, 3, v{dst}')
    a(f'v_lshrrev_b32 v{fdst}, 1, v{t2}')

def gelu_pairs(zs, CK, T, G=4):
    for i0 in range(0, len(zs), G):
        grp = list(enumerate(zs[i0:i0+G]))
        for i, z in grp:
            a(f'v_pk_mul_f32 v[{T+2*i}:{T+2*i+1}], v[{z}:{z+1}], v[{z}:{z+1}]')
        for i, z in grp:
            t = T+2*i
            a(f'v_pk_fma_f32 v[{t}:{t+1}], v[{t}:{t+1}], v[{CK}:{CK+1}], v[{CK}:{CK+1}] op_sel:[0,1,0] op_sel_hi:[1,1,0]')
        for i, z in grp:
            t = T+2*i
            a(f'v_pk_mul_f32 v[{t}:{t+1}], v[{t}:{t+1}], v[{z}:{z+1}]')
        for i, z in grp:
            t = T+2*i
            a(f'v_exp_f32 v{t}, -v{t}')
            a(f'v_exp_f32 v{t+1}, -v{t+1}')
        if len(grp) < 2: a('s_nop 0')
        for i, z in grp:
            t = T+2*i
            a(f'v_pk_add_f32 v[{t}:{t+1}], v[{t}:{t+1}], v[{CK+2}:{CK+3}]')
        for i, z in grp:
            t = T+2*i
            a(f'v_rcp_f32 v{t}, v{t}')
            a(f'v_rcp_f32 v{t+1}, v{t+1}')
        if len(grp) < 2: a('s_nop 0')
        for i, z in grp:
            t = T+2*i
            a(f'v_pk_mul_f32 v[{z}:{z+1}], v[{z}:{z+1}], v[{t}:{t+1}]')

def affine_round(zs, css, AB, T, G=4):
    for i0 in range(0, len(zs), G):
        grp = list(enumerate(zip(zs[i0:i0+G], css[i0:i0+G])))
        for i, (z, cs) in grp:
            a(f'v_pk_mul_f32 v[{T+2*i}:{T+2*i+1}], v[{cs}:{cs+1}], v[{AB}:{AB+1}] op_sel:[0,1] op_sel_hi:[1,1]')
        for i, (z, cs) in grp:
            a(f'v_pk_fma_f32 v[{z}:{z+1}], v[{z}:{z+1}], v[{AB}:{AB+1}], v[{T+2*i}:{T+2*i+1}] op_sel_hi:[1,0,1] neg_lo:[0,0,1] neg_hi:[0,0,1]')
        for i, (z, cs) in grp:
            a(f'v_cvt_pk_bf16_f32 v{T+2*i}, v{z}, v{z+1}')
        for i, (z, cs) in grp:
            unpack(z, z+1, T+2*i)

def round_pair(z, t):
    a(f'v_cvt_pk_bf16_f32 v{t}, v{z}, v{z+1}')
    unpack(z, z+1, t)

def gemm64_main(X, WF, ACC, vW, nsteps=16, st0=0):
    def loads(st, sb):
        for cb in range(4):
            for h in range(2):
                r = WF + 16*sb + 4*cb + 2*h
                a(f'ds_read_b64_tr_b16 v[{r}:{r+1}], v{vW+cb} offset:{(st0+st)*4096 + h*1024}')
    loads(0, 0)
    for st in range(nsteps):
        if st + 1 < nsteps:
            loads(st+1, (st+1) & 1)
            a('s_waitcnt lgkmcnt(8)')
        else:
            a('s_waitcnt lgkmcnt(0)')
        for cb in range(4):
            w = WF + 16*(st & 1) + 4*cb
            c = ACC + 4*cb
            a(f'v_mfma_f32_16x16x32_bf16 v[{c}:{c+3}], v[{w}:{w+3}], v[{X+4*st}:{X+4*st+3}], v[{c}:{c+3}]')

def dma_tile(srd, vOff, sOff, sM0, step_bytes, n=16):
    for ii in range(n):
        a(f's_mov_b32 m0, s{sM0}')
        a(f's_add_u32 s{sM0}, s{sM0}, 4096')
        a(f'buffer_load_dwordx4 v{vOff}, s[{srd}:{srd+3}], s{sOff} offen lds')
        if ii < n-1:
            a(f's_add_u32 s{sOff}, s{sOff}, {step_bytes}')

def mk_srd(dst, lo, nbytes):
    a(f's_mov_b32 s{dst}, s{lo}')
    a(f's_mov_b32 s{dst+1}, s{lo+1}')
    a(f's_mov_b32 s{dst+2}, {nbytes}')
    a(f's_mov_b32 s{dst+3}, 0x00020000')

def gen_k3():
    global SV
    SV = 160
    name = 'k3_kernel'
    a.begin_kernel(name)
    a(f"""
    s_cmp_ge_u32 s2, 256
    s_cbranch_scc1 K3_exit
    s_load_dwordx2 s[4:5], s[0:1], {KA['ws']}
    s_load_dwordx2 s[6:7], s[0:1], {KA['w1']}
    """)
    trace_begin()
    a(f"""
    v_lshrrev_b32 v1, 6, v0
    v_and_b32 v2, 63, v0
    v_readfirstlane_b32 s3, v1         ; wave
    s_bfe_u32 s16, s2, 0x30003
    s_and_b32 s17, s2, 7
    s_lshl_b32 s17, s17, 2
    s_lshr_b32 s19, s2, 6
    s_add_u32 s17, s17, s19
    s_lshr_b32 s18, s3, 1
    s_lshl_b32 s18, s18, 4
    s_and_b32 s19, s3, 1
    s_lshl_b32 s19, s19, 2
    s_add_u32 s18, s18, s19            ; krow0 = 16(w>>1)+4(w&1)
    """)
    dma_lane_off(3, 2, 4096, 5, 6)
    dma_lane_off(4, 2, 1024, 5, 6)
    a('s_waitcnt lgkmcnt(0)')
    ws_ptr(8, 4, 'HT')
    a(f"""
    s_mov_b32 s10, {2*MB}
    s_mov_b32 s11, 0x00020000
    """)
    mk_srd(12, 6, 512*1024)
    a(f"""
    s_lshl_b32 s20, s18, 12
    s_lshl_b32 s21, s17, 7
    s_add_u32 s20, s20, s21
    s_lshl_b32 s22, s3, 10             ; m0 = w*1024
    """)
    dma_tile(8, 3, 20, 22, 32*4096)
    a(f"""
    s_lshl_b32 s20, s18, 10
    s_lshl_b32 s21, s16, 7
    s_add_u32 s20, s20, s21            ; W1 soffset
    """)
    dma_tile(12, 4, 20, 22, 32*1024)
    ws_ptr(24, 4, 'HR'); ws_ptr(26, 4, 'G1'); ws_ptr(28, 4, 'CS'); ws_ptr(30, 4, 'ST1')
    tr_lane_base(5, 6, 2, 7, 8)
    a('v_xor_b32 v7, s3, v6')
    a('v_lshl_add_u32 v9, v7, 5, v5')
    for cb in range(4):
        a(f'v_xor_b32 v7, {cb}, v6')
        a(f'v_lshl_add_u32 v{10+cb}, v7, 5, v5')
        a(f'v_add_u32 v{10+cb}, 0x10000, v{10+cb}')
    a(f"""
    v_and_b32 v14, 15, v2
    v_lshrrev_b32 v15, 4, v2
    s_lshl_b32 s21, s17, 6
    s_lshl_b32 s23, s3, 4
    s_add_u32 s21, s21, s23
    v_add_u32 v14, s21, v14            ; token
    v_lshlrev_b32 v16, 3, v14
    v_lshlrev_b32 v14, 10, v14
    s_lshl_b32 s23, s21, 10
    v_lshl_add_u32 v17, v2, 4, s23
    s_lshl_b32 s21, s16, 8
    v_lshl_add_u32 v18, v15, 4, s21
    """)
    CSR = 20
    for cb in range(4):
        a(f'global_load_dwordx4 v[{CSR+4*cb}:{CSR+4*cb+3}], v18, s[28:29] offset:{64*cb}')
    X = 64
    WF = 128
    ACC = 36
    GR = 52; SU = 56; ONE = 60
    for i in range(24):
        a(f'v_mov_b32 v{36+i}, 0')
    for i in range(4):
        a(f'v_mov_b32 v{ONE+i}, 0x3f803f80')
    a('s_waitcnt vmcnt(20)')
    a('s_barrier')
    for st in range(16):
        for h in range(2):
            a(f'ds_read_b64_tr_b16 v[{X+4*st+2*h}:{X+4*st+2*h+1}], v9 offset:{st*4096 + h*1024}')
    for st in range(16):
        a(f's_waitcnt lgkmcnt({min(15, 30-2*st)})')
        x = X + 4*st
        a(f'v_mfma_f32_16x16x32_bf16 v[{GR}:{GR+3}], v[{x}:{x+3}], v[{x}:{x+3}], v[{GR}:{GR+3}]')
        a(f'v_mfma_f32_16x16x32_bf16 v[{SU}:{SU+3}], v[{ONE}:{ONE+3}], v[{x}:{x+3}], v[{SU}:{SU+3}]')
    for j in range(8):
        l = a.newlabel('K3_hr')
        a(f's_cmp_lg_u32 s16, {j}')
        a(f's_cbranch_scc1 {l}')
        a(f'v_add_u32 v17, {2048*j}, v17')
        for st in (2*j, 2*j+1):
            a(f'global_store_dwordx4 v17, v[{X+4*st}:{X+4*st+3}], s[24:25] offset:{1024*(st&1)}')
        a.label(l)
    a('s_waitcnt vmcnt(2)')
    a('s_barrier')
    gemm64_main(X, WF, ACC, 10)
    a(f"""
    v_and_b32 v7, 3, v2
    v_cmp_eq_u32 vcc, 1, v7
    v_cmp_eq_u32 s[32:33], 2, v7
    v_cmp_eq_u32 s[34:35], 3, v7
    v_and_b32 v8, 15, v2
    v_lshrrev_b32 v7, 2, v8
    v_cndmask_b32 v{GR}, v{GR}, v{GR+1}, vcc
    v_cndmask_b32 v{GR}, v{GR}, v{GR+2}, s[32:33]
    v_cndmask_b32 v{GR}, v{GR}, v{GR+3}, s[34:35]
    v_lshl_add_u32 v7, v7, 4, v8
    v_lshlrev_b32 v7, 2, v7
    ds_bpermute_b32 v{GR}, v7, v{GR}
    v_mul_f32 v{SU}, {hx(1/512)}, v{SU}          ; mean1
    s_waitcnt lgkmcnt(0)
    v_mul_f32 v{GR}, {hx(1/512)}, v{GR}
    v_fma_f32 v{GR}, -v{SU}, v{SU}, v{GR}        ; var1
    v_max_f32 v{GR}, 0, v{GR}
    v_mov_b32 v{SU+1}, v{SU}
    v_mov_b32 v{GR+1}, v{GR}
    """)
    ln_scalars(SU, GR, 7)
    a(f"""
    v_sub_f32 v{SU+1}, v{SU+1}, v{SU}
    v_mul_f32 v{SU+1}, v{SU+1}, v{GR}            ; mean2
    v_mul_f32 v{GR+1}, v{GR+1}, v{GR}
    v_mul_f32 v{GR+1}, v{GR+1}, v{GR}            ; var2
    """)
    ln_scalars(SU+1, GR+1, 7)
    a(f"""
    v_mul_f32 v{ONE}, v{GR}, v{GR+1}             ; alpha
    v_fma_f32 v{ONE+1}, v{GR}, v{SU}, v{SU+1}
    v_mul_f32 v{ONE+1}, v{ONE+1}, v{GR+1}        ; beta
    v_mov_b32 v{SU+2}, v{SU}
    v_mov_b32 v{SU+3}, v{GR}
    v_mov_b32 v128, {hx(GC1)}
    v_mov_b32 v129, {hx(GC2)}
    v_mov_b32 v130, 1.0
    v_mov_b32 v131, 1.0
    s_cmp_lg_u32 s16, 0
    s_cbranch_scc1 K3_nost
    v_cmp_gt_u32 vcc, 16, v2
    s_and_saveexec_b64 s[32:33], vcc
    global_store_dwordx2 v16, v[{SU+2}:{SU+3}], s[30:31]
    s_mov_b64 exec, s[32:33]
    """)
    a.label('K3_nost')
    affine_round([ACC+2*p for p in range(8)], [CSR+2*p for p in range(8)], ONE, 144)
    gelu_pairs([ACC+2*p for p in range(8)], 128, 144)
    O = 136
    for p in range(8):
        a(f'v_cvt_pk_bf16_f32 v{O+p}, v{ACC+2*p}, v{ACC+2*p+1}')
    a(f"""
    v_and_b32 v7, 1, v15
    v_lshrrev_b32 v8, 1, v15
    v_lshl_add_u32 v7, v7, 1, v8
    v_and_b32 v8, 15, v2
    v_lshl_add_u32 v7, v7, 4, v8
    s_lshl_b32 s21, s16, 11
    s_add_u32 s21, s21, s23
    v_lshl_add_u32 v7, v7, 4, s21
    """)
    for P in range(2):
        o = O + 4*P
        a(f'v_permlane16_swap_b32 v{o}, v{o+2}')
        a(f'v_permlane16_swap_b32 v{o+1}, v{o+3}')
    a('s_nop 1')
    for P in range(2):
        o = O + 4*P
        a(f'global_store_dwordx4 v7, v[{o}:{o+3}], s[26:27] offset:{1024*P}')
    trace_end(2)
    a.label('K3_exit')
    a.end_kernel(name, (256,1,1), (256,1,1), 131072, 168)

class Ring:
    def __init__(self, TT, NT, nch, nslots, a_rs, w_rs, wfmt, vAsrc, vWsrc, vAr, vWr, FB, ACC, rot=False, shifts=None, vTmp=None):
        self.__dict__.update(locals())
        self.ABY = 4 * TT * 16 * 256
        self.WBY = 128 * (128 if wfmt == 128 else 224)
        self.SLOT = self.ABY + self.WBY
        self.na = TT * 4
        self.nw = 4 if wfmt == 128 else 7
    def setup_addrs(self, t1, t2, t3):
        r = self
        a(f'v_lshrrev_b32 v{t1}, 4, v2')
        a(f'v_and_b32 v{t2}, 15, v2')
        a(f'v_xor_b32 v{t2}, v{t2}, v{t1}')
        a(f'v_mul_u32_u24 v{t1}, {r.a_rs}, v{t1}')
        a(f'v_add_u32 v{t1}, v{t1}, v{r.vTmp}')
        for i in range(4):
            a(f'v_xor_b32 v{t3}, {4*i}, v{t2}')
            a(f'v_lshl_add_u32 v{r.vAsrc+i}, v{t3}, 4, v{t1}')
        a(f'v_and_b32 v{t1}, 15, v2')
        a(f'v_lshrrev_b32 v{t2}, 4, v2')
        a(f'v_xor_b32 v{t2}, v{t2}, v{t1}')
        a(f'v_lshlrev_b32 v{t1}, 8, v{t1}')
        a(f's_mul_i32 s21, s3, {r.TT*4096}')
        a(f'v_add_u32 v{t1}, s21, v{t1}')
        for i in range(4):
            a(f'v_xor_b32 v{t3}, {4*i}, v{t2}')
            a(f'v_lshl_add_u32 v{r.vAr+i}, v{t3}, 4, v{t1}')
        if r.wfmt == 128:
            dma_lane_off(r.vWsrc, 2, r.w_rs, t1, t2)
            tr_lane_base(t1, t2, 2, t3, r.vWr)
            for cb in range(4):
                a(f'v_xor_b32 v{t3}, {cb}, v{t2}')
                a(f'v_lshl_add_u32 v{r.vWr+cb}, v{t3}, 5, v{t1}')
                a(f'v_add_u32 v{r.vWr+cb}, {r.ABY}, v{r.vWr+cb}')
        else:
            for j in range(7):
                a(f'v_add_u32 v{t1}, {64*j}, v2')
                a(f'v_mul_u32_u24 v{t2}, 4682, v{t1}')
                a(f'v_lshrrev_b32 v{t2}, 16, v{t2}')
                a(f'v_mul_u32_u24 v{t3}, 14, v{t2}')
                a(f'v_sub_u32 v{t1}, v{t1}, v{t3}')
                a(f'v_and_b32 v{t3}, 0x13, v{t2}')
                a(f'v_bfe_u32 v{r.vWsrc+j}, v{t2}, 2, 1')
                a(f'v_lshl_or_b32 v{t3}, v{r.vWsrc+j}, 3, v{t3}')
                a(f'v_bfe_u32 v{r.vWsrc+j}, v{t2}, 3, 1')
                a(f'v_lshl_or_b32 v{t3}, v{r.vWsrc+j}, 2, v{t3}')
                a(f'v_mul_u32_u24 v{t3}, {r.w_rs}, v{t3}')
                a(f'v_lshl_add_u32 v{r.vWsrc+j}, v{t1}, 4, v{t3}')
            a(f'v_lshrrev_b32 v{t1}, 5, v2')
            a(f'v_lshlrev_b32 v{t1}, 4, v{t1}')
            a(f'v_bfe_u32 v{t2}, v2, 2, 3')
            a(f'v_add_u32 v{t1}, v{t1}, v{t2}')
            a(f'v_mul_u32_u24 v{t1}, 224, v{t1}')
            a(f'v_and_b32 v{t2}, 3, v2')
            a(f'v_lshl_add_u32 v{r.vWr}, v{t2}, 3, v{t1}')
            a(f'v_add_u32 v{r.vWr}, {r.ABY}, v{r.vWr}')
    def issue_groups(self, c):
        r = self
        G = []
        slot = c % r.nslots
        base = slot * r.SLOT
        pre = []
        if r.rot:
            pre += [f's_mul_i32 s35, s34, {128*r.w_rs}', 's_add_u32 s35, s35, s20', 's_lshl_b32 s36, s34, 8']
        else:
            pre += [f's_add_u32 s35, s20, {c*128*r.w_rs}', f's_movk_i32 s36, {c*256}']
        if r.wfmt == 128:
            pre += [f's_lshl_b32 s22, s3, 10', f's_add_u32 s22, s22, {base + r.ABY}']
            for i in range(4):
                g = ['s_mov_b32 m0, s22', 's_add_u32 s22, s22, 4096', f'buffer_load_dwordx4 v{r.vWsrc}, s[12:15], s35 offen lds']
                if i < 3: g.append(f's_add_u32 s35, s35, {32*r.w_rs}')
                G.append(pre + g); pre = []
        else:
            pre += [f's_mul_i32 s22, s3, 7168', f's_add_u32 s22, s22, {base + r.ABY}']
            for j in range(7):
                G.append(pre + ['s_mov_b32 m0, s22', 's_add_u32 s22, s22, 1024', f'buffer_load_dwordx4 v{r.vWsrc+j}, s[12:15], s35 offen lds']); pre = []
        pre = [f's_mul_i32 s22, s3, {r.TT*4096}']
        if base: pre.append(f's_add_u32 s22, s22, {base}')
        for i in range(r.na):
            g = ['s_mov_b32 m0, s22', 's_add_u32 s22, s22, 1024']
            if r.shifts:
                off = (4*i + r.shifts[c]) * r.a_rs
                if off >= 0: g.append(f'v_add_u32 v{r.vTmp}, {off}, v{r.vAsrc+(i&3)}')
                else: g.append(f'v_subrev_u32 v{r.vTmp}, {-off}, v{r.vAsrc+(i&3)}')
                g.append(f'buffer_load_dwordx4 v{r.vTmp}, s[8:11], s36 offen lds')
            else:
                g.append(f'buffer_load_dwordx4 v{r.vAsrc+(i&3)}, s[8:11], s36 offen lds')
                if i < r.na-1: g.append(f's_add_u32 s36, s36, {4*r.a_rs}')
            if i == r.na-1 and r.rot:
                g += ['s_add_u32 s34, s34, 1', f's_cmp_eq_u32 s34, {r.nch}', 's_cselect_b32 s34, 0, s34']
            G.append(pre + g); pre = []
        return G
    def issue(self, c):
        for g in self.issue_groups(c):
            for l in g: a(l)
    def compute(self, c, fillers):
        r = self
        FS = 4*(r.TT + r.NT)
        def loads(st, sb):
            f = r.FB + FS*sb
            for tt in range(r.TT):
                a(f'ds_read_b128 v[{f+4*tt}:{f+4*tt+3}], v{r.vAr+st} offset:{r.cur + tt*4096}')
            for cb in range(r.NT):
                for h in range(2):
                    d = f + 4*r.TT + 4*cb + 2*h
                    if r.wfmt == 128:
                        a(f'ds_read_b64_tr_b16 v[{d}:{d+1}], v{r.vWr+cb} offset:{r.cur + st*4096 + h*1024}')
                    else:
                        a(f'ds_read_b64_tr_b16 v[{d}:{d+1}], v{r.vWr} offset:{r.cur + st*7168 + h*1792 + 32*cb}')
        nl = r.TT + 2*r.NT
        nm = 4 * r.NT * r.TT
        fillers = list(fillers)
        every = max(1, nm // (len(fillers) + 1)) if fillers else 0
        loads(0, 0)
        loads(1, 1)
        for _ in range(min(2, len(fillers))):
            for l in fillers.pop(0): a(l)
        m = 0
        for st in range(4):
            a(f's_waitcnt lgkmcnt({min(15, nl) if st < 3 else 0})')
            f = r.FB + FS*(st & 1)
            for cb in range(r.NT):
                w = f + 4*r.TT + 4*cb
                for tt in range(r.TT):
                    cc = r.ACC + 4*r.NT*tt + 4*cb
                    a(f'v_mfma_f32_16x16x32_bf16 v[{cc}:{cc+3}], v[{w}:{w+3}], v[{f+4*tt}:{f+4*tt+3}], v[{cc}:{cc+3}]')
                    m += 1
                    if fillers and m % every == 0:
                        for l in fillers.pop(0): a(l)
            if st + 2 < 4:
                loads(st+2, st & 1)
        for g in fillers:
            for l in g: a(l)
    def bump(self, delta):
        r = self
        regs = [r.vAr+i for i in range(4)] + ([r.vWr+i for i in range(4)] if r.wfmt == 128 else [r.vWr])
        for v in regs:
            if delta > 0: a(f'v_add_u32 v{v}, {delta}, v{v}')
            else: a(f'v_subrev_u32 v{v}, {-delta}, v{v}')
    def prologue(self):
        r = self
        r.ahead = r.nslots if r.nch <= r.nslots else r.nslots - 1
        for c in range(min(r.nch, r.ahead)):
            r.issue(c)
    def run(self):
        r = self
        per = r.na + r.nw
        regbase = 0
        for c in range(r.nch):
            issued = min(r.nch, c + r.ahead)
            a(f's_waitcnt vmcnt({min(63, per*(issued - (c+1)))})')
            a('s_barrier')
            stamp([0,100,255], 1 + c)
            base = (c % r.nslots) * r.SLOT
            want = (base // 32768) * 32768 if r.SLOT * r.nslots > 65536 else 0
            if want != regbase:
                r.bump(want - regbase); regbase = want
            r.cur = base - regbase
            fill = r.issue_groups(c + r.ahead) if c + r.ahead < r.nch else []
            r.compute(c, fill)

class Ring3:
    def __init__(self, TT, NT, KC, nch, nslots, a_rs, w_rs, wfmt, FB, ACC, vAr, vWr, rot=False, shifts=None, LA=LA_DEF):
        self.__dict__.update(locals())
        self.RB = 64 * KC
        self.AW = TT * 16 * self.RB
        self.ABY = 4 * self.AW
        self.WBY = 32 * KC * (128 if wfmt == 128 else 224)
        self.SLOT = self.ABY + self.WBY
        self.na = self.AW // 1024
        self.nw = 4 if (wfmt == 128 or KC == 2) else 7
        self.rows_per = 1024 // self.RB
    def loader(self, tag):
        r = self
        vA, vW, vT = 8, 12, 24
        t1, t2, t3 = 3, 4, 5
        nv = 4 if r.KC == 4 else 2
        sh = 4 if r.KC == 4 else 3
        a(f'v_lshrrev_b32 v{t1}, {sh}, v2')
        a(f'v_mul_u32_u24 v{t1}, {r.a_rs}, v{t1}')
        a(f'v_add_u32 v{t1}, s38, v{t1}')
        a(f'v_and_b32 v{t2}, {(1 << sh) - 1}, v2')
        a(f'v_lshrrev_b32 v{t3}, 4, v2')
        a(f'v_xor_b32 v{t2}, v{t2}, v{t3}')
        for i in range(nv):
            a(f'v_xor_b32 v{t3}, {4*i}, v{t2}')
            a(f'v_lshl_add_u32 v{vA+i}, v{t3}, 4, v{t1}')
        if r.wfmt == 128:
            dma_lane_off(vW, 2, r.w_rs, t1, t2)
        else:
            assert r.KC == 2
            for i in range(4):
                a(f's_add_u32 s{60+i}, s3, {4*i}')
                a(f's_min_u32 s{60+i}, s{60+i}, 13')
                a(f's_cmp_ge_u32 s{60+i}, 7')
                a('s_cselect_b32 s21, 7, 0')
                a(f's_cselect_b32 s22, {32*r.w_rs}, 0')
                a(f's_sub_u32 s21, s{60+i}, s21')
                a('s_lshl_b32 s21, s21, 6')
                a(f'v_add_u32 v{t1}, s21, v2')
                a(f'v_mul_u32_u24 v{t2}, 4682, v{t1}')
                a(f'v_lshrrev_b32 v{t2}, 16, v{t2}')
                a(f'v_mul_u32_u24 v{t3}, 14, v{t2}')
                a(f'v_sub_u32 v{t1}, v{t1}, v{t3}')
                a(f'v_and_b32 v{t3}, 0x13, v{t2}')
                a(f'v_bfe_u32 v{vW+i}, v{t2}, 2, 1')
                a(f'v_lshl_or_b32 v{t3}, v{vW+i}, 3, v{t3}')
                a(f'v_bfe_u32 v{vW+i}, v{t2}, 3, 1')
                a(f'v_lshl_or_b32 v{t3}, v{vW+i}, 2, v{t3}')
                a(f'v_mul_u32_u24 v{t3}, {r.w_rs}, v{t3}')
                a(f'v_lshl_add_u32 v{vW+i}, v{t1}, 4, v{t3}')
                a(f'v_add_u32 v{vW+i}, s22, v{vW+i}')
                a(f's_lshl_b32 s{60+i}, s{60+i}, 10')
        def issue(c):
            base = (c % r.nslots) * r.SLOT
            if r.rot:
                a(f's_mul_i32 s35, s34, {32*r.KC*r.w_rs}')
                a('s_add_u32 s35, s35, s20')
                a(f's_mul_i32 s36, s34, {r.RB}')
            else:
                a(f's_add_u32 s35, s20, {c*32*r.KC*r.w_rs}')
                a(f's_movk_i32 s36, {c*r.RB}')
            a(f's_mul_i32 s22, s3, {r.AW}')
            if base: a(f's_add_u32 s22, s22, {base}')
            for i in range(r.na):
                a('s_mov_b32 m0, s22')
                a('s_add_u32 s22, s22, 1024')
                if r.shifts:
                    off = (r.rows_per*i + r.shifts[c]) * r.a_rs
                    if off >= 0: a(f'v_add_u32 v{vT}, {off}, v{vA+(i % nv)}')
                    else: a(f'v_subrev_u32 v{vT}, {-off}, v{vA+(i % nv)}')
                    a(f'buffer_load_dwordx4 v{vT}, s[8:11], s36 offen lds')
                else:
                    a(f'buffer_load_dwordx4 v{vA+(i % nv)}, s[8:11], s36 offen lds')
                    if i < r.na-1: a(f's_add_u32 s36, s36, {r.rows_per*r.a_rs}')
            if r.wfmt == 128:
                a(f's_lshl_b32 s22, s3, 10')
                a(f's_add_u32 s22, s22, {base + r.ABY}')
                for i in range(4):
                    a('s_mov_b32 m0, s22')
                    a('s_add_u32 s22, s22, 4096')
                    a(f'buffer_load_dwordx4 v{vW}, s[12:15], s35 offen lds')
                    if i < 3: a(f's_add_u32 s35, s35, {32*r.w_rs}')
            else:
                for i in range(4):
                    a(f's_add_u32 s22, s{60+i}, {base + r.ABY}')
                    a('s_mov_b32 m0, s22')
                    a('s_nop 0')
                    a(f'buffer_load_dwordx4 v{vW+i}, s[12:15], s35 offen lds')
            if r.rot:
                a('s_add_u32 s34, s34, 1')
                a(f's_cmp_eq_u32 s34, {r.nch}')
                a('s_cselect_b32 s34, 0, s34')
        per = r.na + r.nw
        issued = 0
        LA = r.LA
        for c in range(min(r.nch, LA0)):
            issue(c); issued += 1
        for c in range(r.nch):
            a(f's_waitcnt vmcnt({min(63, per*(issued - (c+1)))})')
            a('s_barrier')
            lim = min(r.nch - 1, c + LA, max(r.nslots - 1, c - 2 + r.nslots))
            while issued <= lim:
                issue(issued); issued += 1
    def comp_setup(self, t1, t2, t3):
        r = self
        a(f'v_and_b32 v{t1}, 15, v2')
        a(f'v_lshrrev_b32 v{t2}, 4, v2')
        if r.KC == 4:
            a(f'v_xor_b32 v{t2}, v{t2}, v{t1}')
        else:
            a(f'v_lshrrev_b32 v{t3}, 1, v{t1}')
            a(f'v_xor_b32 v{t2}, v{t2}, v{t3}')
        a(f'v_mul_u32_u24 v{t1}, {r.RB}, v{t1}')
        a(f's_mul_i32 s21, s3, {r.AW}')
        a(f'v_add_u32 v{t1}, s21, v{t1}')
        for i in range(r.KC):
            a(f'v_xor_b32 v{t3}, {4*i}, v{t2}')
            a(f'v_lshl_add_u32 v{r.vAr+i}, v{t3}, 4, v{t1}')
        if r.wfmt == 128:
            tr_lane_base(t1, t2, 2, t3, r.vWr)
            for cb in range(4):
                a(f'v_xor_b32 v{t3}, {cb}, v{t2}')
                a(f'v_lshl_add_u32 v{r.vWr+cb}, v{t3}, 5, v{t1}')
                a(f'v_add_u32 v{r.vWr+cb}, {r.ABY}, v{r.vWr+cb}')
        else:
            a(f'v_lshrrev_b32 v{t1}, 5, v2')
            a(f'v_lshlrev_b32 v{t1}, 4, v{t1}')
            a(f'v_bfe_u32 v{t2}, v2, 2, 3')
            a(f'v_add_u32 v{t1}, v{t1}, v{t2}')
            a(f'v_mul_u32_u24 v{t1}, 224, v{t1}')
            a(f'v_and_b32 v{t2}, 3, v2')
            a(f'v_lshl_add_u32 v{r.vWr}, v{t2}, 3, v{t1}')
            a(f'v_add_u32 v{r.vWr}, {r.ABY}, v{r.vWr}')
    def compute(self):
        r = self
        FS = 4*(r.TT + r.NT)
        nl = r.TT + 2*r.NT
        total = r.KC * r.nch
        state = dict(regbase=0)
        regs = [r.vAr+i for i in range(r.KC)] + ([r.vWr+i for i in range(4)] if r.wfmt == 128 else [r.vWr])
        def loads(s):
            c, st = divmod(s, r.KC)
            base = (c % r.nslots) * r.SLOT
            if st == 0:
                a('s_barrier')
                stamp([0,100,255], min(15, 1 + c))
                want = (base // 16384) * 16384
                d = want - state['regbase']
                if d:
                    for v in regs:
                        if d > 0: a(f'v_add_u32 v{v}, {d}, v{v}')
                        else: a(f'v_subrev_u32 v{v}, {-d}, v{v}')
                    state['regbase'] = want
            cur = base - state['regbase']
            f = r.FB + FS*(s & 1)
            for tt in range(r.TT):
                a(f'ds_read_b128 v[{f+4*tt}:{f+4*tt+3}], v{r.vAr+st} offset:{cur + tt*16*r.RB}')
            for cb in range(r.NT):
                for h in range(2):
                    d = f + 4*r.TT + 4*cb + 2*h
                    if r.wfmt == 128:
                        a(f'ds_read_b64_tr_b16 v[{d}:{d+1}], v{r.vWr+cb} offset:{cur + st*4096 + h*1024}')
                    else:
                        a(f'ds_read_b64_tr_b16 v[{d}:{d+1}], v{r.vWr} offset:{cur + st*7168 + h*1792 + 32*cb}')
        loads(0); loads(1)
        for s_ in range(total):
            a(f's_waitcnt lgkmcnt({min(15, nl) if s_ < total-1 else 0})')
            f = r.FB + FS*(s_ & 1)
            for cb in range(r.NT):
                w = f + 4*r.TT + 4*cb
                for tt in range(r.TT):
                    cc = r.ACC + 4*r.NT*tt + 4*cb
                    a(f'v_mfma_f32_16x16x32_bf16 v[{cc}:{cc+3}], v[{w}:{w+3}], v[{f+4*tt}:{f+4*tt+3}], v[{cc}:{cc+3}]')
            if s_ + 2 < total:
                loads(s_ + 2)

class Ring4:
    def __init__(self, TT, NT, nch, nslots, w_rs, wfmt, FB, ACC, vWr, X, XW, rot=False, LA=2):
        self.__dict__.update(locals())
        self.KC = 4
        self.SLOT = 128 * (128 if wfmt == 128 else 224)
        self.nw = 4 if wfmt == 128 else 7
    def loader(self):
        r = self
        vW = 12
        t1, t2, t3 = 3, 4, 5
        if r.wfmt == 128:
            dma_lane_off(vW, 2, r.w_rs, t1, t2)
        else:
            for j in range(7):
                a(f'v_add_u32 v{t1}, {64*j}, v2')
                a(f'v_mul_u32_u24 v{t2}, 4682, v{t1}')
                a(f'v_lshrrev_b32 v{t2}, 16, v{t2}')
                a(f'v_mul_u32_u24 v{t3}, 14, v{t2}')
                a(f'v_sub_u32 v{t1}, v{t1}, v{t3}')
                a(f'v_and_b32 v{t3}, 0x13, v{t2}')
                a(f'v_bfe_u32 v{vW+j}, v{t2}, 2, 1')
                a(f'v_lshl_or_b32 v{t3}, v{vW+j}, 3, v{t3}')
                a(f'v_bfe_u32 v{vW+j}, v{t2}, 3, 1')
                a(f'v_lshl_or_b32 v{t3}, v{vW+j}, 2, v{t3}')
                a(f'v_mul_u32_u24 v{t3}, {r.w_rs}, v{t3}')
                a(f'v_lshl_add_u32 v{vW+j}, v{t1}, 4, v{t3}')
        def issue(c):
            base = (c % r.nslots) * r.SLOT
            if r.rot:
                a(f's_mul_i32 s35, s34, {128*r.w_rs}')
                a('s_add_u32 s35, s35, s20')
            else:
                a(f's_add_u32 s35, s20, {c*128*r.w_rs}')
            if r.wfmt == 128:
                a(f's_lshl_b32 s22, s3, 10')
                if base: a(f's_add_u32 s22, s22, {base}')
                for i in range(4):
                    a('s_mov_b32 m0, s22')
                    a('s_add_u32 s22, s22, 4096')
                    a(f'buffer_load_dwordx4 v{vW}, s[12:15], s35 offen lds')
                    if i < 3: a(f's_add_u32 s35, s35, {32*r.w_rs}')
            else:
                a(f's_mul_i32 s22, s3, 7168')
                if base: a(f's_add_u32 s22, s22, {base}')
                for j in range(7):
                    a('s_mov_b32 m0, s22')
                    a('s_add_u32 s22, s22, 1024')
                    a(f'buffer_load_dwordx4 v{vW+j}, s[12:15], s35 offen lds')
            if r.rot:
                a('s_add_u32 s34, s34, 1')
                a(f's_cmp_eq_u32 s34, {r.nch}')
                a('s_cselect_b32 s34, 0, s34')
        per = r.nw
        issued = 0
        for c in range(min(r.nch, r.LA)):
            issue(c); issued += 1
        for c in range(r.nch):
            a(f's_waitcnt vmcnt({min(63, per*(issued - (c+1)))})')
            a('s_barrier')
            lim = min(r.nch - 1, c + r.LA, max(r.nslots - 1, c - 2 + r.nslots))
            while issued <= lim:
                issue(issued); issued += 1
    def comp_setup(self, t1, t2, t3):
        r = self
        if r.wfmt == 128:
            tr_lane_base(t1, t2, 2, t3, r.vWr)
            for cb in range(4):
                a(f'v_xor_b32 v{t3}, {cb}, v{t2}')
                a(f'v_lshl_add_u32 v{r.vWr+cb}, v{t3}, 5, v{t1}')
        else:
            a(f'v_lshrrev_b32 v{t1}, 5, v2')
            a(f'v_lshlrev_b32 v{t1}, 4, v{t1}')
            a(f'v_bfe_u32 v{t2}, v2, 2, 3')
            a(f'v_add_u32 v{t1}, v{t1}, v{t2}')
            a(f'v_mul_u32_u24 v{t1}, 224, v{t1}')
            a(f'v_and_b32 v{t2}, 3, v2')
            a(f'v_lshl_add_u32 v{r.vWr}, v{t2}, 3, v{t1}')
    def compute(self, aload, extra_vm=0):
        r = self
        FS = 4*r.NT
        nl = 2*r.NT
        total = 4 * r.nch
        state = dict(regbase=0)
        regs = [r.vWr+i for i in range(4)] if r.wfmt == 128 else [r.vWr]
        def loads(s):
            c, st = divmod(s, 4)
            base = (c % r.nslots) * r.SLOT
            if st == 0:
                a('s_barrier')
                want = (base // 32768) * 32768
                d = want - state['regbase']
                if d:
                    for v in regs:
                        if d > 0: a(f'v_add_u32 v{v}, {d}, v{v}')
                        else: a(f'v_subrev_u32 v{v}, {-d}, v{v}')
                    state['regbase'] = want
            cur = base - state['regbase']
            f = r.FB + FS*(s & 1)
            for cb in range(r.NT):
                for h in range(2):
                    d = f + 4*cb + 2*h
                    if r.wfmt == 128:
                        a(f'ds_read_b64_tr_b16 v[{d}:{d+1}], v{r.vWr+cb} offset:{cur + st*4096 + h*1024}')
                    else:
                        a(f'ds_read_b64_tr_b16 v[{d}:{d+1}], v{r.vWr} offset:{cur + st*7168 + h*1792 + 32*cb}')
        loads(0); loads(1)
        for s_ in range(total):
            issued_steps = min(total, s_ + r.XW)
            a(f's_waitcnt vmcnt({min(63, r.TT*(issued_steps - (s_+1)))}) lgkmcnt({min(15, nl) if s_ < total-1 else 0})')
            f = r.FB + FS*(s_ & 1)
            for cb in range(r.NT):
                w = f + 4*cb
                for tt in range(r.TT):
                    cc = r.ACC + 4*r.NT*tt + 4*cb
                    x = r.X + 4*(r.TT*(s_ % r.XW) + tt)
                    a(f'v_mfma_f32_16x16x32_bf16 v[{cc}:{cc+3}], v[{w}:{w+3}], v[{x}:{x+3}], v[{cc}:{cc+3}]')
            if s_ + 2 < total:
                loads(s_ + 2)
            if s_ + r.XW < total:
                aload(s_ + r.XW)

def store_tile64(O, vtok_row, sptr, scol, vt, lds_base_sgpr):
    a(f'v_and_b32 v{vt}, 15, v2')
    a(f'v_mul_u32_u24 v{vt}, 144, v{vt}')
    a(f'v_lshrrev_b32 v{vt+1}, 4, v2')
    a(f'v_lshl_add_u32 v{vt}, v{vt+1}, 3, v{vt}')
    a(f'v_add_u32 v{vt}, s{lds_base_sgpr}, v{vt}')
    for cb in range(4):
        a(f'ds_write_b64 v{vt}, v[{O+2*cb}:{O+2*cb+1}] offset:{32*cb}')
    a(f'v_lshrrev_b32 v{vt+1}, 3, v2')
    a(f'v_and_b32 v{vt+2}, 7, v2')
    a(f'v_mul_u32_u24 v{vt}, 144, v{vt+1}')
    a(f'v_lshl_add_u32 v{vt}, v{vt+2}, 4, v{vt}')
    a(f'v_add_u32 v{vt}, s{lds_base_sgpr}, v{vt}')
    a(f'v_lshlrev_b32 v{vt+1}, 10, v{vt+1}')
    a(f'v_lshl_add_u32 v{vt+1}, v{vt+2}, 4, v{vt+1}')
    a(f'v_add_u32 v{vt+1}, s{vtok_row}, v{vt+1}')
    a(f'v_add_u32 v{vt+1}, s{scol}, v{vt+1}')
    a(f'v_add_u32 v{vt+2}, 8192, v{vt+1}')
    a('s_waitcnt lgkmcnt(0)')
    a(f'ds_read_b128 v[{O}:{O+3}], v{vt}')
    a(f'ds_read_b128 v[{O+4}:{O+7}], v{vt} offset:{8*144}')
    a('s_waitcnt lgkmcnt(1)')
    a(f'global_store_dwordx4 v{vt+1}, v[{O}:{O+3}], s[{sptr}:{sptr+1}]')
    a('s_waitcnt lgkmcnt(0)')
    a(f'global_store_dwordx4 v{vt+2}, v[{O+4}:{O+7}], s[{sptr}:{sptr+1}]')

def wave_krow(dst):
    a(f"""
    s_lshr_b32 s{dst}, s3, 1
    s_lshl_b32 s{dst}, s{dst}, 4
    s_and_b32 s19, s3, 1
    s_lshl_b32 s19, s19, 2
    s_add_u32 s{dst}, s{dst}, s19
    """)

MAP64 = """
    s_bfe_u32 s16, s2, 0x30003
    s_and_b32 s17, s2, 7
    s_lshl_b32 s17, s17, 2
    s_lshr_b32 s19, s2, 6
    s_add_u32 s17, s17, s19
"""

def fra_epi_off(dst, t):
    a(f'v_lshrrev_b32 v{dst}, 1, v15')
    a(f'v_lshlrev_b32 v{dst}, 8, v{dst}')
    a(f'v_and_b32 v{t}, 15, v2')
    a(f'v_lshl_add_u32 v{dst}, v{t}, 4, v{dst}')
    a(f'v_and_b32 v{t}, 1, v15')
    a(f'v_lshl_add_u32 v{dst}, v{t}, 3, v{dst}')
    a('s_lshl_b32 s21, s16, 11')
    a('s_add_u32 s21, s21, s38')
    a(f'v_add_u32 v{dst}, s21, v{dst}')

def fra_store_off(dst, t):
    a(f"""
    v_and_b32 v{dst}, 1, v15
    v_lshrrev_b32 v{t}, 1, v15
    v_lshl_add_u32 v{dst}, v{dst}, 1, v{t}
    v_and_b32 v{t}, 15, v2
    v_lshl_add_u32 v{dst}, v{dst}, 4, v{t}
    s_lshl_b32 s21, s16, 11
    s_add_u32 s21, s21, s38
    v_lshl_add_u32 v{dst}, v{dst}, 4, s21
    """)

def gen_k4():
    global SV
    SV = 176
    name = 'k4_kernel'
    a.begin_kernel(name)
    a(f"""
    s_cmp_ge_u32 s2, 256
    s_cbranch_scc1 K4_exit
    s_load_dwordx2 s[4:5], s[0:1], {KA['ws']}
    s_load_dwordx2 s[6:7], s[0:1], {KA['w2']}
    s_load_dwordx2 s[44:45], s[0:1], {KA['w3']}
    """)
    trace_begin()
    a(f"""
    v_lshrrev_b32 v1, 6, v0
    v_and_b32 v2, 63, v0
    v_readfirstlane_b32 s24, v1
    s_and_b32 s3, s24, 3
    {MAP64}
    """)
    wave_krow(18)
    ACC = 36; FB = 64; X = 96
    R = Ring4(TT=1, NT=4, nch=4, nslots=4, w_rs=1024, wfmt=128, FB=FB, ACC=ACC, vWr=10, X=X, XW=16, LA=LA5)
    a(f"""
    s_lshl_b32 s39, s17, 6
    s_lshl_b32 s23, s3, 4
    s_add_u32 s39, s39, s23
    s_lshl_b32 s38, s39, 10
    s_lshl_b32 s20, s18, 10
    s_lshl_b32 s37, s16, 7
    s_add_u32 s20, s20, s37
    s_cmp_ge_u32 s24, 4
    s_cbranch_scc1 K4_loader
    v_and_b32 v14, 15, v2
    v_lshrrev_b32 v15, 4, v2
    v_add_u32 v14, s39, v14            ; token
    v_lshlrev_b32 v16, 3, v14
    v_lshlrev_b32 v19, 6, v14
    """)
    for q, sh in enumerate([-1, 1, -2, 2]):
        a(f'v_add_u32 v5, {sh}, v14')
        a('v_ashrrev_i32 v6, 4, v5')
        a('v_lshlrev_b32 v6, 14, v6')
        a('v_and_b32 v5, 15, v5')
        a('v_lshl_add_u32 v6, v5, 4, v6')
        a('v_lshl_add_u32 v6, v15, 8, v6')
        a(f'v_add_u32 v{52+q}, {4096*q}, v6')
    fra_epi_off(18, 5)
    a('s_waitcnt lgkmcnt(0)')
    ws_ptr(8, 4, 'G1')
    a(f's_mov_b32 s10, {2*MB}')
    a('s_mov_b32 s11, 0x00020000')
    ws_ptr(24, 4, 'HR'); ws_ptr(26, 4, 'X1'); ws_ptr(28, 4, 'ST3'); ws_ptr(30, 4, 'ST1')
    HRr = 20
    for cb in range(4):
        a(f'global_load_dwordx2 v[{HRr+2*cb}:{HRr+2*cb+1}], v18, s[24:25] offset:{512*cb}')
    a('global_load_dwordx2 v[28:29], v16, s[30:31]')
    for st in range(16):
        a(f'buffer_load_dwordx4 v[{X+4*st}:{X+4*st+3}], v{52+(st>>2)}, s[8:11], 0 offen offset:{1024*(st&3)}')
    R.comp_setup(5, 6, 7)
    for i in range(16):
        a(f'v_mov_b32 v{ACC+i}, 0')
    R.compute(None)
    a('v_mov_b32 v60, 0')
    a('v_mov_b32 v61, 0')
    a('v_mov_b32 v62, 0')
    a('v_mov_b32 v63, 0')
    a('s_nop 4')
    O = 168
    for p in range(8):
        c = ACC + 2*p
        round_pair(c, 164)
        unpack(30, 31, HRr + p)
        a('v_pk_add_f32 v[30:31], v[30:31], v[28:29] op_sel_hi:[1,0] neg_lo:[0,1] neg_hi:[0,1]')
        round_pair(30, 165)
        a('v_pk_mul_f32 v[30:31], v[30:31], v[28:29] op_sel:[0,1] op_sel_hi:[1,1]')
        round_pair(30, 165)
        a(f'v_pk_add_f32 v[{c}:{c+1}], v[{c}:{c+1}], v[30:31]')
        a(f'v_cvt_pk_bf16_f32 v{O+p}, v{c}, v{c+1}')
        unpack(c, c+1, O+p)
        a(f'v_pk_add_f32 v[60:61], v[60:61], v[{c}:{c+1}]')
        a(f'v_pk_fma_f32 v[62:63], v[{c}:{c+1}], v[{c}:{c+1}], v[62:63]')
    a('v_add_f32 v60, v60, v61')
    a('v_add_f32 v61, v62, v63')
    fra_store_off(7, 8)
    a('v_mov_b32 v62, v60')
    a('v_mov_b32 v63, v61')
    for P in range(2):
        o = O + 4*P
        a(f'v_permlane16_swap_b32 v{o}, v{o+2}')
        a(f'v_permlane16_swap_b32 v{o+1}, v{o+3}')
    a('v_permlane16_swap_b32 v60, v62')
    a('v_permlane16_swap_b32 v61, v63')
    for P in range(2):
        o = O + 4*P
        a(f'global_store_dwordx4 v7, v[{o}:{o+3}], s[26:27] offset:{1024*P}')
    a(f"""
    v_pk_add_f32 v[60:61], v[60:61], v[62:63]
    s_nop 0
    v_mov_b32 v62, v60
    v_mov_b32 v63, v61
    s_nop 1
    v_permlane32_swap_b32 v60, v62
    v_permlane32_swap_b32 v61, v63
    s_nop 1
    v_pk_add_f32 v[60:61], v[60:61], v[62:63]
    s_lshl_b32 s21, s16, 3
    v_add_u32 v19, s21, v19
    v_cmp_gt_u32 vcc, 16, v2
    s_and_saveexec_b64 s[32:33], vcc
    global_store_dwordx2 v19, v[60:61], s[28:29]
    s_mov_b64 exec, s[32:33]
    """)
    trace_end(3)
    a('s_endpgm')
    a.label('K4_loader')
    a('s_waitcnt lgkmcnt(0)')
    mk_srd(12, 6, 512*1024)
    R.loader()
    code_prefetch('k5_kernel', 'K_code_end', 30, 32, 40)
    if PF4:
        a('v_and_b32 v0, 255, v0')
        l2_prefetch(44, 512*3584, 24, 28, 21)
    a.label('K4_exit')
    a.end_kernel(name, (256,1,1), (512,1,1), 65536, 184)

def gen_k5():
    global SV
    SV = 200
    name = 'k5_kernel'
    a.begin_kernel(name)
    a(f"""
    s_cmp_ge_u32 s2, 256
    s_cbranch_scc1 K5_exit
    s_load_dwordx2 s[4:5], s[0:1], {KA['ws']}
    s_load_dwordx2 s[6:7], s[0:1], {KA['w3']}
    s_load_dwordx2 s[40:41], s[0:1], {KA['w4']}
    """)
    trace_begin()
    a(f"""
    v_lshrrev_b32 v1, 6, v0
    v_and_b32 v2, 63, v0
    v_readfirstlane_b32 s24, v1
    s_and_b32 s3, s24, 3
    s_bfe_u32 s16, s2, 0x40003
    s_and_b32 s17, s2, 7
    s_lshl_b32 s17, s17, 1
    s_lshr_b32 s19, s2, 7
    s_add_u32 s17, s17, s19
    """)
    ACC = 144; FB = 16; X = 72; XW = 8
    R = Ring4(TT=2, NT=7, nch=4, nslots=4, w_rs=3584, wfmt=224, FB=FB, ACC=ACC, vWr=10, X=X, XW=XW, LA=LA5)
    a(f"""
    s_lshl_b32 s39, s17, 7
    s_lshl_b32 s23, s3, 5
    s_add_u32 s39, s39, s23
    s_lshl_b32 s38, s39, 10
    s_mul_i32 s20, s3, {32*3584}
    s_mul_i32 s37, s16, 224
    s_add_u32 s20, s20, s37
    s_cmp_ge_u32 s24, 4
    s_cbranch_scc1 K5_loader
    v_and_b32 v14, 15, v2
    v_lshrrev_b32 v15, 4, v2
    v_add_u32 v14, s39, v14
    v_lshlrev_b32 v13, 6, v14
    s_mul_i32 s21, s16, 448
    v_lshl_add_u32 v8, v15, 4, s21
    v_lshl_add_u32 v11, v2, 4, s38
    v_add_u32 v12, 0x4000, v11         ; tt1
    s_waitcnt lgkmcnt(0)
    """)
    SV = 232
    gstamp(0)
    ws_ptr(8, 4, 'X1'); ws_ptr(24, 4, 'ST3'); ws_ptr(26, 4, 'HH'); ws_ptr(28, 4, 'CS', 2048)
    for tt in range(2):
        for q in range(4):
            r = ACC + 16*tt + 4*q
            a(f'global_load_dwordx4 v[{r}:{r+3}], v13, s[24:25] offset:{1024*tt + 16*q}')
    CSR = 204
    for cb in range(7):
        a(f'global_load_dwordx4 v[{CSR+4*cb}:{CSR+4*cb+3}], v8, s[28:29] offset:{64*cb}')
    def aload(st):
        if st % 4 == 0 and st:
            a('s_add_u32 s8, s8, 4096')
            a('s_addc_u32 s9, s9, 0')
        for tt in range(2):
            x = X + 4*(2*(st % XW) + tt)
            a(f'global_load_dwordx4 v[{x}:{x+3}], v{11+tt}, s[8:9] offset:{1024*(st&3)}')
    for st in range(XW):
        aload(st)
    gstamp(1)
    R.comp_setup(3, 4, 5)
    a(f's_waitcnt vmcnt({7 + 2*XW})')
    for tt in range(2):
        b = ACC + 16*tt
        for i in (8, 4, 2):
            for j in range(0, i, 2):
                a(f'v_pk_add_f32 v[{b+j}:{b+j+1}], v[{b+j}:{b+j+1}], v[{b+j+i}:{b+j+i+1}]')
        a(f'v_mul_f32 v{b}, {hx(1/512)}, v{b}')
        a(f'v_mul_f32 v{b+1}, {hx(1/512)}, v{b+1}')
        a(f'v_fma_f32 v{b+1}, -v{b}, v{b}, v{b+1}')
        a(f'v_max_f32 v{b+1}, 0, v{b+1}')
        ln_scalars(b, b+1, 3)
        a(f'v_mov_b32 v{4+2*tt}, v{b+1}')
        a(f'v_mul_f32 v{5+2*tt}, v{b}, v{b+1}')
    for i in range(56):
        a(f'v_mov_b32 v{ACC+i}, 0')
    gstamp(2)
    R.compute(aload)
    gstamp(3)
    a(f"""
    v_mov_b32 v72, {hx(GC1)}
    v_mov_b32 v73, {hx(GC2)}
    v_mov_b32 v74, 1.0
    v_mov_b32 v75, 1.0
    s_mul_i32 s21, s39, 3584
    s_mul_i32 s22, s16, 3584
    s_add_u32 s21, s21, s22
    v_and_b32 v3, 1, v15
    v_lshrrev_b32 v13, 1, v15
    v_and_b32 v8, 15, v2
    v_lshl_add_u32 v8, v8, 4, s21
    v_lshl_add_u32 v12, v3, 1, v13
    v_lshl_add_u32 v12, v12, 8, v8
    v_add_u32 v11, 57344, v12          ; tt1
    v_mul_u32_u24 v3, 57344, v3
    v_lshl_add_u32 v10, v13, 8, v8
    v_add_u32 v10, v10, v3
    """)
    O = 80
    for tt in range(2):
        zs = [ACC + 28*tt + 2*p for p in range(14)]
        affine_round(zs, [CSR + 2*p for p in range(14)], 4+2*tt, 64)
        gelu_pairs(zs, 72, 64)
        for p in range(14):
            d = O + 16*tt + p if p < 12 else 112 + 2*tt + (p - 12)
            a(f'v_cvt_pk_bf16_f32 v{d}, v{zs[p]}, v{zs[p]+1}')
        a('s_nop 1')
        for P in range(3):
            o = O + 16*tt + 4*P
            a(f'v_permlane16_swap_b32 v{o}, v{o+2}')
            a(f'v_permlane16_swap_b32 v{o+1}, v{o+3}')
        a('s_nop 1')
        for P in range(3):
            o = O + 16*tt + 4*P
            a(f'global_store_dwordx4 v{12-tt}, v[{o}:{o+3}], s[26:27] offset:{1024*P}')
    a('v_permlane16_swap_b32 v112, v114')
    a('v_permlane16_swap_b32 v113, v115')
    a('s_nop 1')
    a('global_store_dwordx4 v10, v[112:115], s[26:27] offset:3072')
    gstamp(4)
    if GST: a('s_waitcnt vmcnt(0)')
    gstamp(5)
    trace_end(4)
    a('s_endpgm')
    a.label('K5_loader')
    a('s_waitcnt lgkmcnt(0)')
    mk_srd(12, 6, 512*3584)
    R.loader()
    if PF5:
        a('v_and_b32 v0, 255, v0')
        l2_prefetch(40, 1792*1024, 24, 28, 21)
    a.label('K5_exit')
    a.end_kernel(name, (256,1,1), (512,1,1), 4*R.SLOT, 240)

def gen_k6():
    global SV
    SV = 176
    name = 'k6_kernel'
    a.begin_kernel(name)
    a(f"""
    s_cmp_ge_u32 s2, 256
    s_cbranch_scc1 K6_exit
    s_load_dwordx2 s[4:5], s[0:1], {KA['ws']}
    s_load_dwordx2 s[6:7], s[0:1], {KA['w4']}
    s_load_dwordx2 s[26:27], s[0:1], {KA['out']}
    """)
    trace_begin()
    a(f"""
    v_lshrrev_b32 v1, 6, v0
    v_and_b32 v2, 63, v0
    v_readfirstlane_b32 s24, v1
    s_and_b32 s3, s24, 3
    {MAP64}
    """)
    wave_krow(18)
    ACC = 36; FB = 64; X = 96; XW = 16
    R = Ring4(TT=1, NT=4, nch=14, nslots=8, w_rs=1024, wfmt=128, FB=FB, ACC=ACC, vWr=10, X=X, XW=XW, rot=True, LA=LA6)
    a(f"""
    s_lshl_b32 s39, s17, 6
    s_lshl_b32 s23, s3, 4
    s_add_u32 s39, s39, s23
    s_lshl_b32 s38, s39, 10
    s_lshl_b32 s20, s18, 10
    s_lshl_b32 s37, s16, 7
    s_add_u32 s20, s20, s37
    s_lshl_b32 s34, s17, 1
    s_add_u32 s34, s34, s16
    s_mul_hi_u32 s35, s34, 0x24924925
    s_mul_i32 s35, s35, 7
    s_sub_u32 s34, s34, s35
    s_lshl_b32 s34, s34, 1
    s_cmp_ge_u32 s24, 4
    s_cbranch_scc1 K6_loader
    v_lshrrev_b32 v15, 4, v2
    s_mul_i32 s21, s39, 3584
    v_lshl_add_u32 v17, v2, 4, s21
    s_lshl_b32 s36, s34, 12
    """)
    fra_epi_off(18, 5)
    a('s_waitcnt lgkmcnt(0)')
    ws_ptr(8, 4, 'HH'); ws_ptr(24, 4, 'HR'); ws_ptr(28, 4, 'X1')
    a(f's_mov_b32 s10, {2048*3584}')
    a('s_mov_b32 s11, 0x00020000')
    for cb in range(4):
        a(f'global_load_dwordx2 v[{20+2*cb}:{21+2*cb}], v18, s[24:25] offset:{512*cb}')
    for cb in range(4):
        a(f'global_load_dwordx2 v[{28+2*cb}:{29+2*cb}], v18, s[28:29] offset:{512*cb}')
    def aload(st):
        x = X + 4*(st % XW)
        a(f'buffer_load_dwordx4 v[{x}:{x+3}], v17, s[8:11], s36 offen offset:{1024*(st&3)}')
        if st % 4 == 3:
            a('s_add_u32 s36, s36, 4096')
            a('s_cmp_eq_u32 s36, 57344')
            a('s_cselect_b32 s36, 0, s36')
    for st in range(XW):
        aload(st)
    R.comp_setup(5, 6, 7)
    for i in range(16):
        a(f'v_mov_b32 v{ACC+i}, 0')
    R.compute(aload)
    a('s_nop 7')
    O = 168
    for p in range(8):
        c = ACC + 2*p
        round_pair(c, 60)
        unpack(62, 63, 28 + p)
        a(f'v_pk_add_f32 v[{c}:{c+1}], v[{c}:{c+1}], v[62:63]')
        round_pair(c, 60)
        unpack(62, 63, 20 + p)
        a(f'v_pk_add_f32 v[{c}:{c+1}], v[{c}:{c+1}], v[62:63]')
        a(f'v_cvt_pk_bf16_f32 v{O+p}, v{c}, v{c+1}')
    a(f's_mul_i32 s21, s3, 2560')
    a(f's_add_u32 s21, s21, {8*R.SLOT}')
    store_tile64(O, 38, 26, 37, 64, 21)
    trace_end(5)
    a('s_endpgm')
    a.label('K6_loader')
    a('s_waitcnt lgkmcnt(0)')
    mk_srd(12, 6, 1792*1024)
    R.loader()
    a.label('K6_exit')
    a.end_kernel(name, (256,1,1), (512,1,1), 8*R.SLOT + 10240, 184)
    a.label('K_code_end')

def main():
    gen_k1()
    gen_k2()
    gen_k3()
    gen_k4()
    gen_k5()
    gen_k6()

if __name__ == '__main__':
    out = sys.argv[1] if len(sys.argv) > 1 else 'k.s'
    if 'stamps' in sys.argv[2:]:
        STAMPS = True
    if 'trace' in sys.argv[2:]:
        TRACE = True
    if 'gst' in sys.argv[2:]:
        GST = True
    main()
    open(out, 'w').write(a.text(HEADER))
```

```python
import sys, struct
from asmlib import *
from gen_ws import WS, MB

KA = dict(x=0, Are=8, Aim=16, Bre=24, Bim=32, Cre=40, Cim=48, ldt=56, Dsk=64, Bx=72, w1=80, w2=88, w3=96, w4=104, out=112, dbg=120, ws=128)

def f2u(f):
    return struct.unpack('<I', struct.pack('<f', f))[0]
def hx(f):
    return hex(f2u(f))

LOG2E = 1.4426950408889634
LOG2E_HI = struct.unpack('<f', struct.pack('<f', LOG2E))[0]
LOG2E_LO = LOG2E - LOG2E_HI
LN2 = 0.6931471805599453
INV2PI = 0.15915494309189535

a = Asm()

def ws_ptr(dst, wsreg, name, extra=0):
    off = WS[name] + extra
    a(f's_add_u32 s{dst}, s{wsreg}, {hex(off)}')
    a(f's_addc_u32 s{dst+1}, s{wsreg+1}, 0')

def row16_allreduce(v):
    for sh in (8, 4, 2, 1):
        a('s_nop 1')
        a(f'v_add_f32_dpp v{v}, v{v}, v{v} row_ror:{sh} row_mask:0xf bank_mask:0xf')

def unpack(dlo, dhi, src):
    a(f'v_lshlrev_b32 v{dlo}, 16, v{src}')
    a(f'v_and_b32 v{dhi}, 0xffff0000, v{src}')

STAMPS = False
PREFETCH = True
F16 = 'nof16' not in sys.argv
NOPF2 = 'nopf2' in sys.argv
PF2W3 = 'pf2w3' in sys.argv
PF4 = 'pf4' in sys.argv
LA5 = int([x[3:] for x in sys.argv if x.startswith('l5_')][0]) if any(x.startswith('l5_') for x in sys.argv) else 2
LA6 = int([x[3:] for x in sys.argv if x.startswith('l6_')][0]) if any(x.startswith('l6_') for x in sys.argv) else 3
LA0 = int([x[3:] for x in sys.argv if x.startswith('lb_')][0]) if any(x.startswith('lb_') for x in sys.argv) else 2
LA_DEF = int([x[2:] for x in sys.argv if x.startswith('la')][0]) if any(x.startswith('la') for x in sys.argv) else 2
PF2 = 'pf2' in sys.argv
PF5 = 'nopf5' not in sys.argv
SV = 124
def stamp_init():
    if not STAMPS: return
    a(f's_load_dwordx2 s[90:91], s[0:1], {KA["dbg"]}')
def stamp(wg_list, slot):
    if not STAMPS: return
    l = a.newlabel('STP')
    a('s_memtime s[92:93]')
    a('s_waitcnt lgkmcnt(0)')
    a('v_readfirstlane_b32 s95, v0')
    a('s_nop 3')
    a('s_cmp_lg_u32 s95, 0')
    a(f's_cbranch_scc1 {l}')
    for i, wg in enumerate(wg_list):
        l2 = a.newlabel('STQ')
        a(f's_cmp_lg_u32 s2, {wg}')
        a(f's_cbranch_scc1 {l2}')
        a(f'v_mov_b32 v{SV+1}, s92')
        a(f'v_mov_b32 v{SV}, {(i*16+slot+16)*4}')
        a(f'global_store_dword v{SV}, v{SV+1}, s[90:91]')
        a.label(l2)
    a.label(l)

TRACE = False
GST = False
def gstamp(slot):
    if not GST: return
    l = a.newlabel('GST')
    a('s_memrealtime s[92:93]')
    a('v_readfirstlane_b32 s95, v0')
    a('s_waitcnt lgkmcnt(0)')
    a('s_cmp_lg_u32 s95, 0')
    a(f's_cbranch_scc1 {l}')
    a(f'v_mov_b32 v{SV+1}, s92')
    a('s_lshl_b32 s95, s2, 6')
    a(f's_add_u32 s95, s95, {40*MB + slot*4}')
    a(f'v_mov_b32 v{SV}, s95')
    a(f'global_store_dword v{SV}, v{SV+1}, s[4:5]')
    a.label(l)
def trace_begin():
    if not TRACE: return
    a('s_memrealtime s[96:97]')
    a('s_getreg_b32 s98, hwreg(HW_REG_HW_ID)')
    a('s_getreg_b32 s99, hwreg(HW_REG_XCC_ID)')
def trace_end(kidx):
    if not TRACE: return
    l = a.newlabel('TRC')
    a('s_mov_b64 exec, -1')
    a('s_memrealtime s[100:101]')
    a('v_readfirstlane_b32 s95, v0')
    a('s_waitcnt lgkmcnt(0)')
    a('s_cmp_lg_u32 s95, 0')
    a(f's_cbranch_scc1 {l}')
    a(f'v_mov_b32 v{SV}, s96')
    a(f'v_mov_b32 v{SV+1}, s100')
    a(f'v_mov_b32 v{SV+2}, s98')
    a(f'v_mov_b32 v{SV+3}, s99')
    a('s_lshl_b32 s95, s2, 4')
    a(f's_add_u32 s95, s95, {hex(32*MB + kidx*65536)}')
    a(f'v_mov_b32 v{SV+4}, s95')
    a(f'global_store_dwordx4 v{SV+4}, v[{SV}:{SV+3}], s[4:5]')
    a.label(l)

def l2_prefetch(sptr, total_bytes, vtmp, vdst, stmp):
    per = total_bytes // 32
    assert per % 4096 == 0
    a(f's_lshr_b32 s{stmp}, s2, 3')
    a(f's_mul_i32 s{stmp}, s{stmp}, {per}')
    a(f'v_lshl_add_u32 v{vtmp}, v0, 4, s{stmp}')
    for i in range(per // 4096):
        a(f'global_load_dwordx4 v[{vdst}:{vdst+3}], v{vtmp}, s[{sptr}:{sptr+1}]')
        if i < per // 4096 - 1:
            a(f's_add_u32 s{sptr}, s{sptr}, 4096')
            a(f's_addc_u32 s{sptr+1}, s{sptr+1}, 0')

CODEPF = 'nocpf' not in sys.argv
def code_prefetch(first_label, last_label, vt, vdst, sp):
    if not CODEPF: return
    l = a.newlabel('CPF')
    a(f's_getpc_b64 s[{sp}:{sp+1}]')
    a.label(l)
    a(f's_add_u32 s{sp}, s{sp}, {first_label}-{l}')
    a(f's_addc_u32 s{sp+1}, s{sp+1}, 0')
    a(f's_bfe_u32 s{sp+2}, s2, 0x50003')
    a(f's_lshl_b32 s{sp+2}, s{sp+2}, 10')
    a(f'v_and_b32 v{vt}, 63, v0')
    a(f'v_lshl_add_u32 v{vt}, v{vt}, 4, s{sp+2}')
    a(f'v_min_u32 v{vt}, {last_label}-{first_label}-16, v{vt}')
    a(f'global_load_dwordx4 v[{vdst}:{vdst+3}], v{vt}, s[{sp}:{sp+1}]')

def ln_scalars(S, Q, T):
    a(f'v_cvt_pk_bf16_f32 v{T}, v{S}, v{Q}')
    unpack(S, Q, T)
    a(f'v_add_f32 v{Q}, {hx(1e-5)}, v{Q}')
    a(f'v_cvt_pk_bf16_f32 v{T}, v{Q}, v{Q}')
    a(f'v_lshlrev_b32 v{Q}, 16, v{T}')
    a(f'v_sqrt_f32 v{Q}, v{Q}')
    a('s_nop 0')
    a(f'v_cvt_pk_bf16_f32 v{T}, v{Q}, v{Q}')
    a(f'v_lshlrev_b32 v{Q}, 16, v{T}')
    a(f'v_rcp_f32 v{Q}, v{Q}')
    a('s_nop 0')

def gen_k1():
    global SV
    SV = 96
    name = 'k1_kernel'
    SW = [0, 64, 82]
    a.begin_kernel(name)
    a(f"""
    s_cmp_ge_u32 s2, 274
    s_cbranch_scc1 K1_exit
    s_load_dwordx2 s[4:5], s[0:1], {KA['ws']}
    """)
    stamp_init(); stamp(SW, 0); trace_begin()

    a(f"""
    s_cmp_lt_u32 s2, 256
    s_cbranch_scc1 K1_kgen
    """)
    a(f"""
    s_sub_u32 s3, s2, 256            ; 0..17 : 0..3 -> w1 ; 4..17 -> w3
    s_load_dwordx2 s[6:7], s[0:1], {KA['w1']}
    s_load_dwordx2 s[8:9], s[0:1], {KA['w3']}
    s_movk_i32 s10, 1024
    s_lshl_b32 s11, s3, 8
    s_cmp_lt_u32 s3, 4
    s_waitcnt lgkmcnt(0)
    s_cbranch_scc1 K1_cs_w1
    s_mov_b32 s6, s8
    s_mov_b32 s7, s9
    s_movk_i32 s10, 3584
    s_sub_u32 s11, s11, 1024
    """)
    a.label('K1_cs_w1')
    a("""
    v_lshrrev_b32 v1, 4, v0          ; rg 0..31
    v_and_b32 v2, 15, v0
    v_mul_lo_u32 v3, v1, s10
    v_lshl_add_u32 v3, v2, 4, v3
    v_add_u32 v3, s11, v3
    s_lshl_b32 s12, s10, 5           ; 32 rows
    """)
    for i in range(16):
        a(f'global_load_dwordx4 v[{8+4*i}:{11+4*i}], v3, s[6:7]')
        if i < 15:
            a('s_add_u32 s6, s6, s12')
            a('s_addc_u32 s7, s7, 0')
    AC = 76
    for j in range(8):
        a(f'v_mov_b32 v{AC+j}, 0')
    for i in range(16):
        a(f's_waitcnt vmcnt({15-i})')
        for j in range(4):
            unpack(84+2*(j&1), 85+2*(j&1), 8+4*i+j)
            a(f'v_pk_add_f32 v[{AC+2*j}:{AC+2*j+1}], v[{AC+2*j}:{AC+2*j+1}], v[{84+2*(j&1)}:{85+2*(j&1)}]')
    a(f"""
    v_lshlrev_b32 v4, 5, v0          ; rg*512 + c*32
    ds_write_b128 v4, v[{AC}:{AC+3}]
    ds_write_b128 v4, v[{AC+4}:{AC+7}] offset:16
    v_lshlrev_b32 v5, 2, v0
    s_waitcnt lgkmcnt(0)
    s_barrier
    v_cmp_gt_u32 vcc, 128, v0
    s_and_saveexec_b64 s[14:15], vcc
    s_cbranch_execz K1_end
    """)
    for i in range(32):
        a(f'ds_read_b32 v{8+i}, v5 offset:{512*i}')
    ws_ptr(8, 4, 'CS')
    a('s_lshl_b32 s3, s3, 9')
    a('v_add_u32 v5, s3, v5')
    a('s_waitcnt lgkmcnt(0)')
    for st in (16, 8, 4, 2, 1):
        for i in range(st):
            a(f'v_add_f32 v{8+i}, v{8+i}, v{8+i+st}')
    a('global_store_dword v5, v8, s[8:9]')
    a('s_branch K1_end')

    a.label('K1_kgen')
    a(f"""
    s_load_dwordx4 s[8:11], s[0:1], {KA['Are']}
    s_load_dwordx4 s[12:15], s[0:1], {KA['Bre']}
    s_load_dwordx4 s[16:19], s[0:1], {KA['Cre']}
    s_load_dwordx2 s[20:21], s[0:1], {KA['ldt']}
    s_load_dwordx2 s[6:7], s[0:1], {KA['x']}
    s_lshl_b32 s3, s2, 1             ; d0
    v_lshrrev_b32 v1, 8, v0
    v_add_u32 v1, s3, v1             ; d
    v_lshrrev_b32 v2, 6, v0          ; wave
    v_and_b32 v3, 31, v0
    v_lshl_add_u32 v3, v2, 5, v3     ; (ch*128 + n)
    s_lshl_b32 s26, s3, 8
    v_lshlrev_b32 v14, 4, v3
    v_lshl_add_u32 v3, v3, 1, s26    ; d*256 + n*2
    v_lshlrev_b32 v4, 1, v1
    v_and_b32 v5, 15, v0             ; idx
    v_bfe_u32 v6, v0, 4, 2           ; nn
    s_lshl_b32 s26, s2, 13
    v_lshl_add_u32 v92, v0, 4, s26   ; (8wg + wave)*1024 + lane*16
    s_waitcnt lgkmcnt(0)
    global_load_ushort v7, v4, s[20:21]
    global_load_ushort v8, v3, s[8:9]
    global_load_ushort v9, v3, s[10:11]
    global_load_ushort v10, v3, s[12:13]
    global_load_ushort v11, v3, s[14:15]
    global_load_ushort v12, v3, s[16:17]
    global_load_ushort v13, v3, s[18:19]
    global_load_dwordx4 v[76:79], v92, s[6:7]
    """)
    ws_ptr(22, 4, 'KH'); ws_ptr(24, 4, 'KL')
    if PREFETCH:
        a(f"""
        s_load_dwordx4 s[28:31], s[0:1], {KA['w1']}
        s_load_dwordx4 s[32:35], s[0:1], {KA['w3']}
        s_mov_b32 s36, s2
        s_mul_i32 s37, s36, 7168
        v_min_u32 v44, 447, v0
        v_lshl_add_u32 v44, v44, 4, s37
        s_lshl_b32 s37, s36, 11
        v_and_b32 v45, 127, v0
        v_lshl_add_u32 v45, v45, 4, s37
        s_waitcnt lgkmcnt(0)
        global_load_dwordx4 v[72:75], v44, s[34:35]
        global_load_dwordx4 v[72:75], v44, s[32:33]
        global_load_dwordx4 v[72:75], v45, s[30:31]
        global_load_dwordx4 v[72:75], v45, s[28:29]
        """)
    code_prefetch('k2_kernel', 'k4_kernel', 44, 72, 36)
    a("""
    v_lshrrev_b32 v40, 3, v5
    v_lshlrev_b32 v40, 7, v40
    v_and_or_b32 v32, v5, 7, v40
    v_bfe_u32 v40, v5, 2, 1
    v_lshlrev_b32 v40, 7, v40
    v_and_b32 v41, 3, v5
    v_lshl_add_u32 v40, v41, 1, v40
    v_add_u32 v40, 256, v40
    v_bfe_u32 v41, v5, 1, 2
    v_lshlrev_b32 v41, 7, v41
    v_and_b32 v33, 1, v5
    v_lshl_add_u32 v41, v33, 2, v41
    v_add_u32 v41, 512, v41
    v_cmp_gt_u32 vcc, 8, v5
    v_lshlrev_b32 v34, 7, v5
    v_add_u32 v34, 1024, v34
    v_cndmask_b32 v33, v41, v40, vcc
    v_lshlrev_b32 v35, 3, v5
    v_cvt_f32_u32 v32, v32
    v_cvt_f32_u32 v33, v33
    v_cvt_f32_u32 v34, v34
    v_cvt_f32_u32 v35, v35
    v_mul_u32_u24 v42, 3072, v2
    v_add_u32 v42, 4096, v42
    v_lshrrev_b32 v40, 1, v6
    v_lshlrev_b32 v40, 7, v40
    v_and_b32 v41, 1, v6
    v_lshl_add_u32 v40, v41, 2, v40
    v_lshl_add_u32 v40, v5, 3, v40
    v_lshl_add_u32 v36, v40, 2, v42
    v_lshlrev_b32 v40, 6, v6
    v_add_u32 v40, 256, v40
    v_lshl_add_u32 v41, v5, 2, v40
    v_lshl_add_u32 v40, v5, 1, v40
    v_cmp_gt_u32 vcc, 2, v6
    v_mov_b32 v43, 32
    s_nop 0
    v_cndmask_b32 v40, v40, v41, vcc
    v_cndmask_b32 v43, v43, 2, vcc
    v_lshl_add_u32 v37, v40, 2, v42
    v_lshl_add_u32 v38, v43, 2, v37
    v_lshlrev_b32 v40, 6, v6
    v_add_u32 v40, v40, v5
    v_add_u32 v40, 512, v40
    v_lshl_add_u32 v39, v40, 2, v42
    v_lshlrev_b32 v15, 9, v2
    v_lshl_add_u32 v15, v6, 4, v15
    """)
    stamp(SW, 1)
    a(f's_waitcnt vmcnt({5 + CODEPF})')
    a(f"""
    v_lshlrev_b32 v7, 16, v7
    v_mul_f32 v40, {hx(LOG2E_HI)}, v7
    s_mov_b32 s26, {hx(LOG2E_HI)}
    v_fma_f32 v41, v7, s26, -v40
    v_mov_b32 v43, {hx(LOG2E_LO)}
    v_fmac_f32 v41, v7, v43
    v_exp_f32 v40, v40
    v_mul_f32 v41, {hx(LN2)}, v41
    v_lshlrev_b32 v8, 16, v8
    v_fmac_f32 v40, v40, v41
    v_cvt_pk_bf16_f32 v40, v40, v40
    v_lshlrev_b32 v7, 16, v40         ; dt
    v_lshlrev_b32 v9, 16, v9
    v_lshlrev_b32 v10, 16, v10
    v_lshlrev_b32 v11, 16, v11
    v_lshlrev_b32 v12, 16, v12
    v_lshlrev_b32 v13, 16, v13
    v_mul_f32 v16, v7, v8
    v_mul_f32 v17, v7, v9
    v_mul_f32 v16, {hx(LOG2E)}, v16
    v_mul_f32 v17, {hx(INV2PI)}, v17
    v_mul_f32 v10, v7, v10
    v_mul_f32 v11, v7, v11
    v_mul_f32 v18, v12, v10
    v_mul_f32 v19, v12, v11
    v_fma_f32 v18, -v13, v11, v18
    v_fmac_f32 v19, v13, v10
    ds_write_b128 v14, v[16:19]
    """)
    def ln_block():
        LB = 32768
        F = 80
        ws_ptr(28, 4, 'UT'); ws_ptr(30, 4, 'XT')
        a(f"""
        v_and_b32 v95, 63, v0
        v_mul_u32_u24 v28, 1056, v2
        v_lshl_add_u32 v28, v95, 4, v28
        ds_write_b128 v28, v[76:79] offset:{LB+8448}
        """)
        for i in range(4):
            unpack(F+2*i, F+2*i+1, 76+i)
        def wave_allreduce(v, t):
            row16_allreduce(v)
            a(f'v_mov_b32 v{t}, v{v}')
            a('s_nop 1')
            a(f'v_permlane16_swap_b32 v{v}, v{t}')
            a('s_nop 1')
            a(f'v_add_f32 v{v}, v{v}, v{t}')
            a(f'v_mov_b32 v{t}, v{v}')
            a('s_nop 1')
            a(f'v_permlane32_swap_b32 v{v}, v{t}')
            a('s_nop 1')
            a(f'v_add_f32 v{v}, v{v}, v{t}')
        a(f"""
        v_pk_add_f32 v[88:89], v[{F}:{F+1}], v[{F+2}:{F+3}]
        v_pk_add_f32 v[90:91], v[{F+4}:{F+5}], v[{F+6}:{F+7}]
        v_pk_add_f32 v[88:89], v[88:89], v[90:91]
        v_add_f32 v88, v88, v89
        """)
        wave_allreduce(88, 89)
        a(f'v_mul_f32 v88, {hx(1/512)}, v88')
        a('v_mov_b32 v90, 0')
        a('v_mov_b32 v91, 0')
        for i in range(4):
            a(f'v_pk_add_f32 v[92:93], v[{F+2*i}:{F+2*i+1}], v[88:89] op_sel_hi:[1,0] neg_lo:[0,1] neg_hi:[0,1]')
            a('v_pk_fma_f32 v[90:91], v[92:93], v[92:93], v[90:91]')
        a('v_add_f32 v90, v90, v91')
        wave_allreduce(90, 91)
        a(f'v_mul_f32 v90, {hx(1/512)}, v90')
        ln_scalars(88, 90, 92)
        for i in range(4):
            f0 = F+2*i
            a(f'v_pk_add_f32 v[{f0}:{f0+1}], v[{f0}:{f0+1}], v[88:89] op_sel_hi:[1,0] neg_lo:[0,1] neg_hi:[0,1]')
            a(f'v_cvt_pk_bf16_f32 v92, v{f0}, v{f0+1}')
            unpack(f0, f0+1, 92)
            a(f'v_pk_mul_f32 v[{f0}:{f0+1}], v[{f0}:{f0+1}], v[90:91] op_sel_hi:[1,0]')
            a(f'v_cvt_pk_bf16_f32 v{76+i}, v{f0}, v{f0+1}')
            if F16:
                unpack(f0, f0+1, 76+i)
                a(f'v_cvt_pk_f16_f32 v{76+i}, v{f0}, v{f0+1}')
        a(f"""
        ds_write_b128 v28, v[76:79] offset:{LB}
        v_bfe_u32 v28, v0, 2, 2
        v_mul_u32_u24 v28, 1056, v28
        v_lshrrev_b32 v29, 4, v0
        v_lshlrev_b32 v29, 5, v29
        v_and_b32 v95, 3, v0
        v_lshlrev_b32 v95, 3, v95
        v_add3_u32 v28, v28, v29, v95
        v_lshrrev_b32 v94, 1, v0
        v_lshlrev_b32 v94, 13, v94
        v_and_b32 v95, 1, v0
        v_lshl_add_u32 v94, v95, 4, v94
        s_lshl_b32 s26, s2, 5
        v_add_u32 v94, s26, v94
        s_waitcnt lgkmcnt(0)
        s_barrier
        ds_read_b64_tr_b16 v[76:77], v28 offset:{LB}
        ds_read_b64_tr_b16 v[78:79], v28 offset:{LB+4224}
        ds_read_b64_tr_b16 v[80:81], v28 offset:{LB+8448}
        ds_read_b64_tr_b16 v[82:83], v28 offset:{LB+8448+4224}
        s_waitcnt lgkmcnt(2)
        global_store_dwordx4 v94, v[76:79], s[28:29]
        s_waitcnt lgkmcnt(0)
        global_store_dwordx4 v94, v[80:83], s[30:31]
        """)
    ACC = 60
    for i in range(12):
        a(f'v_mov_b32 v{ACC+i}, 0')
    a('s_waitcnt lgkmcnt(0)')
    a('ds_read_b128 v[16:19], v15')
    a('ds_read_b128 v[24:27], v15 offset:64')
    a('s_mov_b32 s27, 0')
    def split(H, L, R, t):
        a(f'v_cvt_pk_bf16_f32 v{H}, v{R}, v{R+1}')
        a(f'v_lshlrev_b32 v{t}, 16, v{H}')
        a(f'v_and_b32 v{t+1}, 0xffff0000, v{H}')
        a(f'v_pk_add_f32 v[{t}:{t+1}], v[{R}:{R+1}], v[{t}:{t+1}] neg_lo:[0,1] neg_hi:[0,1]')
        a(f'v_cvt_pk_bf16_f32 v{L}, v{t}, v{t+1}')
    for it in range(2):
        for u in range(4):
            P = 16 + 8*(u & 1)
            a(f's_waitcnt lgkmcnt({1})')
            a(f"""
            v_pk_mul_f32 v[44:45], v[{P}:{P+1}], v[34:35] op_sel:[0,1] op_sel_hi:[1,1]
            v_pk_mul_f32 v[46:47], v[{P}:{P+1}], v[32:33] op_sel:[0,0] op_sel_hi:[1,0]
            v_pk_mul_f32 v[48:49], v[{P}:{P+1}], v[32:33] op_sel:[0,1] op_sel_hi:[1,1]
            v_pk_mul_f32 v[50:51], v[{P}:{P+1}], v[34:35] op_sel:[0,0] op_sel_hi:[1,0]
            v_fract_f32 v45, v45
            v_fract_f32 v47, v47
            v_fract_f32 v49, v49
            v_fract_f32 v51, v51
            v_exp_f32 v44, v44
            v_cos_f32 v52, v45
            v_sin_f32 v53, v45
            v_exp_f32 v46, v46
            v_cos_f32 v54, v47
            v_sin_f32 v55, v47
            v_pk_mul_f32 v[52:53], v[52:53], v[44:45] op_sel_hi:[1,0]
            v_exp_f32 v48, v48
            v_cos_f32 v56, v49
            v_sin_f32 v57, v49
            v_pk_mul_f32 v[54:55], v[54:55], v[46:47] op_sel_hi:[1,0]
            v_pk_mul_f32 v[20:21], v[{P+2}:{P+3}], v[52:53] op_sel:[0,0] op_sel_hi:[0,1] neg_hi:[1,0]
            v_exp_f32 v50, v50
            v_cos_f32 v58, v51
            v_sin_f32 v59, v51
            v_pk_fma_f32 v[20:21], v[{P+2}:{P+3}], v[52:53], v[20:21] op_sel:[1,1,0] op_sel_hi:[1,0,1] neg_lo:[1,0,0] neg_hi:[1,0,0]
            v_pk_mul_f32 v[56:57], v[56:57], v[48:49] op_sel_hi:[1,0]
            v_pk_mul_f32 v[58:59], v[58:59], v[50:51] op_sel_hi:[1,0]
            ds_read_b128 v[{P}:{P+3}], v15 offset:{128+64*u}
            """)
            split(96+u, 100+u, 54, 44)
            split(120+u, 124+u, 20, 46)
            split(104+u, 108+u, 56, 48)
            split(112+u, 116+u, 58, 50)
        a('s_nop 1')
        a('v_add_u32 v15, 256, v15')
        for t in range(3):
            a(f'v_mfma_f32_16x16x32_bf16 v[{60+4*t}:{63+4*t}], v[{96+8*t}:{99+8*t}], v[120:123], v[{60+4*t}:{63+4*t}]')
        for t in range(3):
            a(f'v_mfma_f32_16x16x32_bf16 v[{60+4*t}:{63+4*t}], v[{96+8*t}:{99+8*t}], v[124:127], v[{60+4*t}:{63+4*t}]')
        for t in range(3):
            a(f'v_mfma_f32_16x16x32_bf16 v[{60+4*t}:{63+4*t}], v[{100+8*t}:{103+8*t}], v[120:123], v[{60+4*t}:{63+4*t}]')
        if it == 0:
            a(f's_waitcnt vmcnt({4 + CODEPF})')
            a('s_waitcnt lgkmcnt(0)')
            ln_block()
    a('s_waitcnt lgkmcnt(0)')
    a(f"""
    v_and_b32 v8, 63, v0
    v_bfe_u32 v9, v0, 6, 2
    v_lshlrev_b32 v8, 5, v8
    v_lshl_add_u32 v8, v9, 3, v8      ; s0 = 32a+8q
    v_cmp_gt_u32 vcc, 256, v8
    v_cvt_f32_u32 v9, v8
    v_lshrrev_b32 v11, 8, v0
    v_mul_u32_u24 v11, 12288, v11
    v_add_u32 v11, 4096, v11
    v_lshl_add_u32 v10, v8, 2, v11
    v_subrev_u32 v11, {4*(0x4380-256)}, v11
    """)
    for p in range(4):
        a(f'v_add_f32 v12, {hx(7.0-2*p)}, v9')
        a(f'v_add_f32 v13, {hx(6.0-2*p)}, v9')
        a('v_cvt_pk_bf16_f32 v12, v12, v13')
        a('v_lshrrev_b32 v13, 16, v12')
        a('v_and_b32 v12, 0xffff, v12')
        a('v_lshl_add_u32 v12, v12, 2, v11')
        a('v_lshl_add_u32 v13, v13, 2, v11')
        a(f'v_add_u32 v14, {4*(7-2*p)}, v10')
        a(f'v_add_u32 v16, {4*(6-2*p)}, v10')
        a(f'v_cndmask_b32 v{24+2*p}, v12, v14, vcc')
        a(f'v_cndmask_b32 v{25+2*p}, v13, v16, vcc')
    if F16:
        a("""
        v_max3_f32 v14, |v60|, |v61|, |v62|
        v_max3_f32 v16, |v63|, |v64|, |v65|
        v_max3_f32 v17, |v66|, |v67|, |v68|
        v_max3_f32 v18, |v69|, |v70|, |v71|
        v_max3_f32 v14, v14, v16, v17
        v_max_f32 v14, v14, v18
        """)
        for sh in (8, 4, 2, 1):
            a('s_nop 1')
            a(f'v_max_f32_dpp v14, v14, v14 row_ror:{sh} row_mask:0xf bank_mask:0xf')
        a("""
        v_mov_b32 v16, v14
        s_nop 1
        v_permlane16_swap_b32 v14, v16
        s_nop 1
        v_max_f32 v14, v14, v16
        v_mov_b32 v16, v14
        s_nop 1
        v_permlane32_swap_b32 v14, v16
        s_nop 1
        v_max_f32 v14, v14, v16
        v_lshlrev_b32 v16, 2, v2
        ds_write_b32 v16, v14 offset:28672
        """)
    for rr in range(4):
        a(f'ds_write_b32 v36, v{60+rr} offset:{4*rr}')
    for rr in range(4):
        a(f'ds_write_b32 v{37+(rr>>1)}, v{64+rr} offset:{4*(rr&1)}')
    for rr in range(4):
        a(f'ds_write_b32 v39, v{68+rr} offset:{64*rr}')
    a("""
    s_lshl_b32 s26, s3, 12
    v_lshl_add_u32 v12, v0, 4, s26    ; d0*4096 + tid*16
    s_waitcnt lgkmcnt(0)
    s_barrier
    """)
    if F16:
        a('v_lshrrev_b32 v15, 8, v0')
        a('v_lshlrev_b32 v15, 4, v15')
        a('ds_read_b128 v[16:19], v15 offset:28672')
    for kk in range(8):
        for w in range(4):
            a(f'ds_read_b32 v{32+4*kk+w}, v{24+kk} offset:{3072*w}')
    a('s_waitcnt lgkmcnt(0)')
    for kk in range(8):
        b = 32+4*kk
        a(f'v_add_f32 v{b}, v{b}, v{b+1}')
        a(f'v_add_f32 v{b+2}, v{b+2}, v{b+3}')
    for kk in range(8):
        b = 32+4*kk
        a(f'v_add_f32 v{b}, v{b}, v{b+2}')
    if F16:
        a("""
        v_add_f32 v14, v16, v17
        v_add_f32 v15, v18, v19
        v_add_f32 v14, v14, v15
        v_lshrrev_b32 v14, 23, v14
        v_max_u32 v14, 15, v14
        v_sub_u32 v15, 268, v14
        v_lshlrev_b32 v15, 23, v15         ; scale
        v_subrev_u32 v14, 14, v14
        v_lshlrev_b32 v14, 23, v14
        """)
        for kk in range(8):
            a(f'v_mul_f32 v{32+4*kk}, v{32+4*kk}, v15')
        for p in range(4):
            a(f'v_cvt_pk_f16_f32 v{64+p}, v{32+8*p}, v{36+8*p}')
        a('global_store_dwordx4 v12, v[64:67], s[22:23]')
        ws_ptr(24, 4, 'SCL')
        a("""
        v_and_b32 v16, 255, v0
        v_cmp_eq_u32 vcc, 0, v16
        v_lshlrev_b32 v16, 2, v1
        s_and_saveexec_b64 s[26:27], vcc
        s_cbranch_execz K1_nosc
        global_store_dword v16, v14, s[24:25]
        """)
        a.label('K1_nosc')
        a('s_mov_b64 exec, s[26:27]')
    else:
        for p in range(4):
            k0, k1 = 32+8*p, 36+8*p
            a(f'v_cvt_pk_bf16_f32 v{64+p}, v{k0}, v{k1}')
            unpack(14, 15, 64+p)
            a(f'v_sub_f32 v{k0}, v{k0}, v14')
            a(f'v_sub_f32 v{k1}, v{k1}, v15')
            a(f'v_cvt_pk_bf16_f32 v{68+p}, v{k0}, v{k1}')
        a('global_store_dwordx4 v12, v[64:67], s[22:23]')
        a('global_store_dwordx4 v12, v[68:71], s[24:25]')
    a.label('K1_end')
    trace_end(0)
    a.label('K1_exit')
    a.end_kernel(name, (274,1,1), (512,1,1), 51200, 128)

def gen_k2():
    global SV
    SV = 128
    name = 'k2_kernel'
    CHB = 45568; KOFF = 33280; RED = 2 * CHB
    a.begin_kernel(name)
    a(f"""
    s_cmp_ge_u32 s2, 256
    s_cbranch_scc1 K2_exit
    s_load_dwordx2 s[4:5], s[0:1], {KA['ws']}
    s_load_dwordx2 s[6:7], s[0:1], {KA['Dsk']}
    s_load_dwordx4 s[40:43], s[0:1], {KA['w1']}
    s_load_dwordx2 s[44:45], s[0:1], {KA['w3']}
    """)
    trace_begin()
    a(f"""
    v_lshrrev_b32 v1, 6, v0            ; wave
    v_and_b32 v2, 63, v0               ; lane
    v_readfirstlane_b32 s30, v1
    s_and_b32 s3, s30, 3
    s_lshl_b32 s16, s2, 1              ; d0
    s_lshr_b32 s17, s3, 1              ; ch
    s_and_b32 s18, s3, 1
    s_add_u32 s19, s16, s17
    s_mul_i32 s20, s17, {CHB}
    s_lshl_b32 s26, s2, 13
    v_lshrrev_b32 v57, 1, v0           ; tau
    v_and_b32 v56, 1, v0               ; ch
    v_lshl_add_u32 v4, v0, 4, s26
    v_mul_u32_u24 v58, {CHB}, v56
    v_cmp_eq_u32 s[58:59], 0, v57
    v_subrev_u32 v5, 32, v4
    v_lshl_add_u32 v120, v57, 4, v58
    v_cndmask_b32 v5, v5, v4, s[58:59]
    v_add_u32 v120, 64, v120
    s_waitcnt lgkmcnt(0)
    """)
    ws_ptr(8, 4, 'UT')
    a("""
    global_load_dwordx4 v[8:11], v5, s[8:9]
    global_load_dwordx4 v[12:15], v4, s[8:9]
    s_cmp_ge_u32 s30, 4
    s_cbranch_scc1 K2_helper
    """)
    ws_ptr(10, 4, 'XT'); ws_ptr(22, 4, 'HT'); ws_ptr(32, 4, 'SCL')
    a(f"""
    v_and_b32 v6, 31, v2
    v_lshrrev_b32 v7, 5, v2
    v_lshlrev_b32 v40, 6, v6
    v_lshl_add_u32 v40, v7, 3, v40
    s_lshl_b32 s27, s18, 11
    v_add_u32 v122, s27, v40
    s_lshl_b32 s26, s18, 5
    v_add_u32 v121, s26, v6
    v_lshlrev_b32 v121, 7, v121
    v_lshl_add_u32 v121, v7, 3, v121
    s_lshl_b32 s26, s2, 13
    s_lshl_b32 s27, s17, 4
    s_add_u32 s26, s26, s27
    v_add_u32 v121, s26, v121
    global_load_dwordx2 v[112:113], v121, s[10:11]
    global_load_dwordx2 v[114:115], v121, s[10:11] offset:32
    global_load_dwordx2 v[116:117], v121, s[10:11] offset:64
    global_load_dwordx2 v[118:119], v121, s[10:11] offset:96
    s_lshl_b32 s26, s19, 1
    v_mov_b32 v42, s26
    global_load_ushort v125, v42, s[6:7]
    v_lshlrev_b32 v42, 1, v42
    global_load_dword v110, v42, s[32:33]
    v_and_b32 v45, 7, v6
    v_mul_u32_u24 v45, 4160, v45
    v_lshrrev_b32 v46, 3, v6
    v_lshl_add_u32 v45, v46, 4, v45
    v_lshlrev_b32 v46, 4, v7
    v_sub_u32 v45, v45, v46
    v_add_u32 v45, 32, v45
    v_add_u32 v126, s20, v45           ; vA'
    v_mul_u32_u24 v46, 1536, v7
    v_lshl_add_u32 v46, v6, 4, v46
    v_add_u32 v46, {KOFF + 512 - 16*63}, v46
    v_add_u32 v127, s20, v46           ; vB
    s_branch K2_copies
    """)
    a.label('K2_helper')
    ws_ptr(12, 4, 'KH')
    a(f"""
    s_mov_b32 s14, {4*MB}
    s_mov_b32 s15, 0x00020000
    """)
    if F16:
        a(f"""
        s_lshl_b32 s24, s18, 11
        s_lshl_b32 s25, s19, 12
        s_add_u32 s24, s24, s25
        s_mul_i32 s25, s18, 3072
        s_add_u32 s25, s25, s20
        s_add_u32 s25, s25, {KOFF+512}
        v_lshlrev_b32 v3, 4, v2
        """)
    else:
        a(f"""
        s_lshl_b32 s24, s18, 21
        s_lshl_b32 s25, s19, 12
        s_add_u32 s24, s24, s25
        s_mul_i32 s25, s18, 6144
        s_add_u32 s25, s25, s20
        s_add_u32 s25, s25, {KOFF+512}
        v_lshlrev_b32 v3, 4, v2
        """)
    nq = 2 if F16 else 4
    for q in range(nq):
        a('s_mov_b32 m0, s25')
        a('s_nop 0')
        a('buffer_load_dwordx4 v3, s[12:15], s24 offen lds')
        if q < nq-1:
            a('s_add_u32 s24, s24, 1024')
            a('s_add_u32 s25, s25, 1536')
    a(f"""
    v_mov_b32 v48, 0
    v_mov_b32 v49, 0
    v_mov_b32 v50, 0
    v_mov_b32 v51, 0
    v_bfe_u32 v45, v0, 5, 3
    v_mul_u32_u24 v45, 1536, v45
    v_and_b32 v46, 31, v0
    v_lshl_add_u32 v45, v46, 4, v45
    ds_write_b128 v45, v[48:51] offset:{KOFF}
    v_add_u32 v45, {CHB}, v45
    ds_write_b128 v45, v[48:51] offset:{KOFF}
    v_bfe_u32 v45, v0, 2, 3
    v_mul_u32_u24 v45, 4160, v45
    v_and_b32 v46, 3, v0
    v_lshl_add_u32 v45, v46, 4, v45
    ds_write_b128 v45, v[48:51]
    ds_write_b128 v45, v[48:51] offset:{CHB}
    """)
    a.label('K2_copies')
    E = 8
    a('s_waitcnt vmcnt(2)' if F16 else 's_waitcnt vmcnt(4)')
    for i in range(4):
        a(f'v_cndmask_b32 v{E+i}, v{E+i}, 0, s[58:59]')
    for i in range(7):
        a(f'v_alignbit_b32 v{52+i}, v{E+i+1}, v{E+i}, 16')
    for i in range(6):
        a(f'v_alignbit_b32 v{60+i}, v{E+i+2}, v{E+i+1}, 16')
    for i in range(6):
        a(f'v_mov_b32 v{66+i}, v{E+i+1}')
    src = {7: E+4, 5: 68, 3: E+2, 1: 66, 0: 52, 2: 60, 4: 54, 6: 62}
    for c in range(8):
        r = src[c]
        a(f'ds_write_b128 v120, v[{r}:{r+3}] offset:{4160*c}')
    ACC = [72, 88]
    for i in range(32):
        a(f'v_mov_b32 v{72+i}, 0')
    a('s_waitcnt vmcnt(0) lgkmcnt(0)')
    a('s_barrier')
    a('s_cmp_lt_u32 s30, 4')
    a('s_cbranch_scc1 K2_main')
    code_prefetch('k4_kernel', 'k6_kernel', 60, 64, 28)
    a('v_and_b32 v0, 255, v0')
    ws_ptr(46, 4, 'W3P')
    a(f"""
    v_min_u32 v60, 223, v0
    v_mul_u32_u24 v61, 4682, v60
    v_lshrrev_b32 v61, 16, v61         ; ntile
    v_mul_u32_u24 v62, 14, v61
    v_sub_u32 v62, v60, v62            ; ch
    s_mul_i32 s28, s2, 7168
    v_lshl_add_u32 v60, v60, 4, s28
    global_load_dwordx4 v[64:67], v60, s[44:45]
    global_load_dwordx4 v[68:71], v60, s[44:45] offset:3584
    s_lshl_b32 s28, s2, 1              ; k
    s_and_b32 s29, s28, 0x1f3
    s_bfe_u32 s31, s28, 0x10002
    s_lshl_b32 s31, s31, 3
    s_or_b32 s29, s29, s31
    s_bfe_u32 s31, s28, 0x10003
    s_lshl_b32 s31, s31, 2
    s_or_b32 s29, s29, s31
    s_mul_i32 s29, s29, 224
    v_mul_u32_u24 v61, 114688, v61
    v_lshl_add_u32 v61, v62, 4, v61
    v_add_u32 v61, s29, v61
    """)
    if not NOPF2:
        l2_prefetch(40, 512*1024, 63, 72, 28)
        l2_prefetch(42, 512*1024, 63, 72, 28)
        a('s_waitcnt vmcnt(8)')
    else:
        a('s_waitcnt vmcnt(0)')
    a('global_store_dwordx4 v61, v[64:67], s[46:47]')
    a('global_store_dwordx4 v61, v[68:71], s[46:47] offset:224')
    a('s_endpgm')
    a.label('K2_main')
    a('s_cmp_eq_u32 s18, 1')
    a('s_cbranch_scc1 K2_roleB')
    def emit_units(units):
        def loads(u, setb):
            out = []; regs = []
            r = 8 + 24*setb if True else 0
            n = 0
            for (d, sl, tiles) in u:
                ra = r + 4*n; n += 1
                out.append(f'ds_read_b128 v[{ra}:{ra+3}], v126 offset:{64*d + 32*(1-sl)}')
                bs = []
                for T in tiles:
                    for arr in range(1 if F16 else 2):
                        rb = r + 4*n; n += 1
                        out.append(f'ds_read_b128 v[{rb}:{rb+3}], v127 offset:{sl*3072 + T*512 + 16*(63-d) + arr*6144}')
                        bs.append((T, rb))
                regs.append((ra, bs))
            assert n <= 6
            return out, regs
        cur_l, cur_r = loads(units[0], 0)
        for l in cur_l: a(l)
        for i, u in enumerate(units):
            if i + 1 < len(units):
                nl, nr = loads(units[i+1], (i+1) & 1)
                for l in nl: a(l)
                a(f's_waitcnt lgkmcnt({len(nl)})')
            else:
                a('s_waitcnt lgkmcnt(0)')
            for (ra, bs) in cur_r:
                for (T, rb) in bs:
                    c = ACC[T]
                    a(f'v_mfma_f32_32x32x16_{"f16" if F16 else "bf16"} v[{c}:{c+15}], v[{ra}:{ra+3}], v[{rb}:{rb+3}], v[{c}:{c+15}]')
            if i + 1 < len(units):
                cur_r = nr
    if F16:
        emit_units([[(d, 0, (0, 1)), (d, 1, (0, 1))] for d in range(24)])
    else:
        emit_units([[(d, sl, (0, 1))] for d in range(24) for sl in range(2)])
    a('s_nop 15')
    a('s_nop 3')
    a(f'v_lshlrev_b32 v123, 4, v0')
    a(f'v_add_u32 v123, {RED}, v123')
    for r4 in range(4):
        a(f'ds_write_b128 v123, v[{88+4*r4}:{91+4*r4}] offset:{4096*r4}')
    a('s_waitcnt lgkmcnt(0)')
    a('s_barrier')
    for r4 in range(4):
        a(f'ds_read_b128 v[{8+4*r4}:{11+4*r4}], v123 offset:{4096*r4 + 1024}')
    a('s_branch K2_fin')
    a.label('K2_roleB')
    if F16:
        emit_units([[(d, 0, (0, 1)), (d, 1, (0, 1))] for d in range(24, 32)] +
                   [[(d, 0, (1,)), (d, 1, (1,)), (d+1, 0, (1,))] if False else [(d, 0, (1,)), (d, 1, (1,))] for d in range(32, 64)])
    else:
        emit_units([[(d, sl, (0, 1))] for d in range(24, 32) for sl in range(2)] +
                   [[(d, 0, (1,)), (d, 1, (1,))] for d in range(32, 64)])
    a('s_nop 15')
    a('s_nop 3')
    a(f'v_lshlrev_b32 v123, 4, v0')
    a(f'v_add_u32 v123, {RED}, v123')
    for r4 in range(4):
        a(f'ds_write_b128 v123, v[{72+4*r4}:{75+4*r4}] offset:{4096*r4}')
    a('s_waitcnt lgkmcnt(0)')
    a('s_barrier')
    a('v_subrev_u32 v123, 1024, v123')
    for r4 in range(4):
        a(f'ds_read_b128 v[{8+4*r4}:{11+4*r4}], v123 offset:{4096*r4}')
    for i in range(16):
        a(f'v_mov_b32 v{72+i}, v{88+i}')
    a.label('K2_fin')
    a(f'v_add_u32 v122, s20, v122')
    for rq in range(4):
        a(f'ds_read_b64 v[{24+2*rq}:{25+2*rq}], v122 offset:{7*4160 + 64 + 16*rq}')
    a('v_lshlrev_b32 v124, 16, v125')
    a('s_waitcnt lgkmcnt(0)')
    for i in range(8):
        a(f'v_pk_add_f32 v[{72+2*i}:{73+2*i}], v[{72+2*i}:{73+2*i}], v[{8+2*i}:{9+2*i}]')
    if F16:
        for i in range(8):
            a(f'v_pk_mul_f32 v[{72+2*i}:{73+2*i}], v[{72+2*i}:{73+2*i}], v[110:111] op_sel_hi:[1,0]')
    for i in range(8):
        y = 72 + 2*i
        a(f'v_cvt_pk_bf16_f32 v32, v{y}, v{y+1}')
        unpack(y, y+1, 32)
        if F16:
            a(f'v_cvt_f32_f16 v34, v{24+i}')
            a(f'v_cvt_f32_f16_sdwa v35, v{24+i} dst_sel:DWORD dst_unused:UNUSED_PAD src0_sel:WORD_1')
        else:
            unpack(34, 35, 24+i)
        a('v_pk_mul_f32 v[34:35], v[34:35], v[124:125] op_sel_hi:[1,0]')
        a('v_cvt_pk_bf16_f32 v33, v34, v35')
        unpack(34, 35, 33)
        a(f'v_pk_add_f32 v[{y}:{y+1}], v[{y}:{y+1}], v[34:35]')
        a(f'v_cvt_pk_bf16_f32 v32, v{y}, v{y+1}')
        unpack(y, y+1, 32)
        unpack(34, 35, 112+i)
        a(f'v_pk_add_f32 v[{y}:{y+1}], v[{y}:{y+1}], v[34:35]')
        a(f'v_cvt_pk_bf16_f32 v{104+i}, v{y}, v{y+1}')
    a(f"""
    s_lshl_b32 s26, s3, 11
    s_add_u32 s26, s26, {RED + 16384}
    v_lshlrev_b32 v120, 6, v6
    v_lshl_add_u32 v120, v7, 3, v120
    v_add_u32 v120, s26, v120
    v_lshl_add_u32 v123, v2, 4, s26
    s_lshl_b32 s26, s19, 12
    s_lshl_b32 s27, s18, 11
    s_add_u32 s26, s26, s27
    v_lshl_add_u32 v121, v2, 4, s26
    """)
    for rq in range(4):
        a(f'ds_write_b64 v120, v[{104+2*rq}:{105+2*rq}] offset:{16*rq}')
    a('s_waitcnt lgkmcnt(0)')
    a('ds_read_b128 v[8:11], v123')
    a('ds_read_b128 v[12:15], v123 offset:1024')
    a('s_waitcnt lgkmcnt(0)')
    a('global_store_dwordx4 v121, v[8:11], s[22:23]')
    a('global_store_dwordx4 v121, v[12:15], s[22:23] offset:1024')
    trace_end(1)
    a.label('K2_exit')
    a.end_kernel(name, (256,1,1), (512,1,1), RED + 16384 + 8192, 128+8)

GC1 = 2 * 0.7978845608028654 * LOG2E
GC2 = GC1 * 0.044715

def dma_lane_off(dst, lane, rs_sgpr_or_imm, t1, t2):
    a(f'v_lshrrev_b32 v{t1}, 5, v{lane}')
    a(f'v_lshlrev_b32 v{t1}, 3, v{t1}')
    a(f'v_bfe_u32 v{t2}, v{lane}, 3, 2')
    a(f'v_add_u32 v{t1}, v{t1}, v{t2}')
    a(f'v_mul_u32_u24 v{dst}, {rs_sgpr_or_imm}, v{t1}')
    a(f'v_bfe_u32 v{t1}, v{lane}, 1, 2')
    a(f'v_bfe_u32 v{t2}, v{lane}, 4, 2')
    a(f'v_xor_b32 v{t1}, v{t1}, v{t2}')
    a(f'v_lshl_add_u32 v{dst}, v{t1}, 5, v{dst}')
    a(f'v_and_b32 v{t1}, 1, v{lane}')
    a(f'v_lshl_add_u32 v{dst}, v{t1}, 4, v{dst}')

def tr_lane_base(dst, fdst, lane, t1, t2):
    a(f'v_lshrrev_b32 v{t1}, 5, v{lane}')
    a(f'v_lshlrev_b32 v{t1}, 4, v{t1}')
    a(f'v_bfe_u32 v{t2}, v{lane}, 2, 3')
    a(f'v_add_u32 v{t1}, v{t1}, v{t2}')
    a(f'v_lshlrev_b32 v{dst}, 7, v{t1}')
    a(f'v_and_b32 v{t1}, 3, v{lane}')
    a(f'v_lshl_add_u32 v{dst}, v{t1}, 3, v{dst}')
    a(f'v_lshrrev_b32 v{fdst}, 1, v{t2}')

def gelu_pairs(zs, CK, T, G=4):
    for i0 in range(0, len(zs), G):
        grp = list(enumerate(zs[i0:i0+G]))
        for i, z in grp:
            a(f'v_pk_mul_f32 v[{T+2*i}:{T+2*i+1}], v[{z}:{z+1}], v[{z}:{z+1}]')
        for i, z in grp:
            t = T+2*i
            a(f'v_pk_fma_f32 v[{t}:{t+1}], v[{t}:{t+1}], v[{CK}:{CK+1}], v[{CK}:{CK+1}] op_sel:[0,1,0] op_sel_hi:[1,1,0]')
        for i, z in grp:
            t = T+2*i
            a(f'v_pk_mul_f32 v[{t}:{t+1}], v[{t}:{t+1}], v[{z}:{z+1}]')
        for i, z in grp:
            t = T+2*i
            a(f'v_exp_f32 v{t}, -v{t}')
            a(f'v_exp_f32 v{t+1}, -v{t+1}')
        if len(grp) < 2: a('s_nop 0')
        for i, z in grp:
            t = T+2*i
            a(f'v_pk_add_f32 v[{t}:{t+1}], v[{t}:{t+1}], v[{CK+2}:{CK+3}]')
        for i, z in grp:
            t = T+2*i
            a(f'v_rcp_f32 v{t}, v{t}')
            a(f'v_rcp_f32 v{t+1}, v{t+1}')
        if len(grp) < 2: a('s_nop 0')
        for i, z in grp:
            t = T+2*i
            a(f'v_pk_mul_f32 v[{z}:{z+1}], v[{z}:{z+1}], v[{t}:{t+1}]')

def affine_round(zs, css, AB, T, G=4):
    for i0 in range(0, len(zs), G):
        grp = list(enumerate(zip(zs[i0:i0+G], css[i0:i0+G])))
        for i, (z, cs) in grp:
            a(f'v_pk_mul_f32 v[{T+2*i}:{T+2*i+1}], v[{cs}:{cs+1}], v[{AB}:{AB+1}] op_sel:[0,1] op_sel_hi:[1,1]')
        for i, (z, cs) in grp:
            a(f'v_pk_fma_f32 v[{z}:{z+1}], v[{z}:{z+1}], v[{AB}:{AB+1}], v[{T+2*i}:{T+2*i+1}] op_sel_hi:[1,0,1] neg_lo:[0,0,1] neg_hi:[0,0,1]')
        for i, (z, cs) in grp:
            a(f'v_cvt_pk_bf16_f32 v{T+2*i}, v{z}, v{z+1}')
        for i, (z, cs) in grp:
            unpack(z, z+1, T+2*i)

def round_pair(z, t):
    a(f'v_cvt_pk_bf16_f32 v{t}, v{z}, v{z+1}')
    unpack(z, z+1, t)

def gemm64_main(X, WF, ACC, vW, nsteps=16, st0=0):
    def loads(st, sb):
        for cb in range(4):
            for h in range(2):
                r = WF + 16*sb + 4*cb + 2*h
                a(f'ds_read_b64_tr_b16 v[{r}:{r+1}], v{vW+cb} offset:{(st0+st)*4096 + h*1024}')
    loads(0, 0)
    for st in range(nsteps):
        if st + 1 < nsteps:
            loads(st+1, (st+1) & 1)
            a('s_waitcnt lgkmcnt(8)')
        else:
            a('s_waitcnt lgkmcnt(0)')
        for cb in range(4):
            w = WF + 16*(st & 1) + 4*cb
            c = ACC + 4*cb
            a(f'v_mfma_f32_16x16x32_bf16 v[{c}:{c+3}], v[{w}:{w+3}], v[{X+4*st}:{X+4*st+3}], v[{c}:{c+3}]')

def dma_tile(srd, vOff, sOff, sM0, step_bytes, n=16):
    for ii in range(n):
        a(f's_mov_b32 m0, s{sM0}')
        a(f's_add_u32 s{sM0}, s{sM0}, 4096')
        a(f'buffer_load_dwordx4 v{vOff}, s[{srd}:{srd+3}], s{sOff} offen lds')
        if ii < n-1:
            a(f's_add_u32 s{sOff}, s{sOff}, {step_bytes}')

def mk_srd(dst, lo, nbytes):
    a(f's_mov_b32 s{dst}, s{lo}')
    a(f's_mov_b32 s{dst+1}, s{lo+1}')
    a(f's_mov_b32 s{dst+2}, {nbytes}')
    a(f's_mov_b32 s{dst+3}, 0x00020000')

def gen_k3():
    global SV
    SV = 160
    name = 'k3_kernel'
    a.begin_kernel(name)
    a(f"""
    s_cmp_ge_u32 s2, 256
    s_cbranch_scc1 K3_exit
    s_load_dwordx2 s[4:5], s[0:1], {KA['ws']}
    s_load_dwordx2 s[6:7], s[0:1], {KA['w1']}
    """)
    trace_begin()
    a(f"""
    v_lshrrev_b32 v1, 6, v0
    v_and_b32 v2, 63, v0
    v_readfirstlane_b32 s3, v1         ; wave
    s_bfe_u32 s16, s2, 0x30003
    s_and_b32 s17, s2, 7
    s_lshl_b32 s17, s17, 2
    s_lshr_b32 s19, s2, 6
    s_add_u32 s17, s17, s19
    s_lshr_b32 s18, s3, 1
    s_lshl_b32 s18, s18, 4
    s_and_b32 s19, s3, 1
    s_lshl_b32 s19, s19, 2
    s_add_u32 s18, s18, s19            ; krow0 = 16(w>>1)+4(w&1)
    """)
    dma_lane_off(3, 2, 4096, 5, 6)
    dma_lane_off(4, 2, 1024, 5, 6)
    a('s_waitcnt lgkmcnt(0)')
    ws_ptr(8, 4, 'HT')
    a(f"""
    s_mov_b32 s10, {2*MB}
    s_mov_b32 s11, 0x00020000
    """)
    mk_srd(12, 6, 512*1024)
    a(f"""
    s_lshl_b32 s20, s18, 12
    s_lshl_b32 s21, s17, 7
    s_add_u32 s20, s20, s21
    s_lshl_b32 s22, s3, 10             ; m0 = w*1024
    """)
    dma_tile(8, 3, 20, 22, 32*4096)
    a(f"""
    s_lshl_b32 s20, s18, 10
    s_lshl_b32 s21, s16, 7
    s_add_u32 s20, s20, s21            ; W1 soffset
    """)
    dma_tile(12, 4, 20, 22, 32*1024)
    ws_ptr(24, 4, 'HR'); ws_ptr(26, 4, 'G1'); ws_ptr(28, 4, 'CS'); ws_ptr(30, 4, 'ST1')
    tr_lane_base(5, 6, 2, 7, 8)
    a('v_xor_b32 v7, s3, v6')
    a('v_lshl_add_u32 v9, v7, 5, v5')
    for cb in range(4):
        a(f'v_xor_b32 v7, {cb}, v6')
        a(f'v_lshl_add_u32 v{10+cb}, v7, 5, v5')
        a(f'v_add_u32 v{10+cb}, 0x10000, v{10+cb}')
    a(f"""
    v_and_b32 v14, 15, v2
    v_lshrrev_b32 v15, 4, v2
    s_lshl_b32 s21, s17, 6
    s_lshl_b32 s23, s3, 4
    s_add_u32 s21, s21, s23
    v_add_u32 v14, s21, v14            ; token
    v_lshlrev_b32 v16, 3, v14
    v_lshlrev_b32 v14, 10, v14
    s_lshl_b32 s23, s21, 10
    v_lshl_add_u32 v17, v2, 4, s23
    s_lshl_b32 s21, s16, 8
    v_lshl_add_u32 v18, v15, 4, s21
    """)
    CSR = 20
    for cb in range(4):
        a(f'global_load_dwordx4 v[{CSR+4*cb}:{CSR+4*cb+3}], v18, s[28:29] offset:{64*cb}')
    X = 64
    WF = 128
    ACC = 36
    GR = 52; SU = 56; ONE = 60
    for i in range(24):
        a(f'v_mov_b32 v{36+i}, 0')
    for i in range(4):
        a(f'v_mov_b32 v{ONE+i}, 0x3f803f80')
    a('s_waitcnt vmcnt(20)')
    a('s_barrier')
    for st in range(16):
        for h in range(2):
            a(f'ds_read_b64_tr_b16 v[{X+4*st+2*h}:{X+4*st+2*h+1}], v9 offset:{st*4096 + h*1024}')
    for st in range(16):
        a(f's_waitcnt lgkmcnt({min(15, 30-2*st)})')
        x = X + 4*st
        a(f'v_mfma_f32_16x16x32_bf16 v[{GR}:{GR+3}], v[{x}:{x+3}], v[{x}:{x+3}], v[{GR}:{GR+3}]')
        a(f'v_mfma_f32_16x16x32_bf16 v[{SU}:{SU+3}], v[{ONE}:{ONE+3}], v[{x}:{x+3}], v[{SU}:{SU+3}]')
    for j in range(8):
        l = a.newlabel('K3_hr')
        a(f's_cmp_lg_u32 s16, {j}')
        a(f's_cbranch_scc1 {l}')
        a(f'v_add_u32 v17, {2048*j}, v17')
        for st in (2*j, 2*j+1):
            a(f'global_store_dwordx4 v17, v[{X+4*st}:{X+4*st+3}], s[24:25] offset:{1024*(st&1)}')
        a.label(l)
    a('s_waitcnt vmcnt(2)')
    a('s_barrier')
    gemm64_main(X, WF, ACC, 10)
    a(f"""
    v_and_b32 v7, 3, v2
    v_cmp_eq_u32 vcc, 1, v7
    v_cmp_eq_u32 s[32:33], 2, v7
    v_cmp_eq_u32 s[34:35], 3, v7
    v_and_b32 v8, 15, v2
    v_lshrrev_b32 v7, 2, v8
    v_cndmask_b32 v{GR}, v{GR}, v{GR+1}, vcc
    v_cndmask_b32 v{GR}, v{GR}, v{GR+2}, s[32:33]
    v_cndmask_b32 v{GR}, v{GR}, v{GR+3}, s[34:35]
    v_lshl_add_u32 v7, v7, 4, v8
    v_lshlrev_b32 v7, 2, v7
    ds_bpermute_b32 v{GR}, v7, v{GR}
    v_mul_f32 v{SU}, {hx(1/512)}, v{SU}          ; mean1
    s_waitcnt lgkmcnt(0)
    v_mul_f32 v{GR}, {hx(1/512)}, v{GR}
    v_fma_f32 v{GR}, -v{SU}, v{SU}, v{GR}        ; var1
    v_max_f32 v{GR}, 0, v{GR}
    v_mov_b32 v{SU+1}, v{SU}
    v_mov_b32 v{GR+1}, v{GR}
    """)
    ln_scalars(SU, GR, 7)
    a(f"""
    v_sub_f32 v{SU+1}, v{SU+1}, v{SU}
    v_mul_f32 v{SU+1}, v{SU+1}, v{GR}            ; mean2
    v_mul_f32 v{GR+1}, v{GR+1}, v{GR}
    v_mul_f32 v{GR+1}, v{GR+1}, v{GR}            ; var2
    """)
    ln_scalars(SU+1, GR+1, 7)
    a(f"""
    v_mul_f32 v{ONE}, v{GR}, v{GR+1}             ; alpha
    v_fma_f32 v{ONE+1}, v{GR}, v{SU}, v{SU+1}
    v_mul_f32 v{ONE+1}, v{ONE+1}, v{GR+1}        ; beta
    v_mov_b32 v{SU+2}, v{SU}
    v_mov_b32 v{SU+3}, v{GR}
    v_mov_b32 v128, {hx(GC1)}
    v_mov_b32 v129, {hx(GC2)}
    v_mov_b32 v130, 1.0
    v_mov_b32 v131, 1.0
    s_cmp_lg_u32 s16, 0
    s_cbranch_scc1 K3_nost
    v_cmp_gt_u32 vcc, 16, v2
    s_and_saveexec_b64 s[32:33], vcc
    global_store_dwordx2 v16, v[{SU+2}:{SU+3}], s[30:31]
    s_mov_b64 exec, s[32:33]
    """)
    a.label('K3_nost')
    affine_round([ACC+2*p for p in range(8)], [CSR+2*p for p in range(8)], ONE, 144)
    gelu_pairs([ACC+2*p for p in range(8)], 128, 144)
    O = 136
    for p in range(8):
        a(f'v_cvt_pk_bf16_f32 v{O+p}, v{ACC+2*p}, v{ACC+2*p+1}')
    a(f"""
    v_and_b32 v7, 1, v15
    v_lshrrev_b32 v8, 1, v15
    v_lshl_add_u32 v7, v7, 1, v8
    v_and_b32 v8, 15, v2
    v_lshl_add_u32 v7, v7, 4, v8
    s_lshl_b32 s21, s16, 11
    s_add_u32 s21, s21, s23
    v_lshl_add_u32 v7, v7, 4, s21
    """)
    for P in range(2):
        o = O + 4*P
        a(f'v_permlane16_swap_b32 v{o}, v{o+2}')
        a(f'v_permlane16_swap_b32 v{o+1}, v{o+3}')
    a('s_nop 1')
    for P in range(2):
        o = O + 4*P
        a(f'global_store_dwordx4 v7, v[{o}:{o+3}], s[26:27] offset:{1024*P}')
    trace_end(2)
    a.label('K3_exit')
    a.end_kernel(name, (256,1,1), (256,1,1), 131072, 168)

class Ring:
    def __init__(self, TT, NT, nch, nslots, a_rs, w_rs, wfmt, vAsrc, vWsrc, vAr, vWr, FB, ACC, rot=False, shifts=None, vTmp=None):
        self.__dict__.update(locals())
        self.ABY = 4 * TT * 16 * 256
        self.WBY = 128 * (128 if wfmt == 128 else 224)
        self.SLOT = self.ABY + self.WBY
        self.na = TT * 4
        self.nw = 4 if wfmt == 128 else 7
    def setup_addrs(self, t1, t2, t3):
        r = self
        a(f'v_lshrrev_b32 v{t1}, 4, v2')
        a(f'v_and_b32 v{t2}, 15, v2')
        a(f'v_xor_b32 v{t2}, v{t2}, v{t1}')
        a(f'v_mul_u32_u24 v{t1}, {r.a_rs}, v{t1}')
        a(f'v_add_u32 v{t1}, v{t1}, v{r.vTmp}')
        for i in range(4):
            a(f'v_xor_b32 v{t3}, {4*i}, v{t2}')
            a(f'v_lshl_add_u32 v{r.vAsrc+i}, v{t3}, 4, v{t1}')
        a(f'v_and_b32 v{t1}, 15, v2')
        a(f'v_lshrrev_b32 v{t2}, 4, v2')
        a(f'v_xor_b32 v{t2}, v{t2}, v{t1}')
        a(f'v_lshlrev_b32 v{t1}, 8, v{t1}')
        a(f's_mul_i32 s21, s3, {r.TT*4096}')
        a(f'v_add_u32 v{t1}, s21, v{t1}')
        for i in range(4):
            a(f'v_xor_b32 v{t3}, {4*i}, v{t2}')
            a(f'v_lshl_add_u32 v{r.vAr+i}, v{t3}, 4, v{t1}')
        if r.wfmt == 128:
            dma_lane_off(r.vWsrc, 2, r.w_rs, t1, t2)
            tr_lane_base(t1, t2, 2, t3, r.vWr)
            for cb in range(4):
                a(f'v_xor_b32 v{t3}, {cb}, v{t2}')
                a(f'v_lshl_add_u32 v{r.vWr+cb}, v{t3}, 5, v{t1}')
                a(f'v_add_u32 v{r.vWr+cb}, {r.ABY}, v{r.vWr+cb}')
        else:
            for j in range(7):
                a(f'v_add_u32 v{t1}, {64*j}, v2')
                a(f'v_mul_u32_u24 v{t2}, 4682, v{t1}')
                a(f'v_lshrrev_b32 v{t2}, 16, v{t2}')
                a(f'v_mul_u32_u24 v{t3}, 14, v{t2}')
                a(f'v_sub_u32 v{t1}, v{t1}, v{t3}')
                a(f'v_and_b32 v{t3}, 0x13, v{t2}')
                a(f'v_bfe_u32 v{r.vWsrc+j}, v{t2}, 2, 1')
                a(f'v_lshl_or_b32 v{t3}, v{r.vWsrc+j}, 3, v{t3}')
                a(f'v_bfe_u32 v{r.vWsrc+j}, v{t2}, 3, 1')
                a(f'v_lshl_or_b32 v{t3}, v{r.vWsrc+j}, 2, v{t3}')
                a(f'v_mul_u32_u24 v{t3}, {r.w_rs}, v{t3}')
                a(f'v_lshl_add_u32 v{r.vWsrc+j}, v{t1}, 4, v{t3}')
            a(f'v_lshrrev_b32 v{t1}, 5, v2')
            a(f'v_lshlrev_b32 v{t1}, 4, v{t1}')
            a(f'v_bfe_u32 v{t2}, v2, 2, 3')
            a(f'v_add_u32 v{t1}, v{t1}, v{t2}')
            a(f'v_mul_u32_u24 v{t1}, 224, v{t1}')
            a(f'v_and_b32 v{t2}, 3, v2')
            a(f'v_lshl_add_u32 v{r.vWr}, v{t2}, 3, v{t1}')
            a(f'v_add_u32 v{r.vWr}, {r.ABY}, v{r.vWr}')
    def issue_groups(self, c):
        r = self
        G = []
        slot = c % r.nslots
        base = slot * r.SLOT
        pre = []
        if r.rot:
            pre += [f's_mul_i32 s35, s34, {128*r.w_rs}', 's_add_u32 s35, s35, s20', 's_lshl_b32 s36, s34, 8']
        else:
            pre += [f's_add_u32 s35, s20, {c*128*r.w_rs}', f's_movk_i32 s36, {c*256}']
        if r.wfmt == 128:
            pre += [f's_lshl_b32 s22, s3, 10', f's_add_u32 s22, s22, {base + r.ABY}']
            for i in range(4):
                g = ['s_mov_b32 m0, s22', 's_add_u32 s22, s22, 4096', f'buffer_load_dwordx4 v{r.vWsrc}, s[12:15], s35 offen lds']
                if i < 3: g.append(f's_add_u32 s35, s35, {32*r.w_rs}')
                G.append(pre + g); pre = []
        else:
            pre += [f's_mul_i32 s22, s3, 7168', f's_add_u32 s22, s22, {base + r.ABY}']
            for j in range(7):
                G.append(pre + ['s_mov_b32 m0, s22', 's_add_u32 s22, s22, 1024', f'buffer_load_dwordx4 v{r.vWsrc+j}, s[12:15], s35 offen lds']); pre = []
        pre = [f's_mul_i32 s22, s3, {r.TT*4096}']
        if base: pre.append(f's_add_u32 s22, s22, {base}')
        for i in range(r.na):
            g = ['s_mov_b32 m0, s22', 's_add_u32 s22, s22, 1024']
            if r.shifts:
                off = (4*i + r.shifts[c]) * r.a_rs
                if off >= 0: g.append(f'v_add_u32 v{r.vTmp}, {off}, v{r.vAsrc+(i&3)}')
                else: g.append(f'v_subrev_u32 v{r.vTmp}, {-off}, v{r.vAsrc+(i&3)}')
                g.append(f'buffer_load_dwordx4 v{r.vTmp}, s[8:11], s36 offen lds')
            else:
                g.append(f'buffer_load_dwordx4 v{r.vAsrc+(i&3)}, s[8:11], s36 offen lds')
                if i < r.na-1: g.append(f's_add_u32 s36, s36, {4*r.a_rs}')
            if i == r.na-1 and r.rot:
                g += ['s_add_u32 s34, s34, 1', f's_cmp_eq_u32 s34, {r.nch}', 's_cselect_b32 s34, 0, s34']
            G.append(pre + g); pre = []
        return G
    def issue(self, c):
        for g in self.issue_groups(c):
            for l in g: a(l)
    def compute(self, c, fillers):
        r = self
        FS = 4*(r.TT + r.NT)
        def loads(st, sb):
            f = r.FB + FS*sb
            for tt in range(r.TT):
                a(f'ds_read_b128 v[{f+4*tt}:{f+4*tt+3}], v{r.vAr+st} offset:{r.cur + tt*4096}')
            for cb in range(r.NT):
                for h in range(2):
                    d = f + 4*r.TT + 4*cb + 2*h
                    if r.wfmt == 128:
                        a(f'ds_read_b64_tr_b16 v[{d}:{d+1}], v{r.vWr+cb} offset:{r.cur + st*4096 + h*1024}')
                    else:
                        a(f'ds_read_b64_tr_b16 v[{d}:{d+1}], v{r.vWr} offset:{r.cur + st*7168 + h*1792 + 32*cb}')
        nl = r.TT + 2*r.NT
        nm = 4 * r.NT * r.TT
        fillers = list(fillers)
        every = max(1, nm // (len(fillers) + 1)) if fillers else 0
        loads(0, 0)
        loads(1, 1)
        for _ in range(min(2, len(fillers))):
            for l in fillers.pop(0): a(l)
        m = 0
        for st in range(4):
            a(f's_waitcnt lgkmcnt({min(15, nl) if st < 3 else 0})')
            f = r.FB + FS*(st & 1)
            for cb in range(r.NT):
                w = f + 4*r.TT + 4*cb
                for tt in range(r.TT):
                    cc = r.ACC + 4*r.NT*tt + 4*cb
                    a(f'v_mfma_f32_16x16x32_bf16 v[{cc}:{cc+3}], v[{w}:{w+3}], v[{f+4*tt}:{f+4*tt+3}], v[{cc}:{cc+3}]')
                    m += 1
                    if fillers and m % every == 0:
                        for l in fillers.pop(0): a(l)
            if st + 2 < 4:
                loads(st+2, st & 1)
        for g in fillers:
            for l in g: a(l)
    def bump(self, delta):
        r = self
        regs = [r.vAr+i for i in range(4)] + ([r.vWr+i for i in range(4)] if r.wfmt == 128 else [r.vWr])
        for v in regs:
            if delta > 0: a(f'v_add_u32 v{v}, {delta}, v{v}')
            else: a(f'v_subrev_u32 v{v}, {-delta}, v{v}')
    def prologue(self):
        r = self
        r.ahead = r.nslots if r.nch <= r.nslots else r.nslots - 1
        for c in range(min(r.nch, r.ahead)):
            r.issue(c)
    def run(self):
        r = self
        per = r.na + r.nw
        regbase = 0
        for c in range(r.nch):
            issued = min(r.nch, c + r.ahead)
            a(f's_waitcnt vmcnt({min(63, per*(issued - (c+1)))})')
            a('s_barrier')
            stamp([0,100,255], 1 + c)
            base = (c % r.nslots) * r.SLOT
            want = (base // 32768) * 32768 if r.SLOT * r.nslots > 65536 else 0
            if want != regbase:
                r.bump(want - regbase); regbase = want
            r.cur = base - regbase
            fill = r.issue_groups(c + r.ahead) if c + r.ahead < r.nch else []
            r.compute(c, fill)

class Ring3:
    def __init__(self, TT, NT, KC, nch, nslots, a_rs, w_rs, wfmt, FB, ACC, vAr, vWr, rot=False, shifts=None, LA=LA_DEF):
        self.__dict__.update(locals())
        self.RB = 64 * KC
        self.AW = TT * 16 * self.RB
        self.ABY = 4 * self.AW
        self.WBY = 32 * KC * (128 if wfmt == 128 else 224)
        self.SLOT = self.ABY + self.WBY
        self.na = self.AW // 1024
        self.nw = 4 if (wfmt == 128 or KC == 2) else 7
        self.rows_per = 1024 // self.RB
    def loader(self, tag):
        r = self
        vA, vW, vT = 8, 12, 24
        t1, t2, t3 = 3, 4, 5
        nv = 4 if r.KC == 4 else 2
        sh = 4 if r.KC == 4 else 3
        a(f'v_lshrrev_b32 v{t1}, {sh}, v2')
        a(f'v_mul_u32_u24 v{t1}, {r.a_rs}, v{t1}')
        a(f'v_add_u32 v{t1}, s38, v{t1}')
        a(f'v_and_b32 v{t2}, {(1 << sh) - 1}, v2')
        a(f'v_lshrrev_b32 v{t3}, 4, v2')
        a(f'v_xor_b32 v{t2}, v{t2}, v{t3}')
        for i in range(nv):
            a(f'v_xor_b32 v{t3}, {4*i}, v{t2}')
            a(f'v_lshl_add_u32 v{vA+i}, v{t3}, 4, v{t1}')
        if r.wfmt == 128:
            dma_lane_off(vW, 2, r.w_rs, t1, t2)
        else:
            assert r.KC == 2
            for i in range(4):
                a(f's_add_u32 s{60+i}, s3, {4*i}')
                a(f's_min_u32 s{60+i}, s{60+i}, 13')
                a(f's_cmp_ge_u32 s{60+i}, 7')
                a('s_cselect_b32 s21, 7, 0')
                a(f's_cselect_b32 s22, {32*r.w_rs}, 0')
                a(f's_sub_u32 s21, s{60+i}, s21')
                a('s_lshl_b32 s21, s21, 6')
                a(f'v_add_u32 v{t1}, s21, v2')
                a(f'v_mul_u32_u24 v{t2}, 4682, v{t1}')
                a(f'v_lshrrev_b32 v{t2}, 16, v{t2}')
                a(f'v_mul_u32_u24 v{t3}, 14, v{t2}')
                a(f'v_sub_u32 v{t1}, v{t1}, v{t3}')
                a(f'v_and_b32 v{t3}, 0x13, v{t2}')
                a(f'v_bfe_u32 v{vW+i}, v{t2}, 2, 1')
                a(f'v_lshl_or_b32 v{t3}, v{vW+i}, 3, v{t3}')
                a(f'v_bfe_u32 v{vW+i}, v{t2}, 3, 1')
                a(f'v_lshl_or_b32 v{t3}, v{vW+i}, 2, v{t3}')
                a(f'v_mul_u32_u24 v{t3}, {r.w_rs}, v{t3}')
                a(f'v_lshl_add_u32 v{vW+i}, v{t1}, 4, v{t3}')
                a(f'v_add_u32 v{vW+i}, s22, v{vW+i}')
                a(f's_lshl_b32 s{60+i}, s{60+i}, 10')
        def issue(c):
            base = (c % r.nslots) * r.SLOT
            if r.rot:
                a(f's_mul_i32 s35, s34, {32*r.KC*r.w_rs}')
                a('s_add_u32 s35, s35, s20')
                a(f's_mul_i32 s36, s34, {r.RB}')
            else:
                a(f's_add_u32 s35, s20, {c*32*r.KC*r.w_rs}')
                a(f's_movk_i32 s36, {c*r.RB}')
            a(f's_mul_i32 s22, s3, {r.AW}')
            if base: a(f's_add_u32 s22, s22, {base}')
            for i in range(r.na):
                a('s_mov_b32 m0, s22')
                a('s_add_u32 s22, s22, 1024')
                if r.shifts:
                    off = (r.rows_per*i + r.shifts[c]) * r.a_rs
                    if off >= 0: a(f'v_add_u32 v{vT}, {off}, v{vA+(i % nv)}')
                    else: a(f'v_subrev_u32 v{vT}, {-off}, v{vA+(i % nv)}')
                    a(f'buffer_load_dwordx4 v{vT}, s[8:11], s36 offen lds')
                else:
                    a(f'buffer_load_dwordx4 v{vA+(i % nv)}, s[8:11], s36 offen lds')
                    if i < r.na-1: a(f's_add_u32 s36, s36, {r.rows_per*r.a_rs}')
            if r.wfmt == 128:
                a(f's_lshl_b32 s22, s3, 10')
                a(f's_add_u32 s22, s22, {base + r.ABY}')
                for i in range(4):
                    a('s_mov_b32 m0, s22')
                    a('s_add_u32 s22, s22, 4096')
                    a(f'buffer_load_dwordx4 v{vW}, s[12:15], s35 offen lds')
                    if i < 3: a(f's_add_u32 s35, s35, {32*r.w_rs}')
            else:
                for i in range(4):
                    a(f's_add_u32 s22, s{60+i}, {base + r.ABY}')
                    a('s_mov_b32 m0, s22')
                    a('s_nop 0')
                    a(f'buffer_load_dwordx4 v{vW+i}, s[12:15], s35 offen lds')
            if r.rot:
                a('s_add_u32 s34, s34, 1')
                a(f's_cmp_eq_u32 s34, {r.nch}')
                a('s_cselect_b32 s34, 0, s34')
        per = r.na + r.nw
        issued = 0
        LA = r.LA
        for c in range(min(r.nch, LA0)):
            issue(c); issued += 1
        for c in range(r.nch):
            a(f's_waitcnt vmcnt({min(63, per*(issued - (c+1)))})')
            a('s_barrier')
            lim = min(r.nch - 1, c + LA, max(r.nslots - 1, c - 2 + r.nslots))
            while issued <= lim:
                issue(issued); issued += 1
    def comp_setup(self, t1, t2, t3):
        r = self
        a(f'v_and_b32 v{t1}, 15, v2')
        a(f'v_lshrrev_b32 v{t2}, 4, v2')
        if r.KC == 4:
            a(f'v_xor_b32 v{t2}, v{t2}, v{t1}')
        else:
            a(f'v_lshrrev_b32 v{t3}, 1, v{t1}')
            a(f'v_xor_b32 v{t2}, v{t2}, v{t3}')
        a(f'v_mul_u32_u24 v{t1}, {r.RB}, v{t1}')
        a(f's_mul_i32 s21, s3, {r.AW}')
        a(f'v_add_u32 v{t1}, s21, v{t1}')
        for i in range(r.KC):
            a(f'v_xor_b32 v{t3}, {4*i}, v{t2}')
            a(f'v_lshl_add_u32 v{r.vAr+i}, v{t3}, 4, v{t1}')
        if r.wfmt == 128:
            tr_lane_base(t1, t2, 2, t3, r.vWr)
            for cb in range(4):
                a(f'v_xor_b32 v{t3}, {cb}, v{t2}')
                a(f'v_lshl_add_u32 v{r.vWr+cb}, v{t3}, 5, v{t1}')
                a(f'v_add_u32 v{r.vWr+cb}, {r.ABY}, v{r.vWr+cb}')
        else:
            a(f'v_lshrrev_b32 v{t1}, 5, v2')
            a(f'v_lshlrev_b32 v{t1}, 4, v{t1}')
            a(f'v_bfe_u32 v{t2}, v2, 2, 3')
            a(f'v_add_u32 v{t1}, v{t1}, v{t2}')
            a(f'v_mul_u32_u24 v{t1}, 224, v{t1}')
            a(f'v_and_b32 v{t2}, 3, v2')
            a(f'v_lshl_add_u32 v{r.vWr}, v{t2}, 3, v{t1}')
            a(f'v_add_u32 v{r.vWr}, {r.ABY}, v{r.vWr}')
    def compute(self):
        r = self
        FS = 4*(r.TT + r.NT)
        nl = r.TT + 2*r.NT
        total = r.KC * r.nch
        state = dict(regbase=0)
        regs = [r.vAr+i for i in range(r.KC)] + ([r.vWr+i for i in range(4)] if r.wfmt == 128 else [r.vWr])
        def loads(s):
            c, st = divmod(s, r.KC)
            base = (c % r.nslots) * r.SLOT
            if st == 0:
                a('s_barrier')
                stamp([0,100,255], min(15, 1 + c))
                want = (base // 16384) * 16384
                d = want - state['regbase']
                if d:
                    for v in regs:
                        if d > 0: a(f'v_add_u32 v{v}, {d}, v{v}')
                        else: a(f'v_subrev_u32 v{v}, {-d}, v{v}')
                    state['regbase'] = want
            cur = base - state['regbase']
            f = r.FB + FS*(s & 1)
            for tt in range(r.TT):
                a(f'ds_read_b128 v[{f+4*tt}:{f+4*tt+3}], v{r.vAr+st} offset:{cur + tt*16*r.RB}')
            for cb in range(r.NT):
                for h in range(2):
                    d = f + 4*r.TT + 4*cb + 2*h
                    if r.wfmt == 128:
                        a(f'ds_read_b64_tr_b16 v[{d}:{d+1}], v{r.vWr+cb} offset:{cur + st*4096 + h*1024}')
                    else:
                        a(f'ds_read_b64_tr_b16 v[{d}:{d+1}], v{r.vWr} offset:{cur + st*7168 + h*1792 + 32*cb}')
        loads(0); loads(1)
        for s_ in range(total):
            a(f's_waitcnt lgkmcnt({min(15, nl) if s_ < total-1 else 0})')
            f = r.FB + FS*(s_ & 1)
            for cb in range(r.NT):
                w = f + 4*r.TT + 4*cb
                for tt in range(r.TT):
                    cc = r.ACC + 4*r.NT*tt + 4*cb
                    a(f'v_mfma_f32_16x16x32_bf16 v[{cc}:{cc+3}], v[{w}:{w+3}], v[{f+4*tt}:{f+4*tt+3}], v[{cc}:{cc+3}]')
            if s_ + 2 < total:
                loads(s_ + 2)

class Ring4:
    def __init__(self, TT, NT, nch, nslots, w_rs, wfmt, FB, ACC, vWr, X, XW, rot=False, LA=2):
        self.__dict__.update(locals())
        self.KC = 4
        self.SLOT = 128 * (128 if wfmt == 128 else 224)
        self.nw = 4 if wfmt == 128 else 7
    def loader(self):
        r = self
        vW = 12
        t1, t2, t3 = 3, 4, 5
        if r.wfmt == 128:
            dma_lane_off(vW, 2, r.w_rs, t1, t2)
        else:
            a(f'v_lshlrev_b32 v{vW}, 4, v2')
        def issue(c):
            base = (c % r.nslots) * r.SLOT
            if r.rot:
                a(f's_mul_i32 s35, s34, {128*r.w_rs}')
                a('s_add_u32 s35, s35, s20')
            else:
                a(f's_add_u32 s35, s20, {c*128*r.w_rs}')
            if r.wfmt == 128:
                a(f's_lshl_b32 s22, s3, 10')
                if base: a(f's_add_u32 s22, s22, {base}')
                for i in range(4):
                    a('s_mov_b32 m0, s22')
                    a('s_add_u32 s22, s22, 4096')
                    a(f'buffer_load_dwordx4 v{vW}, s[12:15], s35 offen lds')
                    if i < 3: a(f's_add_u32 s35, s35, {32*r.w_rs}')
            else:
                a(f's_mul_i32 s22, s3, 7168')
                if base: a(f's_add_u32 s22, s22, {base}')
                for j in range(7):
                    a('s_mov_b32 m0, s22')
                    a('s_add_u32 s22, s22, 1024')
                    a(f'buffer_load_dwordx4 v{vW}, s[12:15], s35 offen lds')
                    if j < 6: a('s_add_u32 s35, s35, 1024')
            if r.rot:
                a('s_add_u32 s34, s34, 1')
                a(f's_cmp_eq_u32 s34, {r.nch}')
                a('s_cselect_b32 s34, 0, s34')
        per = r.nw
        issued = 0
        for c in range(min(r.nch, r.LA)):
            issue(c); issued += 1
        for c in range(r.nch):
            a(f's_waitcnt vmcnt({min(63, per*(issued - (c+1)))})')
            a('s_barrier')
            lim = min(r.nch - 1, c + r.LA, max(r.nslots - 1, c - 2 + r.nslots))
            while issued <= lim:
                issue(issued); issued += 1
    def comp_setup(self, t1, t2, t3):
        r = self
        if r.wfmt == 128:
            tr_lane_base(t1, t2, 2, t3, r.vWr)
            for cb in range(4):
                a(f'v_xor_b32 v{t3}, {cb}, v{t2}')
                a(f'v_lshl_add_u32 v{r.vWr+cb}, v{t3}, 5, v{t1}')
        else:
            a(f'v_lshrrev_b32 v{t1}, 5, v2')
            a(f'v_lshlrev_b32 v{t1}, 4, v{t1}')
            a(f'v_bfe_u32 v{t2}, v2, 2, 3')
            a(f'v_add_u32 v{t1}, v{t1}, v{t2}')
            a(f'v_mul_u32_u24 v{t1}, 224, v{t1}')
            a(f'v_and_b32 v{t2}, 3, v2')
            a(f'v_lshl_add_u32 v{r.vWr}, v{t2}, 3, v{t1}')
    def compute(self, aload, extra_vm=0):
        r = self
        FS = 4*r.NT
        nl = 2*r.NT
        total = 4 * r.nch
        state = dict(regbase=0)
        regs = [r.vWr+i for i in range(4)] if r.wfmt == 128 else [r.vWr]
        def pre(s):
            c, st = divmod(s, 4)
            base = (c % r.nslots) * r.SLOT
            if st == 0:
                a('s_barrier')
                want = (base // 32768) * 32768
                d = want - state['regbase']
                if d:
                    for v in regs:
                        if d > 0: a(f'v_add_u32 v{v}, {d}, v{v}')
                        else: a(f'v_subrev_u32 v{v}, {-d}, v{v}')
                    state['regbase'] = want
        def load_cb(s, cb):
            c, st = divmod(s, 4)
            cur = (c % r.nslots) * r.SLOT - state['regbase']
            f = r.FB + FS*(s & 1)
            for h in range(2):
                d = f + 4*cb + 2*h
                if r.wfmt == 128:
                    a(f'ds_read_b64_tr_b16 v[{d}:{d+1}], v{r.vWr+cb} offset:{cur + st*4096 + h*1024}')
                else:
                    a(f'ds_read_b64_tr_b16 v[{d}:{d+1}], v{r.vWr} offset:{cur + st*7168 + h*1792 + 32*cb}')
        for s0 in range(2):
            pre(s0)
            for cb in range(r.NT): load_cb(s0, cb)
        for s_ in range(total):
            issued_steps = min(total, s_ + r.XW)
            a(f's_waitcnt vmcnt({min(63, r.TT*(issued_steps - (s_+1)))}) lgkmcnt({min(15, nl) if s_ < total-1 else 0})')
            if s_ + 2 < total:
                pre(s_ + 2)
            f = r.FB + FS*(s_ & 1)
            for cb in range(r.NT):
                w = f + 4*cb
                for tt in range(r.TT):
                    cc = r.ACC + 4*r.NT*tt + 4*cb
                    x = r.X + 4*(r.TT*(s_ % r.XW) + tt)
                    a(f'v_mfma_f32_16x16x32_bf16 v[{cc}:{cc+3}], v[{w}:{w+3}], v[{x}:{x+3}], v[{cc}:{cc+3}]')
                if s_ + 2 < total and cb > 0:
                    load_cb(s_ + 2, cb - 1)
            if s_ + 2 < total:
                load_cb(s_ + 2, r.NT - 1)
            if s_ + r.XW < total:
                aload(s_ + r.XW)

def store_tile64(O, vtok_row, sptr, scol, vt, lds_base_sgpr):
    a(f'v_and_b32 v{vt}, 15, v2')
    a(f'v_mul_u32_u24 v{vt}, 144, v{vt}')
    a(f'v_lshrrev_b32 v{vt+1}, 4, v2')
    a(f'v_lshl_add_u32 v{vt}, v{vt+1}, 3, v{vt}')
    a(f'v_add_u32 v{vt}, s{lds_base_sgpr}, v{vt}')
    for cb in range(4):
        a(f'ds_write_b64 v{vt}, v[{O+2*cb}:{O+2*cb+1}] offset:{32*cb}')
    a(f'v_lshrrev_b32 v{vt+1}, 3, v2')
    a(f'v_and_b32 v{vt+2}, 7, v2')
    a(f'v_mul_u32_u24 v{vt}, 144, v{vt+1}')
    a(f'v_lshl_add_u32 v{vt}, v{vt+2}, 4, v{vt}')
    a(f'v_add_u32 v{vt}, s{lds_base_sgpr}, v{vt}')
    a(f'v_lshlrev_b32 v{vt+1}, 10, v{vt+1}')
    a(f'v_lshl_add_u32 v{vt+1}, v{vt+2}, 4, v{vt+1}')
    a(f'v_add_u32 v{vt+1}, s{vtok_row}, v{vt+1}')
    a(f'v_add_u32 v{vt+1}, s{scol}, v{vt+1}')
    a(f'v_add_u32 v{vt+2}, 8192, v{vt+1}')
    a('s_waitcnt lgkmcnt(0)')
    a(f'ds_read_b128 v[{O}:{O+3}], v{vt}')
    a(f'ds_read_b128 v[{O+4}:{O+7}], v{vt} offset:{8*144}')
    a('s_waitcnt lgkmcnt(1)')
    a(f'global_store_dwordx4 v{vt+1}, v[{O}:{O+3}], s[{sptr}:{sptr+1}]')
    a('s_waitcnt lgkmcnt(0)')
    a(f'global_store_dwordx4 v{vt+2}, v[{O+4}:{O+7}], s[{sptr}:{sptr+1}]')

def wave_krow(dst):
    a(f"""
    s_lshr_b32 s{dst}, s3, 1
    s_lshl_b32 s{dst}, s{dst}, 4
    s_and_b32 s19, s3, 1
    s_lshl_b32 s19, s19, 2
    s_add_u32 s{dst}, s{dst}, s19
    """)

MAP64 = """
    s_bfe_u32 s16, s2, 0x30003
    s_and_b32 s17, s2, 7
    s_lshl_b32 s17, s17, 2
    s_lshr_b32 s19, s2, 6
    s_add_u32 s17, s17, s19
"""

def fra_epi_off(dst, t):
    a(f'v_lshrrev_b32 v{dst}, 1, v15')
    a(f'v_lshlrev_b32 v{dst}, 8, v{dst}')
    a(f'v_and_b32 v{t}, 15, v2')
    a(f'v_lshl_add_u32 v{dst}, v{t}, 4, v{dst}')
    a(f'v_and_b32 v{t}, 1, v15')
    a(f'v_lshl_add_u32 v{dst}, v{t}, 3, v{dst}')
    a('s_lshl_b32 s21, s16, 11')
    a('s_add_u32 s21, s21, s38')
    a(f'v_add_u32 v{dst}, s21, v{dst}')

def fra_store_off(dst, t):
    a(f"""
    v_and_b32 v{dst}, 1, v15
    v_lshrrev_b32 v{t}, 1, v15
    v_lshl_add_u32 v{dst}, v{dst}, 1, v{t}
    v_and_b32 v{t}, 15, v2
    v_lshl_add_u32 v{dst}, v{dst}, 4, v{t}
    s_lshl_b32 s21, s16, 11
    s_add_u32 s21, s21, s38
    v_lshl_add_u32 v{dst}, v{dst}, 4, s21
    """)

def gen_k4():
    global SV
    SV = 176
    name = 'k4_kernel'
    a.begin_kernel(name)
    a(f"""
    s_cmp_ge_u32 s2, 256
    s_cbranch_scc1 K4_exit
    s_load_dwordx2 s[4:5], s[0:1], {KA['ws']}
    s_load_dwordx2 s[6:7], s[0:1], {KA['w2']}
    s_load_dwordx2 s[44:45], s[0:1], {KA['w3']}
    """)
    trace_begin()
    a(f"""
    v_lshrrev_b32 v1, 6, v0
    v_and_b32 v2, 63, v0
    v_readfirstlane_b32 s24, v1
    s_and_b32 s3, s24, 3
    {MAP64}
    """)
    wave_krow(18)
    ACC = 36; FB = 64; X = 96
    R = Ring4(TT=1, NT=4, nch=4, nslots=4, w_rs=1024, wfmt=128, FB=FB, ACC=ACC, vWr=10, X=X, XW=16, LA=LA5)
    a(f"""
    s_lshl_b32 s39, s17, 6
    s_lshl_b32 s23, s3, 4
    s_add_u32 s39, s39, s23
    s_lshl_b32 s38, s39, 10
    s_lshl_b32 s20, s18, 10
    s_lshl_b32 s37, s16, 7
    s_add_u32 s20, s20, s37
    s_cmp_ge_u32 s24, 4
    s_cbranch_scc1 K4_loader
    v_and_b32 v14, 15, v2
    v_lshrrev_b32 v15, 4, v2
    v_add_u32 v14, s39, v14            ; token
    v_lshlrev_b32 v16, 3, v14
    v_lshlrev_b32 v19, 6, v14
    """)
    for q, sh in enumerate([-1, 1, -2, 2]):
        a(f'v_add_u32 v5, {sh}, v14')
        a('v_ashrrev_i32 v6, 4, v5')
        a('v_lshlrev_b32 v6, 14, v6')
        a('v_and_b32 v5, 15, v5')
        a('v_lshl_add_u32 v6, v5, 4, v6')
        a('v_lshl_add_u32 v6, v15, 8, v6')
        a(f'v_add_u32 v{52+q}, {4096*q}, v6')
    fra_epi_off(18, 5)
    a('s_waitcnt lgkmcnt(0)')
    ws_ptr(8, 4, 'G1')
    a(f's_mov_b32 s10, {2*MB}')
    a('s_mov_b32 s11, 0x00020000')
    ws_ptr(24, 4, 'HR'); ws_ptr(26, 4, 'X1'); ws_ptr(28, 4, 'ST3'); ws_ptr(30, 4, 'ST1')
    HRr = 20
    for cb in range(4):
        a(f'global_load_dwordx2 v[{HRr+2*cb}:{HRr+2*cb+1}], v18, s[24:25] offset:{512*cb}')
    a('global_load_dwordx2 v[28:29], v16, s[30:31]')
    for st in range(16):
        a(f'buffer_load_dwordx4 v[{X+4*st}:{X+4*st+3}], v{52+(st>>2)}, s[8:11], 0 offen offset:{1024*(st&3)}')
    R.comp_setup(5, 6, 7)
    for i in range(16):
        a(f'v_mov_b32 v{ACC+i}, 0')
    R.compute(None)
    a('v_mov_b32 v60, 0')
    a('v_mov_b32 v61, 0')
    a('v_mov_b32 v62, 0')
    a('v_mov_b32 v63, 0')
    a('s_nop 4')
    O = 168
    for p in range(8):
        c = ACC + 2*p
        round_pair(c, 164)
        unpack(30, 31, HRr + p)
        a('v_pk_add_f32 v[30:31], v[30:31], v[28:29] op_sel_hi:[1,0] neg_lo:[0,1] neg_hi:[0,1]')
        round_pair(30, 165)
        a('v_pk_mul_f32 v[30:31], v[30:31], v[28:29] op_sel:[0,1] op_sel_hi:[1,1]')
        round_pair(30, 165)
        a(f'v_pk_add_f32 v[{c}:{c+1}], v[{c}:{c+1}], v[30:31]')
        a(f'v_cvt_pk_bf16_f32 v{O+p}, v{c}, v{c+1}')
        unpack(c, c+1, O+p)
        a(f'v_pk_add_f32 v[60:61], v[60:61], v[{c}:{c+1}]')
        a(f'v_pk_fma_f32 v[62:63], v[{c}:{c+1}], v[{c}:{c+1}], v[62:63]')
    a('v_add_f32 v60, v60, v61')
    a('v_add_f32 v61, v62, v63')
    fra_store_off(7, 8)
    a('v_mov_b32 v62, v60')
    a('v_mov_b32 v63, v61')
    for P in range(2):
        o = O + 4*P
        a(f'v_permlane16_swap_b32 v{o}, v{o+2}')
        a(f'v_permlane16_swap_b32 v{o+1}, v{o+3}')
    a('v_permlane16_swap_b32 v60, v62')
    a('v_permlane16_swap_b32 v61, v63')
    for P in range(2):
        o = O + 4*P
        a(f'global_store_dwordx4 v7, v[{o}:{o+3}], s[26:27] offset:{1024*P}')
    a(f"""
    v_pk_add_f32 v[60:61], v[60:61], v[62:63]
    s_nop 0
    v_mov_b32 v62, v60
    v_mov_b32 v63, v61
    s_nop 1
    v_permlane32_swap_b32 v60, v62
    v_permlane32_swap_b32 v61, v63
    s_nop 1
    v_pk_add_f32 v[60:61], v[60:61], v[62:63]
    s_lshl_b32 s21, s16, 3
    v_add_u32 v19, s21, v19
    v_cmp_gt_u32 vcc, 16, v2
    s_and_saveexec_b64 s[32:33], vcc
    global_store_dwordx2 v19, v[60:61], s[28:29]
    s_mov_b64 exec, s[32:33]
    """)
    trace_end(3)
    a('s_endpgm')
    a.label('K4_loader')
    a('s_waitcnt lgkmcnt(0)')
    mk_srd(12, 6, 512*1024)
    R.loader()
    code_prefetch('k5_kernel', 'K_code_end', 30, 32, 40)
    if PF4:
        a('v_and_b32 v0, 255, v0')
        ws_ptr(44, 4, 'W3P')
        l2_prefetch(44, 512*3584, 24, 28, 21)
    a.label('K4_exit')
    a.end_kernel(name, (256,1,1), (512,1,1), 65536, 184)

def gen_k5():
    global SV
    SV = 200
    name = 'k5_kernel'
    a.begin_kernel(name)
    a(f"""
    s_cmp_ge_u32 s2, 256
    s_cbranch_scc1 K5_exit
    s_load_dwordx2 s[4:5], s[0:1], {KA['ws']}
    s_load_dwordx2 s[6:7], s[0:1], {KA['w3']}
    s_load_dwordx2 s[40:41], s[0:1], {KA['w4']}
    """)
    trace_begin()
    a(f"""
    v_lshrrev_b32 v1, 6, v0
    v_and_b32 v2, 63, v0
    v_readfirstlane_b32 s24, v1
    s_and_b32 s3, s24, 3
    s_bfe_u32 s16, s2, 0x40003
    s_and_b32 s17, s2, 7
    s_lshl_b32 s17, s17, 1
    s_lshr_b32 s19, s2, 7
    s_add_u32 s17, s17, s19
    """)
    ACC = 144; FB = 16; X = 72; XW = 8
    R = Ring4(TT=2, NT=7, nch=4, nslots=4, w_rs=224, wfmt=224, FB=FB, ACC=ACC, vWr=10, X=X, XW=XW, LA=LA5)
    a(f"""
    s_lshl_b32 s39, s17, 7
    s_lshl_b32 s23, s3, 5
    s_add_u32 s39, s39, s23
    s_lshl_b32 s38, s39, 10
    s_mul_i32 s20, s3, 7168
    s_mul_i32 s37, s16, 114688
    s_add_u32 s20, s20, s37
    s_cmp_ge_u32 s24, 4
    s_cbranch_scc1 K5_loader
    v_and_b32 v14, 15, v2
    v_lshrrev_b32 v15, 4, v2
    v_add_u32 v14, s39, v14
    v_lshlrev_b32 v13, 6, v14
    s_mul_i32 s21, s16, 448
    v_lshl_add_u32 v8, v15, 4, s21
    v_lshl_add_u32 v11, v2, 4, s38
    v_add_u32 v12, 0x4000, v11         ; tt1
    s_waitcnt lgkmcnt(0)
    """)
    SV = 232
    gstamp(0)
    ws_ptr(8, 4, 'X1'); ws_ptr(24, 4, 'ST3'); ws_ptr(26, 4, 'HH'); ws_ptr(28, 4, 'CS', 2048)
    for tt in range(2):
        for q in range(4):
            r = ACC + 16*tt + 4*q
            a(f'global_load_dwordx4 v[{r}:{r+3}], v13, s[24:25] offset:{1024*tt + 16*q}')
    CSR = 204
    for cb in range(7):
        a(f'global_load_dwordx4 v[{CSR+4*cb}:{CSR+4*cb+3}], v8, s[28:29] offset:{64*cb}')
    def aload(st):
        if st % 4 == 0 and st:
            a('s_add_u32 s8, s8, 4096')
            a('s_addc_u32 s9, s9, 0')
        for tt in range(2):
            x = X + 4*(2*(st % XW) + tt)
            a(f'global_load_dwordx4 v[{x}:{x+3}], v{11+tt}, s[8:9] offset:{1024*(st&3)}')
    for st in range(XW):
        aload(st)
    gstamp(1)
    R.comp_setup(3, 4, 5)
    a(f's_waitcnt vmcnt({7 + 2*XW})')
    for tt in range(2):
        b = ACC + 16*tt
        for i in (8, 4, 2):
            for j in range(0, i, 2):
                a(f'v_pk_add_f32 v[{b+j}:{b+j+1}], v[{b+j}:{b+j+1}], v[{b+j+i}:{b+j+i+1}]')
        a(f'v_mul_f32 v{b}, {hx(1/512)}, v{b}')
        a(f'v_mul_f32 v{b+1}, {hx(1/512)}, v{b+1}')
        a(f'v_fma_f32 v{b+1}, -v{b}, v{b}, v{b+1}')
        a(f'v_max_f32 v{b+1}, 0, v{b+1}')
        ln_scalars(b, b+1, 3)
        a(f'v_mov_b32 v{4+2*tt}, v{b+1}')
        a(f'v_mul_f32 v{5+2*tt}, v{b}, v{b+1}')
    for i in range(56):
        a(f'v_mov_b32 v{ACC+i}, 0')
    gstamp(2)
    R.compute(aload)
    gstamp(3)
    a(f"""
    v_mov_b32 v72, {hx(GC1)}
    v_mov_b32 v73, {hx(GC2)}
    v_mov_b32 v74, 1.0
    v_mov_b32 v75, 1.0
    s_mul_i32 s21, s39, 3584
    s_mul_i32 s22, s16, 3584
    s_add_u32 s21, s21, s22
    v_and_b32 v3, 1, v15
    v_lshrrev_b32 v13, 1, v15
    v_and_b32 v8, 15, v2
    v_lshl_add_u32 v8, v8, 4, s21
    v_lshl_add_u32 v12, v3, 1, v13
    v_lshl_add_u32 v12, v12, 8, v8
    v_add_u32 v11, 57344, v12          ; tt1
    v_mul_u32_u24 v3, 57344, v3
    v_lshl_add_u32 v10, v13, 8, v8
    v_add_u32 v10, v10, v3
    """)
    O = 80
    for tt in range(2):
        zs = [ACC + 28*tt + 2*p for p in range(14)]
        affine_round(zs, [CSR + 2*p for p in range(14)], 4+2*tt, 64)
        gelu_pairs(zs, 72, 64)
        for p in range(14):
            d = O + 16*tt + p if p < 12 else 112 + 2*tt + (p - 12)
            a(f'v_cvt_pk_bf16_f32 v{d}, v{zs[p]}, v{zs[p]+1}')
        a('s_nop 1')
        for P in range(3):
            o = O + 16*tt + 4*P
            a(f'v_permlane16_swap_b32 v{o}, v{o+2}')
            a(f'v_permlane16_swap_b32 v{o+1}, v{o+3}')
        a('s_nop 1')
        for P in range(3):
            o = O + 16*tt + 4*P
            a(f'global_store_dwordx4 v{12-tt}, v[{o}:{o+3}], s[26:27] offset:{1024*P}')
    a('v_permlane16_swap_b32 v112, v114')
    a('v_permlane16_swap_b32 v113, v115')
    a('s_nop 1')
    a('global_store_dwordx4 v10, v[112:115], s[26:27] offset:3072')
    gstamp(4)
    if GST: a('s_waitcnt vmcnt(0)')
    gstamp(5)
    trace_end(4)
    a('s_endpgm')
    a.label('K5_loader')
    a('s_waitcnt lgkmcnt(0)')
    ws_ptr(12, 4, 'W3P')
    a(f's_mov_b32 s14, {512*3584}')
    a('s_mov_b32 s15, 0x00020000')
    R.loader()
    if PF5:
        a('v_and_b32 v0, 255, v0')
        l2_prefetch(40, 1792*1024, 24, 28, 21)
    a.label('K5_exit')
    a.end_kernel(name, (256,1,1), (512,1,1), 4*R.SLOT, 240)

def gen_k6():
    global SV
    SV = 176
    name = 'k6_kernel'
    a.begin_kernel(name)
    a(f"""
    s_cmp_ge_u32 s2, 256
    s_cbranch_scc1 K6_exit
    s_load_dwordx2 s[4:5], s[0:1], {KA['ws']}
    s_load_dwordx2 s[6:7], s[0:1], {KA['w4']}
    s_load_dwordx2 s[26:27], s[0:1], {KA['out']}
    """)
    trace_begin()
    a(f"""
    v_lshrrev_b32 v1, 6, v0
    v_and_b32 v2, 63, v0
    v_readfirstlane_b32 s24, v1
    s_and_b32 s3, s24, 3
    {MAP64}
    """)
    wave_krow(18)
    ACC = 36; FB = 64; X = 96; XW = 16
    R = Ring4(TT=1, NT=4, nch=14, nslots=8, w_rs=1024, wfmt=128, FB=FB, ACC=ACC, vWr=10, X=X, XW=XW, rot=True, LA=LA6)
    a(f"""
    s_lshl_b32 s39, s17, 6
    s_lshl_b32 s23, s3, 4
    s_add_u32 s39, s39, s23
    s_lshl_b32 s38, s39, 10
    s_lshl_b32 s20, s18, 10
    s_lshl_b32 s37, s16, 7
    s_add_u32 s20, s20, s37
    s_lshl_b32 s34, s17, 1
    s_add_u32 s34, s34, s16
    s_mul_hi_u32 s35, s34, 0x24924925
    s_mul_i32 s35, s35, 7
    s_sub_u32 s34, s34, s35
    s_lshl_b32 s34, s34, 1
    s_cmp_ge_u32 s24, 4
    s_cbranch_scc1 K6_loader
    v_lshrrev_b32 v15, 4, v2
    s_mul_i32 s21, s39, 3584
    v_lshl_add_u32 v17, v2, 4, s21
    s_lshl_b32 s36, s34, 12
    """)
    fra_epi_off(18, 5)
    a('s_waitcnt lgkmcnt(0)')
    ws_ptr(8, 4, 'HH'); ws_ptr(24, 4, 'HR'); ws_ptr(28, 4, 'X1')
    a(f's_mov_b32 s10, {2048*3584}')
    a('s_mov_b32 s11, 0x00020000')
    for cb in range(4):
        a(f'global_load_dwordx2 v[{20+2*cb}:{21+2*cb}], v18, s[24:25] offset:{512*cb}')
    for cb in range(4):
        a(f'global_load_dwordx2 v[{28+2*cb}:{29+2*cb}], v18, s[28:29] offset:{512*cb}')
    def aload(st):
        x = X + 4*(st % XW)
        a(f'buffer_load_dwordx4 v[{x}:{x+3}], v17, s[8:11], s36 offen offset:{1024*(st&3)}')
        if st % 4 == 3:
            a('s_add_u32 s36, s36, 4096')
            a('s_cmp_eq_u32 s36, 57344')
            a('s_cselect_b32 s36, 0, s36')
    for st in range(XW):
        aload(st)
    R.comp_setup(5, 6, 7)
    for i in range(16):
        a(f'v_mov_b32 v{ACC+i}, 0')
    R.compute(aload)
    a('s_nop 7')
    O = 168
    for p in range(8):
        c = ACC + 2*p
        round_pair(c, 60)
        unpack(62, 63, 28 + p)
        a(f'v_pk_add_f32 v[{c}:{c+1}], v[{c}:{c+1}], v[62:63]')
        round_pair(c, 60)
        unpack(62, 63, 20 + p)
        a(f'v_pk_add_f32 v[{c}:{c+1}], v[{c}:{c+1}], v[62:63]')
        a(f'v_cvt_pk_bf16_f32 v{O+p}, v{c}, v{c+1}')
    a(f's_mul_i32 s21, s3, 2560')
    a(f's_add_u32 s21, s21, {8*R.SLOT}')
    store_tile64(O, 38, 26, 37, 64, 21)
    trace_end(5)
    a('s_endpgm')
    a.label('K6_loader')
    a('s_waitcnt lgkmcnt(0)')
    mk_srd(12, 6, 1792*1024)
    R.loader()
    a.label('K6_exit')
    a.end_kernel(name, (256,1,1), (512,1,1), 8*R.SLOT + 10240, 184)
    a.label('K_code_end')

def main():
    gen_k1()
    gen_k2()
    gen_k3()
    gen_k4()
    gen_k5()
    gen_k6()

if __name__ == '__main__':
    out = sys.argv[1] if len(sys.argv) > 1 else 'k.s'
    if 'stamps' in sys.argv[2:]:
        STAMPS = True
    if 'trace' in sys.argv[2:]:
        TRACE = True
    if 'gst' in sys.argv[2:]:
        GST = True
    main()
    open(out, 'w').write(a.text(HEADER))
```

```python
import sys, struct
from asmlib import *
from gen_ws import WS, MB

KA = dict(x=0, Are=8, Aim=16, Bre=24, Bim=32, Cre=40, Cim=48, ldt=56, Dsk=64, Bx=72, w1=80, w2=88, w3=96, w4=104, out=112, dbg=120, ws=128)

def f2u(f):
    return struct.unpack('<I', struct.pack('<f', f))[0]
def hx(f):
    return hex(f2u(f))

LOG2E = 1.4426950408889634
LOG2E_HI = struct.unpack('<f', struct.pack('<f', LOG2E))[0]
LOG2E_LO = LOG2E - LOG2E_HI
LN2 = 0.6931471805599453
INV2PI = 0.15915494309189535

a = Asm()

def ws_ptr(dst, wsreg, name, extra=0):
    off = WS[name] + extra
    a(f's_add_u32 s{dst}, s{wsreg}, {hex(off)}')
    a(f's_addc_u32 s{dst+1}, s{wsreg+1}, 0')

def row16_allreduce(v):
    for sh in (8, 4, 2, 1):
        a('s_nop 1')
        a(f'v_add_f32_dpp v{v}, v{v}, v{v} row_ror:{sh} row_mask:0xf bank_mask:0xf')

def unpack(dlo, dhi, src):
    a(f'v_lshlrev_b32 v{dlo}, 16, v{src}')
    a(f'v_and_b32 v{dhi}, 0xffff0000, v{src}')

STAMPS = False
PREFETCH = True
SC2 = ' sc1' if ('sc2' in sys.argv or 'sc3' in sys.argv) else ''
SC3 = ' sc1' if 'sc3' in sys.argv else ''
USC = ' sc1' if 'usc1' in sys.argv else (' nt' if 'unt' in sys.argv else '')
F16 = 'nof16' not in sys.argv
NOPF2 = 'nopf2' in sys.argv
PF2W3 = 'pf2w3' in sys.argv
PF4 = 'pf4' in sys.argv
LA5 = int([x[3:] for x in sys.argv if x.startswith('l5_')][0]) if any(x.startswith('l5_') for x in sys.argv) else 2
LA6 = int([x[3:] for x in sys.argv if x.startswith('l6_')][0]) if any(x.startswith('l6_') for x in sys.argv) else 3
LA0 = int([x[3:] for x in sys.argv if x.startswith('lb_')][0]) if any(x.startswith('lb_') for x in sys.argv) else 2
LA_DEF = int([x[2:] for x in sys.argv if x.startswith('la')][0]) if any(x.startswith('la') for x in sys.argv) else 2
PF2 = 'pf2' in sys.argv
PF5 = 'nopf5' not in sys.argv
SV = 124
def stamp_init():
    if not STAMPS: return
    a(f's_load_dwordx2 s[90:91], s[0:1], {KA["dbg"]}')
def stamp(wg_list, slot):
    if not STAMPS: return
    l = a.newlabel('STP')
    a('s_memtime s[92:93]')
    a('s_waitcnt lgkmcnt(0)')
    a('v_readfirstlane_b32 s95, v0')
    a('s_nop 3')
    a('s_cmp_lg_u32 s95, 0')
    a(f's_cbranch_scc1 {l}')
    for i, wg in enumerate(wg_list):
        l2 = a.newlabel('STQ')
        a(f's_cmp_lg_u32 s2, {wg}')
        a(f's_cbranch_scc1 {l2}')
        a(f'v_mov_b32 v{SV+1}, s92')
        a(f'v_mov_b32 v{SV}, {(i*16+slot+16)*4}')
        a(f'global_store_dword v{SV}, v{SV+1}, s[90:91]')
        a.label(l2)
    a.label(l)

TRACE = False
GST = False
def gstamp(slot):
    if not GST: return
    l = a.newlabel('GST')
    a('s_memrealtime s[92:93]')
    a('v_readfirstlane_b32 s95, v0')
    a('s_waitcnt lgkmcnt(0)')
    a('s_cmp_lg_u32 s95, 0')
    a(f's_cbranch_scc1 {l}')
    a(f'v_mov_b32 v{SV+1}, s92')
    a('s_lshl_b32 s95, s2, 6')
    a(f's_add_u32 s95, s95, {40*MB + slot*4}')
    a(f'v_mov_b32 v{SV}, s95')
    a(f'global_store_dword v{SV}, v{SV+1}, s[4:5]')
    a.label(l)
def trace_begin():
    if not TRACE: return
    a('s_memrealtime s[96:97]')
    a('s_getreg_b32 s98, hwreg(HW_REG_HW_ID)')
    a('s_getreg_b32 s99, hwreg(HW_REG_XCC_ID)')
def trace_end(kidx):
    if not TRACE: return
    l = a.newlabel('TRC')
    a('s_mov_b64 exec, -1')
    a('s_memrealtime s[100:101]')
    a('v_readfirstlane_b32 s95, v0')
    a('s_waitcnt lgkmcnt(0)')
    a('s_cmp_lg_u32 s95, 0')
    a(f's_cbranch_scc1 {l}')
    a(f'v_mov_b32 v{SV}, s96')
    a(f'v_mov_b32 v{SV+1}, s100')
    a(f'v_mov_b32 v{SV+2}, s98')
    a(f'v_mov_b32 v{SV+3}, s99')
    a('s_lshl_b32 s95, s2, 4')
    a(f's_add_u32 s95, s95, {hex(32*MB + kidx*65536)}')
    a(f'v_mov_b32 v{SV+4}, s95')
    a(f'global_store_dwordx4 v{SV+4}, v[{SV}:{SV+3}], s[4:5]')
    a.label(l)

def l2_prefetch(sptr, total_bytes, vtmp, vdst, stmp):
    per = total_bytes // 32
    assert per % 4096 == 0
    a(f's_lshr_b32 s{stmp}, s2, 3')
    a(f's_mul_i32 s{stmp}, s{stmp}, {per}')
    a(f'v_lshl_add_u32 v{vtmp}, v0, 4, s{stmp}')
    for i in range(per // 4096):
        a(f'global_load_dwordx4 v[{vdst}:{vdst+3}], v{vtmp}, s[{sptr}:{sptr+1}]')
        if i < per // 4096 - 1:
            a(f's_add_u32 s{sptr}, s{sptr}, 4096')
            a(f's_addc_u32 s{sptr+1}, s{sptr+1}, 0')

CODEPF = 'nocpf' not in sys.argv
def code_prefetch(first_label, last_label, vt, vdst, sp):
    if not CODEPF: return
    l = a.newlabel('CPF')
    a(f's_getpc_b64 s[{sp}:{sp+1}]')
    a.label(l)
    a(f's_add_u32 s{sp}, s{sp}, {first_label}-{l}')
    a(f's_addc_u32 s{sp+1}, s{sp+1}, 0')
    a(f's_bfe_u32 s{sp+2}, s2, 0x50003')
    a(f's_lshl_b32 s{sp+2}, s{sp+2}, 10')
    a(f'v_and_b32 v{vt}, 63, v0')
    a(f'v_lshl_add_u32 v{vt}, v{vt}, 4, s{sp+2}')
    a(f'v_min_u32 v{vt}, {last_label}-{first_label}-16, v{vt}')
    a(f'global_load_dwordx4 v[{vdst}:{vdst+3}], v{vt}, s[{sp}:{sp+1}]')

def ln_scalars(S, Q, T):
    a(f'v_cvt_pk_bf16_f32 v{T}, v{S}, v{Q}')
    unpack(S, Q, T)
    a(f'v_add_f32 v{Q}, {hx(1e-5)}, v{Q}')
    a(f'v_cvt_pk_bf16_f32 v{T}, v{Q}, v{Q}')
    a(f'v_lshlrev_b32 v{Q}, 16, v{T}')
    a(f'v_sqrt_f32 v{Q}, v{Q}')
    a('s_nop 0')
    a(f'v_cvt_pk_bf16_f32 v{T}, v{Q}, v{Q}')
    a(f'v_lshlrev_b32 v{Q}, 16, v{T}')
    a(f'v_rcp_f32 v{Q}, v{Q}')
    a('s_nop 0')

def gen_k1():
    global SV
    SV = 96
    name = 'k1_kernel'
    SW = [0, 64, 82]
    a.begin_kernel(name)
    a(f"""
    s_cmp_ge_u32 s2, 274
    s_cbranch_scc1 K1_exit
    s_load_dwordx2 s[4:5], s[0:1], {KA['ws']}
    """)
    stamp_init(); stamp(SW, 0); trace_begin()

    a(f"""
    s_cmp_lt_u32 s2, 256
    s_cbranch_scc1 K1_kgen
    """)
    a(f"""
    s_sub_u32 s3, s2, 256            ; 0..17 : 0..3 -> w1 ; 4..17 -> w3
    s_load_dwordx2 s[6:7], s[0:1], {KA['w1']}
    s_load_dwordx2 s[8:9], s[0:1], {KA['w3']}
    s_movk_i32 s10, 1024
    s_lshl_b32 s11, s3, 8
    s_cmp_lt_u32 s3, 4
    s_waitcnt lgkmcnt(0)
    s_cbranch_scc1 K1_cs_w1
    s_mov_b32 s6, s8
    s_mov_b32 s7, s9
    s_movk_i32 s10, 3584
    s_sub_u32 s11, s11, 1024
    """)
    a.label('K1_cs_w1')
    a("""
    v_lshrrev_b32 v1, 4, v0          ; rg 0..31
    v_and_b32 v2, 15, v0
    v_mul_lo_u32 v3, v1, s10
    v_lshl_add_u32 v3, v2, 4, v3
    v_add_u32 v3, s11, v3
    s_lshl_b32 s12, s10, 5           ; 32 rows
    """)
    for i in range(16):
        a(f'global_load_dwordx4 v[{8+4*i}:{11+4*i}], v3, s[6:7]')
        if i < 15:
            a('s_add_u32 s6, s6, s12')
            a('s_addc_u32 s7, s7, 0')
    AC = 76
    for j in range(8):
        a(f'v_mov_b32 v{AC+j}, 0')
    for i in range(16):
        a(f's_waitcnt vmcnt({15-i})')
        for j in range(4):
            unpack(84+2*(j&1), 85+2*(j&1), 8+4*i+j)
            a(f'v_pk_add_f32 v[{AC+2*j}:{AC+2*j+1}], v[{AC+2*j}:{AC+2*j+1}], v[{84+2*(j&1)}:{85+2*(j&1)}]')
    a(f"""
    v_lshlrev_b32 v4, 5, v0          ; rg*512 + c*32
    ds_write_b128 v4, v[{AC}:{AC+3}]
    ds_write_b128 v4, v[{AC+4}:{AC+7}] offset:16
    v_lshlrev_b32 v5, 2, v0
    s_waitcnt lgkmcnt(0)
    s_barrier
    v_cmp_gt_u32 vcc, 128, v0
    s_and_saveexec_b64 s[14:15], vcc
    s_cbranch_execz K1_end
    """)
    for i in range(32):
        a(f'ds_read_b32 v{8+i}, v5 offset:{512*i}')
    ws_ptr(8, 4, 'CS')
    a('s_lshl_b32 s3, s3, 9')
    a('v_add_u32 v5, s3, v5')
    a('s_waitcnt lgkmcnt(0)')
    for st in (16, 8, 4, 2, 1):
        for i in range(st):
            a(f'v_add_f32 v{8+i}, v{8+i}, v{8+i+st}')
    a('global_store_dword v5, v8, s[8:9]')
    a('s_branch K1_end')

    a.label('K1_kgen')
    a(f"""
    s_load_dwordx4 s[8:11], s[0:1], {KA['Are']}
    s_load_dwordx4 s[12:15], s[0:1], {KA['Bre']}
    s_load_dwordx4 s[16:19], s[0:1], {KA['Cre']}
    s_load_dwordx2 s[20:21], s[0:1], {KA['ldt']}
    s_load_dwordx2 s[6:7], s[0:1], {KA['x']}
    s_lshl_b32 s3, s2, 1             ; d0
    v_lshrrev_b32 v1, 8, v0
    v_add_u32 v1, s3, v1             ; d
    v_lshrrev_b32 v2, 6, v0          ; wave
    v_and_b32 v3, 31, v0
    v_lshl_add_u32 v3, v2, 5, v3     ; (ch*128 + n)
    s_lshl_b32 s26, s3, 8
    v_lshlrev_b32 v14, 4, v3
    v_lshl_add_u32 v3, v3, 1, s26    ; d*256 + n*2
    v_lshlrev_b32 v4, 1, v1
    v_and_b32 v5, 15, v0             ; idx
    v_bfe_u32 v6, v0, 4, 2           ; nn
    s_lshl_b32 s26, s2, 13
    v_lshl_add_u32 v92, v0, 4, s26   ; (8wg + wave)*1024 + lane*16
    s_waitcnt lgkmcnt(0)
    global_load_ushort v7, v4, s[20:21]
    global_load_ushort v8, v3, s[8:9]
    global_load_ushort v9, v3, s[10:11]
    global_load_ushort v10, v3, s[12:13]
    global_load_ushort v11, v3, s[14:15]
    global_load_ushort v12, v3, s[16:17]
    global_load_ushort v13, v3, s[18:19]
    global_load_dwordx4 v[76:79], v92, s[6:7]
    """)
    ws_ptr(22, 4, 'KH'); ws_ptr(24, 4, 'KL')
    if PREFETCH:
        a(f"""
        s_load_dwordx4 s[28:31], s[0:1], {KA['w1']}
        s_load_dwordx4 s[32:35], s[0:1], {KA['w3']}
        s_mov_b32 s36, s2
        s_mul_i32 s37, s36, 7168
        v_min_u32 v44, 447, v0
        v_lshl_add_u32 v44, v44, 4, s37
        s_lshl_b32 s37, s36, 11
        v_and_b32 v45, 127, v0
        v_lshl_add_u32 v45, v45, 4, s37
        s_waitcnt lgkmcnt(0)
        global_load_dwordx4 v[72:75], v44, s[34:35]
        global_load_dwordx4 v[72:75], v44, s[32:33]
        global_load_dwordx4 v[72:75], v45, s[30:31]
        global_load_dwordx4 v[72:75], v45, s[28:29]
        """)
    code_prefetch('k2_kernel', 'k4_kernel', 44, 72, 36)
    a("""
    v_lshrrev_b32 v40, 3, v5
    v_lshlrev_b32 v40, 7, v40
    v_and_or_b32 v32, v5, 7, v40
    v_bfe_u32 v40, v5, 2, 1
    v_lshlrev_b32 v40, 7, v40
    v_and_b32 v41, 3, v5
    v_lshl_add_u32 v40, v41, 1, v40
    v_add_u32 v40, 256, v40
    v_bfe_u32 v41, v5, 1, 2
    v_lshlrev_b32 v41, 7, v41
    v_and_b32 v33, 1, v5
    v_lshl_add_u32 v41, v33, 2, v41
    v_add_u32 v41, 512, v41
    v_cmp_gt_u32 vcc, 8, v5
    v_lshlrev_b32 v34, 7, v5
    v_add_u32 v34, 1024, v34
    v_cndmask_b32 v33, v41, v40, vcc
    v_lshlrev_b32 v35, 3, v5
    v_cvt_f32_u32 v32, v32
    v_cvt_f32_u32 v33, v33
    v_cvt_f32_u32 v34, v34
    v_cvt_f32_u32 v35, v35
    v_mul_u32_u24 v42, 3072, v2
    v_add_u32 v42, 4096, v42
    v_lshrrev_b32 v40, 1, v6
    v_lshlrev_b32 v40, 7, v40
    v_and_b32 v41, 1, v6
    v_lshl_add_u32 v40, v41, 2, v40
    v_lshl_add_u32 v40, v5, 3, v40
    v_lshl_add_u32 v36, v40, 2, v42
    v_lshlrev_b32 v40, 6, v6
    v_add_u32 v40, 256, v40
    v_lshl_add_u32 v41, v5, 2, v40
    v_lshl_add_u32 v40, v5, 1, v40
    v_cmp_gt_u32 vcc, 2, v6
    v_mov_b32 v43, 32
    s_nop 0
    v_cndmask_b32 v40, v40, v41, vcc
    v_cndmask_b32 v43, v43, 2, vcc
    v_lshl_add_u32 v37, v40, 2, v42
    v_lshl_add_u32 v38, v43, 2, v37
    v_lshlrev_b32 v40, 6, v6
    v_add_u32 v40, v40, v5
    v_add_u32 v40, 512, v40
    v_lshl_add_u32 v39, v40, 2, v42
    v_lshlrev_b32 v15, 9, v2
    v_lshl_add_u32 v15, v6, 4, v15
    """)
    stamp(SW, 1)
    a(f's_waitcnt vmcnt({5 + CODEPF})')
    a(f"""
    v_lshlrev_b32 v7, 16, v7
    v_mul_f32 v40, {hx(LOG2E_HI)}, v7
    s_mov_b32 s26, {hx(LOG2E_HI)}
    v_fma_f32 v41, v7, s26, -v40
    v_mov_b32 v43, {hx(LOG2E_LO)}
    v_fmac_f32 v41, v7, v43
    v_exp_f32 v40, v40
    v_mul_f32 v41, {hx(LN2)}, v41
    v_lshlrev_b32 v8, 16, v8
    v_fmac_f32 v40, v40, v41
    v_cvt_pk_bf16_f32 v40, v40, v40
    v_lshlrev_b32 v7, 16, v40         ; dt
    v_lshlrev_b32 v9, 16, v9
    v_lshlrev_b32 v10, 16, v10
    v_lshlrev_b32 v11, 16, v11
    v_lshlrev_b32 v12, 16, v12
    v_lshlrev_b32 v13, 16, v13
    v_mul_f32 v16, v7, v8
    v_mul_f32 v17, v7, v9
    v_mul_f32 v16, {hx(LOG2E)}, v16
    v_mul_f32 v17, {hx(INV2PI)}, v17
    v_mul_f32 v10, v7, v10
    v_mul_f32 v11, v7, v11
    v_mul_f32 v18, v12, v10
    v_mul_f32 v19, v12, v11
    v_fma_f32 v18, -v13, v11, v18
    v_fmac_f32 v19, v13, v10
    ds_write_b128 v14, v[16:19]
    """)
    def ln_block():
        LB = 32768
        F = 80
        ws_ptr(28, 4, 'UT'); ws_ptr(30, 4, 'XT')
        a(f"""
        v_and_b32 v95, 63, v0
        v_mul_u32_u24 v28, 1056, v2
        v_lshl_add_u32 v28, v95, 4, v28
        ds_write_b128 v28, v[76:79] offset:{LB+8448}
        """)
        for i in range(4):
            unpack(F+2*i, F+2*i+1, 76+i)
        def wave_allreduce(v, t):
            row16_allreduce(v)
            a(f'v_mov_b32 v{t}, v{v}')
            a('s_nop 1')
            a(f'v_permlane16_swap_b32 v{v}, v{t}')
            a('s_nop 1')
            a(f'v_add_f32 v{v}, v{v}, v{t}')
            a(f'v_mov_b32 v{t}, v{v}')
            a('s_nop 1')
            a(f'v_permlane32_swap_b32 v{v}, v{t}')
            a('s_nop 1')
            a(f'v_add_f32 v{v}, v{v}, v{t}')
        a(f"""
        v_pk_add_f32 v[88:89], v[{F}:{F+1}], v[{F+2}:{F+3}]
        v_pk_add_f32 v[90:91], v[{F+4}:{F+5}], v[{F+6}:{F+7}]
        v_pk_add_f32 v[88:89], v[88:89], v[90:91]
        v_add_f32 v88, v88, v89
        """)
        wave_allreduce(88, 89)
        a(f'v_mul_f32 v88, {hx(1/512)}, v88')
        a('v_mov_b32 v90, 0')
        a('v_mov_b32 v91, 0')
        for i in range(4):
            a(f'v_pk_add_f32 v[92:93], v[{F+2*i}:{F+2*i+1}], v[88:89] op_sel_hi:[1,0] neg_lo:[0,1] neg_hi:[0,1]')
            a('v_pk_fma_f32 v[90:91], v[92:93], v[92:93], v[90:91]')
        a('v_add_f32 v90, v90, v91')
        wave_allreduce(90, 91)
        a(f'v_mul_f32 v90, {hx(1/512)}, v90')
        ln_scalars(88, 90, 92)
        for i in range(4):
            f0 = F+2*i
            a(f'v_pk_add_f32 v[{f0}:{f0+1}], v[{f0}:{f0+1}], v[88:89] op_sel_hi:[1,0] neg_lo:[0,1] neg_hi:[0,1]')
            a(f'v_cvt_pk_bf16_f32 v92, v{f0}, v{f0+1}')
            unpack(f0, f0+1, 92)
            a(f'v_pk_mul_f32 v[{f0}:{f0+1}], v[{f0}:{f0+1}], v[90:91] op_sel_hi:[1,0]')
            a(f'v_cvt_pk_bf16_f32 v{76+i}, v{f0}, v{f0+1}')
            if F16:
                unpack(f0, f0+1, 76+i)
                a(f'v_cvt_pk_f16_f32 v{76+i}, v{f0}, v{f0+1}')
        a(f"""
        ds_write_b128 v28, v[76:79] offset:{LB}
        v_bfe_u32 v28, v0, 2, 2
        v_mul_u32_u24 v28, 1056, v28
        v_lshrrev_b32 v29, 4, v0
        v_lshlrev_b32 v29, 5, v29
        v_and_b32 v95, 3, v0
        v_lshlrev_b32 v95, 3, v95
        v_add3_u32 v28, v28, v29, v95
        v_lshrrev_b32 v94, 1, v0
        v_lshlrev_b32 v94, 13, v94
        v_and_b32 v95, 1, v0
        v_lshl_add_u32 v94, v95, 4, v94
        s_lshl_b32 s26, s2, 5
        v_add_u32 v94, s26, v94
        s_waitcnt lgkmcnt(0)
        s_barrier
        ds_read_b64_tr_b16 v[76:77], v28 offset:{LB}
        ds_read_b64_tr_b16 v[78:79], v28 offset:{LB+4224}
        ds_read_b64_tr_b16 v[80:81], v28 offset:{LB+8448}
        ds_read_b64_tr_b16 v[82:83], v28 offset:{LB+8448+4224}
        s_waitcnt lgkmcnt(2)
        global_store_dwordx4 v94, v[76:79], s[28:29]{USC}
        s_waitcnt lgkmcnt(0)
        global_store_dwordx4 v94, v[80:83], s[30:31]{USC}
        """)
    ACC = 60
    for i in range(12):
        a(f'v_mov_b32 v{ACC+i}, 0')
    a('s_waitcnt lgkmcnt(0)')
    a('ds_read_b128 v[16:19], v15')
    a('ds_read_b128 v[24:27], v15 offset:64')
    a('s_mov_b32 s27, 0')
    def split(H, L, R, t):
        a(f'v_cvt_pk_bf16_f32 v{H}, v{R}, v{R+1}')
        a(f'v_lshlrev_b32 v{t}, 16, v{H}')
        a(f'v_and_b32 v{t+1}, 0xffff0000, v{H}')
        a(f'v_pk_add_f32 v[{t}:{t+1}], v[{R}:{R+1}], v[{t}:{t+1}] neg_lo:[0,1] neg_hi:[0,1]')
        a(f'v_cvt_pk_bf16_f32 v{L}, v{t}, v{t+1}')
    for it in range(2):
        for u in range(4):
            P = 16 + 8*(u & 1)
            a(f's_waitcnt lgkmcnt({1})')
            a(f"""
            v_pk_mul_f32 v[44:45], v[{P}:{P+1}], v[34:35] op_sel:[0,1] op_sel_hi:[1,1]
            v_pk_mul_f32 v[46:47], v[{P}:{P+1}], v[32:33] op_sel:[0,0] op_sel_hi:[1,0]
            v_pk_mul_f32 v[48:49], v[{P}:{P+1}], v[32:33] op_sel:[0,1] op_sel_hi:[1,1]
            v_pk_mul_f32 v[50:51], v[{P}:{P+1}], v[34:35] op_sel:[0,0] op_sel_hi:[1,0]
            v_fract_f32 v45, v45
            v_fract_f32 v47, v47
            v_fract_f32 v49, v49
            v_fract_f32 v51, v51
            v_exp_f32 v44, v44
            v_cos_f32 v52, v45
            v_sin_f32 v53, v45
            v_exp_f32 v46, v46
            v_cos_f32 v54, v47
            v_sin_f32 v55, v47
            v_pk_mul_f32 v[52:53], v[52:53], v[44:45] op_sel_hi:[1,0]
            v_exp_f32 v48, v48
            v_cos_f32 v56, v49
            v_sin_f32 v57, v49
            v_pk_mul_f32 v[54:55], v[54:55], v[46:47] op_sel_hi:[1,0]
            v_pk_mul_f32 v[20:21], v[{P+2}:{P+3}], v[52:53] op_sel:[0,0] op_sel_hi:[0,1] neg_hi:[1,0]
            v_exp_f32 v50, v50
            v_cos_f32 v58, v51
            v_sin_f32 v59, v51
            v_pk_fma_f32 v[20:21], v[{P+2}:{P+3}], v[52:53], v[20:21] op_sel:[1,1,0] op_sel_hi:[1,0,1] neg_lo:[1,0,0] neg_hi:[1,0,0]
            v_pk_mul_f32 v[56:57], v[56:57], v[48:49] op_sel_hi:[1,0]
            v_pk_mul_f32 v[58:59], v[58:59], v[50:51] op_sel_hi:[1,0]
            ds_read_b128 v[{P}:{P+3}], v15 offset:{128+64*u}
            """)
            split(96+u, 100+u, 54, 44)
            split(120+u, 124+u, 20, 46)
            split(104+u, 108+u, 56, 48)
            split(112+u, 116+u, 58, 50)
        a('s_nop 1')
        a('v_add_u32 v15, 256, v15')
        for t in range(3):
            a(f'v_mfma_f32_16x16x32_bf16 v[{60+4*t}:{63+4*t}], v[{96+8*t}:{99+8*t}], v[120:123], v[{60+4*t}:{63+4*t}]')
        for t in range(3):
            a(f'v_mfma_f32_16x16x32_bf16 v[{60+4*t}:{63+4*t}], v[{96+8*t}:{99+8*t}], v[124:127], v[{60+4*t}:{63+4*t}]')
        for t in range(3):
            a(f'v_mfma_f32_16x16x32_bf16 v[{60+4*t}:{63+4*t}], v[{100+8*t}:{103+8*t}], v[120:123], v[{60+4*t}:{63+4*t}]')
        if it == 0:
            a(f's_waitcnt vmcnt({4 + CODEPF})')
            a('s_waitcnt lgkmcnt(0)')
            ln_block()
    a('s_waitcnt lgkmcnt(0)')
    a(f"""
    v_and_b32 v8, 63, v0
    v_bfe_u32 v9, v0, 6, 2
    v_lshlrev_b32 v8, 5, v8
    v_lshl_add_u32 v8, v9, 3, v8      ; s0 = 32a+8q
    v_cmp_gt_u32 vcc, 256, v8
    v_cvt_f32_u32 v9, v8
    v_lshrrev_b32 v11, 8, v0
    v_mul_u32_u24 v11, 12288, v11
    v_add_u32 v11, 4096, v11
    v_lshl_add_u32 v10, v8, 2, v11
    v_subrev_u32 v11, {4*(0x4380-256)}, v11
    """)
    for p in range(4):
        a(f'v_add_f32 v12, {hx(7.0-2*p)}, v9')
        a(f'v_add_f32 v13, {hx(6.0-2*p)}, v9')
        a('v_cvt_pk_bf16_f32 v12, v12, v13')
        a('v_lshrrev_b32 v13, 16, v12')
        a('v_and_b32 v12, 0xffff, v12')
        a('v_lshl_add_u32 v12, v12, 2, v11')
        a('v_lshl_add_u32 v13, v13, 2, v11')
        a(f'v_add_u32 v14, {4*(7-2*p)}, v10')
        a(f'v_add_u32 v16, {4*(6-2*p)}, v10')
        a(f'v_cndmask_b32 v{24+2*p}, v12, v14, vcc')
        a(f'v_cndmask_b32 v{25+2*p}, v13, v16, vcc')
    if F16:
        a("""
        v_max3_f32 v14, |v60|, |v61|, |v62|
        v_max3_f32 v16, |v63|, |v64|, |v65|
        v_max3_f32 v17, |v66|, |v67|, |v68|
        v_max3_f32 v18, |v69|, |v70|, |v71|
        v_max3_f32 v14, v14, v16, v17
        v_max_f32 v14, v14, v18
        """)
        for sh in (8, 4, 2, 1):
            a('s_nop 1')
            a(f'v_max_f32_dpp v14, v14, v14 row_ror:{sh} row_mask:0xf bank_mask:0xf')
        a("""
        v_mov_b32 v16, v14
        s_nop 1
        v_permlane16_swap_b32 v14, v16
        s_nop 1
        v_max_f32 v14, v14, v16
        v_mov_b32 v16, v14
        s_nop 1
        v_permlane32_swap_b32 v14, v16
        s_nop 1
        v_max_f32 v14, v14, v16
        v_lshlrev_b32 v16, 2, v2
        ds_write_b32 v16, v14 offset:28672
        """)
    for rr in range(4):
        a(f'ds_write_b32 v36, v{60+rr} offset:{4*rr}')
    for rr in range(4):
        a(f'ds_write_b32 v{37+(rr>>1)}, v{64+rr} offset:{4*(rr&1)}')
    for rr in range(4):
        a(f'ds_write_b32 v39, v{68+rr} offset:{64*rr}')
    a("""
    s_lshl_b32 s26, s3, 12
    v_lshl_add_u32 v12, v0, 4, s26    ; d0*4096 + tid*16
    s_waitcnt lgkmcnt(0)
    s_barrier
    """)
    if F16:
        a('v_lshrrev_b32 v15, 8, v0')
        a('v_lshlrev_b32 v15, 4, v15')
        a('ds_read_b128 v[16:19], v15 offset:28672')
    for kk in range(8):
        for w in range(4):
            a(f'ds_read_b32 v{32+4*kk+w}, v{24+kk} offset:{3072*w}')
    a('s_waitcnt lgkmcnt(0)')
    for kk in range(8):
        b = 32+4*kk
        a(f'v_add_f32 v{b}, v{b}, v{b+1}')
        a(f'v_add_f32 v{b+2}, v{b+2}, v{b+3}')
    for kk in range(8):
        b = 32+4*kk
        a(f'v_add_f32 v{b}, v{b}, v{b+2}')
    if F16:
        a("""
        v_add_f32 v14, v16, v17
        v_add_f32 v15, v18, v19
        v_add_f32 v14, v14, v15
        v_lshrrev_b32 v14, 23, v14
        v_max_u32 v14, 15, v14
        v_sub_u32 v15, 268, v14
        v_lshlrev_b32 v15, 23, v15         ; scale
        v_subrev_u32 v14, 14, v14
        v_lshlrev_b32 v14, 23, v14
        """)
        for kk in range(8):
            a(f'v_mul_f32 v{32+4*kk}, v{32+4*kk}, v15')
        for p in range(4):
            a(f'v_cvt_pk_f16_f32 v{64+p}, v{32+8*p}, v{36+8*p}')
        a(f'global_store_dwordx4 v12, v[64:67], s[22:23]{SC2}')
        ws_ptr(24, 4, 'SCL')
        a("""
        v_and_b32 v16, 255, v0
        v_cmp_eq_u32 vcc, 0, v16
        v_lshlrev_b32 v16, 2, v1
        s_and_saveexec_b64 s[26:27], vcc
        s_cbranch_execz K1_nosc
        global_store_dword v16, v14, s[24:25]
        """)
        a.label('K1_nosc')
        a('s_mov_b64 exec, s[26:27]')
    else:
        for p in range(4):
            k0, k1 = 32+8*p, 36+8*p
            a(f'v_cvt_pk_bf16_f32 v{64+p}, v{k0}, v{k1}')
            unpack(14, 15, 64+p)
            a(f'v_sub_f32 v{k0}, v{k0}, v14')
            a(f'v_sub_f32 v{k1}, v{k1}, v15')
            a(f'v_cvt_pk_bf16_f32 v{68+p}, v{k0}, v{k1}')
        a('global_store_dwordx4 v12, v[64:67], s[22:23]')
        a('global_store_dwordx4 v12, v[68:71], s[24:25]')
    a.label('K1_end')
    trace_end(0)
    a.label('K1_exit')
    a.end_kernel(name, (274,1,1), (512,1,1), 51200, 128)

def gen_k2():
    global SV
    SV = 128
    name = 'k2_kernel'
    CHB = 45568; KOFF = 33280; RED = 2 * CHB
    a.begin_kernel(name)
    a(f"""
    s_cmp_ge_u32 s2, 256
    s_cbranch_scc1 K2_exit
    s_load_dwordx2 s[4:5], s[0:1], {KA['ws']}
    s_load_dwordx2 s[6:7], s[0:1], {KA['Dsk']}
    s_load_dwordx4 s[40:43], s[0:1], {KA['w1']}
    s_load_dwordx2 s[44:45], s[0:1], {KA['w3']}
    """)
    trace_begin()
    a(f"""
    v_lshrrev_b32 v1, 6, v0            ; wave
    v_and_b32 v2, 63, v0               ; lane
    v_readfirstlane_b32 s30, v1
    s_and_b32 s3, s30, 3
    s_lshl_b32 s16, s2, 1              ; d0
    s_lshr_b32 s17, s3, 1              ; ch
    s_and_b32 s18, s3, 1
    s_add_u32 s19, s16, s17
    s_mul_i32 s20, s17, {CHB}
    s_lshl_b32 s26, s2, 13
    v_lshrrev_b32 v57, 1, v0           ; tau
    v_and_b32 v56, 1, v0               ; ch
    v_lshl_add_u32 v4, v0, 4, s26
    v_mul_u32_u24 v58, {CHB}, v56
    v_cmp_eq_u32 s[58:59], 0, v57
    v_subrev_u32 v5, 32, v4
    v_lshl_add_u32 v120, v57, 4, v58
    v_cndmask_b32 v5, v5, v4, s[58:59]
    v_add_u32 v120, 64, v120
    s_waitcnt lgkmcnt(0)
    """)
    ws_ptr(8, 4, 'UT')
    a("""
    global_load_dwordx4 v[8:11], v5, s[8:9]
    global_load_dwordx4 v[12:15], v4, s[8:9]
    s_cmp_ge_u32 s30, 4
    s_cbranch_scc1 K2_helper
    """)
    ws_ptr(10, 4, 'XT'); ws_ptr(22, 4, 'HT'); ws_ptr(32, 4, 'SCL')
    a(f"""
    v_and_b32 v6, 31, v2
    v_lshrrev_b32 v7, 5, v2
    v_lshlrev_b32 v40, 6, v6
    v_lshl_add_u32 v40, v7, 3, v40
    s_lshl_b32 s27, s18, 11
    v_add_u32 v122, s27, v40
    s_lshl_b32 s26, s18, 5
    v_add_u32 v121, s26, v6
    v_lshlrev_b32 v121, 7, v121
    v_lshl_add_u32 v121, v7, 3, v121
    s_lshl_b32 s26, s2, 13
    s_lshl_b32 s27, s17, 4
    s_add_u32 s26, s26, s27
    v_add_u32 v121, s26, v121
    global_load_dwordx2 v[112:113], v121, s[10:11]
    global_load_dwordx2 v[114:115], v121, s[10:11] offset:32
    global_load_dwordx2 v[116:117], v121, s[10:11] offset:64
    global_load_dwordx2 v[118:119], v121, s[10:11] offset:96
    s_lshl_b32 s26, s19, 1
    v_mov_b32 v42, s26
    global_load_ushort v125, v42, s[6:7]
    v_lshlrev_b32 v42, 1, v42
    global_load_dword v110, v42, s[32:33]
    v_and_b32 v45, 7, v6
    v_mul_u32_u24 v45, 4160, v45
    v_lshrrev_b32 v46, 3, v6
    v_lshl_add_u32 v45, v46, 4, v45
    v_lshlrev_b32 v46, 4, v7
    v_sub_u32 v45, v45, v46
    v_add_u32 v45, 32, v45
    v_add_u32 v126, s20, v45           ; vA'
    v_mul_u32_u24 v46, 1536, v7
    v_lshl_add_u32 v46, v6, 4, v46
    v_add_u32 v46, {KOFF + 512 - 16*63}, v46
    v_add_u32 v127, s20, v46           ; vB
    s_branch K2_copies
    """)
    a.label('K2_helper')
    ws_ptr(12, 4, 'KH')
    a(f"""
    s_mov_b32 s14, {4*MB}
    s_mov_b32 s15, 0x00020000
    """)
    if F16:
        a(f"""
        s_lshl_b32 s24, s18, 11
        s_lshl_b32 s25, s19, 12
        s_add_u32 s24, s24, s25
        s_mul_i32 s25, s18, 3072
        s_add_u32 s25, s25, s20
        s_add_u32 s25, s25, {KOFF+512}
        v_lshlrev_b32 v3, 4, v2
        """)
    else:
        a(f"""
        s_lshl_b32 s24, s18, 21
        s_lshl_b32 s25, s19, 12
        s_add_u32 s24, s24, s25
        s_mul_i32 s25, s18, 6144
        s_add_u32 s25, s25, s20
        s_add_u32 s25, s25, {KOFF+512}
        v_lshlrev_b32 v3, 4, v2
        """)
    nq = 2 if F16 else 4
    for q in range(nq):
        a('s_mov_b32 m0, s25')
        a('s_nop 0')
        a('buffer_load_dwordx4 v3, s[12:15], s24 offen lds')
        if q < nq-1:
            a('s_add_u32 s24, s24, 1024')
            a('s_add_u32 s25, s25, 1536')
    a(f"""
    v_mov_b32 v48, 0
    v_mov_b32 v49, 0
    v_mov_b32 v50, 0
    v_mov_b32 v51, 0
    v_bfe_u32 v45, v0, 5, 3
    v_mul_u32_u24 v45, 1536, v45
    v_and_b32 v46, 31, v0
    v_lshl_add_u32 v45, v46, 4, v45
    ds_write_b128 v45, v[48:51] offset:{KOFF}
    v_add_u32 v45, {CHB}, v45
    ds_write_b128 v45, v[48:51] offset:{KOFF}
    v_bfe_u32 v45, v0, 2, 3
    v_mul_u32_u24 v45, 4160, v45
    v_and_b32 v46, 3, v0
    v_lshl_add_u32 v45, v46, 4, v45
    ds_write_b128 v45, v[48:51]
    ds_write_b128 v45, v[48:51] offset:{CHB}
    """)
    a.label('K2_copies')
    E = 8
    a('s_waitcnt vmcnt(2)' if F16 else 's_waitcnt vmcnt(4)')
    for i in range(4):
        a(f'v_cndmask_b32 v{E+i}, v{E+i}, 0, s[58:59]')
    for i in range(7):
        a(f'v_alignbit_b32 v{52+i}, v{E+i+1}, v{E+i}, 16')
    for i in range(6):
        a(f'v_alignbit_b32 v{60+i}, v{E+i+2}, v{E+i+1}, 16')
    for i in range(6):
        a(f'v_mov_b32 v{66+i}, v{E+i+1}')
    src = {7: E+4, 5: 68, 3: E+2, 1: 66, 0: 52, 2: 60, 4: 54, 6: 62}
    for c in range(8):
        r = src[c]
        a(f'ds_write_b128 v120, v[{r}:{r+3}] offset:{4160*c}')
    ACC = [72, 88]
    for i in range(32):
        a(f'v_mov_b32 v{72+i}, 0')
    a('s_waitcnt vmcnt(0) lgkmcnt(0)')
    a('s_barrier')
    a('s_cmp_lt_u32 s30, 4')
    a('s_cbranch_scc1 K2_main')
    code_prefetch('k4_kernel', 'k6_kernel', 60, 64, 28)
    a('v_and_b32 v0, 255, v0')
    ws_ptr(46, 4, 'W3P')
    a(f"""
    v_min_u32 v60, 223, v0
    v_mul_u32_u24 v61, 4682, v60
    v_lshrrev_b32 v61, 16, v61         ; ntile
    v_mul_u32_u24 v62, 14, v61
    v_sub_u32 v62, v60, v62            ; ch
    s_mul_i32 s28, s2, 7168
    v_lshl_add_u32 v60, v60, 4, s28
    global_load_dwordx4 v[64:67], v60, s[44:45]
    global_load_dwordx4 v[68:71], v60, s[44:45] offset:3584
    s_lshl_b32 s28, s2, 1              ; k
    s_and_b32 s29, s28, 0x1f3
    s_bfe_u32 s31, s28, 0x10002
    s_lshl_b32 s31, s31, 3
    s_or_b32 s29, s29, s31
    s_bfe_u32 s31, s28, 0x10003
    s_lshl_b32 s31, s31, 2
    s_or_b32 s29, s29, s31
    s_mul_i32 s29, s29, 224
    v_mul_u32_u24 v61, 114688, v61
    v_lshl_add_u32 v61, v62, 4, v61
    v_add_u32 v61, s29, v61
    """)
    if not NOPF2:
        l2_prefetch(40, 512*1024, 63, 72, 28)
        l2_prefetch(42, 512*1024, 63, 72, 28)
        a('s_waitcnt vmcnt(8)')
    else:
        a('s_waitcnt vmcnt(0)')
    a(f'global_store_dwordx4 v61, v[64:67], s[46:47]{SC2}')
    a(f'global_store_dwordx4 v61, v[68:71], s[46:47] offset:224{SC2}')
    a('s_endpgm')
    a.label('K2_main')
    a('s_cmp_eq_u32 s18, 1')
    a('s_cbranch_scc1 K2_roleB')
    def emit_units(units):
        def loads(u, setb):
            out = []; regs = []
            r = 8 + 24*setb if True else 0
            n = 0
            for (d, sl, tiles) in u:
                ra = r + 4*n; n += 1
                out.append(f'ds_read_b128 v[{ra}:{ra+3}], v126 offset:{64*d + 32*(1-sl)}')
                bs = []
                for T in tiles:
                    for arr in range(1 if F16 else 2):
                        rb = r + 4*n; n += 1
                        out.append(f'ds_read_b128 v[{rb}:{rb+3}], v127 offset:{sl*3072 + T*512 + 16*(63-d) + arr*6144}')
                        bs.append((T, rb))
                regs.append((ra, bs))
            assert n <= 6
            return out, regs
        cur_l, cur_r = loads(units[0], 0)
        for l in cur_l: a(l)
        for i, u in enumerate(units):
            if i + 1 < len(units):
                nl, nr = loads(units[i+1], (i+1) & 1)
                for l in nl: a(l)
                a(f's_waitcnt lgkmcnt({len(nl)})')
            else:
                a('s_waitcnt lgkmcnt(0)')
            for (ra, bs) in cur_r:
                for (T, rb) in bs:
                    c = ACC[T]
                    a(f'v_mfma_f32_32x32x16_{"f16" if F16 else "bf16"} v[{c}:{c+15}], v[{ra}:{ra+3}], v[{rb}:{rb+3}], v[{c}:{c+15}]')
            if i + 1 < len(units):
                cur_r = nr
    if F16:
        emit_units([[(d, 0, (0, 1)), (d, 1, (0, 1))] for d in range(24)])
    else:
        emit_units([[(d, sl, (0, 1))] for d in range(24) for sl in range(2)])
    a('s_nop 15')
    a('s_nop 3')
    a(f'v_lshlrev_b32 v123, 4, v0')
    a(f'v_add_u32 v123, {RED}, v123')
    for r4 in range(4):
        a(f'ds_write_b128 v123, v[{88+4*r4}:{91+4*r4}] offset:{4096*r4}')
    a('s_waitcnt lgkmcnt(0)')
    a('s_barrier')
    for r4 in range(4):
        a(f'ds_read_b128 v[{8+4*r4}:{11+4*r4}], v123 offset:{4096*r4 + 1024}')
    a('s_branch K2_fin')
    a.label('K2_roleB')
    if F16:
        emit_units([[(d, 0, (0, 1)), (d, 1, (0, 1))] for d in range(24, 32)] +
                   [[(d, 0, (1,)), (d, 1, (1,)), (d+1, 0, (1,))] if False else [(d, 0, (1,)), (d, 1, (1,))] for d in range(32, 64)])
    else:
        emit_units([[(d, sl, (0, 1))] for d in range(24, 32) for sl in range(2)] +
                   [[(d, 0, (1,)), (d, 1, (1,))] for d in range(32, 64)])
    a('s_nop 15')
    a('s_nop 3')
    a(f'v_lshlrev_b32 v123, 4, v0')
    a(f'v_add_u32 v123, {RED}, v123')
    for r4 in range(4):
        a(f'ds_write_b128 v123, v[{72+4*r4}:{75+4*r4}] offset:{4096*r4}')
    a('s_waitcnt lgkmcnt(0)')
    a('s_barrier')
    a('v_subrev_u32 v123, 1024, v123')
    for r4 in range(4):
        a(f'ds_read_b128 v[{8+4*r4}:{11+4*r4}], v123 offset:{4096*r4}')
    for i in range(16):
        a(f'v_mov_b32 v{72+i}, v{88+i}')
    a.label('K2_fin')
    a(f'v_add_u32 v122, s20, v122')
    for rq in range(4):
        a(f'ds_read_b64 v[{24+2*rq}:{25+2*rq}], v122 offset:{7*4160 + 64 + 16*rq}')
    a('v_lshlrev_b32 v124, 16, v125')
    a('s_waitcnt lgkmcnt(0)')
    for i in range(8):
        a(f'v_pk_add_f32 v[{72+2*i}:{73+2*i}], v[{72+2*i}:{73+2*i}], v[{8+2*i}:{9+2*i}]')
    if F16:
        for i in range(8):
            a(f'v_pk_mul_f32 v[{72+2*i}:{73+2*i}], v[{72+2*i}:{73+2*i}], v[110:111] op_sel_hi:[1,0]')
    for i in range(8):
        y = 72 + 2*i
        a(f'v_cvt_pk_bf16_f32 v32, v{y}, v{y+1}')
        unpack(y, y+1, 32)
        if F16:
            a(f'v_cvt_f32_f16 v34, v{24+i}')
            a(f'v_cvt_f32_f16_sdwa v35, v{24+i} dst_sel:DWORD dst_unused:UNUSED_PAD src0_sel:WORD_1')
        else:
            unpack(34, 35, 24+i)
        a('v_pk_mul_f32 v[34:35], v[34:35], v[124:125] op_sel_hi:[1,0]')
        a('v_cvt_pk_bf16_f32 v33, v34, v35')
        unpack(34, 35, 33)
        a(f'v_pk_add_f32 v[{y}:{y+1}], v[{y}:{y+1}], v[34:35]')
        a(f'v_cvt_pk_bf16_f32 v32, v{y}, v{y+1}')
        unpack(y, y+1, 32)
        unpack(34, 35, 112+i)
        a(f'v_pk_add_f32 v[{y}:{y+1}], v[{y}:{y+1}], v[34:35]')
        a(f'v_cvt_pk_bf16_f32 v{104+i}, v{y}, v{y+1}')
    a(f"""
    s_lshl_b32 s26, s3, 11
    s_add_u32 s26, s26, {RED + 16384}
    v_lshlrev_b32 v120, 6, v6
    v_lshl_add_u32 v120, v7, 3, v120
    v_add_u32 v120, s26, v120
    v_lshl_add_u32 v123, v2, 4, s26
    s_lshl_b32 s26, s19, 12
    s_lshl_b32 s27, s18, 11
    s_add_u32 s26, s26, s27
    v_lshl_add_u32 v121, v2, 4, s26
    """)
    for rq in range(4):
        a(f'ds_write_b64 v120, v[{104+2*rq}:{105+2*rq}] offset:{16*rq}')
    a('s_waitcnt lgkmcnt(0)')
    a('ds_read_b128 v[8:11], v123')
    a('ds_read_b128 v[12:15], v123 offset:1024')
    a('s_waitcnt lgkmcnt(0)')
    a(f'global_store_dwordx4 v121, v[8:11], s[22:23]{SC2}')
    a(f'global_store_dwordx4 v121, v[12:15], s[22:23] offset:1024{SC2}')
    trace_end(1)
    a.label('K2_exit')
    a.end_kernel(name, (256,1,1), (512,1,1), RED + 16384 + 8192, 128+8)

GC1 = 2 * 0.7978845608028654 * LOG2E
GC2 = GC1 * 0.044715

def dma_lane_off(dst, lane, rs_sgpr_or_imm, t1, t2):
    a(f'v_lshrrev_b32 v{t1}, 5, v{lane}')
    a(f'v_lshlrev_b32 v{t1}, 3, v{t1}')
    a(f'v_bfe_u32 v{t2}, v{lane}, 3, 2')
    a(f'v_add_u32 v{t1}, v{t1}, v{t2}')
    a(f'v_mul_u32_u24 v{dst}, {rs_sgpr_or_imm}, v{t1}')
    a(f'v_bfe_u32 v{t1}, v{lane}, 1, 2')
    a(f'v_bfe_u32 v{t2}, v{lane}, 4, 2')
    a(f'v_xor_b32 v{t1}, v{t1}, v{t2}')
    a(f'v_lshl_add_u32 v{dst}, v{t1}, 5, v{dst}')
    a(f'v_and_b32 v{t1}, 1, v{lane}')
    a(f'v_lshl_add_u32 v{dst}, v{t1}, 4, v{dst}')

def tr_lane_base(dst, fdst, lane, t1, t2):
    a(f'v_lshrrev_b32 v{t1}, 5, v{lane}')
    a(f'v_lshlrev_b32 v{t1}, 4, v{t1}')
    a(f'v_bfe_u32 v{t2}, v{lane}, 2, 3')
    a(f'v_add_u32 v{t1}, v{t1}, v{t2}')
    a(f'v_lshlrev_b32 v{dst}, 7, v{t1}')
    a(f'v_and_b32 v{t1}, 3, v{lane}')
    a(f'v_lshl_add_u32 v{dst}, v{t1}, 3, v{dst}')
    a(f'v_lshrrev_b32 v{fdst}, 1, v{t2}')

def gelu_pairs(zs, CK, T, G=4):
    for i0 in range(0, len(zs), G):
        grp = list(enumerate(zs[i0:i0+G]))
        for i, z in grp:
            a(f'v_pk_mul_f32 v[{T+2*i}:{T+2*i+1}], v[{z}:{z+1}], v[{z}:{z+1}]')
        for i, z in grp:
            t = T+2*i
            a(f'v_pk_fma_f32 v[{t}:{t+1}], v[{t}:{t+1}], v[{CK}:{CK+1}], v[{CK}:{CK+1}] op_sel:[0,1,0] op_sel_hi:[1,1,0]')
        for i, z in grp:
            t = T+2*i
            a(f'v_pk_mul_f32 v[{t}:{t+1}], v[{t}:{t+1}], v[{z}:{z+1}]')
        for i, z in grp:
            t = T+2*i
            a(f'v_exp_f32 v{t}, -v{t}')
            a(f'v_exp_f32 v{t+1}, -v{t+1}')
        if len(grp) < 2: a('s_nop 0')
        for i, z in grp:
            t = T+2*i
            a(f'v_pk_add_f32 v[{t}:{t+1}], v[{t}:{t+1}], v[{CK+2}:{CK+3}]')
        for i, z in grp:
            t = T+2*i
            a(f'v_rcp_f32 v{t}, v{t}')
            a(f'v_rcp_f32 v{t+1}, v{t+1}')
        if len(grp) < 2: a('s_nop 0')
        for i, z in grp:
            t = T+2*i
            a(f'v_pk_mul_f32 v[{z}:{z+1}], v[{z}:{z+1}], v[{t}:{t+1}]')

def affine_round(zs, css, AB, T, G=4):
    for i0 in range(0, len(zs), G):
        grp = list(enumerate(zip(zs[i0:i0+G], css[i0:i0+G])))
        for i, (z, cs) in grp:
            a(f'v_pk_mul_f32 v[{T+2*i}:{T+2*i+1}], v[{cs}:{cs+1}], v[{AB}:{AB+1}] op_sel:[0,1] op_sel_hi:[1,1]')
        for i, (z, cs) in grp:
            a(f'v_pk_fma_f32 v[{z}:{z+1}], v[{z}:{z+1}], v[{AB}:{AB+1}], v[{T+2*i}:{T+2*i+1}] op_sel_hi:[1,0,1] neg_lo:[0,0,1] neg_hi:[0,0,1]')
        for i, (z, cs) in grp:
            a(f'v_cvt_pk_bf16_f32 v{T+2*i}, v{z}, v{z+1}')
        for i, (z, cs) in grp:
            unpack(z, z+1, T+2*i)

def round_pair(z, t):
    a(f'v_cvt_pk_bf16_f32 v{t}, v{z}, v{z+1}')
    unpack(z, z+1, t)

def gemm64_main(X, WF, ACC, vW, nsteps=16, st0=0):
    def loads(st, sb):
        for cb in range(4):
            for h in range(2):
                r = WF + 16*sb + 4*cb + 2*h
                a(f'ds_read_b64_tr_b16 v[{r}:{r+1}], v{vW+cb} offset:{(st0+st)*4096 + h*1024}')
    loads(0, 0)
    for st in range(nsteps):
        if st + 1 < nsteps:
            loads(st+1, (st+1) & 1)
            a('s_waitcnt lgkmcnt(8)')
        else:
            a('s_waitcnt lgkmcnt(0)')
        for cb in range(4):
            w = WF + 16*(st & 1) + 4*cb
            c = ACC + 4*cb
            a(f'v_mfma_f32_16x16x32_bf16 v[{c}:{c+3}], v[{w}:{w+3}], v[{X+4*st}:{X+4*st+3}], v[{c}:{c+3}]')

def dma_tile(srd, vOff, sOff, sM0, step_bytes, n=16):
    for ii in range(n):
        a(f's_mov_b32 m0, s{sM0}')
        a(f's_add_u32 s{sM0}, s{sM0}, 4096')
        a(f'buffer_load_dwordx4 v{vOff}, s[{srd}:{srd+3}], s{sOff} offen lds')
        if ii < n-1:
            a(f's_add_u32 s{sOff}, s{sOff}, {step_bytes}')

def mk_srd(dst, lo, nbytes):
    a(f's_mov_b32 s{dst}, s{lo}')
    a(f's_mov_b32 s{dst+1}, s{lo+1}')
    a(f's_mov_b32 s{dst+2}, {nbytes}')
    a(f's_mov_b32 s{dst+3}, 0x00020000')

def gen_k3():
    global SV
    SV = 160
    name = 'k3_kernel'
    a.begin_kernel(name)
    a(f"""
    s_cmp_ge_u32 s2, 256
    s_cbranch_scc1 K3_exit
    s_load_dwordx2 s[4:5], s[0:1], {KA['ws']}
    s_load_dwordx2 s[6:7], s[0:1], {KA['w1']}
    """)
    trace_begin()
    a(f"""
    v_lshrrev_b32 v1, 6, v0
    v_and_b32 v2, 63, v0
    v_readfirstlane_b32 s36, v1        ; wave 0..7
    s_and_b32 s3, s36, 3
    s_bfe_u32 s16, s2, 0x30003
    s_and_b32 s17, s2, 7
    s_lshl_b32 s17, s17, 2
    s_lshr_b32 s19, s2, 6
    s_add_u32 s17, s17, s19
    s_cmp_lt_u32 s36, 4
    s_cbranch_scc1 K3_comp
    s_lshr_b32 s18, s3, 1
    s_lshl_b32 s18, s18, 4
    s_and_b32 s19, s3, 1
    s_lshl_b32 s19, s19, 2
    s_add_u32 s18, s18, s19
    """)
    dma_lane_off(3, 2, 4096, 5, 6)
    dma_lane_off(4, 2, 1024, 5, 6)
    a('s_waitcnt lgkmcnt(0)')
    ws_ptr(8, 4, 'HT')
    a(f"""
    s_mov_b32 s10, {2*MB}
    s_mov_b32 s11, 0x00020000
    """)
    mk_srd(12, 6, 512*1024)
    a(f"""
    s_lshl_b32 s20, s18, 12
    s_lshl_b32 s21, s17, 7
    s_add_u32 s20, s20, s21
    s_lshl_b32 s22, s3, 10             ; m0 (HT)
    s_lshl_b32 s38, s18, 10
    s_lshl_b32 s21, s16, 7
    s_add_u32 s38, s38, s21            ; W1 soffset
    s_add_u32 s39, s22, 0x10000        ; m0 (W)
    """)
    def issue(c):
        for i in range(4):
            a('s_mov_b32 m0, s22')
            a('s_add_u32 s22, s22, 4096')
            a('buffer_load_dwordx4 v3, s[8:11], s20 offen lds')
            a(f's_add_u32 s20, s20, {32*4096}')
        for i in range(4):
            a('s_mov_b32 m0, s39')
            a('s_add_u32 s39, s39, 4096')
            a('buffer_load_dwordx4 v4, s[12:15], s38 offen lds')
            a(f's_add_u32 s38, s38, {32*1024}')
    issue(0); issue(1)
    for c in range(4):
        a(f's_waitcnt vmcnt({8 if c < 3 else 0})')
        a('s_barrier')
        if c + 2 < 4: issue(c + 2)
    a('s_endpgm')
    a.label('K3_comp')
    tr_lane_base(5, 6, 2, 7, 8)
    a('v_xor_b32 v7, s3, v6')
    a('v_lshl_add_u32 v9, v7, 5, v5')
    for cb in range(4):
        a(f'v_xor_b32 v7, {cb}, v6')
        a(f'v_lshl_add_u32 v{10+cb}, v7, 5, v5')
        a(f'v_add_u32 v{10+cb}, 0x10000, v{10+cb}')
    a(f"""
    v_and_b32 v14, 15, v2
    v_lshrrev_b32 v15, 4, v2
    s_lshl_b32 s21, s17, 6
    s_lshl_b32 s23, s3, 4
    s_add_u32 s21, s21, s23
    v_add_u32 v14, s21, v14            ; token
    v_lshlrev_b32 v16, 3, v14
    v_lshlrev_b32 v14, 10, v14
    s_lshl_b32 s23, s21, 10
    v_lshl_add_u32 v17, v2, 4, s23
    s_lshl_b32 s21, s16, 8
    v_lshl_add_u32 v18, v15, 4, s21
    s_waitcnt lgkmcnt(0)
    """)
    ws_ptr(24, 4, 'HR'); ws_ptr(26, 4, 'G1'); ws_ptr(28, 4, 'CS'); ws_ptr(30, 4, 'ST1')
    CSR = 20
    for cb in range(4):
        a(f'global_load_dwordx4 v[{CSR+4*cb}:{CSR+4*cb+3}], v18, s[28:29] offset:{64*cb}')
    X = 64
    WF = 128
    ACC = 36
    GR = 52; SU = 56; ONE = 60
    for i in range(24):
        a(f'v_mov_b32 v{36+i}, 0')
    for i in range(4):
        a(f'v_mov_b32 v{ONE+i}, 0x3f803f80')
    def ld_x(st):
        for h in range(2):
            a(f'ds_read_b64_tr_b16 v[{X+4*st+2*h}:{X+4*st+2*h+1}], v9 offset:{st*4096 + h*1024}')
    def ld_w(st, cb):
        for h in range(2):
            r = WF + 16*(st & 1) + 4*cb + 2*h
            a(f'ds_read_b64_tr_b16 v[{r}:{r+1}], v{10+cb} offset:{st*4096 + h*1024}')
    a('s_barrier')
    for st in range(2):
        ld_x(st)
        for cb in range(4): ld_w(st, cb)
    for st in range(16):
        a(f's_waitcnt lgkmcnt({10 if st < 15 else 0})')
        nx = st + 2
        if nx < 16 and nx % 4 == 0:
            a('s_barrier')
        x = X + 4*st
        for cb in range(4):
            w = WF + 16*(st & 1) + 4*cb
            c = ACC + 4*cb
            a(f'v_mfma_f32_16x16x32_bf16 v[{c}:{c+3}], v[{w}:{w+3}], v[{x}:{x+3}], v[{c}:{c+3}]')
            if nx < 16:
                if cb == 0: ld_x(nx)
                else: ld_w(nx, cb-1)
        a(f'v_mfma_f32_16x16x32_bf16 v[{GR}:{GR+3}], v[{x}:{x+3}], v[{x}:{x+3}], v[{GR}:{GR+3}]')
        if nx < 16: ld_w(nx, 3)
        a(f'v_mfma_f32_16x16x32_bf16 v[{SU}:{SU+3}], v[{ONE}:{ONE+3}], v[{x}:{x+3}], v[{SU}:{SU+3}]')
    for j in range(8):
        l = a.newlabel('K3_hr')
        a(f's_cmp_lg_u32 s16, {j}')
        a(f's_cbranch_scc1 {l}')
        a(f'v_add_u32 v17, {2048*j}, v17')
        for st in (2*j, 2*j+1):
            a(f'global_store_dwordx4 v17, v[{X+4*st}:{X+4*st+3}], s[24:25] offset:{1024*(st&1)}{SC3}')
        a.label(l)
    a('s_waitcnt vmcnt(2)')
    a(f"""
    v_and_b32 v7, 3, v2
    v_cmp_eq_u32 vcc, 1, v7
    v_cmp_eq_u32 s[32:33], 2, v7
    v_cmp_eq_u32 s[34:35], 3, v7
    v_and_b32 v8, 15, v2
    v_lshrrev_b32 v7, 2, v8
    v_cndmask_b32 v{GR}, v{GR}, v{GR+1}, vcc
    v_cndmask_b32 v{GR}, v{GR}, v{GR+2}, s[32:33]
    v_cndmask_b32 v{GR}, v{GR}, v{GR+3}, s[34:35]
    v_lshl_add_u32 v7, v7, 4, v8
    v_lshlrev_b32 v7, 2, v7
    ds_bpermute_b32 v{GR}, v7, v{GR}
    v_mul_f32 v{SU}, {hx(1/512)}, v{SU}          ; mean1
    s_waitcnt lgkmcnt(0)
    v_mul_f32 v{GR}, {hx(1/512)}, v{GR}
    v_fma_f32 v{GR}, -v{SU}, v{SU}, v{GR}        ; var1
    v_max_f32 v{GR}, 0, v{GR}
    v_mov_b32 v{SU+1}, v{SU}
    v_mov_b32 v{GR+1}, v{GR}
    """)
    ln_scalars(SU, GR, 7)
    a(f"""
    v_sub_f32 v{SU+1}, v{SU+1}, v{SU}
    v_mul_f32 v{SU+1}, v{SU+1}, v{GR}            ; mean2
    v_mul_f32 v{GR+1}, v{GR+1}, v{GR}
    v_mul_f32 v{GR+1}, v{GR+1}, v{GR}            ; var2
    """)
    ln_scalars(SU+1, GR+1, 7)
    a(f"""
    v_mul_f32 v{ONE}, v{GR}, v{GR+1}             ; alpha
    v_fma_f32 v{ONE+1}, v{GR}, v{SU}, v{SU+1}
    v_mul_f32 v{ONE+1}, v{ONE+1}, v{GR+1}        ; beta
    v_mov_b32 v{SU+2}, v{SU}
    v_mov_b32 v{SU+3}, v{GR}
    v_mov_b32 v128, {hx(GC1)}
    v_mov_b32 v129, {hx(GC2)}
    v_mov_b32 v130, 1.0
    v_mov_b32 v131, 1.0
    s_cmp_lg_u32 s16, 0
    s_cbranch_scc1 K3_nost
    v_cmp_gt_u32 vcc, 16, v2
    s_and_saveexec_b64 s[32:33], vcc
    global_store_dwordx2 v16, v[{SU+2}:{SU+3}], s[30:31]
    s_mov_b64 exec, s[32:33]
    """)
    a.label('K3_nost')
    affine_round([ACC+2*p for p in range(8)], [CSR+2*p for p in range(8)], ONE, 144)
    gelu_pairs([ACC+2*p for p in range(8)], 128, 144)
    O = 136
    for p in range(8):
        a(f'v_cvt_pk_bf16_f32 v{O+p}, v{ACC+2*p}, v{ACC+2*p+1}')
    a(f"""
    v_and_b32 v7, 1, v15
    v_lshrrev_b32 v8, 1, v15
    v_lshl_add_u32 v7, v7, 1, v8
    v_and_b32 v8, 15, v2
    v_lshl_add_u32 v7, v7, 4, v8
    s_lshl_b32 s21, s16, 11
    s_add_u32 s21, s21, s23
    v_lshl_add_u32 v7, v7, 4, s21
    """)
    for P in range(2):
        o = O + 4*P
        a(f'v_permlane16_swap_b32 v{o}, v{o+2}')
        a(f'v_permlane16_swap_b32 v{o+1}, v{o+3}')
    a('s_nop 1')
    for P in range(2):
        o = O + 4*P
        a(f'global_store_dwordx4 v7, v[{o}:{o+3}], s[26:27] offset:{1024*P}{SC3}')
    trace_end(2)
    a.label('K3_exit')
    a.end_kernel(name, (256,1,1), (512,1,1), 131072, 168)

class Ring:
    def __init__(self, TT, NT, nch, nslots, a_rs, w_rs, wfmt, vAsrc, vWsrc, vAr, vWr, FB, ACC, rot=False, shifts=None, vTmp=None):
        self.__dict__.update(locals())
        self.ABY = 4 * TT * 16 * 256
        self.WBY = 128 * (128 if wfmt == 128 else 224)
        self.SLOT = self.ABY + self.WBY
        self.na = TT * 4
        self.nw = 4 if wfmt == 128 else 7
    def setup_addrs(self, t1, t2, t3):
        r = self
        a(f'v_lshrrev_b32 v{t1}, 4, v2')
        a(f'v_and_b32 v{t2}, 15, v2')
        a(f'v_xor_b32 v{t2}, v{t2}, v{t1}')
        a(f'v_mul_u32_u24 v{t1}, {r.a_rs}, v{t1}')
        a(f'v_add_u32 v{t1}, v{t1}, v{r.vTmp}')
        for i in range(4):
            a(f'v_xor_b32 v{t3}, {4*i}, v{t2}')
            a(f'v_lshl_add_u32 v{r.vAsrc+i}, v{t3}, 4, v{t1}')
        a(f'v_and_b32 v{t1}, 15, v2')
        a(f'v_lshrrev_b32 v{t2}, 4, v2')
        a(f'v_xor_b32 v{t2}, v{t2}, v{t1}')
        a(f'v_lshlrev_b32 v{t1}, 8, v{t1}')
        a(f's_mul_i32 s21, s3, {r.TT*4096}')
        a(f'v_add_u32 v{t1}, s21, v{t1}')
        for i in range(4):
            a(f'v_xor_b32 v{t3}, {4*i}, v{t2}')
            a(f'v_lshl_add_u32 v{r.vAr+i}, v{t3}, 4, v{t1}')
        if r.wfmt == 128:
            dma_lane_off(r.vWsrc, 2, r.w_rs, t1, t2)
            tr_lane_base(t1, t2, 2, t3, r.vWr)
            for cb in range(4):
                a(f'v_xor_b32 v{t3}, {cb}, v{t2}')
                a(f'v_lshl_add_u32 v{r.vWr+cb}, v{t3}, 5, v{t1}')
                a(f'v_add_u32 v{r.vWr+cb}, {r.ABY}, v{r.vWr+cb}')
        else:
            for j in range(7):
                a(f'v_add_u32 v{t1}, {64*j}, v2')
                a(f'v_mul_u32_u24 v{t2}, 4682, v{t1}')
                a(f'v_lshrrev_b32 v{t2}, 16, v{t2}')
                a(f'v_mul_u32_u24 v{t3}, 14, v{t2}')
                a(f'v_sub_u32 v{t1}, v{t1}, v{t3}')
                a(f'v_and_b32 v{t3}, 0x13, v{t2}')
                a(f'v_bfe_u32 v{r.vWsrc+j}, v{t2}, 2, 1')
                a(f'v_lshl_or_b32 v{t3}, v{r.vWsrc+j}, 3, v{t3}')
                a(f'v_bfe_u32 v{r.vWsrc+j}, v{t2}, 3, 1')
                a(f'v_lshl_or_b32 v{t3}, v{r.vWsrc+j}, 2, v{t3}')
                a(f'v_mul_u32_u24 v{t3}, {r.w_rs}, v{t3}')
                a(f'v_lshl_add_u32 v{r.vWsrc+j}, v{t1}, 4, v{t3}')
            a(f'v_lshrrev_b32 v{t1}, 5, v2')
            a(f'v_lshlrev_b32 v{t1}, 4, v{t1}')
            a(f'v_bfe_u32 v{t2}, v2, 2, 3')
            a(f'v_add_u32 v{t1}, v{t1}, v{t2}')
            a(f'v_mul_u32_u24 v{t1}, 224, v{t1}')
            a(f'v_and_b32 v{t2}, 3, v2')
            a(f'v_lshl_add_u32 v{r.vWr}, v{t2}, 3, v{t1}')
            a(f'v_add_u32 v{r.vWr}, {r.ABY}, v{r.vWr}')
    def issue_groups(self, c):
        r = self
        G = []
        slot = c % r.nslots
        base = slot * r.SLOT
        pre = []
        if r.rot:
            pre += [f's_mul_i32 s35, s34, {128*r.w_rs}', 's_add_u32 s35, s35, s20', 's_lshl_b32 s36, s34, 8']
        else:
            pre += [f's_add_u32 s35, s20, {c*128*r.w_rs}', f's_movk_i32 s36, {c*256}']
        if r.wfmt == 128:
            pre += [f's_lshl_b32 s22, s3, 10', f's_add_u32 s22, s22, {base + r.ABY}']
            for i in range(4):
                g = ['s_mov_b32 m0, s22', 's_add_u32 s22, s22, 4096', f'buffer_load_dwordx4 v{r.vWsrc}, s[12:15], s35 offen lds']
                if i < 3: g.append(f's_add_u32 s35, s35, {32*r.w_rs}')
                G.append(pre + g); pre = []
        else:
            pre += [f's_mul_i32 s22, s3, 7168', f's_add_u32 s22, s22, {base + r.ABY}']
            for j in range(7):
                G.append(pre + ['s_mov_b32 m0, s22', 's_add_u32 s22, s22, 1024', f'buffer_load_dwordx4 v{r.vWsrc+j}, s[12:15], s35 offen lds']); pre = []
        pre = [f's_mul_i32 s22, s3, {r.TT*4096}']
        if base: pre.append(f's_add_u32 s22, s22, {base}')
        for i in range(r.na):
            g = ['s_mov_b32 m0, s22', 's_add_u32 s22, s22, 1024']
            if r.shifts:
                off = (4*i + r.shifts[c]) * r.a_rs
                if off >= 0: g.append(f'v_add_u32 v{r.vTmp}, {off}, v{r.vAsrc+(i&3)}')
                else: g.append(f'v_subrev_u32 v{r.vTmp}, {-off}, v{r.vAsrc+(i&3)}')
                g.append(f'buffer_load_dwordx4 v{r.vTmp}, s[8:11], s36 offen lds')
            else:
                g.append(f'buffer_load_dwordx4 v{r.vAsrc+(i&3)}, s[8:11], s36 offen lds')
                if i < r.na-1: g.append(f's_add_u32 s36, s36, {4*r.a_rs}')
            if i == r.na-1 and r.rot:
                g += ['s_add_u32 s34, s34, 1', f's_cmp_eq_u32 s34, {r.nch}', 's_cselect_b32 s34, 0, s34']
            G.append(pre + g); pre = []
        return G
    def issue(self, c):
        for g in self.issue_groups(c):
            for l in g: a(l)
    def compute(self, c, fillers):
        r = self
        FS = 4*(r.TT + r.NT)
        def loads(st, sb):
            f = r.FB + FS*sb
            for tt in range(r.TT):
                a(f'ds_read_b128 v[{f+4*tt}:{f+4*tt+3}], v{r.vAr+st} offset:{r.cur + tt*4096}')
            for cb in range(r.NT):
                for h in range(2):
                    d = f + 4*r.TT + 4*cb + 2*h
                    if r.wfmt == 128:
                        a(f'ds_read_b64_tr_b16 v[{d}:{d+1}], v{r.vWr+cb} offset:{r.cur + st*4096 + h*1024}')
                    else:
                        a(f'ds_read_b64_tr_b16 v[{d}:{d+1}], v{r.vWr} offset:{r.cur + st*7168 + h*1792 + 32*cb}')
        nl = r.TT + 2*r.NT
        nm = 4 * r.NT * r.TT
        fillers = list(fillers)
        every = max(1, nm // (len(fillers) + 1)) if fillers else 0
        loads(0, 0)
        loads(1, 1)
        for _ in range(min(2, len(fillers))):
            for l in fillers.pop(0): a(l)
        m = 0
        for st in range(4):
            a(f's_waitcnt lgkmcnt({min(15, nl) if st < 3 else 0})')
            f = r.FB + FS*(st & 1)
            for cb in range(r.NT):
                w = f + 4*r.TT + 4*cb
                for tt in range(r.TT):
                    cc = r.ACC + 4*r.NT*tt + 4*cb
                    a(f'v_mfma_f32_16x16x32_bf16 v[{cc}:{cc+3}], v[{w}:{w+3}], v[{f+4*tt}:{f+4*tt+3}], v[{cc}:{cc+3}]')
                    m += 1
                    if fillers and m % every == 0:
                        for l in fillers.pop(0): a(l)
            if st + 2 < 4:
                loads(st+2, st & 1)
        for g in fillers:
            for l in g: a(l)
    def bump(self, delta):
        r = self
        regs = [r.vAr+i for i in range(4)] + ([r.vWr+i for i in range(4)] if r.wfmt == 128 else [r.vWr])
        for v in regs:
            if delta > 0: a(f'v_add_u32 v{v}, {delta}, v{v}')
            else: a(f'v_subrev_u32 v{v}, {-delta}, v{v}')
    def prologue(self):
        r = self
        r.ahead = r.nslots if r.nch <= r.nslots else r.nslots - 1
        for c in range(min(r.nch, r.ahead)):
            r.issue(c)
    def run(self):
        r = self
        per = r.na + r.nw
        regbase = 0
        for c in range(r.nch):
            issued = min(r.nch, c + r.ahead)
            a(f's_waitcnt vmcnt({min(63, per*(issued - (c+1)))})')
            a('s_barrier')
            stamp([0,100,255], 1 + c)
            base = (c % r.nslots) * r.SLOT
            want = (base // 32768) * 32768 if r.SLOT * r.nslots > 65536 else 0
            if want != regbase:
                r.bump(want - regbase); regbase = want
            r.cur = base - regbase
            fill = r.issue_groups(c + r.ahead) if c + r.ahead < r.nch else []
            r.compute(c, fill)

class Ring3:
    def __init__(self, TT, NT, KC, nch, nslots, a_rs, w_rs, wfmt, FB, ACC, vAr, vWr, rot=False, shifts=None, LA=LA_DEF):
        self.__dict__.update(locals())
        self.RB = 64 * KC
        self.AW = TT * 16 * self.RB
        self.ABY = 4 * self.AW
        self.WBY = 32 * KC * (128 if wfmt == 128 else 224)
        self.SLOT = self.ABY + self.WBY
        self.na = self.AW // 1024
        self.nw = 4 if (wfmt == 128 or KC == 2) else 7
        self.rows_per = 1024 // self.RB
    def loader(self, tag):
        r = self
        vA, vW, vT = 8, 12, 24
        t1, t2, t3 = 3, 4, 5
        nv = 4 if r.KC == 4 else 2
        sh = 4 if r.KC == 4 else 3
        a(f'v_lshrrev_b32 v{t1}, {sh}, v2')
        a(f'v_mul_u32_u24 v{t1}, {r.a_rs}, v{t1}')
        a(f'v_add_u32 v{t1}, s38, v{t1}')
        a(f'v_and_b32 v{t2}, {(1 << sh) - 1}, v2')
        a(f'v_lshrrev_b32 v{t3}, 4, v2')
        a(f'v_xor_b32 v{t2}, v{t2}, v{t3}')
        for i in range(nv):
            a(f'v_xor_b32 v{t3}, {4*i}, v{t2}')
            a(f'v_lshl_add_u32 v{vA+i}, v{t3}, 4, v{t1}')
        if r.wfmt == 128:
            dma_lane_off(vW, 2, r.w_rs, t1, t2)
        else:
            assert r.KC == 2
            for i in range(4):
                a(f's_add_u32 s{60+i}, s3, {4*i}')
                a(f's_min_u32 s{60+i}, s{60+i}, 13')
                a(f's_cmp_ge_u32 s{60+i}, 7')
                a('s_cselect_b32 s21, 7, 0')
                a(f's_cselect_b32 s22, {32*r.w_rs}, 0')
                a(f's_sub_u32 s21, s{60+i}, s21')
                a('s_lshl_b32 s21, s21, 6')
                a(f'v_add_u32 v{t1}, s21, v2')
                a(f'v_mul_u32_u24 v{t2}, 4682, v{t1}')
                a(f'v_lshrrev_b32 v{t2}, 16, v{t2}')
                a(f'v_mul_u32_u24 v{t3}, 14, v{t2}')
                a(f'v_sub_u32 v{t1}, v{t1}, v{t3}')
                a(f'v_and_b32 v{t3}, 0x13, v{t2}')
                a(f'v_bfe_u32 v{vW+i}, v{t2}, 2, 1')
                a(f'v_lshl_or_b32 v{t3}, v{vW+i}, 3, v{t3}')
                a(f'v_bfe_u32 v{vW+i}, v{t2}, 3, 1')
                a(f'v_lshl_or_b32 v{t3}, v{vW+i}, 2, v{t3}')
                a(f'v_mul_u32_u24 v{t3}, {r.w_rs}, v{t3}')
                a(f'v_lshl_add_u32 v{vW+i}, v{t1}, 4, v{t3}')
                a(f'v_add_u32 v{vW+i}, s22, v{vW+i}')
                a(f's_lshl_b32 s{60+i}, s{60+i}, 10')
        def issue(c):
            base = (c % r.nslots) * r.SLOT
            if r.rot:
                a(f's_mul_i32 s35, s34, {32*r.KC*r.w_rs}')
                a('s_add_u32 s35, s35, s20')
                a(f's_mul_i32 s36, s34, {r.RB}')
            else:
                a(f's_add_u32 s35, s20, {c*32*r.KC*r.w_rs}')
                a(f's_movk_i32 s36, {c*r.RB}')
            a(f's_mul_i32 s22, s3, {r.AW}')
            if base: a(f's_add_u32 s22, s22, {base}')
            for i in range(r.na):
                a('s_mov_b32 m0, s22')
                a('s_add_u32 s22, s22, 1024')
                if r.shifts:
                    off = (r.rows_per*i + r.shifts[c]) * r.a_rs
                    if off >= 0: a(f'v_add_u32 v{vT}, {off}, v{vA+(i % nv)}')
                    else: a(f'v_subrev_u32 v{vT}, {-off}, v{vA+(i % nv)}')
                    a(f'buffer_load_dwordx4 v{vT}, s[8:11], s36 offen lds')
                else:
                    a(f'buffer_load_dwordx4 v{vA+(i % nv)}, s[8:11], s36 offen lds')
                    if i < r.na-1: a(f's_add_u32 s36, s36, {r.rows_per*r.a_rs}')
            if r.wfmt == 128:
                a(f's_lshl_b32 s22, s3, 10')
                a(f's_add_u32 s22, s22, {base + r.ABY}')
                for i in range(4):
                    a('s_mov_b32 m0, s22')
                    a('s_add_u32 s22, s22, 4096')
                    a(f'buffer_load_dwordx4 v{vW}, s[12:15], s35 offen lds')
                    if i < 3: a(f's_add_u32 s35, s35, {32*r.w_rs}')
            else:
                for i in range(4):
                    a(f's_add_u32 s22, s{60+i}, {base + r.ABY}')
                    a('s_mov_b32 m0, s22')
                    a('s_nop 0')
                    a(f'buffer_load_dwordx4 v{vW+i}, s[12:15], s35 offen lds')
            if r.rot:
                a('s_add_u32 s34, s34, 1')
                a(f's_cmp_eq_u32 s34, {r.nch}')
                a('s_cselect_b32 s34, 0, s34')
        per = r.na + r.nw
        issued = 0
        LA = r.LA
        for c in range(min(r.nch, LA0)):
            issue(c); issued += 1
        for c in range(r.nch):
            a(f's_waitcnt vmcnt({min(63, per*(issued - (c+1)))})')
            a('s_barrier')
            lim = min(r.nch - 1, c + LA, max(r.nslots - 1, c - 2 + r.nslots))
            while issued <= lim:
                issue(issued); issued += 1
    def comp_setup(self, t1, t2, t3):
        r = self
        a(f'v_and_b32 v{t1}, 15, v2')
        a(f'v_lshrrev_b32 v{t2}, 4, v2')
        if r.KC == 4:
            a(f'v_xor_b32 v{t2}, v{t2}, v{t1}')
        else:
            a(f'v_lshrrev_b32 v{t3}, 1, v{t1}')
            a(f'v_xor_b32 v{t2}, v{t2}, v{t3}')
        a(f'v_mul_u32_u24 v{t1}, {r.RB}, v{t1}')
        a(f's_mul_i32 s21, s3, {r.AW}')
        a(f'v_add_u32 v{t1}, s21, v{t1}')
        for i in range(r.KC):
            a(f'v_xor_b32 v{t3}, {4*i}, v{t2}')
            a(f'v_lshl_add_u32 v{r.vAr+i}, v{t3}, 4, v{t1}')
        if r.wfmt == 128:
            tr_lane_base(t1, t2, 2, t3, r.vWr)
            for cb in range(4):
                a(f'v_xor_b32 v{t3}, {cb}, v{t2}')
                a(f'v_lshl_add_u32 v{r.vWr+cb}, v{t3}, 5, v{t1}')
                a(f'v_add_u32 v{r.vWr+cb}, {r.ABY}, v{r.vWr+cb}')
        else:
            a(f'v_lshrrev_b32 v{t1}, 5, v2')
            a(f'v_lshlrev_b32 v{t1}, 4, v{t1}')
            a(f'v_bfe_u32 v{t2}, v2, 2, 3')
            a(f'v_add_u32 v{t1}, v{t1}, v{t2}')
            a(f'v_mul_u32_u24 v{t1}, 224, v{t1}')
            a(f'v_and_b32 v{t2}, 3, v2')
            a(f'v_lshl_add_u32 v{r.vWr}, v{t2}, 3, v{t1}')
            a(f'v_add_u32 v{r.vWr}, {r.ABY}, v{r.vWr}')
    def compute(self):
        r = self
        FS = 4*(r.TT + r.NT)
        nl = r.TT + 2*r.NT
        total = r.KC * r.nch
        state = dict(regbase=0)
        regs = [r.vAr+i for i in range(r.KC)] + ([r.vWr+i for i in range(4)] if r.wfmt == 128 else [r.vWr])
        def loads(s):
            c, st = divmod(s, r.KC)
            base = (c % r.nslots) * r.SLOT
            if st == 0:
                a('s_barrier')
                stamp([0,100,255], min(15, 1 + c))
                want = (base // 16384) * 16384
                d = want - state['regbase']
                if d:
                    for v in regs:
                        if d > 0: a(f'v_add_u32 v{v}, {d}, v{v}')
                        else: a(f'v_subrev_u32 v{v}, {-d}, v{v}')
                    state['regbase'] = want
            cur = base - state['regbase']
            f = r.FB + FS*(s & 1)
            for tt in range(r.TT):
                a(f'ds_read_b128 v[{f+4*tt}:{f+4*tt+3}], v{r.vAr+st} offset:{cur + tt*16*r.RB}')
            for cb in range(r.NT):
                for h in range(2):
                    d = f + 4*r.TT + 4*cb + 2*h
                    if r.wfmt == 128:
                        a(f'ds_read_b64_tr_b16 v[{d}:{d+1}], v{r.vWr+cb} offset:{cur + st*4096 + h*1024}')
                    else:
                        a(f'ds_read_b64_tr_b16 v[{d}:{d+1}], v{r.vWr} offset:{cur + st*7168 + h*1792 + 32*cb}')
        loads(0); loads(1)
        for s_ in range(total):
            a(f's_waitcnt lgkmcnt({min(15, nl) if s_ < total-1 else 0})')
            f = r.FB + FS*(s_ & 1)
            for cb in range(r.NT):
                w = f + 4*r.TT + 4*cb
                for tt in range(r.TT):
                    cc = r.ACC + 4*r.NT*tt + 4*cb
                    a(f'v_mfma_f32_16x16x32_bf16 v[{cc}:{cc+3}], v[{w}:{w+3}], v[{f+4*tt}:{f+4*tt+3}], v[{cc}:{cc+3}]')
            if s_ + 2 < total:
                loads(s_ + 2)

class Ring4:
    def __init__(self, TT, NT, nch, nslots, w_rs, wfmt, FB, ACC, vWr, X, XW, rot=False, LA=2):
        self.__dict__.update(locals())
        self.KC = 4
        self.SLOT = 128 * (128 if wfmt == 128 else 224)
        self.nw = 4 if wfmt == 128 else 7
    def loader(self):
        r = self
        vW = 12
        t1, t2, t3 = 3, 4, 5
        if r.wfmt == 128:
            dma_lane_off(vW, 2, r.w_rs, t1, t2)
        else:
            a(f'v_lshlrev_b32 v{vW}, 4, v2')
        def issue(c):
            base = (c % r.nslots) * r.SLOT
            if r.rot:
                a(f's_mul_i32 s35, s34, {128*r.w_rs}')
                a('s_add_u32 s35, s35, s20')
            else:
                a(f's_add_u32 s35, s20, {c*128*r.w_rs}')
            if r.wfmt == 128:
                a(f's_lshl_b32 s22, s3, 10')
                if base: a(f's_add_u32 s22, s22, {base}')
                for i in range(4):
                    a('s_mov_b32 m0, s22')
                    a('s_add_u32 s22, s22, 4096')
                    a(f'buffer_load_dwordx4 v{vW}, s[12:15], s35 offen lds')
                    if i < 3: a(f's_add_u32 s35, s35, {32*r.w_rs}')
            else:
                a(f's_mul_i32 s22, s3, 7168')
                if base: a(f's_add_u32 s22, s22, {base}')
                for j in range(7):
                    a('s_mov_b32 m0, s22')
                    a('s_add_u32 s22, s22, 1024')
                    a(f'buffer_load_dwordx4 v{vW}, s[12:15], s35 offen lds')
                    if j < 6: a('s_add_u32 s35, s35, 1024')
            if r.rot:
                a('s_add_u32 s34, s34, 1')
                a(f's_cmp_eq_u32 s34, {r.nch}')
                a('s_cselect_b32 s34, 0, s34')
        per = r.nw
        issued = 0
        for c in range(min(r.nch, r.LA)):
            issue(c); issued += 1
        for c in range(r.nch):
            a(f's_waitcnt vmcnt({min(63, per*(issued - (c+1)))})')
            a('s_barrier')
            lim = min(r.nch - 1, c + r.LA, max(r.nslots - 1, c - 2 + r.nslots))
            while issued <= lim:
                issue(issued); issued += 1
    def comp_setup(self, t1, t2, t3):
        r = self
        if r.wfmt == 128:
            tr_lane_base(t1, t2, 2, t3, r.vWr)
            for cb in range(4):
                a(f'v_xor_b32 v{t3}, {cb}, v{t2}')
                a(f'v_lshl_add_u32 v{r.vWr+cb}, v{t3}, 5, v{t1}')
        else:
            a(f'v_lshrrev_b32 v{t1}, 5, v2')
            a(f'v_lshlrev_b32 v{t1}, 4, v{t1}')
            a(f'v_bfe_u32 v{t2}, v2, 2, 3')
            a(f'v_add_u32 v{t1}, v{t1}, v{t2}')
            a(f'v_mul_u32_u24 v{t1}, 224, v{t1}')
            a(f'v_and_b32 v{t2}, 3, v2')
            a(f'v_lshl_add_u32 v{r.vWr}, v{t2}, 3, v{t1}')
    def compute(self, aload, extra_vm=0):
        r = self
        FS = 4*r.NT
        nl = 2*r.NT
        total = 4 * r.nch
        state = dict(regbase=0)
        regs = [r.vWr+i for i in range(4)] if r.wfmt == 128 else [r.vWr]
        def pre(s):
            c, st = divmod(s, 4)
            base = (c % r.nslots) * r.SLOT
            if st == 0:
                a('s_barrier')
                want = (base // 32768) * 32768
                d = want - state['regbase']
                if d:
                    for v in regs:
                        if d > 0: a(f'v_add_u32 v{v}, {d}, v{v}')
                        else: a(f'v_subrev_u32 v{v}, {-d}, v{v}')
                    state['regbase'] = want
        def load_cb(s, cb):
            c, st = divmod(s, 4)
            cur = (c % r.nslots) * r.SLOT - state['regbase']
            f = r.FB + FS*(s & 1)
            for h in range(2):
                d = f + 4*cb + 2*h
                if r.wfmt == 128:
                    a(f'ds_read_b64_tr_b16 v[{d}:{d+1}], v{r.vWr+cb} offset:{cur + st*4096 + h*1024}')
                else:
                    a(f'ds_read_b64_tr_b16 v[{d}:{d+1}], v{r.vWr} offset:{cur + st*7168 + h*1792 + 32*cb}')
        for s0 in range(2):
            pre(s0)
            for cb in range(r.NT): load_cb(s0, cb)
        for s_ in range(total):
            issued_steps = min(total, s_ + r.XW)
            a(f's_waitcnt vmcnt({min(63, r.TT*(issued_steps - (s_+1)))}) lgkmcnt({min(15, nl) if s_ < total-1 else 0})')
            if s_ + 2 < total:
                pre(s_ + 2)
            f = r.FB + FS*(s_ & 1)
            for cb in range(r.NT):
                w = f + 4*cb
                for tt in range(r.TT):
                    cc = r.ACC + 4*r.NT*tt + 4*cb
                    x = r.X + 4*(r.TT*(s_ % r.XW) + tt)
                    a(f'v_mfma_f32_16x16x32_bf16 v[{cc}:{cc+3}], v[{w}:{w+3}], v[{x}:{x+3}], v[{cc}:{cc+3}]')
                if s_ + 2 < total and cb > 0:
                    load_cb(s_ + 2, cb - 1)
            if s_ + 2 < total:
                load_cb(s_ + 2, r.NT - 1)
            if s_ + r.XW < total:
                aload(s_ + r.XW)

def store_tile64(O, vtok_row, sptr, scol, vt, lds_base_sgpr):
    a(f'v_and_b32 v{vt}, 15, v2')
    a(f'v_mul_u32_u24 v{vt}, 144, v{vt}')
    a(f'v_lshrrev_b32 v{vt+1}, 4, v2')
    a(f'v_lshl_add_u32 v{vt}, v{vt+1}, 3, v{vt}')
    a(f'v_add_u32 v{vt}, s{lds_base_sgpr}, v{vt}')
    for cb in range(4):
        a(f'ds_write_b64 v{vt}, v[{O+2*cb}:{O+2*cb+1}] offset:{32*cb}')
    a(f'v_lshrrev_b32 v{vt+1}, 3, v2')
    a(f'v_and_b32 v{vt+2}, 7, v2')
    a(f'v_mul_u32_u24 v{vt}, 144, v{vt+1}')
    a(f'v_lshl_add_u32 v{vt}, v{vt+2}, 4, v{vt}')
    a(f'v_add_u32 v{vt}, s{lds_base_sgpr}, v{vt}')
    a(f'v_lshlrev_b32 v{vt+1}, 10, v{vt+1}')
    a(f'v_lshl_add_u32 v{vt+1}, v{vt+2}, 4, v{vt+1}')
    a(f'v_add_u32 v{vt+1}, s{vtok_row}, v{vt+1}')
    a(f'v_add_u32 v{vt+1}, s{scol}, v{vt+1}')
    a(f'v_add_u32 v{vt+2}, 8192, v{vt+1}')
    a('s_waitcnt lgkmcnt(0)')
    a(f'ds_read_b128 v[{O}:{O+3}], v{vt}')
    a(f'ds_read_b128 v[{O+4}:{O+7}], v{vt} offset:{8*144}')
    a('s_waitcnt lgkmcnt(1)')
    a(f'global_store_dwordx4 v{vt+1}, v[{O}:{O+3}], s[{sptr}:{sptr+1}]')
    a('s_waitcnt lgkmcnt(0)')
    a(f'global_store_dwordx4 v{vt+2}, v[{O+4}:{O+7}], s[{sptr}:{sptr+1}]')

def wave_krow(dst):
    a(f"""
    s_lshr_b32 s{dst}, s3, 1
    s_lshl_b32 s{dst}, s{dst}, 4
    s_and_b32 s19, s3, 1
    s_lshl_b32 s19, s19, 2
    s_add_u32 s{dst}, s{dst}, s19
    """)

MAP64 = """
    s_bfe_u32 s16, s2, 0x30003
    s_and_b32 s17, s2, 7
    s_lshl_b32 s17, s17, 2
    s_lshr_b32 s19, s2, 6
    s_add_u32 s17, s17, s19
"""

def fra_epi_off(dst, t):
    a(f'v_lshrrev_b32 v{dst}, 1, v15')
    a(f'v_lshlrev_b32 v{dst}, 8, v{dst}')
    a(f'v_and_b32 v{t}, 15, v2')
    a(f'v_lshl_add_u32 v{dst}, v{t}, 4, v{dst}')
    a(f'v_and_b32 v{t}, 1, v15')
    a(f'v_lshl_add_u32 v{dst}, v{t}, 3, v{dst}')
    a('s_lshl_b32 s21, s16, 11')
    a('s_add_u32 s21, s21, s38')
    a(f'v_add_u32 v{dst}, s21, v{dst}')

def fra_store_off(dst, t):
    a(f"""
    v_and_b32 v{dst}, 1, v15
    v_lshrrev_b32 v{t}, 1, v15
    v_lshl_add_u32 v{dst}, v{dst}, 1, v{t}
    v_and_b32 v{t}, 15, v2
    v_lshl_add_u32 v{dst}, v{dst}, 4, v{t}
    s_lshl_b32 s21, s16, 11
    s_add_u32 s21, s21, s38
    v_lshl_add_u32 v{dst}, v{dst}, 4, s21
    """)

def gen_k4():
    global SV
    SV = 176
    name = 'k4_kernel'
    a.begin_kernel(name)
    a(f"""
    s_cmp_ge_u32 s2, 256
    s_cbranch_scc1 K4_exit
    s_load_dwordx2 s[4:5], s[0:1], {KA['ws']}
    s_load_dwordx2 s[6:7], s[0:1], {KA['w2']}
    s_load_dwordx2 s[44:45], s[0:1], {KA['w3']}
    """)
    trace_begin()
    a(f"""
    v_lshrrev_b32 v1, 6, v0
    v_and_b32 v2, 63, v0
    v_readfirstlane_b32 s24, v1
    s_and_b32 s3, s24, 3
    {MAP64}
    """)
    wave_krow(18)
    ACC = 36; FB = 64; X = 96
    R = Ring4(TT=1, NT=4, nch=4, nslots=4, w_rs=1024, wfmt=128, FB=FB, ACC=ACC, vWr=10, X=X, XW=16, LA=LA5)
    a(f"""
    s_lshl_b32 s39, s17, 6
    s_lshl_b32 s23, s3, 4
    s_add_u32 s39, s39, s23
    s_lshl_b32 s38, s39, 10
    s_lshl_b32 s20, s18, 10
    s_lshl_b32 s37, s16, 7
    s_add_u32 s20, s20, s37
    s_cmp_ge_u32 s24, 4
    s_cbranch_scc1 K4_loader
    v_and_b32 v14, 15, v2
    v_lshrrev_b32 v15, 4, v2
    v_add_u32 v14, s39, v14            ; token
    v_lshlrev_b32 v16, 3, v14
    v_lshlrev_b32 v19, 6, v14
    """)
    for q, sh in enumerate([-1, 1, -2, 2]):
        a(f'v_add_u32 v5, {sh}, v14')
        a('v_ashrrev_i32 v6, 4, v5')
        a('v_lshlrev_b32 v6, 14, v6')
        a('v_and_b32 v5, 15, v5')
        a('v_lshl_add_u32 v6, v5, 4, v6')
        a('v_lshl_add_u32 v6, v15, 8, v6')
        a(f'v_add_u32 v{52+q}, {4096*q}, v6')
    fra_epi_off(18, 5)
    a('s_waitcnt lgkmcnt(0)')
    ws_ptr(8, 4, 'G1')
    a(f's_mov_b32 s10, {2*MB}')
    a('s_mov_b32 s11, 0x00020000')
    ws_ptr(24, 4, 'HR'); ws_ptr(26, 4, 'X1'); ws_ptr(28, 4, 'ST3'); ws_ptr(30, 4, 'ST1')
    HRr = 20
    for cb in range(4):
        a(f'global_load_dwordx2 v[{HRr+2*cb}:{HRr+2*cb+1}], v18, s[24:25] offset:{512*cb}')
    a('global_load_dwordx2 v[28:29], v16, s[30:31]')
    for st in range(16):
        a(f'buffer_load_dwordx4 v[{X+4*st}:{X+4*st+3}], v{52+(st>>2)}, s[8:11], 0 offen offset:{1024*(st&3)}')
    R.comp_setup(5, 6, 7)
    for i in range(16):
        a(f'v_mov_b32 v{ACC+i}, 0')
    R.compute(None)
    a('v_mov_b32 v60, 0')
    a('v_mov_b32 v61, 0')
    a('v_mov_b32 v62, 0')
    a('v_mov_b32 v63, 0')
    a('s_nop 4')
    O = 168
    for p in range(8):
        c = ACC + 2*p
        round_pair(c, 164)
        unpack(30, 31, HRr + p)
        a('v_pk_add_f32 v[30:31], v[30:31], v[28:29] op_sel_hi:[1,0] neg_lo:[0,1] neg_hi:[0,1]')
        round_pair(30, 165)
        a('v_pk_mul_f32 v[30:31], v[30:31], v[28:29] op_sel:[0,1] op_sel_hi:[1,1]')
        round_pair(30, 165)
        a(f'v_pk_add_f32 v[{c}:{c+1}], v[{c}:{c+1}], v[30:31]')
        a(f'v_cvt_pk_bf16_f32 v{O+p}, v{c}, v{c+1}')
        unpack(c, c+1, O+p)
        a(f'v_pk_add_f32 v[60:61], v[60:61], v[{c}:{c+1}]')
        a(f'v_pk_fma_f32 v[62:63], v[{c}:{c+1}], v[{c}:{c+1}], v[62:63]')
    a('v_add_f32 v60, v60, v61')
    a('v_add_f32 v61, v62, v63')
    fra_store_off(7, 8)
    a('v_mov_b32 v62, v60')
    a('v_mov_b32 v63, v61')
    for P in range(2):
        o = O + 4*P
        a(f'v_permlane16_swap_b32 v{o}, v{o+2}')
        a(f'v_permlane16_swap_b32 v{o+1}, v{o+3}')
    a('v_permlane16_swap_b32 v60, v62')
    a('v_permlane16_swap_b32 v61, v63')
    for P in range(2):
        o = O + 4*P
        a(f'global_store_dwordx4 v7, v[{o}:{o+3}], s[26:27] offset:{1024*P}{SC3}')
    a(f"""
    v_pk_add_f32 v[60:61], v[60:61], v[62:63]
    s_nop 0
    v_mov_b32 v62, v60
    v_mov_b32 v63, v61
    s_nop 1
    v_permlane32_swap_b32 v60, v62
    v_permlane32_swap_b32 v61, v63
    s_nop 1
    v_pk_add_f32 v[60:61], v[60:61], v[62:63]
    s_lshl_b32 s21, s16, 3
    v_add_u32 v19, s21, v19
    v_cmp_gt_u32 vcc, 16, v2
    s_and_saveexec_b64 s[32:33], vcc
    global_store_dwordx2 v19, v[60:61], s[28:29]
    s_mov_b64 exec, s[32:33]
    """)
    trace_end(3)
    a('s_endpgm')
    a.label('K4_loader')
    a('s_waitcnt lgkmcnt(0)')
    mk_srd(12, 6, 512*1024)
    R.loader()
    code_prefetch('k5_kernel', 'K_code_end', 30, 32, 40)
    if PF4:
        a('v_and_b32 v0, 255, v0')
        ws_ptr(44, 4, 'W3P')
        l2_prefetch(44, 512*3584, 24, 28, 21)
    a.label('K4_exit')
    a.end_kernel(name, (256,1,1), (512,1,1), 65536, 184)

def gen_k5():
    global SV
    SV = 200
    name = 'k5_kernel'
    a.begin_kernel(name)
    a(f"""
    s_cmp_ge_u32 s2, 256
    s_cbranch_scc1 K5_exit
    s_load_dwordx2 s[4:5], s[0:1], {KA['ws']}
    s_load_dwordx2 s[6:7], s[0:1], {KA['w3']}
    s_load_dwordx2 s[40:41], s[0:1], {KA['w4']}
    """)
    trace_begin()
    a(f"""
    v_lshrrev_b32 v1, 6, v0
    v_and_b32 v2, 63, v0
    v_readfirstlane_b32 s24, v1
    s_and_b32 s3, s24, 3
    s_bfe_u32 s16, s2, 0x40003
    s_and_b32 s17, s2, 7
    s_lshl_b32 s17, s17, 1
    s_lshr_b32 s19, s2, 7
    s_add_u32 s17, s17, s19
    """)
    ACC = 144; FB = 16; X = 72; XW = 8
    R = Ring4(TT=2, NT=7, nch=4, nslots=4, w_rs=224, wfmt=224, FB=FB, ACC=ACC, vWr=10, X=X, XW=XW, LA=LA5)
    a(f"""
    s_lshl_b32 s39, s17, 7
    s_lshl_b32 s23, s3, 5
    s_add_u32 s39, s39, s23
    s_lshl_b32 s38, s39, 10
    s_mul_i32 s20, s3, 7168
    s_mul_i32 s37, s16, 114688
    s_add_u32 s20, s20, s37
    s_cmp_ge_u32 s24, 4
    s_cbranch_scc1 K5_loader
    v_and_b32 v14, 15, v2
    v_lshrrev_b32 v15, 4, v2
    v_add_u32 v14, s39, v14
    v_lshlrev_b32 v13, 6, v14
    s_mul_i32 s21, s16, 448
    v_lshl_add_u32 v8, v15, 4, s21
    v_lshl_add_u32 v11, v2, 4, s38
    v_add_u32 v12, 0x4000, v11         ; tt1
    s_waitcnt lgkmcnt(0)
    """)
    SV = 232
    gstamp(0)
    ws_ptr(8, 4, 'X1'); ws_ptr(24, 4, 'ST3'); ws_ptr(26, 4, 'HH'); ws_ptr(28, 4, 'CS', 2048)
    for tt in range(2):
        for q in range(4):
            r = ACC + 16*tt + 4*q
            a(f'global_load_dwordx4 v[{r}:{r+3}], v13, s[24:25] offset:{1024*tt + 16*q}')
    CSR = 204
    for cb in range(7):
        a(f'global_load_dwordx4 v[{CSR+4*cb}:{CSR+4*cb+3}], v8, s[28:29] offset:{64*cb}')
    def aload(st):
        if st % 4 == 0 and st:
            a('s_add_u32 s8, s8, 4096')
            a('s_addc_u32 s9, s9, 0')
        for tt in range(2):
            x = X + 4*(2*(st % XW) + tt)
            a(f'global_load_dwordx4 v[{x}:{x+3}], v{11+tt}, s[8:9] offset:{1024*(st&3)}')
    for st in range(XW):
        aload(st)
    gstamp(1)
    R.comp_setup(3, 4, 5)
    a(f's_waitcnt vmcnt({7 + 2*XW})')
    for tt in range(2):
        b = ACC + 16*tt
        for i in (8, 4, 2):
            for j in range(0, i, 2):
                a(f'v_pk_add_f32 v[{b+j}:{b+j+1}], v[{b+j}:{b+j+1}], v[{b+j+i}:{b+j+i+1}]')
        a(f'v_mul_f32 v{b}, {hx(1/512)}, v{b}')
        a(f'v_mul_f32 v{b+1}, {hx(1/512)}, v{b+1}')
        a(f'v_fma_f32 v{b+1}, -v{b}, v{b}, v{b+1}')
        a(f'v_max_f32 v{b+1}, 0, v{b+1}')
        ln_scalars(b, b+1, 3)
        a(f'v_mov_b32 v{4+2*tt}, v{b+1}')
        a(f'v_mul_f32 v{5+2*tt}, v{b}, v{b+1}')
    for i in range(56):
        a(f'v_mov_b32 v{ACC+i}, 0')
    gstamp(2)
    R.compute(aload)
    gstamp(3)
    a(f"""
    v_mov_b32 v72, {hx(GC1)}
    v_mov_b32 v73, {hx(GC2)}
    v_mov_b32 v74, 1.0
    v_mov_b32 v75, 1.0
    s_mul_i32 s21, s39, 3584
    s_mul_i32 s22, s16, 3584
    s_add_u32 s21, s21, s22
    v_and_b32 v3, 1, v15
    v_lshrrev_b32 v13, 1, v15
    v_and_b32 v8, 15, v2
    v_lshl_add_u32 v8, v8, 4, s21
    v_lshl_add_u32 v12, v3, 1, v13
    v_lshl_add_u32 v12, v12, 8, v8
    v_add_u32 v11, 57344, v12          ; tt1
    v_mul_u32_u24 v3, 57344, v3
    v_lshl_add_u32 v10, v13, 8, v8
    v_add_u32 v10, v10, v3
    """)
    O = 80
    for tt in range(2):
        zs = [ACC + 28*tt + 2*p for p in range(14)]
        affine_round(zs, [CSR + 2*p for p in range(14)], 4+2*tt, 64)
        gelu_pairs(zs, 72, 64)
        for p in range(14):
            d = O + 16*tt + p if p < 12 else 112 + 2*tt + (p - 12)
            a(f'v_cvt_pk_bf16_f32 v{d}, v{zs[p]}, v{zs[p]+1}')
        a('s_nop 1')
        for P in range(3):
            o = O + 16*tt + 4*P
            a(f'v_permlane16_swap_b32 v{o}, v{o+2}')
            a(f'v_permlane16_swap_b32 v{o+1}, v{o+3}')
        a('s_nop 1')
        for P in range(3):
            o = O + 16*tt + 4*P
            a(f'global_store_dwordx4 v{12-tt}, v[{o}:{o+3}], s[26:27] offset:{1024*P}{SC3}')
    a('v_permlane16_swap_b32 v112, v114')
    a('v_permlane16_swap_b32 v113, v115')
    a('s_nop 1')
    a(f'global_store_dwordx4 v10, v[112:115], s[26:27] offset:3072{SC3}')
    gstamp(4)
    if GST: a('s_waitcnt vmcnt(0)')
    gstamp(5)
    trace_end(4)
    a('s_endpgm')
    a.label('K5_loader')
    a('s_waitcnt lgkmcnt(0)')
    ws_ptr(12, 4, 'W3P')
    a(f's_mov_b32 s14, {512*3584}')
    a('s_mov_b32 s15, 0x00020000')
    R.loader()
    if PF5:
        a('v_and_b32 v0, 255, v0')
        l2_prefetch(40, 1792*1024, 24, 28, 21)
    a.label('K5_exit')
    a.end_kernel(name, (256,1,1), (512,1,1), 4*R.SLOT, 240)

def gen_k6():
    global SV
    SV = 176
    name = 'k6_kernel'
    a.begin_kernel(name)
    a(f"""
    s_cmp_ge_u32 s2, 256
    s_cbranch_scc1 K6_exit
    s_load_dwordx2 s[4:5], s[0:1], {KA['ws']}
    s_load_dwordx2 s[6:7], s[0:1], {KA['w4']}
    s_load_dwordx2 s[26:27], s[0:1], {KA['out']}
    """)
    trace_begin()
    a(f"""
    v_lshrrev_b32 v1, 6, v0
    v_and_b32 v2, 63, v0
    v_readfirstlane_b32 s24, v1
    s_and_b32 s3, s24, 3
    {MAP64}
    """)
    wave_krow(18)
    ACC = 36; FB = 64; X = 96; XW = 16
    R = Ring4(TT=1, NT=4, nch=14, nslots=8, w_rs=1024, wfmt=128, FB=FB, ACC=ACC, vWr=10, X=X, XW=XW, rot=True, LA=LA6)
    a(f"""
    s_lshl_b32 s39, s17, 6
    s_lshl_b32 s23, s3, 4
    s_add_u32 s39, s39, s23
    s_lshl_b32 s38, s39, 10
    s_lshl_b32 s20, s18, 10
    s_lshl_b32 s37, s16, 7
    s_add_u32 s20, s20, s37
    s_lshl_b32 s34, s17, 1
    s_add_u32 s34, s34, s16
    s_mul_hi_u32 s35, s34, 0x24924925
    s_mul_i32 s35, s35, 7
    s_sub_u32 s34, s34, s35
    s_lshl_b32 s34, s34, 1
    s_cmp_ge_u32 s24, 4
    s_cbranch_scc1 K6_loader
    v_lshrrev_b32 v15, 4, v2
    s_mul_i32 s21, s39, 3584
    v_lshl_add_u32 v17, v2, 4, s21
    s_lshl_b32 s36, s34, 12
    """)
    fra_epi_off(18, 5)
    a('s_waitcnt lgkmcnt(0)')
    ws_ptr(8, 4, 'HH'); ws_ptr(24, 4, 'HR'); ws_ptr(28, 4, 'X1')
    a(f's_mov_b32 s10, {2048*3584}')
    a('s_mov_b32 s11, 0x00020000')
    for cb in range(4):
        a(f'global_load_dwordx2 v[{20+2*cb}:{21+2*cb}], v18, s[24:25] offset:{512*cb}')
    for cb in range(4):
        a(f'global_load_dwordx2 v[{28+2*cb}:{29+2*cb}], v18, s[28:29] offset:{512*cb}')
    def aload(st):
        x = X + 4*(st % XW)
        a(f'buffer_load_dwordx4 v[{x}:{x+3}], v17, s[8:11], s36 offen offset:{1024*(st&3)}')
        if st % 4 == 3:
            a('s_add_u32 s36, s36, 4096')
            a('s_cmp_eq_u32 s36, 57344')
            a('s_cselect_b32 s36, 0, s36')
    for st in range(XW):
        aload(st)
    R.comp_setup(5, 6, 7)
    for i in range(16):
        a(f'v_mov_b32 v{ACC+i}, 0')
    R.compute(aload)
    a('s_nop 7')
    O = 168
    for p in range(8):
        c = ACC + 2*p
        round_pair(c, 60)
        unpack(62, 63, 28 + p)
        a(f'v_pk_add_f32 v[{c}:{c+1}], v[{c}:{c+1}], v[62:63]')
        round_pair(c, 60)
        unpack(62, 63, 20 + p)
        a(f'v_pk_add_f32 v[{c}:{c+1}], v[{c}:{c+1}], v[62:63]')
        a(f'v_cvt_pk_bf16_f32 v{O+p}, v{c}, v{c+1}')
    a(f's_mul_i32 s21, s3, 2560')
    a(f's_add_u32 s21, s21, {8*R.SLOT}')
    store_tile64(O, 38, 26, 37, 64, 21)
    trace_end(5)
    a('s_endpgm')
    a.label('K6_loader')
    a('s_waitcnt lgkmcnt(0)')
    mk_srd(12, 6, 1792*1024)
    R.loader()
    a.label('K6_exit')
    a.end_kernel(name, (256,1,1), (512,1,1), 8*R.SLOT + 10240, 184)
    a.label('K_code_end')

def main():
    gen_k1()
    gen_k2()
    gen_k3()
    gen_k4()
    gen_k5()
    gen_k6()

if __name__ == '__main__':
    out = sys.argv[1] if len(sys.argv) > 1 else 'k.s'
    if 'stamps' in sys.argv[2:]:
        STAMPS = True
    if 'trace' in sys.argv[2:]:
        TRACE = True
    if 'gst' in sys.argv[2:]:
        GST = True
    main()
    open(out, 'w').write(a.text(HEADER))
```

```python
MB = 1 << 20
WS = dict(UT=0, XT=2*MB, KH=4*MB, KL=6*MB, HT=8*MB, HR=10*MB, XB=12*MB, G1=14*MB, X1=16*MB, HH=18*MB,
          W3P=28*MB, SCL=26*MB+32768, CNT=27*MB, CS=26*MB, ST1=26*MB+65536, ST3=26*MB+131072)
```

```python
import sys, struct
from asmlib import *
from gen_ws import WS, MB

KA = dict(x=0, Are=8, Aim=16, Bre=24, Bim=32, Cre=40, Cim=48, ldt=56, Dsk=64, Bx=72, w1=80, w2=88, w3=96, w4=104, out=112, dbg=120, ws=128)

def f2u(f):
    return struct.unpack('<I', struct.pack('<f', f))[0]
def hx(f):
    return hex(f2u(f))

LOG2E = 1.4426950408889634
LOG2E_HI = struct.unpack('<f', struct.pack('<f', LOG2E))[0]
LOG2E_LO = LOG2E - LOG2E_HI
LN2 = 0.6931471805599453
INV2PI = 0.15915494309189535

a = Asm()

def ws_ptr(dst, wsreg, name, extra=0):
    off = WS[name] + extra
    a(f's_add_u32 s{dst}, s{wsreg}, {hex(off)}')
    a(f's_addc_u32 s{dst+1}, s{wsreg+1}, 0')

def row16_allreduce(v):
    for sh in (8, 4, 2, 1):
        a('s_nop 1')
        a(f'v_add_f32_dpp v{v}, v{v}, v{v} row_ror:{sh} row_mask:0xf bank_mask:0xf')

def unpack(dlo, dhi, src):
    a(f'v_lshlrev_b32 v{dlo}, 16, v{src}')
    a(f'v_and_b32 v{dhi}, 0xffff0000, v{src}')

STAMPS = False
PREFETCH = True
MERGE56 = 'm56' in sys.argv
SC2 = ' sc1' if ('sc2' in sys.argv or 'sc3' in sys.argv) else ''
SC3 = ' sc1' if 'sc3' in sys.argv else ''
USC = '' if 'nousc' in sys.argv else ' sc1'
F16 = 'nof16' not in sys.argv
NOPF2 = 'nopf2' in sys.argv
PF2W3 = 'pf2w3' in sys.argv
PF4 = 'pf4' in sys.argv
LA5 = int([x[3:] for x in sys.argv if x.startswith('l5_')][0]) if any(x.startswith('l5_') for x in sys.argv) else 2
LA6 = int([x[3:] for x in sys.argv if x.startswith('l6_')][0]) if any(x.startswith('l6_') for x in sys.argv) else 3
LA0 = int([x[3:] for x in sys.argv if x.startswith('lb_')][0]) if any(x.startswith('lb_') for x in sys.argv) else 2
LA_DEF = int([x[2:] for x in sys.argv if x.startswith('la')][0]) if any(x.startswith('la') for x in sys.argv) else 2
PF2 = 'pf2' in sys.argv
PF5 = 'nopf5' not in sys.argv
SV = 124
def stamp_init():
    if not STAMPS: return
    a(f's_load_dwordx2 s[90:91], s[0:1], {KA["dbg"]}')
def stamp(wg_list, slot):
    if not STAMPS: return
    l = a.newlabel('STP')
    a('s_memtime s[92:93]')
    a('s_waitcnt lgkmcnt(0)')
    a('v_readfirstlane_b32 s95, v0')
    a('s_nop 3')
    a('s_cmp_lg_u32 s95, 0')
    a(f's_cbranch_scc1 {l}')
    for i, wg in enumerate(wg_list):
        l2 = a.newlabel('STQ')
        a(f's_cmp_lg_u32 s2, {wg}')
        a(f's_cbranch_scc1 {l2}')
        a(f'v_mov_b32 v{SV+1}, s92')
        a(f'v_mov_b32 v{SV}, {(i*16+slot+16)*4}')
        a(f'global_store_dword v{SV}, v{SV+1}, s[90:91]')
        a.label(l2)
    a.label(l)

TRACE = False
GST = False
def gstamp(slot):
    if not GST: return
    l = a.newlabel('GST')
    a('s_memrealtime s[92:93]')
    a('v_readfirstlane_b32 s95, v0')
    a('s_waitcnt lgkmcnt(0)')
    a('s_cmp_lg_u32 s95, 0')
    a(f's_cbranch_scc1 {l}')
    a(f'v_mov_b32 v{SV+1}, s92')
    a('s_lshl_b32 s95, s2, 6')
    a(f's_add_u32 s95, s95, {40*MB + slot*4}')
    a(f'v_mov_b32 v{SV}, s95')
    a(f'global_store_dword v{SV}, v{SV+1}, s[4:5]')
    a.label(l)
def trace_begin():
    if not TRACE: return
    a('s_memrealtime s[96:97]')
    a('s_getreg_b32 s98, hwreg(HW_REG_HW_ID)')
    a('s_getreg_b32 s99, hwreg(HW_REG_XCC_ID)')
def trace_end(kidx):
    if not TRACE: return
    l = a.newlabel('TRC')
    a('s_mov_b64 exec, -1')
    a('s_memrealtime s[100:101]')
    a('v_readfirstlane_b32 s95, v0')
    a('s_waitcnt lgkmcnt(0)')
    a('s_cmp_lg_u32 s95, 0')
    a(f's_cbranch_scc1 {l}')
    a(f'v_mov_b32 v{SV}, s96')
    a(f'v_mov_b32 v{SV+1}, s100')
    a(f'v_mov_b32 v{SV+2}, s98')
    a(f'v_mov_b32 v{SV+3}, s99')
    a('s_lshl_b32 s95, s2, 4')
    a(f's_add_u32 s95, s95, {hex(32*MB + kidx*65536)}')
    a(f'v_mov_b32 v{SV+4}, s95')
    a(f'global_store_dwordx4 v{SV+4}, v[{SV}:{SV+3}], s[4:5]')
    a.label(l)

def l2_prefetch(sptr, total_bytes, vtmp, vdst, stmp):
    per = total_bytes // 32
    assert per % 4096 == 0
    a(f's_lshr_b32 s{stmp}, s2, 3')
    a(f's_mul_i32 s{stmp}, s{stmp}, {per}')
    a(f'v_lshl_add_u32 v{vtmp}, v0, 4, s{stmp}')
    for i in range(per // 4096):
        a(f'global_load_dwordx4 v[{vdst}:{vdst+3}], v{vtmp}, s[{sptr}:{sptr+1}]')
        if i < per // 4096 - 1:
            a(f's_add_u32 s{sptr}, s{sptr}, 4096')
            a(f's_addc_u32 s{sptr+1}, s{sptr+1}, 0')

CODEPF = 'nocpf' not in sys.argv
def code_prefetch(first_label, last_label, vt, vdst, sp):
    if not CODEPF: return
    l = a.newlabel('CPF')
    a(f's_getpc_b64 s[{sp}:{sp+1}]')
    a.label(l)
    a(f's_add_u32 s{sp}, s{sp}, {first_label}-{l}')
    a(f's_addc_u32 s{sp+1}, s{sp+1}, 0')
    a(f's_bfe_u32 s{sp+2}, s2, 0x50003')
    a(f's_lshl_b32 s{sp+2}, s{sp+2}, 10')
    a(f'v_and_b32 v{vt}, 63, v0')
    a(f'v_lshl_add_u32 v{vt}, v{vt}, 4, s{sp+2}')
    a(f'v_min_u32 v{vt}, {last_label}-{first_label}-16, v{vt}')
    a(f'global_load_dwordx4 v[{vdst}:{vdst+3}], v{vt}, s[{sp}:{sp+1}]')

def ln_scalars(S, Q, T):
    a(f'v_cvt_pk_bf16_f32 v{T}, v{S}, v{Q}')
    unpack(S, Q, T)
    a(f'v_add_f32 v{Q}, {hx(1e-5)}, v{Q}')
    a(f'v_cvt_pk_bf16_f32 v{T}, v{Q}, v{Q}')
    a(f'v_lshlrev_b32 v{Q}, 16, v{T}')
    a(f'v_sqrt_f32 v{Q}, v{Q}')
    a('s_nop 0')
    a(f'v_cvt_pk_bf16_f32 v{T}, v{Q}, v{Q}')
    a(f'v_lshlrev_b32 v{Q}, 16, v{T}')
    a(f'v_rcp_f32 v{Q}, v{Q}')
    a('s_nop 0')

def gen_k1():
    global SV
    SV = 96
    name = 'k1_kernel'
    SW = [0, 64, 82]
    a.begin_kernel(name)
    a(f"""
    s_cmp_ge_u32 s2, 274
    s_cbranch_scc1 K1_exit
    s_load_dwordx2 s[4:5], s[0:1], {KA['ws']}
    """)
    stamp_init(); stamp(SW, 0); trace_begin()

    a(f"""
    s_cmp_lt_u32 s2, 256
    s_cbranch_scc1 K1_kgen
    """)
    a(f"""
    s_waitcnt lgkmcnt(0)
    s_add_u32 s20, s4, {hex(WS['CNT'])}
    s_addc_u32 s21, s5, 0
    v_lshlrev_b32 v1, 4, v0
    v_mov_b32 v4, 0
    v_mov_b32 v5, 0
    v_mov_b32 v6, 0
    v_mov_b32 v7, 0
    global_store_dwordx4 v1, v[4:7], s[20:21]
    s_sub_u32 s3, s2, 256            ; 0..17 : 0..3 -> w1 ; 4..17 -> w3
    s_load_dwordx2 s[6:7], s[0:1], {KA['w1']}
    s_load_dwordx2 s[8:9], s[0:1], {KA['w3']}
    s_movk_i32 s10, 1024
    s_lshl_b32 s11, s3, 8
    s_cmp_lt_u32 s3, 4
    s_waitcnt lgkmcnt(0)
    s_cbranch_scc1 K1_cs_w1
    s_mov_b32 s6, s8
    s_mov_b32 s7, s9
    s_movk_i32 s10, 3584
    s_sub_u32 s11, s11, 1024
    """)
    a.label('K1_cs_w1')
    a("""
    v_lshrrev_b32 v1, 4, v0          ; rg 0..31
    v_and_b32 v2, 15, v0
    v_mul_lo_u32 v3, v1, s10
    v_lshl_add_u32 v3, v2, 4, v3
    v_add_u32 v3, s11, v3
    s_lshl_b32 s12, s10, 5           ; 32 rows
    """)
    for i in range(16):
        a(f'global_load_dwordx4 v[{8+4*i}:{11+4*i}], v3, s[6:7]')
        if i < 15:
            a('s_add_u32 s6, s6, s12')
            a('s_addc_u32 s7, s7, 0')
    AC = 76
    for j in range(8):
        a(f'v_mov_b32 v{AC+j}, 0')
    for i in range(16):
        a(f's_waitcnt vmcnt({15-i})')
        for j in range(4):
            unpack(84+2*(j&1), 85+2*(j&1), 8+4*i+j)
            a(f'v_pk_add_f32 v[{AC+2*j}:{AC+2*j+1}], v[{AC+2*j}:{AC+2*j+1}], v[{84+2*(j&1)}:{85+2*(j&1)}]')
    a(f"""
    v_lshlrev_b32 v4, 5, v0          ; rg*512 + c*32
    ds_write_b128 v4, v[{AC}:{AC+3}]
    ds_write_b128 v4, v[{AC+4}:{AC+7}] offset:16
    v_lshlrev_b32 v5, 2, v0
    s_waitcnt lgkmcnt(0)
    s_barrier
    v_cmp_gt_u32 vcc, 128, v0
    s_and_saveexec_b64 s[14:15], vcc
    s_cbranch_execz K1_end
    """)
    for i in range(32):
        a(f'ds_read_b32 v{8+i}, v5 offset:{512*i}')
    ws_ptr(8, 4, 'CS')
    a('s_lshl_b32 s3, s3, 9')
    a('v_add_u32 v5, s3, v5')
    a('s_waitcnt lgkmcnt(0)')
    for st in (16, 8, 4, 2, 1):
        for i in range(st):
            a(f'v_add_f32 v{8+i}, v{8+i}, v{8+i+st}')
    a('global_store_dword v5, v8, s[8:9]')
    a('s_branch K1_end')

    a.label('K1_kgen')
    a(f"""
    s_load_dwordx4 s[8:11], s[0:1], {KA['Are']}
    s_load_dwordx4 s[12:15], s[0:1], {KA['Bre']}
    s_load_dwordx4 s[16:19], s[0:1], {KA['Cre']}
    s_load_dwordx2 s[20:21], s[0:1], {KA['ldt']}
    s_load_dwordx2 s[6:7], s[0:1], {KA['x']}
    s_lshl_b32 s3, s2, 1             ; d0
    v_lshrrev_b32 v1, 8, v0
    v_add_u32 v1, s3, v1             ; d
    v_lshrrev_b32 v2, 6, v0          ; wave
    v_and_b32 v3, 31, v0
    v_lshl_add_u32 v3, v2, 5, v3     ; (ch*128 + n)
    s_lshl_b32 s26, s3, 8
    v_lshlrev_b32 v14, 4, v3
    v_lshl_add_u32 v3, v3, 1, s26    ; d*256 + n*2
    v_lshlrev_b32 v4, 1, v1
    v_and_b32 v5, 15, v0             ; idx
    v_bfe_u32 v6, v0, 4, 2           ; nn
    s_lshl_b32 s26, s2, 13
    v_lshl_add_u32 v92, v0, 4, s26   ; (8wg + wave)*1024 + lane*16
    s_waitcnt lgkmcnt(0)
    global_load_ushort v7, v4, s[20:21]
    global_load_ushort v8, v3, s[8:9]
    global_load_ushort v9, v3, s[10:11]
    global_load_ushort v10, v3, s[12:13]
    global_load_ushort v11, v3, s[14:15]
    global_load_ushort v12, v3, s[16:17]
    global_load_ushort v13, v3, s[18:19]
    global_load_dwordx4 v[76:79], v92, s[6:7]
    """)
    ws_ptr(22, 4, 'KH'); ws_ptr(24, 4, 'KL')
    if PREFETCH:
        a(f"""
        s_load_dwordx4 s[28:31], s[0:1], {KA['w1']}
        s_load_dwordx4 s[32:35], s[0:1], {KA['w3']}
        s_mov_b32 s36, s2
        s_mul_i32 s37, s36, 7168
        v_min_u32 v44, 447, v0
        v_lshl_add_u32 v44, v44, 4, s37
        s_lshl_b32 s37, s36, 11
        v_and_b32 v45, 127, v0
        v_lshl_add_u32 v45, v45, 4, s37
        s_waitcnt lgkmcnt(0)
        global_load_dwordx4 v[72:75], v44, s[34:35]
        global_load_dwordx4 v[72:75], v44, s[32:33]
        global_load_dwordx4 v[72:75], v45, s[30:31]
        global_load_dwordx4 v[72:75], v45, s[28:29]
        """)
    code_prefetch('k2_kernel', 'k4_kernel', 44, 72, 36)
    a("""
    v_lshrrev_b32 v40, 3, v5
    v_lshlrev_b32 v40, 7, v40
    v_and_or_b32 v32, v5, 7, v40
    v_bfe_u32 v40, v5, 2, 1
    v_lshlrev_b32 v40, 7, v40
    v_and_b32 v41, 3, v5
    v_lshl_add_u32 v40, v41, 1, v40
    v_add_u32 v40, 256, v40
    v_bfe_u32 v41, v5, 1, 2
    v_lshlrev_b32 v41, 7, v41
    v_and_b32 v33, 1, v5
    v_lshl_add_u32 v41, v33, 2, v41
    v_add_u32 v41, 512, v41
    v_cmp_gt_u32 vcc, 8, v5
    v_lshlrev_b32 v34, 7, v5
    v_add_u32 v34, 1024, v34
    v_cndmask_b32 v33, v41, v40, vcc
    v_lshlrev_b32 v35, 3, v5
    v_cvt_f32_u32 v32, v32
    v_cvt_f32_u32 v33, v33
    v_cvt_f32_u32 v34, v34
    v_cvt_f32_u32 v35, v35
    v_mul_u32_u24 v42, 3072, v2
    v_add_u32 v42, 4096, v42
    v_lshrrev_b32 v40, 1, v6
    v_lshlrev_b32 v40, 7, v40
    v_and_b32 v41, 1, v6
    v_lshl_add_u32 v40, v41, 2, v40
    v_lshl_add_u32 v40, v5, 3, v40
    v_lshl_add_u32 v36, v40, 2, v42
    v_lshlrev_b32 v40, 6, v6
    v_add_u32 v40, 256, v40
    v_lshl_add_u32 v41, v5, 2, v40
    v_lshl_add_u32 v40, v5, 1, v40
    v_cmp_gt_u32 vcc, 2, v6
    v_mov_b32 v43, 32
    s_nop 0
    v_cndmask_b32 v40, v40, v41, vcc
    v_cndmask_b32 v43, v43, 2, vcc
    v_lshl_add_u32 v37, v40, 2, v42
    v_lshl_add_u32 v38, v43, 2, v37
    v_lshlrev_b32 v40, 6, v6
    v_add_u32 v40, v40, v5
    v_add_u32 v40, 512, v40
    v_lshl_add_u32 v39, v40, 2, v42
    v_lshlrev_b32 v15, 9, v2
    v_lshl_add_u32 v15, v6, 4, v15
    """)
    stamp(SW, 1)
    a(f's_waitcnt vmcnt({5 + CODEPF})')
    a(f"""
    v_lshlrev_b32 v7, 16, v7
    v_mul_f32 v40, {hx(LOG2E_HI)}, v7
    s_mov_b32 s26, {hx(LOG2E_HI)}
    v_fma_f32 v41, v7, s26, -v40
    v_mov_b32 v43, {hx(LOG2E_LO)}
    v_fmac_f32 v41, v7, v43
    v_exp_f32 v40, v40
    v_mul_f32 v41, {hx(LN2)}, v41
    v_lshlrev_b32 v8, 16, v8
    v_fmac_f32 v40, v40, v41
    v_cvt_pk_bf16_f32 v40, v40, v40
    v_lshlrev_b32 v7, 16, v40         ; dt
    v_lshlrev_b32 v9, 16, v9
    v_lshlrev_b32 v10, 16, v10
    v_lshlrev_b32 v11, 16, v11
    v_lshlrev_b32 v12, 16, v12
    v_lshlrev_b32 v13, 16, v13
    v_mul_f32 v16, v7, v8
    v_mul_f32 v17, v7, v9
    v_mul_f32 v16, {hx(LOG2E)}, v16
    v_mul_f32 v17, {hx(INV2PI)}, v17
    v_mul_f32 v10, v7, v10
    v_mul_f32 v11, v7, v11
    v_mul_f32 v18, v12, v10
    v_mul_f32 v19, v12, v11
    v_fma_f32 v18, -v13, v11, v18
    v_fmac_f32 v19, v13, v10
    ds_write_b128 v14, v[16:19]
    """)
    def ln_block():
        LB = 32768
        F = 80
        ws_ptr(28, 4, 'UT'); ws_ptr(30, 4, 'XT')
        a(f"""
        v_and_b32 v95, 63, v0
        v_mul_u32_u24 v28, 1056, v2
        v_lshl_add_u32 v28, v95, 4, v28
        ds_write_b128 v28, v[76:79] offset:{LB+8448}
        """)
        for i in range(4):
            unpack(F+2*i, F+2*i+1, 76+i)
        def wave_allreduce(v, t):
            row16_allreduce(v)
            a(f'v_mov_b32 v{t}, v{v}')
            a('s_nop 1')
            a(f'v_permlane16_swap_b32 v{v}, v{t}')
            a('s_nop 1')
            a(f'v_add_f32 v{v}, v{v}, v{t}')
            a(f'v_mov_b32 v{t}, v{v}')
            a('s_nop 1')
            a(f'v_permlane32_swap_b32 v{v}, v{t}')
            a('s_nop 1')
            a(f'v_add_f32 v{v}, v{v}, v{t}')
        a(f"""
        v_pk_add_f32 v[88:89], v[{F}:{F+1}], v[{F+2}:{F+3}]
        v_pk_add_f32 v[90:91], v[{F+4}:{F+5}], v[{F+6}:{F+7}]
        v_pk_add_f32 v[88:89], v[88:89], v[90:91]
        v_add_f32 v88, v88, v89
        """)
        wave_allreduce(88, 89)
        a(f'v_mul_f32 v88, {hx(1/512)}, v88')
        a('v_mov_b32 v90, 0')
        a('v_mov_b32 v91, 0')
        for i in range(4):
            a(f'v_pk_add_f32 v[92:93], v[{F+2*i}:{F+2*i+1}], v[88:89] op_sel_hi:[1,0] neg_lo:[0,1] neg_hi:[0,1]')
            a('v_pk_fma_f32 v[90:91], v[92:93], v[92:93], v[90:91]')
        a('v_add_f32 v90, v90, v91')
        wave_allreduce(90, 91)
        a(f'v_mul_f32 v90, {hx(1/512)}, v90')
        ln_scalars(88, 90, 92)
        for i in range(4):
            f0 = F+2*i
            a(f'v_pk_add_f32 v[{f0}:{f0+1}], v[{f0}:{f0+1}], v[88:89] op_sel_hi:[1,0] neg_lo:[0,1] neg_hi:[0,1]')
            a(f'v_cvt_pk_bf16_f32 v92, v{f0}, v{f0+1}')
            unpack(f0, f0+1, 92)
            a(f'v_pk_mul_f32 v[{f0}:{f0+1}], v[{f0}:{f0+1}], v[90:91] op_sel_hi:[1,0]')
            a(f'v_cvt_pk_bf16_f32 v{76+i}, v{f0}, v{f0+1}')
            if F16:
                unpack(f0, f0+1, 76+i)
                a(f'v_cvt_pk_f16_f32 v{76+i}, v{f0}, v{f0+1}')
        a(f"""
        ds_write_b128 v28, v[76:79] offset:{LB}
        v_bfe_u32 v28, v0, 2, 2
        v_mul_u32_u24 v28, 1056, v28
        v_lshrrev_b32 v29, 4, v0
        v_lshlrev_b32 v29, 5, v29
        v_and_b32 v95, 3, v0
        v_lshlrev_b32 v95, 3, v95
        v_add3_u32 v28, v28, v29, v95
        v_lshrrev_b32 v94, 1, v0
        v_lshlrev_b32 v94, 13, v94
        v_and_b32 v95, 1, v0
        v_lshl_add_u32 v94, v95, 4, v94
        s_lshl_b32 s26, s2, 5
        v_add_u32 v94, s26, v94
        s_waitcnt lgkmcnt(0)
        s_barrier
        ds_read_b64_tr_b16 v[76:77], v28 offset:{LB}
        ds_read_b64_tr_b16 v[78:79], v28 offset:{LB+4224}
        ds_read_b64_tr_b16 v[80:81], v28 offset:{LB+8448}
        ds_read_b64_tr_b16 v[82:83], v28 offset:{LB+8448+4224}
        s_waitcnt lgkmcnt(2)
        global_store_dwordx4 v94, v[76:79], s[28:29]{USC}
        s_waitcnt lgkmcnt(0)
        global_store_dwordx4 v94, v[80:83], s[30:31]{USC}
        """)
    ACC = 60
    for i in range(12):
        a(f'v_mov_b32 v{ACC+i}, 0')
    a('s_waitcnt lgkmcnt(0)')
    a('ds_read_b128 v[16:19], v15')
    a('ds_read_b128 v[24:27], v15 offset:64')
    a('s_mov_b32 s27, 0')
    def split(H, L, R, t):
        a(f'v_cvt_pk_bf16_f32 v{H}, v{R}, v{R+1}')
        a(f'v_lshlrev_b32 v{t}, 16, v{H}')
        a(f'v_and_b32 v{t+1}, 0xffff0000, v{H}')
        a(f'v_pk_add_f32 v[{t}:{t+1}], v[{R}:{R+1}], v[{t}:{t+1}] neg_lo:[0,1] neg_hi:[0,1]')
        a(f'v_cvt_pk_bf16_f32 v{L}, v{t}, v{t+1}')
    for it in range(2):
        for u in range(4):
            P = 16 + 8*(u & 1)
            a(f's_waitcnt lgkmcnt({1})')
            a(f"""
            v_pk_mul_f32 v[44:45], v[{P}:{P+1}], v[34:35] op_sel:[0,1] op_sel_hi:[1,1]
            v_pk_mul_f32 v[46:47], v[{P}:{P+1}], v[32:33] op_sel:[0,0] op_sel_hi:[1,0]
            v_pk_mul_f32 v[48:49], v[{P}:{P+1}], v[32:33] op_sel:[0,1] op_sel_hi:[1,1]
            v_pk_mul_f32 v[50:51], v[{P}:{P+1}], v[34:35] op_sel:[0,0] op_sel_hi:[1,0]
            v_fract_f32 v45, v45
            v_fract_f32 v47, v47
            v_fract_f32 v49, v49
            v_fract_f32 v51, v51
            v_exp_f32 v44, v44
            v_cos_f32 v52, v45
            v_sin_f32 v53, v45
            v_exp_f32 v46, v46
            v_cos_f32 v54, v47
            v_sin_f32 v55, v47
            v_pk_mul_f32 v[52:53], v[52:53], v[44:45] op_sel_hi:[1,0]
            v_exp_f32 v48, v48
            v_cos_f32 v56, v49
            v_sin_f32 v57, v49
            v_pk_mul_f32 v[54:55], v[54:55], v[46:47] op_sel_hi:[1,0]
            v_pk_mul_f32 v[20:21], v[{P+2}:{P+3}], v[52:53] op_sel:[0,0] op_sel_hi:[0,1] neg_hi:[1,0]
            v_exp_f32 v50, v50
            v_cos_f32 v58, v51
            v_sin_f32 v59, v51
            v_pk_fma_f32 v[20:21], v[{P+2}:{P+3}], v[52:53], v[20:21] op_sel:[1,1,0] op_sel_hi:[1,0,1] neg_lo:[1,0,0] neg_hi:[1,0,0]
            v_pk_mul_f32 v[56:57], v[56:57], v[48:49] op_sel_hi:[1,0]
            v_pk_mul_f32 v[58:59], v[58:59], v[50:51] op_sel_hi:[1,0]
            ds_read_b128 v[{P}:{P+3}], v15 offset:{128+64*u}
            """)
            split(96+u, 100+u, 54, 44)
            split(120+u, 124+u, 20, 46)
            split(104+u, 108+u, 56, 48)
            split(112+u, 116+u, 58, 50)
        a('s_nop 1')
        a('v_add_u32 v15, 256, v15')
        for t in range(3):
            a(f'v_mfma_f32_16x16x32_bf16 v[{60+4*t}:{63+4*t}], v[{96+8*t}:{99+8*t}], v[120:123], v[{60+4*t}:{63+4*t}]')
        for t in range(3):
            a(f'v_mfma_f32_16x16x32_bf16 v[{60+4*t}:{63+4*t}], v[{96+8*t}:{99+8*t}], v[124:127], v[{60+4*t}:{63+4*t}]')
        for t in range(3):
            a(f'v_mfma_f32_16x16x32_bf16 v[{60+4*t}:{63+4*t}], v[{100+8*t}:{103+8*t}], v[120:123], v[{60+4*t}:{63+4*t}]')
        if it == 0:
            a(f's_waitcnt vmcnt({4 + CODEPF})')
            a('s_waitcnt lgkmcnt(0)')
            ln_block()
    a('s_waitcnt lgkmcnt(0)')
    a(f"""
    v_and_b32 v8, 63, v0
    v_bfe_u32 v9, v0, 6, 2
    v_lshlrev_b32 v8, 5, v8
    v_lshl_add_u32 v8, v9, 3, v8      ; s0 = 32a+8q
    v_cmp_gt_u32 vcc, 256, v8
    v_cvt_f32_u32 v9, v8
    v_lshrrev_b32 v11, 8, v0
    v_mul_u32_u24 v11, 12288, v11
    v_add_u32 v11, 4096, v11
    v_lshl_add_u32 v10, v8, 2, v11
    v_subrev_u32 v11, {4*(0x4380-256)}, v11
    """)
    for p in range(4):
        a(f'v_add_f32 v12, {hx(7.0-2*p)}, v9')
        a(f'v_add_f32 v13, {hx(6.0-2*p)}, v9')
        a('v_cvt_pk_bf16_f32 v12, v12, v13')
        a('v_lshrrev_b32 v13, 16, v12')
        a('v_and_b32 v12, 0xffff, v12')
        a('v_lshl_add_u32 v12, v12, 2, v11')
        a('v_lshl_add_u32 v13, v13, 2, v11')
        a(f'v_add_u32 v14, {4*(7-2*p)}, v10')
        a(f'v_add_u32 v16, {4*(6-2*p)}, v10')
        a(f'v_cndmask_b32 v{24+2*p}, v12, v14, vcc')
        a(f'v_cndmask_b32 v{25+2*p}, v13, v16, vcc')
    if F16:
        a("""
        v_max3_f32 v14, |v60|, |v61|, |v62|
        v_max3_f32 v16, |v63|, |v64|, |v65|
        v_max3_f32 v17, |v66|, |v67|, |v68|
        v_max3_f32 v18, |v69|, |v70|, |v71|
        v_max3_f32 v14, v14, v16, v17
        v_max_f32 v14, v14, v18
        """)
        for sh in (8, 4, 2, 1):
            a('s_nop 1')
            a(f'v_max_f32_dpp v14, v14, v14 row_ror:{sh} row_mask:0xf bank_mask:0xf')
        a("""
        v_mov_b32 v16, v14
        s_nop 1
        v_permlane16_swap_b32 v14, v16
        s_nop 1
        v_max_f32 v14, v14, v16
        v_mov_b32 v16, v14
        s_nop 1
        v_permlane32_swap_b32 v14, v16
        s_nop 1
        v_max_f32 v14, v14, v16
        v_lshlrev_b32 v16, 2, v2
        ds_write_b32 v16, v14 offset:28672
        """)
    for rr in range(4):
        a(f'ds_write_b32 v36, v{60+rr} offset:{4*rr}')
    for rr in range(4):
        a(f'ds_write_b32 v{37+(rr>>1)}, v{64+rr} offset:{4*(rr&1)}')
    for rr in range(4):
        a(f'ds_write_b32 v39, v{68+rr} offset:{64*rr}')
    a("""
    s_lshl_b32 s26, s3, 12
    v_lshl_add_u32 v12, v0, 4, s26    ; d0*4096 + tid*16
    s_waitcnt lgkmcnt(0)
    s_barrier
    """)
    if F16:
        a('v_lshrrev_b32 v15, 8, v0')
        a('v_lshlrev_b32 v15, 4, v15')
        a('ds_read_b128 v[16:19], v15 offset:28672')
    for kk in range(8):
        for w in range(4):
            a(f'ds_read_b32 v{32+4*kk+w}, v{24+kk} offset:{3072*w}')
    a('s_waitcnt lgkmcnt(0)')
    for kk in range(8):
        b = 32+4*kk
        a(f'v_add_f32 v{b}, v{b}, v{b+1}')
        a(f'v_add_f32 v{b+2}, v{b+2}, v{b+3}')
    for kk in range(8):
        b = 32+4*kk
        a(f'v_add_f32 v{b}, v{b}, v{b+2}')
    if F16:
        a("""
        v_add_f32 v14, v16, v17
        v_add_f32 v15, v18, v19
        v_add_f32 v14, v14, v15
        v_lshrrev_b32 v14, 23, v14
        v_max_u32 v14, 15, v14
        v_sub_u32 v15, 268, v14
        v_lshlrev_b32 v15, 23, v15         ; scale
        v_subrev_u32 v14, 14, v14
        v_lshlrev_b32 v14, 23, v14
        """)
        for kk in range(8):
            a(f'v_mul_f32 v{32+4*kk}, v{32+4*kk}, v15')
        for p in range(4):
            a(f'v_cvt_pk_f16_f32 v{64+p}, v{32+8*p}, v{36+8*p}')
        a(f'global_store_dwordx4 v12, v[64:67], s[22:23]{SC2}')
        ws_ptr(24, 4, 'SCL')
        a("""
        v_and_b32 v16, 255, v0
        v_cmp_eq_u32 vcc, 0, v16
        v_lshlrev_b32 v16, 2, v1
        s_and_saveexec_b64 s[26:27], vcc
        s_cbranch_execz K1_nosc
        global_store_dword v16, v14, s[24:25]
        """)
        a.label('K1_nosc')
        a('s_mov_b64 exec, s[26:27]')
    else:
        for p in range(4):
            k0, k1 = 32+8*p, 36+8*p
            a(f'v_cvt_pk_bf16_f32 v{64+p}, v{k0}, v{k1}')
            unpack(14, 15, 64+p)
            a(f'v_sub_f32 v{k0}, v{k0}, v14')
            a(f'v_sub_f32 v{k1}, v{k1}, v15')
            a(f'v_cvt_pk_bf16_f32 v{68+p}, v{k0}, v{k1}')
        a('global_store_dwordx4 v12, v[64:67], s[22:23]')
        a('global_store_dwordx4 v12, v[68:71], s[24:25]')
    a.label('K1_end')
    trace_end(0)
    a.label('K1_exit')
    a.end_kernel(name, (274,1,1), (512,1,1), 51200, 128)

def gen_k2():
    global SV
    SV = 128
    name = 'k2_kernel'
    CHB = 45568; KOFF = 33280; RED = 2 * CHB
    a.begin_kernel(name)
    a(f"""
    s_cmp_ge_u32 s2, 256
    s_cbranch_scc1 K2_exit
    s_load_dwordx2 s[4:5], s[0:1], {KA['ws']}
    s_load_dwordx2 s[6:7], s[0:1], {KA['Dsk']}
    s_load_dwordx4 s[40:43], s[0:1], {KA['w1']}
    s_load_dwordx2 s[44:45], s[0:1], {KA['w3']}
    """)
    trace_begin()
    a(f"""
    v_lshrrev_b32 v1, 6, v0            ; wave
    v_and_b32 v2, 63, v0               ; lane
    v_readfirstlane_b32 s30, v1
    s_and_b32 s3, s30, 3
    s_lshl_b32 s16, s2, 1              ; d0
    s_lshr_b32 s17, s3, 1              ; ch
    s_and_b32 s18, s3, 1
    s_add_u32 s19, s16, s17
    s_mul_i32 s20, s17, {CHB}
    s_lshl_b32 s26, s2, 13
    v_lshrrev_b32 v57, 1, v0           ; tau
    v_and_b32 v56, 1, v0               ; ch
    v_lshl_add_u32 v4, v0, 4, s26
    v_mul_u32_u24 v58, {CHB}, v56
    v_cmp_eq_u32 s[58:59], 0, v57
    v_subrev_u32 v5, 32, v4
    v_lshl_add_u32 v120, v57, 4, v58
    v_cndmask_b32 v5, v5, v4, s[58:59]
    v_add_u32 v120, 64, v120
    s_waitcnt lgkmcnt(0)
    """)
    ws_ptr(8, 4, 'UT')
    a("""
    global_load_dwordx4 v[8:11], v5, s[8:9]
    global_load_dwordx4 v[12:15], v4, s[8:9]
    s_cmp_ge_u32 s30, 4
    s_cbranch_scc1 K2_helper
    """)
    ws_ptr(10, 4, 'XT'); ws_ptr(22, 4, 'HT'); ws_ptr(32, 4, 'SCL')
    a(f"""
    v_and_b32 v6, 31, v2
    v_lshrrev_b32 v7, 5, v2
    v_lshlrev_b32 v40, 6, v6
    v_lshl_add_u32 v40, v7, 3, v40
    s_lshl_b32 s27, s18, 11
    v_add_u32 v122, s27, v40
    s_lshl_b32 s26, s18, 5
    v_add_u32 v121, s26, v6
    v_lshlrev_b32 v121, 7, v121
    v_lshl_add_u32 v121, v7, 3, v121
    s_lshl_b32 s26, s2, 13
    s_lshl_b32 s27, s17, 4
    s_add_u32 s26, s26, s27
    v_add_u32 v121, s26, v121
    global_load_dwordx2 v[112:113], v121, s[10:11]
    global_load_dwordx2 v[114:115], v121, s[10:11] offset:32
    global_load_dwordx2 v[116:117], v121, s[10:11] offset:64
    global_load_dwordx2 v[118:119], v121, s[10:11] offset:96
    s_lshl_b32 s26, s19, 1
    v_mov_b32 v42, s26
    global_load_ushort v125, v42, s[6:7]
    v_lshlrev_b32 v42, 1, v42
    global_load_dword v110, v42, s[32:33]
    v_and_b32 v45, 7, v6
    v_mul_u32_u24 v45, 4160, v45
    v_lshrrev_b32 v46, 3, v6
    v_lshl_add_u32 v45, v46, 4, v45
    v_lshlrev_b32 v46, 4, v7
    v_sub_u32 v45, v45, v46
    v_add_u32 v45, 32, v45
    v_add_u32 v126, s20, v45           ; vA'
    v_mul_u32_u24 v46, 1536, v7
    v_lshl_add_u32 v46, v6, 4, v46
    v_add_u32 v46, {KOFF + 512 - 16*63}, v46
    v_add_u32 v127, s20, v46           ; vB
    s_branch K2_copies
    """)
    a.label('K2_helper')
    ws_ptr(12, 4, 'KH')
    a(f"""
    s_mov_b32 s14, {4*MB}
    s_mov_b32 s15, 0x00020000
    """)
    if F16:
        a(f"""
        s_lshl_b32 s24, s18, 11
        s_lshl_b32 s25, s19, 12
        s_add_u32 s24, s24, s25
        s_mul_i32 s25, s18, 3072
        s_add_u32 s25, s25, s20
        s_add_u32 s25, s25, {KOFF+512}
        v_lshlrev_b32 v3, 4, v2
        """)
    else:
        a(f"""
        s_lshl_b32 s24, s18, 21
        s_lshl_b32 s25, s19, 12
        s_add_u32 s24, s24, s25
        s_mul_i32 s25, s18, 6144
        s_add_u32 s25, s25, s20
        s_add_u32 s25, s25, {KOFF+512}
        v_lshlrev_b32 v3, 4, v2
        """)
    nq = 2 if F16 else 4
    for q in range(nq):
        a('s_mov_b32 m0, s25')
        a('s_nop 0')
        a('buffer_load_dwordx4 v3, s[12:15], s24 offen lds')
        if q < nq-1:
            a('s_add_u32 s24, s24, 1024')
            a('s_add_u32 s25, s25, 1536')
    a(f"""
    v_mov_b32 v48, 0
    v_mov_b32 v49, 0
    v_mov_b32 v50, 0
    v_mov_b32 v51, 0
    v_bfe_u32 v45, v0, 5, 3
    v_mul_u32_u24 v45, 1536, v45
    v_and_b32 v46, 31, v0
    v_lshl_add_u32 v45, v46, 4, v45
    ds_write_b128 v45, v[48:51] offset:{KOFF}
    v_add_u32 v45, {CHB}, v45
    ds_write_b128 v45, v[48:51] offset:{KOFF}
    v_bfe_u32 v45, v0, 2, 3
    v_mul_u32_u24 v45, 4160, v45
    v_and_b32 v46, 3, v0
    v_lshl_add_u32 v45, v46, 4, v45
    ds_write_b128 v45, v[48:51]
    ds_write_b128 v45, v[48:51] offset:{CHB}
    """)
    a.label('K2_copies')
    E = 8
    a('s_waitcnt vmcnt(2)' if F16 else 's_waitcnt vmcnt(4)')
    for i in range(4):
        a(f'v_cndmask_b32 v{E+i}, v{E+i}, 0, s[58:59]')
    for i in range(7):
        a(f'v_alignbit_b32 v{52+i}, v{E+i+1}, v{E+i}, 16')
    for i in range(6):
        a(f'v_alignbit_b32 v{60+i}, v{E+i+2}, v{E+i+1}, 16')
    for i in range(6):
        a(f'v_mov_b32 v{66+i}, v{E+i+1}')
    src = {7: E+4, 5: 68, 3: E+2, 1: 66, 0: 52, 2: 60, 4: 54, 6: 62}
    for c in range(8):
        r = src[c]
        a(f'ds_write_b128 v120, v[{r}:{r+3}] offset:{4160*c}')
    ACC = [72, 88]
    for i in range(32):
        a(f'v_mov_b32 v{72+i}, 0')
    a('s_waitcnt vmcnt(0) lgkmcnt(0)')
    a('s_barrier')
    a('s_cmp_lt_u32 s30, 4')
    a('s_cbranch_scc1 K2_main')
    code_prefetch('k4_kernel', 'K_code_end' if MERGE56 else 'k6_kernel', 60, 64, 28)
    a('v_and_b32 v0, 255, v0')
    ws_ptr(46, 4, 'W3P')
    a(f"""
    v_min_u32 v60, 223, v0
    v_mul_u32_u24 v61, 4682, v60
    v_lshrrev_b32 v61, 16, v61         ; ntile
    v_mul_u32_u24 v62, 14, v61
    v_sub_u32 v62, v60, v62            ; ch
    s_mul_i32 s28, s2, 7168
    v_lshl_add_u32 v60, v60, 4, s28
    global_load_dwordx4 v[64:67], v60, s[44:45]
    global_load_dwordx4 v[68:71], v60, s[44:45] offset:3584
    s_lshl_b32 s28, s2, 1              ; k
    s_and_b32 s29, s28, 0x1f3
    s_bfe_u32 s31, s28, 0x10002
    s_lshl_b32 s31, s31, 3
    s_or_b32 s29, s29, s31
    s_bfe_u32 s31, s28, 0x10003
    s_lshl_b32 s31, s31, 2
    s_or_b32 s29, s29, s31
    s_mul_i32 s29, s29, 224
    v_mul_u32_u24 v61, 114688, v61
    v_lshl_add_u32 v61, v62, 4, v61
    v_add_u32 v61, s29, v61
    """)
    if not NOPF2:
        l2_prefetch(40, 512*1024, 63, 72, 28)
        l2_prefetch(42, 512*1024, 63, 72, 28)
        a('s_waitcnt vmcnt(8)')
    else:
        a('s_waitcnt vmcnt(0)')
    a(f'global_store_dwordx4 v61, v[64:67], s[46:47]{SC2}')
    a(f'global_store_dwordx4 v61, v[68:71], s[46:47] offset:224{SC2}')
    a('s_endpgm')
    a.label('K2_main')
    a('s_cmp_eq_u32 s18, 1')
    a('s_cbranch_scc1 K2_roleB')
    def emit_units(units):
        def loads(u, setb):
            out = []; regs = []
            r = 8 + 24*setb if True else 0
            n = 0
            for (d, sl, tiles) in u:
                ra = r + 4*n; n += 1
                out.append(f'ds_read_b128 v[{ra}:{ra+3}], v126 offset:{64*d + 32*(1-sl)}')
                bs = []
                for T in tiles:
                    for arr in range(1 if F16 else 2):
                        rb = r + 4*n; n += 1
                        out.append(f'ds_read_b128 v[{rb}:{rb+3}], v127 offset:{sl*3072 + T*512 + 16*(63-d) + arr*6144}')
                        bs.append((T, rb))
                regs.append((ra, bs))
            assert n <= 6
            return out, regs
        cur_l, cur_r = loads(units[0], 0)
        for l in cur_l: a(l)
        for i, u in enumerate(units):
            if i + 1 < len(units):
                nl, nr = loads(units[i+1], (i+1) & 1)
                for l in nl: a(l)
                a(f's_waitcnt lgkmcnt({len(nl)})')
            else:
                a('s_waitcnt lgkmcnt(0)')
            for (ra, bs) in cur_r:
                for (T, rb) in bs:
                    c = ACC[T]
                    a(f'v_mfma_f32_32x32x16_{"f16" if F16 else "bf16"} v[{c}:{c+15}], v[{ra}:{ra+3}], v[{rb}:{rb+3}], v[{c}:{c+15}]')
            if i + 1 < len(units):
                cur_r = nr
    if F16:
        emit_units([[(d, 0, (0, 1)), (d, 1, (0, 1))] for d in range(24)])
    else:
        emit_units([[(d, sl, (0, 1))] for d in range(24) for sl in range(2)])
    a('s_nop 15')
    a('s_nop 3')
    a(f'v_lshlrev_b32 v123, 4, v0')
    a(f'v_add_u32 v123, {RED}, v123')
    for r4 in range(4):
        a(f'ds_write_b128 v123, v[{88+4*r4}:{91+4*r4}] offset:{4096*r4}')
    a('s_waitcnt lgkmcnt(0)')
    a('s_barrier')
    for r4 in range(4):
        a(f'ds_read_b128 v[{8+4*r4}:{11+4*r4}], v123 offset:{4096*r4 + 1024}')
    a('s_branch K2_fin')
    a.label('K2_roleB')
    if F16:
        emit_units([[(d, 0, (0, 1)), (d, 1, (0, 1))] for d in range(24, 32)] +
                   [[(d, 0, (1,)), (d, 1, (1,)), (d+1, 0, (1,))] if False else [(d, 0, (1,)), (d, 1, (1,))] for d in range(32, 64)])
    else:
        emit_units([[(d, sl, (0, 1))] for d in range(24, 32) for sl in range(2)] +
                   [[(d, 0, (1,)), (d, 1, (1,))] for d in range(32, 64)])
    a('s_nop 15')
    a('s_nop 3')
    a(f'v_lshlrev_b32 v123, 4, v0')
    a(f'v_add_u32 v123, {RED}, v123')
    for r4 in range(4):
        a(f'ds_write_b128 v123, v[{72+4*r4}:{75+4*r4}] offset:{4096*r4}')
    a('s_waitcnt lgkmcnt(0)')
    a('s_barrier')
    a('v_subrev_u32 v123, 1024, v123')
    for r4 in range(4):
        a(f'ds_read_b128 v[{8+4*r4}:{11+4*r4}], v123 offset:{4096*r4}')
    for i in range(16):
        a(f'v_mov_b32 v{72+i}, v{88+i}')
    a.label('K2_fin')
    a(f'v_add_u32 v122, s20, v122')
    for rq in range(4):
        a(f'ds_read_b64 v[{24+2*rq}:{25+2*rq}], v122 offset:{7*4160 + 64 + 16*rq}')
    a('v_lshlrev_b32 v124, 16, v125')
    a('s_waitcnt lgkmcnt(0)')
    for i in range(8):
        a(f'v_pk_add_f32 v[{72+2*i}:{73+2*i}], v[{72+2*i}:{73+2*i}], v[{8+2*i}:{9+2*i}]')
    if F16:
        for i in range(8):
            a(f'v_pk_mul_f32 v[{72+2*i}:{73+2*i}], v[{72+2*i}:{73+2*i}], v[110:111] op_sel_hi:[1,0]')
    for g0 in (0, 4):
        G = range(g0, g0+4)
        T1 = lambda i: 32 + (i & 3)
        T2 = lambda i: 36 + 2*(i & 3)
        for i in G: a(f'v_cvt_pk_bf16_f32 v{T1(i)}, v{72+2*i}, v{73+2*i}')
        for i in G: unpack(72+2*i, 73+2*i, T1(i))
        for i in G:
            if F16:
                a(f'v_cvt_f32_f16 v{T2(i)}, v{24+i}')
                a(f'v_cvt_f32_f16_sdwa v{T2(i)+1}, v{24+i} dst_sel:DWORD dst_unused:UNUSED_PAD src0_sel:WORD_1')
            else:
                unpack(T2(i), T2(i)+1, 24+i)
        for i in G: a(f'v_pk_mul_f32 v[{T2(i)}:{T2(i)+1}], v[{T2(i)}:{T2(i)+1}], v[124:125] op_sel_hi:[1,0]')
        for i in G: a(f'v_cvt_pk_bf16_f32 v{T1(i)}, v{T2(i)}, v{T2(i)+1}')
        for i in G: unpack(T2(i), T2(i)+1, T1(i))
        for i in G: a(f'v_pk_add_f32 v[{72+2*i}:{73+2*i}], v[{72+2*i}:{73+2*i}], v[{T2(i)}:{T2(i)+1}]')
        for i in G: a(f'v_cvt_pk_bf16_f32 v{T1(i)}, v{72+2*i}, v{73+2*i}')
        for i in G: unpack(72+2*i, 73+2*i, T1(i))
        for i in G: unpack(T2(i), T2(i)+1, 112+i)
        for i in G: a(f'v_pk_add_f32 v[{72+2*i}:{73+2*i}], v[{72+2*i}:{73+2*i}], v[{T2(i)}:{T2(i)+1}]')
        for i in G: a(f'v_cvt_pk_bf16_f32 v{104+i}, v{72+2*i}, v{73+2*i}')
    a(f"""
    s_lshl_b32 s26, s3, 11
    s_add_u32 s26, s26, {RED + 16384}
    v_lshlrev_b32 v120, 6, v6
    v_lshl_add_u32 v120, v7, 3, v120
    v_add_u32 v120, s26, v120
    v_lshl_add_u32 v123, v2, 4, s26
    s_lshl_b32 s26, s19, 12
    s_lshl_b32 s27, s18, 11
    s_add_u32 s26, s26, s27
    v_lshl_add_u32 v121, v2, 4, s26
    """)
    for rq in range(4):
        a(f'ds_write_b64 v120, v[{104+2*rq}:{105+2*rq}] offset:{16*rq}')
    a('s_waitcnt lgkmcnt(0)')
    a('ds_read_b128 v[8:11], v123')
    a('ds_read_b128 v[12:15], v123 offset:1024')
    a('s_waitcnt lgkmcnt(0)')
    a(f'global_store_dwordx4 v121, v[8:11], s[22:23]{SC2}')
    a(f'global_store_dwordx4 v121, v[12:15], s[22:23] offset:1024{SC2}')
    trace_end(1)
    a.label('K2_exit')
    a.end_kernel(name, (256,1,1), (512,1,1), RED + 16384 + 8192, 128+8)

GC1 = 2 * 0.7978845608028654 * LOG2E
GC2 = GC1 * 0.044715

def dma_lane_off(dst, lane, rs_sgpr_or_imm, t1, t2):
    a(f'v_lshrrev_b32 v{t1}, 5, v{lane}')
    a(f'v_lshlrev_b32 v{t1}, 3, v{t1}')
    a(f'v_bfe_u32 v{t2}, v{lane}, 3, 2')
    a(f'v_add_u32 v{t1}, v{t1}, v{t2}')
    a(f'v_mul_u32_u24 v{dst}, {rs_sgpr_or_imm}, v{t1}')
    a(f'v_bfe_u32 v{t1}, v{lane}, 1, 2')
    a(f'v_bfe_u32 v{t2}, v{lane}, 4, 2')
    a(f'v_xor_b32 v{t1}, v{t1}, v{t2}')
    a(f'v_lshl_add_u32 v{dst}, v{t1}, 5, v{dst}')
    a(f'v_and_b32 v{t1}, 1, v{lane}')
    a(f'v_lshl_add_u32 v{dst}, v{t1}, 4, v{dst}')

def tr_lane_base(dst, fdst, lane, t1, t2):
    a(f'v_lshrrev_b32 v{t1}, 5, v{lane}')
    a(f'v_lshlrev_b32 v{t1}, 4, v{t1}')
    a(f'v_bfe_u32 v{t2}, v{lane}, 2, 3')
    a(f'v_add_u32 v{t1}, v{t1}, v{t2}')
    a(f'v_lshlrev_b32 v{dst}, 7, v{t1}')
    a(f'v_and_b32 v{t1}, 3, v{lane}')
    a(f'v_lshl_add_u32 v{dst}, v{t1}, 3, v{dst}')
    a(f'v_lshrrev_b32 v{fdst}, 1, v{t2}')

def gelu_pairs(zs, CK, T, G=4):
    for i0 in range(0, len(zs), G):
        grp = list(enumerate(zs[i0:i0+G]))
        for i, z in grp:
            a(f'v_pk_mul_f32 v[{T+2*i}:{T+2*i+1}], v[{z}:{z+1}], v[{z}:{z+1}]')
        for i, z in grp:
            t = T+2*i
            a(f'v_pk_fma_f32 v[{t}:{t+1}], v[{t}:{t+1}], v[{CK}:{CK+1}], v[{CK}:{CK+1}] op_sel:[0,1,0] op_sel_hi:[1,1,0]')
        for i, z in grp:
            t = T+2*i
            a(f'v_pk_mul_f32 v[{t}:{t+1}], v[{t}:{t+1}], v[{z}:{z+1}]')
        for i, z in grp:
            t = T+2*i
            a(f'v_exp_f32 v{t}, -v{t}')
            a(f'v_exp_f32 v{t+1}, -v{t+1}')
        if len(grp) < 2: a('s_nop 0')
        for i, z in grp:
            t = T+2*i
            a(f'v_pk_add_f32 v[{t}:{t+1}], v[{t}:{t+1}], v[{CK+2}:{CK+3}]')
        for i, z in grp:
            t = T+2*i
            a(f'v_rcp_f32 v{t}, v{t}')
            a(f'v_rcp_f32 v{t+1}, v{t+1}')
        if len(grp) < 2: a('s_nop 0')
        for i, z in grp:
            t = T+2*i
            a(f'v_pk_mul_f32 v[{z}:{z+1}], v[{z}:{z+1}], v[{t}:{t+1}]')

def affine_round(zs, css, AB, T, G=4):
    for i0 in range(0, len(zs), G):
        grp = list(enumerate(zip(zs[i0:i0+G], css[i0:i0+G])))
        for i, (z, cs) in grp:
            a(f'v_pk_mul_f32 v[{T+2*i}:{T+2*i+1}], v[{cs}:{cs+1}], v[{AB}:{AB+1}] op_sel:[0,1] op_sel_hi:[1,1]')
        for i, (z, cs) in grp:
            a(f'v_pk_fma_f32 v[{z}:{z+1}], v[{z}:{z+1}], v[{AB}:{AB+1}], v[{T+2*i}:{T+2*i+1}] op_sel_hi:[1,0,1] neg_lo:[0,0,1] neg_hi:[0,0,1]')
        for i, (z, cs) in grp:
            a(f'v_cvt_pk_bf16_f32 v{T+2*i}, v{z}, v{z+1}')
        for i, (z, cs) in grp:
            unpack(z, z+1, T+2*i)

def round_pair(z, t):
    a(f'v_cvt_pk_bf16_f32 v{t}, v{z}, v{z+1}')
    unpack(z, z+1, t)

def gemm64_main(X, WF, ACC, vW, nsteps=16, st0=0):
    def loads(st, sb):
        for cb in range(4):
            for h in range(2):
                r = WF + 16*sb + 4*cb + 2*h
                a(f'ds_read_b64_tr_b16 v[{r}:{r+1}], v{vW+cb} offset:{(st0+st)*4096 + h*1024}')
    loads(0, 0)
    for st in range(nsteps):
        if st + 1 < nsteps:
            loads(st+1, (st+1) & 1)
            a('s_waitcnt lgkmcnt(8)')
        else:
            a('s_waitcnt lgkmcnt(0)')
        for cb in range(4):
            w = WF + 16*(st & 1) + 4*cb
            c = ACC + 4*cb
            a(f'v_mfma_f32_16x16x32_bf16 v[{c}:{c+3}], v[{w}:{w+3}], v[{X+4*st}:{X+4*st+3}], v[{c}:{c+3}]')

def dma_tile(srd, vOff, sOff, sM0, step_bytes, n=16):
    for ii in range(n):
        a(f's_mov_b32 m0, s{sM0}')
        a(f's_add_u32 s{sM0}, s{sM0}, 4096')
        a(f'buffer_load_dwordx4 v{vOff}, s[{srd}:{srd+3}], s{sOff} offen lds')
        if ii < n-1:
            a(f's_add_u32 s{sOff}, s{sOff}, {step_bytes}')

def mk_srd(dst, lo, nbytes):
    a(f's_mov_b32 s{dst}, s{lo}')
    a(f's_mov_b32 s{dst+1}, s{lo+1}')
    a(f's_mov_b32 s{dst+2}, {nbytes}')
    a(f's_mov_b32 s{dst+3}, 0x00020000')

def gen_k3():
    global SV
    SV = 160
    name = 'k3_kernel'
    a.begin_kernel(name)
    a(f"""
    s_cmp_ge_u32 s2, 256
    s_cbranch_scc1 K3_exit
    s_load_dwordx2 s[4:5], s[0:1], {KA['ws']}
    s_load_dwordx2 s[6:7], s[0:1], {KA['w1']}
    """)
    trace_begin()
    a(f"""
    v_lshrrev_b32 v1, 6, v0
    v_and_b32 v2, 63, v0
    v_readfirstlane_b32 s36, v1        ; wave 0..7
    s_and_b32 s3, s36, 3
    s_bfe_u32 s16, s2, 0x30003
    s_and_b32 s17, s2, 7
    s_lshl_b32 s17, s17, 2
    s_lshr_b32 s19, s2, 6
    s_add_u32 s17, s17, s19
    s_cmp_lt_u32 s36, 4
    s_cbranch_scc1 K3_comp
    s_lshr_b32 s18, s3, 1
    s_lshl_b32 s18, s18, 4
    s_and_b32 s19, s3, 1
    s_lshl_b32 s19, s19, 2
    s_add_u32 s18, s18, s19
    """)
    dma_lane_off(3, 2, 4096, 5, 6)
    dma_lane_off(4, 2, 1024, 5, 6)
    a('s_waitcnt lgkmcnt(0)')
    ws_ptr(8, 4, 'HT')
    a(f"""
    s_mov_b32 s10, {2*MB}
    s_mov_b32 s11, 0x00020000
    """)
    mk_srd(12, 6, 512*1024)
    a(f"""
    s_lshl_b32 s20, s18, 12
    s_lshl_b32 s21, s17, 7
    s_add_u32 s20, s20, s21
    s_lshl_b32 s22, s3, 10             ; m0 (HT)
    s_lshl_b32 s38, s18, 10
    s_lshl_b32 s21, s16, 7
    s_add_u32 s38, s38, s21            ; W1 soffset
    s_add_u32 s39, s22, 0x10000        ; m0 (W)
    """)
    def issue(c):
        for i in range(4):
            a('s_mov_b32 m0, s22')
            a('s_add_u32 s22, s22, 4096')
            a('buffer_load_dwordx4 v3, s[8:11], s20 offen lds')
            a(f's_add_u32 s20, s20, {32*4096}')
        for i in range(4):
            a('s_mov_b32 m0, s39')
            a('s_add_u32 s39, s39, 4096')
            a('buffer_load_dwordx4 v4, s[12:15], s38 offen lds')
            a(f's_add_u32 s38, s38, {32*1024}')
    issue(0); issue(1)
    for c in range(4):
        a(f's_waitcnt vmcnt({8 if c < 3 else 0})')
        a('s_barrier')
        if c + 2 < 4: issue(c + 2)
    a('s_endpgm')
    a.label('K3_comp')
    tr_lane_base(5, 6, 2, 7, 8)
    a('v_xor_b32 v7, s3, v6')
    a('v_lshl_add_u32 v9, v7, 5, v5')
    for cb in range(4):
        a(f'v_xor_b32 v7, {cb}, v6')
        a(f'v_lshl_add_u32 v{10+cb}, v7, 5, v5')
        a(f'v_add_u32 v{10+cb}, 0x10000, v{10+cb}')
    a(f"""
    v_and_b32 v14, 15, v2
    v_lshrrev_b32 v15, 4, v2
    s_lshl_b32 s21, s17, 6
    s_lshl_b32 s23, s3, 4
    s_add_u32 s21, s21, s23
    v_add_u32 v14, s21, v14            ; token
    v_lshlrev_b32 v16, 3, v14
    v_lshlrev_b32 v14, 10, v14
    s_lshl_b32 s23, s21, 10
    v_lshl_add_u32 v17, v2, 4, s23
    s_lshl_b32 s21, s16, 8
    v_lshl_add_u32 v18, v15, 4, s21
    s_waitcnt lgkmcnt(0)
    """)
    ws_ptr(24, 4, 'HR'); ws_ptr(26, 4, 'G1'); ws_ptr(28, 4, 'CS'); ws_ptr(30, 4, 'ST1')
    CSR = 20
    for cb in range(4):
        a(f'global_load_dwordx4 v[{CSR+4*cb}:{CSR+4*cb+3}], v18, s[28:29] offset:{64*cb}')
    X = 64
    WF = 128
    ACC = 36
    GR = 52; SU = 56; ONE = 60
    for i in range(24):
        a(f'v_mov_b32 v{36+i}, 0')
    for i in range(4):
        a(f'v_mov_b32 v{ONE+i}, 0x3f803f80')
    def ld_x(st):
        for h in range(2):
            a(f'ds_read_b64_tr_b16 v[{X+4*st+2*h}:{X+4*st+2*h+1}], v9 offset:{st*4096 + h*1024}')
    def ld_w(st, cb):
        for h in range(2):
            r = WF + 16*(st & 1) + 4*cb + 2*h
            a(f'ds_read_b64_tr_b16 v[{r}:{r+1}], v{10+cb} offset:{st*4096 + h*1024}')
    a('s_barrier')
    for st in range(2):
        ld_x(st)
        for cb in range(4): ld_w(st, cb)
    for st in range(16):
        a(f's_waitcnt lgkmcnt({10 if st < 15 else 0})')
        nx = st + 2
        if nx < 16 and nx % 4 == 0:
            a('s_barrier')
        x = X + 4*st
        for cb in range(4):
            w = WF + 16*(st & 1) + 4*cb
            c = ACC + 4*cb
            a(f'v_mfma_f32_16x16x32_bf16 v[{c}:{c+3}], v[{w}:{w+3}], v[{x}:{x+3}], v[{c}:{c+3}]')
            if nx < 16:
                if cb == 0: ld_x(nx)
                else: ld_w(nx, cb-1)
        a(f'v_mfma_f32_16x16x32_bf16 v[{GR}:{GR+3}], v[{x}:{x+3}], v[{x}:{x+3}], v[{GR}:{GR+3}]')
        if nx < 16: ld_w(nx, 3)
        a(f'v_mfma_f32_16x16x32_bf16 v[{SU}:{SU+3}], v[{ONE}:{ONE+3}], v[{x}:{x+3}], v[{SU}:{SU+3}]')
    for j in range(8):
        l = a.newlabel('K3_hr')
        a(f's_cmp_lg_u32 s16, {j}')
        a(f's_cbranch_scc1 {l}')
        a(f'v_add_u32 v17, {2048*j}, v17')
        for st in (2*j, 2*j+1):
            a(f'global_store_dwordx4 v17, v[{X+4*st}:{X+4*st+3}], s[24:25] offset:{1024*(st&1)}{SC3}')
        a.label(l)
    a('s_waitcnt vmcnt(2)')
    a(f"""
    v_and_b32 v7, 3, v2
    v_cmp_eq_u32 vcc, 1, v7
    v_cmp_eq_u32 s[32:33], 2, v7
    v_cmp_eq_u32 s[34:35], 3, v7
    v_and_b32 v8, 15, v2
    v_lshrrev_b32 v7, 2, v8
    v_cndmask_b32 v{GR}, v{GR}, v{GR+1}, vcc
    v_cndmask_b32 v{GR}, v{GR}, v{GR+2}, s[32:33]
    v_cndmask_b32 v{GR}, v{GR}, v{GR+3}, s[34:35]
    v_lshl_add_u32 v7, v7, 4, v8
    v_lshlrev_b32 v7, 2, v7
    ds_bpermute_b32 v{GR}, v7, v{GR}
    v_mul_f32 v{SU}, {hx(1/512)}, v{SU}          ; mean1
    s_waitcnt lgkmcnt(0)
    v_mul_f32 v{GR}, {hx(1/512)}, v{GR}
    v_fma_f32 v{GR}, -v{SU}, v{SU}, v{GR}        ; var1
    v_max_f32 v{GR}, 0, v{GR}
    v_mov_b32 v{SU+1}, v{SU}
    v_mov_b32 v{GR+1}, v{GR}
    """)
    ln_scalars(SU, GR, 7)
    a(f"""
    v_sub_f32 v{SU+1}, v{SU+1}, v{SU}
    v_mul_f32 v{SU+1}, v{SU+1}, v{GR}            ; mean2
    v_mul_f32 v{GR+1}, v{GR+1}, v{GR}
    v_mul_f32 v{GR+1}, v{GR+1}, v{GR}            ; var2
    """)
    ln_scalars(SU+1, GR+1, 7)
    a(f"""
    v_mul_f32 v{ONE}, v{GR}, v{GR+1}             ; alpha
    v_fma_f32 v{ONE+1}, v{GR}, v{SU}, v{SU+1}
    v_mul_f32 v{ONE+1}, v{ONE+1}, v{GR+1}        ; beta
    v_mov_b32 v{SU+2}, v{SU}
    v_mov_b32 v{SU+3}, v{GR}
    v_mov_b32 v128, {hx(GC1)}
    v_mov_b32 v129, {hx(GC2)}
    v_mov_b32 v130, 1.0
    v_mov_b32 v131, 1.0
    s_cmp_lg_u32 s16, 0
    s_cbranch_scc1 K3_nost
    v_cmp_gt_u32 vcc, 16, v2
    s_and_saveexec_b64 s[32:33], vcc
    global_store_dwordx2 v16, v[{SU+2}:{SU+3}], s[30:31]
    s_mov_b64 exec, s[32:33]
    """)
    a.label('K3_nost')
    affine_round([ACC+2*p for p in range(8)], [CSR+2*p for p in range(8)], ONE, 144)
    gelu_pairs([ACC+2*p for p in range(8)], 128, 144)
    O = 136
    for p in range(8):
        a(f'v_cvt_pk_bf16_f32 v{O+p}, v{ACC+2*p}, v{ACC+2*p+1}')
    a(f"""
    v_and_b32 v7, 1, v15
    v_lshrrev_b32 v8, 1, v15
    v_lshl_add_u32 v7, v7, 1, v8
    v_and_b32 v8, 15, v2
    v_lshl_add_u32 v7, v7, 4, v8
    s_lshl_b32 s21, s16, 11
    s_add_u32 s21, s21, s23
    v_lshl_add_u32 v7, v7, 4, s21
    """)
    for P in range(2):
        o = O + 4*P
        a(f'v_permlane16_swap_b32 v{o}, v{o+2}')
        a(f'v_permlane16_swap_b32 v{o+1}, v{o+3}')
    a('s_nop 1')
    for P in range(2):
        o = O + 4*P
        a(f'global_store_dwordx4 v7, v[{o}:{o+3}], s[26:27] offset:{1024*P}{SC3}')
    trace_end(2)
    a.label('K3_exit')
    a.end_kernel(name, (256,1,1), (512,1,1), 131072, 168)

class Ring:
    def __init__(self, TT, NT, nch, nslots, a_rs, w_rs, wfmt, vAsrc, vWsrc, vAr, vWr, FB, ACC, rot=False, shifts=None, vTmp=None):
        self.__dict__.update(locals())
        self.ABY = 4 * TT * 16 * 256
        self.WBY = 128 * (128 if wfmt == 128 else 224)
        self.SLOT = self.ABY + self.WBY
        self.na = TT * 4
        self.nw = 4 if wfmt == 128 else 7
    def setup_addrs(self, t1, t2, t3):
        r = self
        a(f'v_lshrrev_b32 v{t1}, 4, v2')
        a(f'v_and_b32 v{t2}, 15, v2')
        a(f'v_xor_b32 v{t2}, v{t2}, v{t1}')
        a(f'v_mul_u32_u24 v{t1}, {r.a_rs}, v{t1}')
        a(f'v_add_u32 v{t1}, v{t1}, v{r.vTmp}')
        for i in range(4):
            a(f'v_xor_b32 v{t3}, {4*i}, v{t2}')
            a(f'v_lshl_add_u32 v{r.vAsrc+i}, v{t3}, 4, v{t1}')
        a(f'v_and_b32 v{t1}, 15, v2')
        a(f'v_lshrrev_b32 v{t2}, 4, v2')
        a(f'v_xor_b32 v{t2}, v{t2}, v{t1}')
        a(f'v_lshlrev_b32 v{t1}, 8, v{t1}')
        a(f's_mul_i32 s21, s3, {r.TT*4096}')
        a(f'v_add_u32 v{t1}, s21, v{t1}')
        for i in range(4):
            a(f'v_xor_b32 v{t3}, {4*i}, v{t2}')
            a(f'v_lshl_add_u32 v{r.vAr+i}, v{t3}, 4, v{t1}')
        if r.wfmt == 128:
            dma_lane_off(r.vWsrc, 2, r.w_rs, t1, t2)
            tr_lane_base(t1, t2, 2, t3, r.vWr)
            for cb in range(4):
                a(f'v_xor_b32 v{t3}, {cb}, v{t2}')
                a(f'v_lshl_add_u32 v{r.vWr+cb}, v{t3}, 5, v{t1}')
                a(f'v_add_u32 v{r.vWr+cb}, {r.ABY}, v{r.vWr+cb}')
        else:
            for j in range(7):
                a(f'v_add_u32 v{t1}, {64*j}, v2')
                a(f'v_mul_u32_u24 v{t2}, 4682, v{t1}')
                a(f'v_lshrrev_b32 v{t2}, 16, v{t2}')
                a(f'v_mul_u32_u24 v{t3}, 14, v{t2}')
                a(f'v_sub_u32 v{t1}, v{t1}, v{t3}')
                a(f'v_and_b32 v{t3}, 0x13, v{t2}')
                a(f'v_bfe_u32 v{r.vWsrc+j}, v{t2}, 2, 1')
                a(f'v_lshl_or_b32 v{t3}, v{r.vWsrc+j}, 3, v{t3}')
                a(f'v_bfe_u32 v{r.vWsrc+j}, v{t2}, 3, 1')
                a(f'v_lshl_or_b32 v{t3}, v{r.vWsrc+j}, 2, v{t3}')
                a(f'v_mul_u32_u24 v{t3}, {r.w_rs}, v{t3}')
                a(f'v_lshl_add_u32 v{r.vWsrc+j}, v{t1}, 4, v{t3}')
            a(f'v_lshrrev_b32 v{t1}, 5, v2')
            a(f'v_lshlrev_b32 v{t1}, 4, v{t1}')
            a(f'v_bfe_u32 v{t2}, v2, 2, 3')
            a(f'v_add_u32 v{t1}, v{t1}, v{t2}')
            a(f'v_mul_u32_u24 v{t1}, 224, v{t1}')
            a(f'v_and_b32 v{t2}, 3, v2')
            a(f'v_lshl_add_u32 v{r.vWr}, v{t2}, 3, v{t1}')
            a(f'v_add_u32 v{r.vWr}, {r.ABY}, v{r.vWr}')
    def issue_groups(self, c):
        r = self
        G = []
        slot = c % r.nslots
        base = slot * r.SLOT
        pre = []
        if r.rot:
            pre += [f's_mul_i32 s35, s34, {128*r.w_rs}', 's_add_u32 s35, s35, s20', 's_lshl_b32 s36, s34, 8']
        else:
            pre += [f's_add_u32 s35, s20, {c*128*r.w_rs}', f's_movk_i32 s36, {c*256}']
        if r.wfmt == 128:
            pre += [f's_lshl_b32 s22, s3, 10', f's_add_u32 s22, s22, {base + r.ABY}']
            for i in range(4):
                g = ['s_mov_b32 m0, s22', 's_add_u32 s22, s22, 4096', f'buffer_load_dwordx4 v{r.vWsrc}, s[12:15], s35 offen lds']
                if i < 3: g.append(f's_add_u32 s35, s35, {32*r.w_rs}')
                G.append(pre + g); pre = []
        else:
            pre += [f's_mul_i32 s22, s3, 7168', f's_add_u32 s22, s22, {base + r.ABY}']
            for j in range(7):
                G.append(pre + ['s_mov_b32 m0, s22', 's_add_u32 s22, s22, 1024', f'buffer_load_dwordx4 v{r.vWsrc+j}, s[12:15], s35 offen lds']); pre = []
        pre = [f's_mul_i32 s22, s3, {r.TT*4096}']
        if base: pre.append(f's_add_u32 s22, s22, {base}')
        for i in range(r.na):
            g = ['s_mov_b32 m0, s22', 's_add_u32 s22, s22, 1024']
            if r.shifts:
                off = (4*i + r.shifts[c]) * r.a_rs
                if off >= 0: g.append(f'v_add_u32 v{r.vTmp}, {off}, v{r.vAsrc+(i&3)}')
                else: g.append(f'v_subrev_u32 v{r.vTmp}, {-off}, v{r.vAsrc+(i&3)}')
                g.append(f'buffer_load_dwordx4 v{r.vTmp}, s[8:11], s36 offen lds')
            else:
                g.append(f'buffer_load_dwordx4 v{r.vAsrc+(i&3)}, s[8:11], s36 offen lds')
                if i < r.na-1: g.append(f's_add_u32 s36, s36, {4*r.a_rs}')
            if i == r.na-1 and r.rot:
                g += ['s_add_u32 s34, s34, 1', f's_cmp_eq_u32 s34, {r.nch}', 's_cselect_b32 s34, 0, s34']
            G.append(pre + g); pre = []
        return G
    def issue(self, c):
        for g in self.issue_groups(c):
            for l in g: a(l)
    def compute(self, c, fillers):
        r = self
        FS = 4*(r.TT + r.NT)
        def loads(st, sb):
            f = r.FB + FS*sb
            for tt in range(r.TT):
                a(f'ds_read_b128 v[{f+4*tt}:{f+4*tt+3}], v{r.vAr+st} offset:{r.cur + tt*4096}')
            for cb in range(r.NT):
                for h in range(2):
                    d = f + 4*r.TT + 4*cb + 2*h
                    if r.wfmt == 128:
                        a(f'ds_read_b64_tr_b16 v[{d}:{d+1}], v{r.vWr+cb} offset:{r.cur + st*4096 + h*1024}')
                    else:
                        a(f'ds_read_b64_tr_b16 v[{d}:{d+1}], v{r.vWr} offset:{r.cur + st*7168 + h*1792 + 32*cb}')
        nl = r.TT + 2*r.NT
        nm = 4 * r.NT * r.TT
        fillers = list(fillers)
        every = max(1, nm // (len(fillers) + 1)) if fillers else 0
        loads(0, 0)
        loads(1, 1)
        for _ in range(min(2, len(fillers))):
            for l in fillers.pop(0): a(l)
        m = 0
        for st in range(4):
            a(f's_waitcnt lgkmcnt({min(15, nl) if st < 3 else 0})')
            f = r.FB + FS*(st & 1)
            for cb in range(r.NT):
                w = f + 4*r.TT + 4*cb
                for tt in range(r.TT):
                    cc = r.ACC + 4*r.NT*tt + 4*cb
                    a(f'v_mfma_f32_16x16x32_bf16 v[{cc}:{cc+3}], v[{w}:{w+3}], v[{f+4*tt}:{f+4*tt+3}], v[{cc}:{cc+3}]')
                    m += 1
                    if fillers and m % every == 0:
                        for l in fillers.pop(0): a(l)
            if st + 2 < 4:
                loads(st+2, st & 1)
        for g in fillers:
            for l in g: a(l)
    def bump(self, delta):
        r = self
        regs = [r.vAr+i for i in range(4)] + ([r.vWr+i for i in range(4)] if r.wfmt == 128 else [r.vWr])
        for v in regs:
            if delta > 0: a(f'v_add_u32 v{v}, {delta}, v{v}')
            else: a(f'v_subrev_u32 v{v}, {-delta}, v{v}')
    def prologue(self):
        r = self
        r.ahead = r.nslots if r.nch <= r.nslots else r.nslots - 1
        for c in range(min(r.nch, r.ahead)):
            r.issue(c)
    def run(self):
        r = self
        per = r.na + r.nw
        regbase = 0
        for c in range(r.nch):
            issued = min(r.nch, c + r.ahead)
            a(f's_waitcnt vmcnt({min(63, per*(issued - (c+1)))})')
            a('s_barrier')
            stamp([0,100,255], 1 + c)
            base = (c % r.nslots) * r.SLOT
            want = (base // 32768) * 32768 if r.SLOT * r.nslots > 65536 else 0
            if want != regbase:
                r.bump(want - regbase); regbase = want
            r.cur = base - regbase
            fill = r.issue_groups(c + r.ahead) if c + r.ahead < r.nch else []
            r.compute(c, fill)

class Ring3:
    def __init__(self, TT, NT, KC, nch, nslots, a_rs, w_rs, wfmt, FB, ACC, vAr, vWr, rot=False, shifts=None, LA=LA_DEF):
        self.__dict__.update(locals())
        self.RB = 64 * KC
        self.AW = TT * 16 * self.RB
        self.ABY = 4 * self.AW
        self.WBY = 32 * KC * (128 if wfmt == 128 else 224)
        self.SLOT = self.ABY + self.WBY
        self.na = self.AW // 1024
        self.nw = 4 if (wfmt == 128 or KC == 2) else 7
        self.rows_per = 1024 // self.RB
    def loader(self, tag):
        r = self
        vA, vW, vT = 8, 12, 24
        t1, t2, t3 = 3, 4, 5
        nv = 4 if r.KC == 4 else 2
        sh = 4 if r.KC == 4 else 3
        a(f'v_lshrrev_b32 v{t1}, {sh}, v2')
        a(f'v_mul_u32_u24 v{t1}, {r.a_rs}, v{t1}')
        a(f'v_add_u32 v{t1}, s38, v{t1}')
        a(f'v_and_b32 v{t2}, {(1 << sh) - 1}, v2')
        a(f'v_lshrrev_b32 v{t3}, 4, v2')
        a(f'v_xor_b32 v{t2}, v{t2}, v{t3}')
        for i in range(nv):
            a(f'v_xor_b32 v{t3}, {4*i}, v{t2}')
            a(f'v_lshl_add_u32 v{vA+i}, v{t3}, 4, v{t1}')
        if r.wfmt == 128:
            dma_lane_off(vW, 2, r.w_rs, t1, t2)
        else:
            assert r.KC == 2
            for i in range(4):
                a(f's_add_u32 s{60+i}, s3, {4*i}')
                a(f's_min_u32 s{60+i}, s{60+i}, 13')
                a(f's_cmp_ge_u32 s{60+i}, 7')
                a('s_cselect_b32 s21, 7, 0')
                a(f's_cselect_b32 s22, {32*r.w_rs}, 0')
                a(f's_sub_u32 s21, s{60+i}, s21')
                a('s_lshl_b32 s21, s21, 6')
                a(f'v_add_u32 v{t1}, s21, v2')
                a(f'v_mul_u32_u24 v{t2}, 4682, v{t1}')
                a(f'v_lshrrev_b32 v{t2}, 16, v{t2}')
                a(f'v_mul_u32_u24 v{t3}, 14, v{t2}')
                a(f'v_sub_u32 v{t1}, v{t1}, v{t3}')
                a(f'v_and_b32 v{t3}, 0x13, v{t2}')
                a(f'v_bfe_u32 v{vW+i}, v{t2}, 2, 1')
                a(f'v_lshl_or_b32 v{t3}, v{vW+i}, 3, v{t3}')
                a(f'v_bfe_u32 v{vW+i}, v{t2}, 3, 1')
                a(f'v_lshl_or_b32 v{t3}, v{vW+i}, 2, v{t3}')
                a(f'v_mul_u32_u24 v{t3}, {r.w_rs}, v{t3}')
                a(f'v_lshl_add_u32 v{vW+i}, v{t1}, 4, v{t3}')
                a(f'v_add_u32 v{vW+i}, s22, v{vW+i}')
                a(f's_lshl_b32 s{60+i}, s{60+i}, 10')
        def issue(c):
            base = (c % r.nslots) * r.SLOT
            if r.rot:
                a(f's_mul_i32 s35, s34, {32*r.KC*r.w_rs}')
                a('s_add_u32 s35, s35, s20')
                a(f's_mul_i32 s36, s34, {r.RB}')
            else:
                a(f's_add_u32 s35, s20, {c*32*r.KC*r.w_rs}')
                a(f's_movk_i32 s36, {c*r.RB}')
            a(f's_mul_i32 s22, s3, {r.AW}')
            if base: a(f's_add_u32 s22, s22, {base}')
            for i in range(r.na):
                a('s_mov_b32 m0, s22')
                a('s_add_u32 s22, s22, 1024')
                if r.shifts:
                    off = (r.rows_per*i + r.shifts[c]) * r.a_rs
                    if off >= 0: a(f'v_add_u32 v{vT}, {off}, v{vA+(i % nv)}')
                    else: a(f'v_subrev_u32 v{vT}, {-off}, v{vA+(i % nv)}')
                    a(f'buffer_load_dwordx4 v{vT}, s[8:11], s36 offen lds')
                else:
                    a(f'buffer_load_dwordx4 v{vA+(i % nv)}, s[8:11], s36 offen lds')
                    if i < r.na-1: a(f's_add_u32 s36, s36, {r.rows_per*r.a_rs}')
            if r.wfmt == 128:
                a(f's_lshl_b32 s22, s3, 10')
                a(f's_add_u32 s22, s22, {base + r.ABY}')
                for i in range(4):
                    a('s_mov_b32 m0, s22')
                    a('s_add_u32 s22, s22, 4096')
                    a(f'buffer_load_dwordx4 v{vW}, s[12:15], s35 offen lds')
                    if i < 3: a(f's_add_u32 s35, s35, {32*r.w_rs}')
            else:
                for i in range(4):
                    a(f's_add_u32 s22, s{60+i}, {base + r.ABY}')
                    a('s_mov_b32 m0, s22')
                    a('s_nop 0')
                    a(f'buffer_load_dwordx4 v{vW+i}, s[12:15], s35 offen lds')
            if r.rot:
                a('s_add_u32 s34, s34, 1')
                a(f's_cmp_eq_u32 s34, {r.nch}')
                a('s_cselect_b32 s34, 0, s34')
        per = r.na + r.nw
        issued = 0
        LA = r.LA
        for c in range(min(r.nch, LA0)):
            issue(c); issued += 1
        for c in range(r.nch):
            a(f's_waitcnt vmcnt({min(63, per*(issued - (c+1)))})')
            a('s_barrier')
            lim = min(r.nch - 1, c + LA, max(r.nslots - 1, c - 2 + r.nslots))
            while issued <= lim:
                issue(issued); issued += 1
    def comp_setup(self, t1, t2, t3):
        r = self
        a(f'v_and_b32 v{t1}, 15, v2')
        a(f'v_lshrrev_b32 v{t2}, 4, v2')
        if r.KC == 4:
            a(f'v_xor_b32 v{t2}, v{t2}, v{t1}')
        else:
            a(f'v_lshrrev_b32 v{t3}, 1, v{t1}')
            a(f'v_xor_b32 v{t2}, v{t2}, v{t3}')
        a(f'v_mul_u32_u24 v{t1}, {r.RB}, v{t1}')
        a(f's_mul_i32 s21, s3, {r.AW}')
        a(f'v_add_u32 v{t1}, s21, v{t1}')
        for i in range(r.KC):
            a(f'v_xor_b32 v{t3}, {4*i}, v{t2}')
            a(f'v_lshl_add_u32 v{r.vAr+i}, v{t3}, 4, v{t1}')
        if r.wfmt == 128:
            tr_lane_base(t1, t2, 2, t3, r.vWr)
            for cb in range(4):
                a(f'v_xor_b32 v{t3}, {cb}, v{t2}')
                a(f'v_lshl_add_u32 v{r.vWr+cb}, v{t3}, 5, v{t1}')
                a(f'v_add_u32 v{r.vWr+cb}, {r.ABY}, v{r.vWr+cb}')
        else:
            a(f'v_lshrrev_b32 v{t1}, 5, v2')
            a(f'v_lshlrev_b32 v{t1}, 4, v{t1}')
            a(f'v_bfe_u32 v{t2}, v2, 2, 3')
            a(f'v_add_u32 v{t1}, v{t1}, v{t2}')
            a(f'v_mul_u32_u24 v{t1}, 224, v{t1}')
            a(f'v_and_b32 v{t2}, 3, v2')
            a(f'v_lshl_add_u32 v{r.vWr}, v{t2}, 3, v{t1}')
            a(f'v_add_u32 v{r.vWr}, {r.ABY}, v{r.vWr}')
    def compute(self):
        r = self
        FS = 4*(r.TT + r.NT)
        nl = r.TT + 2*r.NT
        total = r.KC * r.nch
        state = dict(regbase=0)
        regs = [r.vAr+i for i in range(r.KC)] + ([r.vWr+i for i in range(4)] if r.wfmt == 128 else [r.vWr])
        def loads(s):
            c, st = divmod(s, r.KC)
            base = (c % r.nslots) * r.SLOT
            if st == 0:
                a('s_barrier')
                stamp([0,100,255], min(15, 1 + c))
                want = (base // 16384) * 16384
                d = want - state['regbase']
                if d:
                    for v in regs:
                        if d > 0: a(f'v_add_u32 v{v}, {d}, v{v}')
                        else: a(f'v_subrev_u32 v{v}, {-d}, v{v}')
                    state['regbase'] = want
            cur = base - state['regbase']
            f = r.FB + FS*(s & 1)
            for tt in range(r.TT):
                a(f'ds_read_b128 v[{f+4*tt}:{f+4*tt+3}], v{r.vAr+st} offset:{cur + tt*16*r.RB}')
            for cb in range(r.NT):
                for h in range(2):
                    d = f + 4*r.TT + 4*cb + 2*h
                    if r.wfmt == 128:
                        a(f'ds_read_b64_tr_b16 v[{d}:{d+1}], v{r.vWr+cb} offset:{cur + st*4096 + h*1024}')
                    else:
                        a(f'ds_read_b64_tr_b16 v[{d}:{d+1}], v{r.vWr} offset:{cur + st*7168 + h*1792 + 32*cb}')
        loads(0); loads(1)
        for s_ in range(total):
            a(f's_waitcnt lgkmcnt({min(15, nl) if s_ < total-1 else 0})')
            f = r.FB + FS*(s_ & 1)
            for cb in range(r.NT):
                w = f + 4*r.TT + 4*cb
                for tt in range(r.TT):
                    cc = r.ACC + 4*r.NT*tt + 4*cb
                    a(f'v_mfma_f32_16x16x32_bf16 v[{cc}:{cc+3}], v[{w}:{w+3}], v[{f+4*tt}:{f+4*tt+3}], v[{cc}:{cc+3}]')
            if s_ + 2 < total:
                loads(s_ + 2)

class Ring4:
    def __init__(self, TT, NT, nch, nslots, w_rs, wfmt, FB, ACC, vWr, X, XW, rot=False, LA=2):
        self.__dict__.update(locals())
        self.KC = 4
        self.SLOT = 128 * (128 if wfmt == 128 else 224)
        self.nw = 4 if wfmt == 128 else 7
    def loader(self, pre=None, bars=0):
        r = self
        vW = 12
        t1, t2, t3 = 3, 4, 5
        if r.wfmt == 128:
            dma_lane_off(vW, 2, r.w_rs, t1, t2)
        else:
            a(f'v_lshlrev_b32 v{vW}, 4, v2')
        def issue(c):
            base = (c % r.nslots) * r.SLOT
            if r.rot:
                a(f's_mul_i32 s35, s34, {128*r.w_rs}')
                a('s_add_u32 s35, s35, s20')
            else:
                a(f's_add_u32 s35, s20, {c*128*r.w_rs}')
            if r.wfmt == 128:
                a(f's_lshl_b32 s22, s3, 10')
                if base: a(f's_add_u32 s22, s22, {base}')
                for i in range(4):
                    a('s_mov_b32 m0, s22')
                    a('s_add_u32 s22, s22, 4096')
                    a(f'buffer_load_dwordx4 v{vW}, s[12:15], s35 offen lds')
                    if i < 3: a(f's_add_u32 s35, s35, {32*r.w_rs}')
            else:
                a(f's_mul_i32 s22, s3, 7168')
                if base: a(f's_add_u32 s22, s22, {base}')
                for j in range(7):
                    a('s_mov_b32 m0, s22')
                    a('s_add_u32 s22, s22, 1024')
                    a(f'buffer_load_dwordx4 v{vW}, s[12:15], s35 offen lds')
                    if j < 6: a('s_add_u32 s35, s35, 1024')
            if r.rot:
                a('s_add_u32 s34, s34, 1')
                a(f's_cmp_eq_u32 s34, {r.nch}')
                a('s_cselect_b32 s34, 0, s34')
        per = r.nw
        issued = 0
        if pre is not None:
            for c in range(pre):
                issue(c); issued += 1
            a('s_barrier')
            for c in range(pre, r.nslots):
                issue(c); issued += 1
            a('s_barrier')
        for c in range(issued, min(r.nch, r.LA)):
            issue(c); issued += 1
        for c in range(r.nch):
            a(f's_waitcnt vmcnt({min(63, per*(issued - (c+1)))})')
            a('s_barrier')
            lim = min(r.nch - 1, c + r.LA, max(r.nslots - 1, c - 2 + r.nslots))
            while issued <= lim:
                issue(issued); issued += 1
    def comp_setup(self, t1, t2, t3):
        r = self
        if r.wfmt == 128:
            tr_lane_base(t1, t2, 2, t3, r.vWr)
            for cb in range(4):
                a(f'v_xor_b32 v{t3}, {cb}, v{t2}')
                a(f'v_lshl_add_u32 v{r.vWr+cb}, v{t3}, 5, v{t1}')
        else:
            a(f'v_lshrrev_b32 v{t1}, 5, v2')
            a(f'v_lshlrev_b32 v{t1}, 4, v{t1}')
            a(f'v_bfe_u32 v{t2}, v2, 2, 3')
            a(f'v_add_u32 v{t1}, v{t1}, v{t2}')
            a(f'v_mul_u32_u24 v{t1}, 224, v{t1}')
            a(f'v_and_b32 v{t2}, 3, v2')
            a(f'v_lshl_add_u32 v{r.vWr}, v{t2}, 3, v{t1}')
    def compute(self, aload, extra_vm=0):
        r = self
        FS = 4*r.NT
        nl = 2*r.NT
        total = 4 * r.nch
        state = dict(regbase=0)
        regs = [r.vWr+i for i in range(4)] if r.wfmt == 128 else [r.vWr]
        def pre(s):
            c, st = divmod(s, 4)
            base = (c % r.nslots) * r.SLOT
            if st == 0:
                a('s_barrier')
                want = (base // 32768) * 32768
                d = want - state['regbase']
                if d:
                    for v in regs:
                        if d > 0: a(f'v_add_u32 v{v}, {d}, v{v}')
                        else: a(f'v_subrev_u32 v{v}, {-d}, v{v}')
                    state['regbase'] = want
        def load_cb(s, cb):
            c, st = divmod(s, 4)
            cur = (c % r.nslots) * r.SLOT - state['regbase']
            f = r.FB + FS*(s & 1)
            for h in range(2):
                d = f + 4*cb + 2*h
                if r.wfmt == 128:
                    a(f'ds_read_b64_tr_b16 v[{d}:{d+1}], v{r.vWr+cb} offset:{cur + st*4096 + h*1024}')
                else:
                    a(f'ds_read_b64_tr_b16 v[{d}:{d+1}], v{r.vWr} offset:{cur + st*7168 + h*1792 + 32*cb}')
        for s0 in range(2):
            pre(s0)
            for cb in range(r.NT): load_cb(s0, cb)
        for s_ in range(total):
            issued_steps = min(total, s_ + r.XW)
            a(f's_waitcnt vmcnt({min(63, r.TT*(issued_steps - (s_+1)))}) lgkmcnt({min(15, nl) if s_ < total-1 else 0})')
            if s_ + 2 < total:
                pre(s_ + 2)
            f = r.FB + FS*(s_ & 1)
            for cb in range(r.NT):
                w = f + 4*cb
                for tt in range(r.TT):
                    cc = r.ACC + 4*r.NT*tt + 4*cb
                    x = r.X + 4*(r.TT*(s_ % r.XW) + tt)
                    a(f'v_mfma_f32_16x16x32_bf16 v[{cc}:{cc+3}], v[{w}:{w+3}], v[{x}:{x+3}], v[{cc}:{cc+3}]')
                if s_ + 2 < total and cb > 0:
                    load_cb(s_ + 2, cb - 1)
            if s_ + 2 < total:
                load_cb(s_ + 2, r.NT - 1)
            if s_ + r.XW < total:
                aload(s_ + r.XW)

def store_tile64(O, vtok_row, sptr, scol, vt, lds_base_sgpr):
    a(f'v_and_b32 v{vt}, 15, v2')
    a(f'v_mul_u32_u24 v{vt}, 144, v{vt}')
    a(f'v_lshrrev_b32 v{vt+1}, 4, v2')
    a(f'v_lshl_add_u32 v{vt}, v{vt+1}, 3, v{vt}')
    a(f'v_add_u32 v{vt}, s{lds_base_sgpr}, v{vt}')
    for cb in range(4):
        a(f'ds_write_b64 v{vt}, v[{O+2*cb}:{O+2*cb+1}] offset:{32*cb}')
    a(f'v_lshrrev_b32 v{vt+1}, 3, v2')
    a(f'v_and_b32 v{vt+2}, 7, v2')
    a(f'v_mul_u32_u24 v{vt}, 144, v{vt+1}')
    a(f'v_lshl_add_u32 v{vt}, v{vt+2}, 4, v{vt}')
    a(f'v_add_u32 v{vt}, s{lds_base_sgpr}, v{vt}')
    a(f'v_lshlrev_b32 v{vt+1}, 10, v{vt+1}')
    a(f'v_lshl_add_u32 v{vt+1}, v{vt+2}, 4, v{vt+1}')
    a(f'v_add_u32 v{vt+1}, s{vtok_row}, v{vt+1}')
    a(f'v_add_u32 v{vt+1}, s{scol}, v{vt+1}')
    a(f'v_add_u32 v{vt+2}, 8192, v{vt+1}')
    a('s_waitcnt lgkmcnt(0)')
    a(f'ds_read_b128 v[{O}:{O+3}], v{vt}')
    a(f'ds_read_b128 v[{O+4}:{O+7}], v{vt} offset:{8*144}')
    a('s_waitcnt lgkmcnt(1)')
    a(f'global_store_dwordx4 v{vt+1}, v[{O}:{O+3}], s[{sptr}:{sptr+1}]')
    a('s_waitcnt lgkmcnt(0)')
    a(f'global_store_dwordx4 v{vt+2}, v[{O+4}:{O+7}], s[{sptr}:{sptr+1}]')

def wave_krow(dst):
    a(f"""
    s_lshr_b32 s{dst}, s3, 1
    s_lshl_b32 s{dst}, s{dst}, 4
    s_and_b32 s19, s3, 1
    s_lshl_b32 s19, s19, 2
    s_add_u32 s{dst}, s{dst}, s19
    """)

MAP64 = """
    s_bfe_u32 s16, s2, 0x30003
    s_and_b32 s17, s2, 7
    s_lshl_b32 s17, s17, 2
    s_lshr_b32 s19, s2, 6
    s_add_u32 s17, s17, s19
"""

def fra_epi_off(dst, t):
    a(f'v_lshrrev_b32 v{dst}, 1, v15')
    a(f'v_lshlrev_b32 v{dst}, 8, v{dst}')
    a(f'v_and_b32 v{t}, 15, v2')
    a(f'v_lshl_add_u32 v{dst}, v{t}, 4, v{dst}')
    a(f'v_and_b32 v{t}, 1, v15')
    a(f'v_lshl_add_u32 v{dst}, v{t}, 3, v{dst}')
    a('s_lshl_b32 s21, s16, 11')
    a('s_add_u32 s21, s21, s38')
    a(f'v_add_u32 v{dst}, s21, v{dst}')

def fra_store_off(dst, t):
    a(f"""
    v_and_b32 v{dst}, 1, v15
    v_lshrrev_b32 v{t}, 1, v15
    v_lshl_add_u32 v{dst}, v{dst}, 1, v{t}
    v_and_b32 v{t}, 15, v2
    v_lshl_add_u32 v{dst}, v{dst}, 4, v{t}
    s_lshl_b32 s21, s16, 11
    s_add_u32 s21, s21, s38
    v_lshl_add_u32 v{dst}, v{dst}, 4, s21
    """)

def gen_k4():
    global SV
    SV = 176
    name = 'k4_kernel'
    a.begin_kernel(name)
    a(f"""
    s_cmp_ge_u32 s2, 256
    s_cbranch_scc1 K4_exit
    s_load_dwordx2 s[4:5], s[0:1], {KA['ws']}
    s_load_dwordx2 s[6:7], s[0:1], {KA['w2']}
    s_load_dwordx2 s[44:45], s[0:1], {KA['w3']}
    """)
    trace_begin()
    a(f"""
    v_lshrrev_b32 v1, 6, v0
    v_and_b32 v2, 63, v0
    v_readfirstlane_b32 s24, v1
    s_and_b32 s3, s24, 3
    {MAP64}
    """)
    wave_krow(18)
    ACC = 36; FB = 64; X = 96
    R = Ring4(TT=1, NT=4, nch=4, nslots=4, w_rs=1024, wfmt=128, FB=FB, ACC=ACC, vWr=10, X=X, XW=16, LA=LA5)
    a(f"""
    s_lshl_b32 s39, s17, 6
    s_lshl_b32 s23, s3, 4
    s_add_u32 s39, s39, s23
    s_lshl_b32 s38, s39, 10
    s_lshl_b32 s20, s18, 10
    s_lshl_b32 s37, s16, 7
    s_add_u32 s20, s20, s37
    s_cmp_ge_u32 s24, 4
    s_cbranch_scc1 K4_loader
    v_and_b32 v14, 15, v2
    v_lshrrev_b32 v15, 4, v2
    v_add_u32 v14, s39, v14            ; token
    v_lshlrev_b32 v16, 3, v14
    v_lshlrev_b32 v19, 6, v14
    """)
    for q, sh in enumerate([-1, 1, -2, 2]):
        a(f'v_add_u32 v5, {sh}, v14')
        a('v_ashrrev_i32 v6, 4, v5')
        a('v_lshlrev_b32 v6, 14, v6')
        a('v_and_b32 v5, 15, v5')
        a('v_lshl_add_u32 v6, v5, 4, v6')
        a('v_lshl_add_u32 v6, v15, 8, v6')
        a(f'v_add_u32 v{52+q}, {4096*q}, v6')
    fra_epi_off(18, 5)
    a('s_waitcnt lgkmcnt(0)')
    ws_ptr(8, 4, 'G1')
    a(f's_mov_b32 s10, {2*MB}')
    a('s_mov_b32 s11, 0x00020000')
    ws_ptr(24, 4, 'HR'); ws_ptr(26, 4, 'X1'); ws_ptr(28, 4, 'ST3'); ws_ptr(30, 4, 'ST1')
    HRr = 20
    for cb in range(4):
        a(f'global_load_dwordx2 v[{HRr+2*cb}:{HRr+2*cb+1}], v18, s[24:25] offset:{512*cb}')
    a('global_load_dwordx2 v[28:29], v16, s[30:31]')
    for st in range(16):
        a(f'buffer_load_dwordx4 v[{X+4*st}:{X+4*st+3}], v{52+(st>>2)}, s[8:11], 0 offen offset:{1024*(st&3)}')
    R.comp_setup(5, 6, 7)
    for i in range(16):
        a(f'v_mov_b32 v{ACC+i}, 0')
    R.compute(None)
    a('v_mov_b32 v60, 0')
    a('v_mov_b32 v61, 0')
    a('v_mov_b32 v62, 0')
    a('v_mov_b32 v63, 0')
    a('s_nop 4')
    O = 168
    for g0 in (0, 4):
        G = range(g0, g0+4)
        T1 = lambda p: 64 + (p & 3)
        T2 = lambda p: 68 + 2*(p & 3)
        for p in G: a(f'v_cvt_pk_bf16_f32 v{T1(p)}, v{ACC+2*p}, v{ACC+2*p+1}')
        for p in G: unpack(ACC+2*p, ACC+2*p+1, T1(p))
        for p in G: unpack(T2(p), T2(p)+1, HRr+p)
        for p in G: a(f'v_pk_add_f32 v[{T2(p)}:{T2(p)+1}], v[{T2(p)}:{T2(p)+1}], v[28:29] op_sel_hi:[1,0] neg_lo:[0,1] neg_hi:[0,1]')
        for p in G: a(f'v_cvt_pk_bf16_f32 v{T1(p)}, v{T2(p)}, v{T2(p)+1}')
        for p in G: unpack(T2(p), T2(p)+1, T1(p))
        for p in G: a(f'v_pk_mul_f32 v[{T2(p)}:{T2(p)+1}], v[{T2(p)}:{T2(p)+1}], v[28:29] op_sel:[0,1] op_sel_hi:[1,1]')
        for p in G: a(f'v_cvt_pk_bf16_f32 v{T1(p)}, v{T2(p)}, v{T2(p)+1}')
        for p in G: unpack(T2(p), T2(p)+1, T1(p))
        for p in G: a(f'v_pk_add_f32 v[{ACC+2*p}:{ACC+2*p+1}], v[{ACC+2*p}:{ACC+2*p+1}], v[{T2(p)}:{T2(p)+1}]')
        for p in G: a(f'v_cvt_pk_bf16_f32 v{O+p}, v{ACC+2*p}, v{ACC+2*p+1}')
        for p in G: unpack(ACC+2*p, ACC+2*p+1, O+p)
        for p in G:
            a(f'v_pk_add_f32 v[60:61], v[60:61], v[{ACC+2*p}:{ACC+2*p+1}]')
            a(f'v_pk_fma_f32 v[62:63], v[{ACC+2*p}:{ACC+2*p+1}], v[{ACC+2*p}:{ACC+2*p+1}], v[62:63]')
    a('v_add_f32 v60, v60, v61')
    a('v_add_f32 v61, v62, v63')
    fra_store_off(7, 8)
    a('v_mov_b32 v62, v60')
    a('v_mov_b32 v63, v61')
    for P in range(2):
        o = O + 4*P
        a(f'v_permlane16_swap_b32 v{o}, v{o+2}')
        a(f'v_permlane16_swap_b32 v{o+1}, v{o+3}')
    a('v_permlane16_swap_b32 v60, v62')
    a('v_permlane16_swap_b32 v61, v63')
    for P in range(2):
        o = O + 4*P
        a(f'global_store_dwordx4 v7, v[{o}:{o+3}], s[26:27] offset:{1024*P}{SC3}')
    a(f"""
    v_pk_add_f32 v[60:61], v[60:61], v[62:63]
    s_nop 0
    v_mov_b32 v62, v60
    v_mov_b32 v63, v61
    s_nop 1
    v_permlane32_swap_b32 v60, v62
    v_permlane32_swap_b32 v61, v63
    s_nop 1
    v_pk_add_f32 v[60:61], v[60:61], v[62:63]
    s_lshl_b32 s21, s16, 3
    v_add_u32 v19, s21, v19
    v_cmp_gt_u32 vcc, 16, v2
    s_and_saveexec_b64 s[32:33], vcc
    global_store_dwordx2 v19, v[60:61], s[28:29]
    s_mov_b64 exec, s[32:33]
    """)
    trace_end(3)
    a('s_endpgm')
    a.label('K4_loader')
    a('s_waitcnt lgkmcnt(0)')
    mk_srd(12, 6, 512*1024)
    R.loader()
    code_prefetch('k56_kernel' if MERGE56 else 'k5_kernel', 'K_code_end', 30, 32, 40)
    if PF4:
        a('v_and_b32 v0, 255, v0')
        ws_ptr(44, 4, 'W3P')
        l2_prefetch(44, 512*3584, 24, 28, 21)
    a.label('K4_exit')
    a.end_kernel(name, (256,1,1), (512,1,1), 65536, 184)

def gen_k5():
    global SV
    SV = 200
    name = 'k5_kernel'
    a.begin_kernel(name)
    a(f"""
    s_cmp_ge_u32 s2, 256
    s_cbranch_scc1 K5_exit
    s_load_dwordx2 s[4:5], s[0:1], {KA['ws']}
    s_load_dwordx2 s[6:7], s[0:1], {KA['w3']}
    s_load_dwordx2 s[40:41], s[0:1], {KA['w4']}
    """)
    trace_begin()
    a(f"""
    v_lshrrev_b32 v1, 6, v0
    v_and_b32 v2, 63, v0
    v_readfirstlane_b32 s24, v1
    s_and_b32 s3, s24, 3
    s_bfe_u32 s16, s2, 0x40003
    s_and_b32 s17, s2, 7
    s_lshl_b32 s17, s17, 1
    s_lshr_b32 s19, s2, 7
    s_add_u32 s17, s17, s19
    """)
    ACC = 144; FB = 16; X = 72; XW = 8
    R = Ring4(TT=2, NT=7, nch=4, nslots=4, w_rs=224, wfmt=224, FB=FB, ACC=ACC, vWr=10, X=X, XW=XW, LA=LA5)
    a(f"""
    s_lshl_b32 s39, s17, 7
    s_lshl_b32 s23, s3, 5
    s_add_u32 s39, s39, s23
    s_lshl_b32 s38, s39, 10
    s_mul_i32 s20, s3, 7168
    s_mul_i32 s37, s16, 114688
    s_add_u32 s20, s20, s37
    s_cmp_ge_u32 s24, 4
    s_cbranch_scc1 K5_loader
    v_and_b32 v14, 15, v2
    v_lshrrev_b32 v15, 4, v2
    v_add_u32 v14, s39, v14
    v_lshlrev_b32 v13, 6, v14
    s_mul_i32 s21, s16, 448
    v_lshl_add_u32 v8, v15, 4, s21
    v_lshl_add_u32 v11, v2, 4, s38
    v_add_u32 v12, 0x4000, v11         ; tt1
    s_waitcnt lgkmcnt(0)
    """)
    SV = 232
    ws_ptr(8, 4, 'X1'); ws_ptr(24, 4, 'ST3'); ws_ptr(26, 4, 'HH'); ws_ptr(28, 4, 'CS', 2048)
    for tt in range(2):
        for q in range(4):
            r = ACC + 16*tt + 4*q
            a(f'global_load_dwordx4 v[{r}:{r+3}], v13, s[24:25] offset:{1024*tt + 16*q}')
    CSR = 204
    for cb in range(7):
        a(f'global_load_dwordx4 v[{CSR+4*cb}:{CSR+4*cb+3}], v8, s[28:29] offset:{64*cb}')
    def aload(st):
        if st % 4 == 0 and st:
            a('s_add_u32 s8, s8, 4096')
            a('s_addc_u32 s9, s9, 0')
        for tt in range(2):
            x = X + 4*(2*(st % XW) + tt)
            a(f'global_load_dwordx4 v[{x}:{x+3}], v{11+tt}, s[8:9] offset:{1024*(st&3)}')
    for st in range(XW):
        aload(st)
    R.comp_setup(3, 4, 5)
    a(f's_waitcnt vmcnt({7 + 2*XW})')
    for tt in range(2):
        b = ACC + 16*tt
        for i in (8, 4, 2):
            for j in range(0, i, 2):
                a(f'v_pk_add_f32 v[{b+j}:{b+j+1}], v[{b+j}:{b+j+1}], v[{b+j+i}:{b+j+i+1}]')
        a(f'v_mul_f32 v{b}, {hx(1/512)}, v{b}')
        a(f'v_mul_f32 v{b+1}, {hx(1/512)}, v{b+1}')
        a(f'v_fma_f32 v{b+1}, -v{b}, v{b}, v{b+1}')
        a(f'v_max_f32 v{b+1}, 0, v{b+1}')
        ln_scalars(b, b+1, 3)
        a(f'v_mov_b32 v{4+2*tt}, v{b+1}')
        a(f'v_mul_f32 v{5+2*tt}, v{b}, v{b+1}')
    for i in range(56):
        a(f'v_mov_b32 v{ACC+i}, 0')
    R.compute(aload)
    a(f"""
    v_mov_b32 v72, {hx(GC1)}
    v_mov_b32 v73, {hx(GC2)}
    v_mov_b32 v74, 1.0
    v_mov_b32 v75, 1.0
    s_mul_i32 s21, s39, 3584
    s_mul_i32 s22, s16, 3584
    s_add_u32 s21, s21, s22
    v_and_b32 v3, 1, v15
    v_lshrrev_b32 v13, 1, v15
    v_and_b32 v8, 15, v2
    v_lshl_add_u32 v8, v8, 4, s21
    v_lshl_add_u32 v12, v3, 1, v13
    v_lshl_add_u32 v12, v12, 8, v8
    v_add_u32 v11, 57344, v12          ; tt1
    v_mul_u32_u24 v3, 57344, v3
    v_lshl_add_u32 v10, v13, 8, v8
    v_add_u32 v10, v10, v3
    """)
    O = 80
    for tt in range(2):
        zs = [ACC + 28*tt + 2*p for p in range(14)]
        affine_round(zs, [CSR + 2*p for p in range(14)], 4+2*tt, 64)
        gelu_pairs(zs, 72, 64)
        for p in range(14):
            d = O + 16*tt + p if p < 12 else 112 + 2*tt + (p - 12)
            a(f'v_cvt_pk_bf16_f32 v{d}, v{zs[p]}, v{zs[p]+1}')
        a('s_nop 1')
        for P in range(3):
            o = O + 16*tt + 4*P
            a(f'v_permlane16_swap_b32 v{o}, v{o+2}')
            a(f'v_permlane16_swap_b32 v{o+1}, v{o+3}')
        a('s_nop 1')
        for P in range(3):
            o = O + 16*tt + 4*P
            a(f'global_store_dwordx4 v{12-tt}, v[{o}:{o+3}], s[26:27] offset:{1024*P}{SC3}')
    a('v_permlane16_swap_b32 v112, v114')
    a('v_permlane16_swap_b32 v113, v115')
    a('s_nop 1')
    a(f'global_store_dwordx4 v10, v[112:115], s[26:27] offset:3072{SC3}')
    trace_end(4)
    a('s_endpgm')
    a.label('K5_loader')
    a('s_waitcnt lgkmcnt(0)')
    ws_ptr(12, 4, 'W3P')
    a(f's_mov_b32 s14, {512*3584}')
    a('s_mov_b32 s15, 0x00020000')
    R.loader()
    if PF5:
        a('v_and_b32 v0, 255, v0')
        l2_prefetch(40, 1792*1024, 24, 28, 21)
    a.label('K5_exit')
    a.end_kernel(name, (256,1,1), (512,1,1), 4*R.SLOT, 240)

def gen_k6():
    global SV
    SV = 176
    name = 'k6_kernel'
    a.begin_kernel(name)
    a(f"""
    s_cmp_ge_u32 s2, 256
    s_cbranch_scc1 K6_exit
    s_load_dwordx2 s[4:5], s[0:1], {KA['ws']}
    s_load_dwordx2 s[6:7], s[0:1], {KA['w4']}
    s_load_dwordx2 s[26:27], s[0:1], {KA['out']}
    """)
    trace_begin()
    a(f"""
    v_lshrrev_b32 v1, 6, v0
    v_and_b32 v2, 63, v0
    v_readfirstlane_b32 s24, v1
    s_and_b32 s3, s24, 3
    {MAP64}
    """)
    wave_krow(18)
    ACC = 36; FB = 64; X = 96; XW = 16
    R = Ring4(TT=1, NT=4, nch=14, nslots=8, w_rs=1024, wfmt=128, FB=FB, ACC=ACC, vWr=10, X=X, XW=XW, rot=True, LA=LA6)
    a(f"""
    s_lshl_b32 s39, s17, 6
    s_lshl_b32 s23, s3, 4
    s_add_u32 s39, s39, s23
    s_lshl_b32 s38, s39, 10
    s_lshl_b32 s20, s18, 10
    s_lshl_b32 s37, s16, 7
    s_add_u32 s20, s20, s37
    s_lshl_b32 s34, s17, 1
    s_add_u32 s34, s34, s16
    s_mul_hi_u32 s35, s34, 0x24924925
    s_mul_i32 s35, s35, 7
    s_sub_u32 s34, s34, s35
    s_lshl_b32 s34, s34, 1
    s_cmp_ge_u32 s24, 4
    s_cbranch_scc1 K6_loader
    v_lshrrev_b32 v15, 4, v2
    s_mul_i32 s21, s39, 3584
    v_lshl_add_u32 v17, v2, 4, s21
    s_lshl_b32 s36, s34, 12
    """)
    fra_epi_off(18, 5)
    a('s_waitcnt lgkmcnt(0)')
    ws_ptr(8, 4, 'HH'); ws_ptr(24, 4, 'HR'); ws_ptr(28, 4, 'X1')
    a(f's_mov_b32 s10, {2048*3584}')
    a('s_mov_b32 s11, 0x00020000')
    for cb in range(4):
        a(f'global_load_dwordx2 v[{20+2*cb}:{21+2*cb}], v18, s[24:25] offset:{512*cb}')
    for cb in range(4):
        a(f'global_load_dwordx2 v[{28+2*cb}:{29+2*cb}], v18, s[28:29] offset:{512*cb}')
    def aload(st):
        x = X + 4*(st % XW)
        a(f'buffer_load_dwordx4 v[{x}:{x+3}], v17, s[8:11], s36 offen offset:{1024*(st&3)}')
        if st % 4 == 3:
            a('s_add_u32 s36, s36, 4096')
            a('s_cmp_eq_u32 s36, 57344')
            a('s_cselect_b32 s36, 0, s36')
    for st in range(XW):
        aload(st)
    R.comp_setup(5, 6, 7)
    for i in range(16):
        a(f'v_mov_b32 v{ACC+i}, 0')
    R.compute(aload)
    a('s_nop 7')
    O = 168
    for g0 in (0, 4):
        G = range(g0, g0+4)
        T1 = lambda p: 64 + (p & 3)
        T2 = lambda p: 68 + 2*(p & 3)
        for p in G: a(f'v_cvt_pk_bf16_f32 v{T1(p)}, v{ACC+2*p}, v{ACC+2*p+1}')
        for p in G: unpack(ACC+2*p, ACC+2*p+1, T1(p))
        for p in G: unpack(T2(p), T2(p)+1, 28+p)
        for p in G: a(f'v_pk_add_f32 v[{ACC+2*p}:{ACC+2*p+1}], v[{ACC+2*p}:{ACC+2*p+1}], v[{T2(p)}:{T2(p)+1}]')
        for p in G: a(f'v_cvt_pk_bf16_f32 v{T1(p)}, v{ACC+2*p}, v{ACC+2*p+1}')
        for p in G: unpack(ACC+2*p, ACC+2*p+1, T1(p))
        for p in G: unpack(T2(p), T2(p)+1, 20+p)
        for p in G: a(f'v_pk_add_f32 v[{ACC+2*p}:{ACC+2*p+1}], v[{ACC+2*p}:{ACC+2*p+1}], v[{T2(p)}:{T2(p)+1}]')
        for p in G: a(f'v_cvt_pk_bf16_f32 v{O+p}, v{ACC+2*p}, v{ACC+2*p+1}')
    a(f's_mul_i32 s21, s3, 2560')
    a(f's_add_u32 s21, s21, {8*R.SLOT}')
    store_tile64(O, 38, 26, 37, 64, 21)
    trace_end(5)
    a('s_endpgm')
    a.label('K6_loader')
    a('s_waitcnt lgkmcnt(0)')
    mk_srd(12, 6, 1792*1024)
    R.loader()
    a.label('K6_exit')
    a.end_kernel(name, (256,1,1), (512,1,1), 8*R.SLOT + 10240, 184)
    a.label('K_code_end')

def signal_cnt(soff, vt):
    l = a.newlabel('SIG')
    a('v_cmp_eq_u32 vcc, 0, v0')
    a('s_and_saveexec_b64 s[48:49], vcc')
    a(f's_cbranch_execz {l}')
    a(f'v_mov_b32 v{vt}, s{soff}')
    a(f'v_mov_b32 v{vt+1}, 1')
    a(f'global_atomic_add v{vt}, v{vt+1}, s[46:47] sc1')
    a.label(l)
    a('s_mov_b64 exec, s[48:49]')

def poll_cnt(label, soff, target, vt):
    a(f'v_readfirstlane_b32 s50, v0')
    a(f'v_mov_b32 v{vt}, s{soff}')
    a('s_mov_b32 s51, 0')
    a('s_cmp_lg_u32 s50, 0')
    a(f's_cbranch_scc1 {label}_ok')
    a.label(label)
    a(f'global_load_dword v{vt+1}, v{vt}, s[46:47] sc1')
    a('s_waitcnt vmcnt(0)')
    a(f'v_readfirstlane_b32 s50, v{vt+1}')
    a('s_add_u32 s51, s51, 1')
    a(f's_cmp_ge_u32 s50, {target}')
    a(f's_cbranch_scc1 {label}_ok')
    a('s_cmp_lt_u32 s51, 0x8000')
    a(f's_cbranch_scc0 {label}_ok')
    a('s_sleep 1')
    a(f's_branch {label}')
    a.label(f'{label}_ok')

def gen_k56():
    global SV
    SV = 232
    name = 'k56_kernel'
    a.begin_kernel(name)
    a(f"""
    s_cmp_ge_u32 s2, 256
    s_cbranch_scc1 K56_exit
    s_load_dwordx2 s[4:5], s[0:1], {KA['ws']}
    s_load_dwordx2 s[6:7], s[0:1], {KA['w4']}
    s_load_dwordx2 s[52:53], s[0:1], {KA['out']}
    """)
    trace_begin()
    a(f"""
    v_lshrrev_b32 v1, 6, v0
    v_and_b32 v2, 63, v0
    v_readfirstlane_b32 s44, v1
    s_and_b32 s3, s44, 3
    s_bfe_u32 s16, s2, 0x40003
    s_and_b32 s17, s2, 7
    s_lshl_b32 s17, s17, 1
    s_lshr_b32 s19, s2, 7
    s_add_u32 s17, s17, s19
    """)
    ACC = 144; FB = 16; X = 72; XW = 8
    R = Ring4(TT=2, NT=7, nch=4, nslots=4, w_rs=224, wfmt=224, FB=FB, ACC=ACC, vWr=10, X=X, XW=XW, LA=LA5)
    a(f"""
    s_lshl_b32 s39, s17, 7
    s_lshl_b32 s23, s3, 5
    s_add_u32 s39, s39, s23
    s_lshl_b32 s38, s39, 10
    s_mul_i32 s20, s3, 7168
    s_mul_i32 s37, s16, 114688
    s_add_u32 s20, s20, s37
    s_lshl_b32 s45, s17, 7
    s_cmp_ge_u32 s44, 4
    s_cbranch_scc1 K56_loader
    v_and_b32 v14, 15, v2
    v_lshrrev_b32 v15, 4, v2
    v_add_u32 v14, s39, v14
    v_lshlrev_b32 v13, 6, v14
    s_mul_i32 s21, s16, 448
    v_lshl_add_u32 v8, v15, 4, s21
    v_lshl_add_u32 v11, v2, 4, s38
    v_add_u32 v12, 0x4000, v11
    s_waitcnt lgkmcnt(0)
    """)
    gstamp(0)
    ws_ptr(8, 4, 'X1'); ws_ptr(24, 4, 'ST3'); ws_ptr(26, 4, 'HH'); ws_ptr(28, 4, 'CS', 2048); ws_ptr(46, 4, 'CNT')
    for tt in range(2):
        for q in range(4):
            r = ACC + 16*tt + 4*q
            a(f'global_load_dwordx4 v[{r}:{r+3}], v13, s[24:25] offset:{1024*tt + 16*q}')
    CSR = 204
    for cb in range(7):
        a(f'global_load_dwordx4 v[{CSR+4*cb}:{CSR+4*cb+3}], v8, s[28:29] offset:{64*cb}')
    def aload(st):
        if st % 4 == 0 and st:
            a('s_add_u32 s8, s8, 4096')
            a('s_addc_u32 s9, s9, 0')
        for tt in range(2):
            x = X + 4*(2*(st % XW) + tt)
            a(f'global_load_dwordx4 v[{x}:{x+3}], v{11+tt}, s[8:9] offset:{1024*(st&3)}')
    for st in range(XW):
        aload(st)
    R.comp_setup(3, 4, 5)
    a(f's_waitcnt vmcnt({7 + 2*XW})')
    for tt in range(2):
        b = ACC + 16*tt
        for i in (8, 4, 2):
            for j in range(0, i, 2):
                a(f'v_pk_add_f32 v[{b+j}:{b+j+1}], v[{b+j}:{b+j+1}], v[{b+j+i}:{b+j+i+1}]')
        a(f'v_mul_f32 v{b}, {hx(1/512)}, v{b}')
        a(f'v_mul_f32 v{b+1}, {hx(1/512)}, v{b+1}')
        a(f'v_fma_f32 v{b+1}, -v{b}, v{b}, v{b+1}')
        a(f'v_max_f32 v{b+1}, 0, v{b+1}')
        ln_scalars(b, b+1, 3)
        a(f'v_mov_b32 v{4+2*tt}, v{b+1}')
        a(f'v_mul_f32 v{5+2*tt}, v{b}, v{b+1}')
    for i in range(56):
        a(f'v_mov_b32 v{ACC+i}, 0')
    R.compute(aload)
    gstamp(1)
    a('s_barrier')
    a(f"""
    v_mov_b32 v72, {hx(GC1)}
    v_mov_b32 v73, {hx(GC2)}
    v_mov_b32 v74, 1.0
    v_mov_b32 v75, 1.0
    s_mul_i32 s21, s39, 3584
    s_mul_i32 s22, s16, 3584
    s_add_u32 s21, s21, s22
    v_and_b32 v3, 1, v15
    v_lshrrev_b32 v13, 1, v15
    v_and_b32 v8, 15, v2
    v_lshl_add_u32 v8, v8, 4, s21
    v_lshl_add_u32 v12, v3, 1, v13
    v_lshl_add_u32 v12, v12, 8, v8
    v_add_u32 v11, 57344, v12
    v_mul_u32_u24 v3, 57344, v3
    v_lshl_add_u32 v10, v13, 8, v8
    v_add_u32 v10, v10, v3
    """)
    O = 80
    for tt in range(2):
        zs = [ACC + 28*tt + 2*p for p in range(14)]
        affine_round(zs, [CSR + 2*p for p in range(14)], 4+2*tt, 64)
        gelu_pairs(zs, 72, 64)
        for p in range(14):
            d = O + 16*tt + p if p < 12 else 112 + 2*tt + (p - 12)
            a(f'v_cvt_pk_bf16_f32 v{d}, v{zs[p]}, v{zs[p]+1}')
        a('s_nop 1')
        for P in range(3):
            o = O + 16*tt + 4*P
            a(f'v_permlane16_swap_b32 v{o}, v{o+2}')
            a(f'v_permlane16_swap_b32 v{o+1}, v{o+3}')
        a('s_nop 1')
        for P in range(3):
            o = O + 16*tt + 4*P
            a(f'global_store_dwordx4 v{12-tt}, v[{o}:{o+3}], s[26:27] offset:{1024*P} sc1')
    a('v_permlane16_swap_b32 v112, v114')
    a('v_permlane16_swap_b32 v113, v115')
    a('s_nop 1')
    a('global_store_dwordx4 v10, v[112:115], s[26:27] offset:3072 sc1')
    P6 = f"""
    {MAP64}
    s_lshr_b32 s18, s3, 1
    s_lshl_b32 s18, s18, 4
    s_and_b32 s19, s3, 1
    s_lshl_b32 s19, s19, 2
    s_add_u32 s18, s18, s19
    s_lshl_b32 s39, s17, 6
    s_lshl_b32 s23, s3, 4
    s_add_u32 s39, s39, s23
    s_lshl_b32 s38, s39, 10
    s_lshl_b32 s20, s18, 10
    s_lshl_b32 s37, s16, 7
    s_add_u32 s20, s20, s37
    s_lshl_b32 s34, s17, 1
    s_add_u32 s34, s34, s16
    s_mul_hi_u32 s35, s34, 0x24924925
    s_mul_i32 s35, s35, 7
    s_sub_u32 s34, s34, s35
    s_lshl_b32 s34, s34, 1
    """
    a(P6)
    ACC6 = 36; FB6 = 64; X6 = 96; XW6 = 16
    R6 = Ring4(TT=1, NT=4, nch=14, nslots=8, w_rs=1024, wfmt=128, FB=FB6, ACC=ACC6, vWr=10, X=X6, XW=XW6, rot=True, LA=6)
    a(f"""
    s_mul_i32 s21, s39, 3584
    v_lshl_add_u32 v17, v2, 4, s21
    s_lshl_b32 s36, s34, 12
    s_lshr_b32 s43, s17, 1
    s_lshl_b32 s43, s43, 7
    """)
    fra_epi_off(18, 5)
    gstamp(2)
    a('s_waitcnt vmcnt(0)')
    a('s_barrier')
    gstamp(3)
    signal_cnt(45, 60)
    ws_ptr(8, 4, 'HH'); ws_ptr(24, 4, 'HR'); ws_ptr(28, 4, 'X1')
    a(f's_mov_b32 s10, {2048*3584}')
    a('s_mov_b32 s11, 0x00020000')
    for cb in range(4):
        a(f'global_load_dwordx2 v[{20+2*cb}:{21+2*cb}], v18, s[24:25] offset:{512*cb}')
    for cb in range(4):
        a(f'global_load_dwordx2 v[{28+2*cb}:{29+2*cb}], v18, s[28:29] offset:{512*cb}')
    R6.comp_setup(5, 6, 7)
    for i in range(16):
        a(f'v_mov_b32 v{ACC6+i}, 0')
    poll_cnt('K56_poll', 43, 16, 60)
    gstamp(4)
    a('s_barrier')
    gstamp(5)
    def aload6(st):
        x = X6 + 4*(st % XW6)
        a(f'buffer_load_dwordx4 v[{x}:{x+3}], v17, s[8:11], s36 offen offset:{1024*(st&3)} sc1')
        if st % 4 == 3:
            a('s_add_u32 s36, s36, 4096')
            a('s_cmp_eq_u32 s36, 57344')
            a('s_cselect_b32 s36, 0, s36')
    for st in range(XW6):
        aload6(st)
    R6.compute(aload6)
    gstamp(6)
    a('s_nop 7')
    O = 168
    ACC = ACC6
    for g0 in (0, 4):
        G = range(g0, g0+4)
        T1 = lambda p: 64 + (p & 3)
        T2 = lambda p: 68 + 2*(p & 3)
        for p in G: a(f'v_cvt_pk_bf16_f32 v{T1(p)}, v{ACC+2*p}, v{ACC+2*p+1}')
        for p in G: unpack(ACC+2*p, ACC+2*p+1, T1(p))
        for p in G: unpack(T2(p), T2(p)+1, 28+p)
        for p in G: a(f'v_pk_add_f32 v[{ACC+2*p}:{ACC+2*p+1}], v[{ACC+2*p}:{ACC+2*p+1}], v[{T2(p)}:{T2(p)+1}]')
        for p in G: a(f'v_cvt_pk_bf16_f32 v{T1(p)}, v{ACC+2*p}, v{ACC+2*p+1}')
        for p in G: unpack(ACC+2*p, ACC+2*p+1, T1(p))
        for p in G: unpack(T2(p), T2(p)+1, 20+p)
        for p in G: a(f'v_pk_add_f32 v[{ACC+2*p}:{ACC+2*p+1}], v[{ACC+2*p}:{ACC+2*p+1}], v[{T2(p)}:{T2(p)+1}]')
        for p in G: a(f'v_cvt_pk_bf16_f32 v{O+p}, v{ACC+2*p}, v{ACC+2*p+1}')
    a(f's_mul_i32 s21, s3, 2560')
    a(f's_add_u32 s21, s21, {8*R6.SLOT}')
    store_tile64(O, 38, 52, 37, 64, 21)
    trace_end(4)
    a('s_endpgm')
    a.label('K56_loader')
    a('s_waitcnt lgkmcnt(0)')
    ws_ptr(12, 4, 'W3P')
    a(f's_mov_b32 s14, {512*3584}')
    a('s_mov_b32 s15, 0x00020000')
    R.loader()
    a(P6)
    mk_srd(12, 6, 1792*1024)
    a('s_barrier')
    R6.loader(pre=3, bars=2)
    a.label('K56_exit')
    a.end_kernel(name, (256,1,1), (512,1,1), 8*R6.SLOT + 10240, 240)
    a.label('K_code_end')

def main():
    gen_k1()
    gen_k2()
    gen_k3()
    gen_k4()
    if MERGE56:
        gen_k56()
    else:
        gen_k5()
        gen_k6()

if __name__ == '__main__':
    out = sys.argv[1] if len(sys.argv) > 1 else 'k.s'
    if 'stamps' in sys.argv[2:]:
        STAMPS = True
    if 'trace' in sys.argv[2:]:
        TRACE = True
    if 'gst' in sys.argv[2:]:
        GST = True
    main()
    open(out, 'w').write(a.text(HEADER))
```

```python
import sys, struct
from asmlib import *
from gen_ws import WS, MB

KA = dict(x=0, Are=8, Aim=16, Bre=24, Bim=32, Cre=40, Cim=48, ldt=56, Dsk=64, Bx=72, w1=80, w2=88, w3=96, w4=104, out=112, dbg=120, ws=128)

def f2u(f):
    return struct.unpack('<I', struct.pack('<f', f))[0]
def hx(f):
    return hex(f2u(f))

LOG2E = 1.4426950408889634
LOG2E_HI = struct.unpack('<f', struct.pack('<f', LOG2E))[0]
LOG2E_LO = LOG2E - LOG2E_HI
LN2 = 0.6931471805599453
INV2PI = 0.15915494309189535

a = Asm()

def ws_ptr(dst, wsreg, name, extra=0):
    off = WS[name] + extra
    a(f's_add_u32 s{dst}, s{wsreg}, {hex(off)}')
    a(f's_addc_u32 s{dst+1}, s{wsreg+1}, 0')

def row16_allreduce(v):
    for sh in (8, 4, 2, 1):
        a('s_nop 1')
        a(f'v_add_f32_dpp v{v}, v{v}, v{v} row_ror:{sh} row_mask:0xf bank_mask:0xf')

def unpack(dlo, dhi, src):
    a(f'v_lshlrev_b32 v{dlo}, 16, v{src}')
    a(f'v_and_b32 v{dhi}, 0xffff0000, v{src}')

STAMPS = False
PREFETCH = True
MERGE456 = 'm456' in sys.argv
MERGE56 = 'm56' in sys.argv
SC2 = ' sc1' if ('sc2' in sys.argv or 'sc3' in sys.argv) else ''
SC3 = ' sc1' if 'sc3' in sys.argv else ''
USC = '' if 'nousc' in sys.argv else ' sc1'
F16 = 'nof16' not in sys.argv
NOPF2 = 'nopf2' in sys.argv
PF2W3 = 'pf2w3' in sys.argv
PF4 = 'pf4' in sys.argv
LA5 = int([x[3:] for x in sys.argv if x.startswith('l5_')][0]) if any(x.startswith('l5_') for x in sys.argv) else 2
LA6 = int([x[3:] for x in sys.argv if x.startswith('l6_')][0]) if any(x.startswith('l6_') for x in sys.argv) else 3
LA0 = int([x[3:] for x in sys.argv if x.startswith('lb_')][0]) if any(x.startswith('lb_') for x in sys.argv) else 2
LA_DEF = int([x[2:] for x in sys.argv if x.startswith('la')][0]) if any(x.startswith('la') for x in sys.argv) else 2
PF2 = 'pf2' in sys.argv
PF5 = 'nopf5' not in sys.argv
SV = 124
def stamp_init():
    if not STAMPS: return
    a(f's_load_dwordx2 s[90:91], s[0:1], {KA["dbg"]}')
def stamp(wg_list, slot):
    if not STAMPS: return
    l = a.newlabel('STP')
    a('s_memtime s[92:93]')
    a('s_waitcnt lgkmcnt(0)')
    a('v_readfirstlane_b32 s95, v0')
    a('s_nop 3')
    a('s_cmp_lg_u32 s95, 0')
    a(f's_cbranch_scc1 {l}')
    for i, wg in enumerate(wg_list):
        l2 = a.newlabel('STQ')
        a(f's_cmp_lg_u32 s2, {wg}')
        a(f's_cbranch_scc1 {l2}')
        a(f'v_mov_b32 v{SV+1}, s92')
        a(f'v_mov_b32 v{SV}, {(i*16+slot+16)*4}')
        a(f'global_store_dword v{SV}, v{SV+1}, s[90:91]')
        a.label(l2)
    a.label(l)

TRACE = False
GST = False
def gstamp(slot):
    if not GST: return
    l = a.newlabel('GST')
    a('s_memrealtime s[92:93]')
    a('v_readfirstlane_b32 s95, v0')
    a('s_waitcnt lgkmcnt(0)')
    a('s_cmp_lg_u32 s95, 0')
    a(f's_cbranch_scc1 {l}')
    a(f'v_mov_b32 v{SV+1}, s92')
    a('s_lshl_b32 s95, s2, 6')
    a(f's_add_u32 s95, s95, {40*MB + slot*4}')
    a(f'v_mov_b32 v{SV}, s95')
    a(f'global_store_dword v{SV}, v{SV+1}, s[4:5]')
    a.label(l)
def trace_begin():
    if not TRACE: return
    a('s_memrealtime s[96:97]')
    a('s_getreg_b32 s98, hwreg(HW_REG_HW_ID)')
    a('s_getreg_b32 s99, hwreg(HW_REG_XCC_ID)')
def trace_end(kidx):
    if not TRACE: return
    l = a.newlabel('TRC')
    a('s_mov_b64 exec, -1')
    a('s_memrealtime s[100:101]')
    a('v_readfirstlane_b32 s95, v0')
    a('s_waitcnt lgkmcnt(0)')
    a('s_cmp_lg_u32 s95, 0')
    a(f's_cbranch_scc1 {l}')
    a(f'v_mov_b32 v{SV}, s96')
    a(f'v_mov_b32 v{SV+1}, s100')
    a(f'v_mov_b32 v{SV+2}, s98')
    a(f'v_mov_b32 v{SV+3}, s99')
    a('s_lshl_b32 s95, s2, 4')
    a(f's_add_u32 s95, s95, {hex(32*MB + kidx*65536)}')
    a(f'v_mov_b32 v{SV+4}, s95')
    a(f'global_store_dwordx4 v{SV+4}, v[{SV}:{SV+3}], s[4:5]')
    a.label(l)

def l2_prefetch(sptr, total_bytes, vtmp, vdst, stmp):
    per = total_bytes // 32
    assert per % 4096 == 0
    a(f's_lshr_b32 s{stmp}, s2, 3')
    a(f's_mul_i32 s{stmp}, s{stmp}, {per}')
    a(f'v_lshl_add_u32 v{vtmp}, v0, 4, s{stmp}')
    for i in range(per // 4096):
        a(f'global_load_dwordx4 v[{vdst}:{vdst+3}], v{vtmp}, s[{sptr}:{sptr+1}]')
        if i < per // 4096 - 1:
            a(f's_add_u32 s{sptr}, s{sptr}, 4096')
            a(f's_addc_u32 s{sptr+1}, s{sptr+1}, 0')

CODEPF = 'nocpf' not in sys.argv
def code_prefetch(first_label, last_label, vt, vdst, sp):
    if not CODEPF: return
    l = a.newlabel('CPF')
    a(f's_getpc_b64 s[{sp}:{sp+1}]')
    a.label(l)
    a(f's_add_u32 s{sp}, s{sp}, {first_label}-{l}')
    a(f's_addc_u32 s{sp+1}, s{sp+1}, 0')
    a(f's_bfe_u32 s{sp+2}, s2, 0x50003')
    a(f's_lshl_b32 s{sp+2}, s{sp+2}, 10')
    a(f'v_and_b32 v{vt}, 63, v0')
    a(f'v_lshl_add_u32 v{vt}, v{vt}, 4, s{sp+2}')
    a(f'v_min_u32 v{vt}, {last_label}-{first_label}-16, v{vt}')
    a(f'global_load_dwordx4 v[{vdst}:{vdst+3}], v{vt}, s[{sp}:{sp+1}]')

def ln_scalars(S, Q, T):
    a(f'v_cvt_pk_bf16_f32 v{T}, v{S}, v{Q}')
    unpack(S, Q, T)
    a(f'v_add_f32 v{Q}, {hx(1e-5)}, v{Q}')
    a(f'v_cvt_pk_bf16_f32 v{T}, v{Q}, v{Q}')
    a(f'v_lshlrev_b32 v{Q}, 16, v{T}')
    a(f'v_sqrt_f32 v{Q}, v{Q}')
    a('s_nop 0')
    a(f'v_cvt_pk_bf16_f32 v{T}, v{Q}, v{Q}')
    a(f'v_lshlrev_b32 v{Q}, 16, v{T}')
    a(f'v_rcp_f32 v{Q}, v{Q}')
    a('s_nop 0')

def gen_k1():
    global SV
    SV = 96
    name = 'k1_kernel'
    SW = [0, 64, 82]
    a.begin_kernel(name)
    a(f"""
    s_cmp_ge_u32 s2, 274
    s_cbranch_scc1 K1_exit
    s_load_dwordx2 s[4:5], s[0:1], {KA['ws']}
    """)
    stamp_init(); stamp(SW, 0); trace_begin()

    a(f"""
    s_cmp_lt_u32 s2, 256
    s_cbranch_scc1 K1_kgen
    """)
    a(f"""
    s_waitcnt lgkmcnt(0)
    s_add_u32 s20, s4, {hex(WS['CNT'])}
    s_addc_u32 s21, s5, 0
    v_lshlrev_b32 v1, 4, v0
    v_mov_b32 v4, 0
    v_mov_b32 v5, 0
    v_mov_b32 v6, 0
    v_mov_b32 v7, 0
    global_store_dwordx4 v1, v[4:7], s[20:21]
    s_sub_u32 s3, s2, 256            ; 0..17 : 0..3 -> w1 ; 4..17 -> w3
    s_load_dwordx2 s[6:7], s[0:1], {KA['w1']}
    s_load_dwordx2 s[8:9], s[0:1], {KA['w3']}
    s_movk_i32 s10, 1024
    s_lshl_b32 s11, s3, 8
    s_cmp_lt_u32 s3, 4
    s_waitcnt lgkmcnt(0)
    s_cbranch_scc1 K1_cs_w1
    s_mov_b32 s6, s8
    s_mov_b32 s7, s9
    s_movk_i32 s10, 3584
    s_sub_u32 s11, s11, 1024
    """)
    a.label('K1_cs_w1')
    a("""
    v_lshrrev_b32 v1, 4, v0          ; rg 0..31
    v_and_b32 v2, 15, v0
    v_mul_lo_u32 v3, v1, s10
    v_lshl_add_u32 v3, v2, 4, v3
    v_add_u32 v3, s11, v3
    s_lshl_b32 s12, s10, 5           ; 32 rows
    """)
    for i in range(16):
        a(f'global_load_dwordx4 v[{8+4*i}:{11+4*i}], v3, s[6:7]')
        if i < 15:
            a('s_add_u32 s6, s6, s12')
            a('s_addc_u32 s7, s7, 0')
    AC = 76
    for j in range(8):
        a(f'v_mov_b32 v{AC+j}, 0')
    for i in range(16):
        a(f's_waitcnt vmcnt({15-i})')
        for j in range(4):
            unpack(84+2*(j&1), 85+2*(j&1), 8+4*i+j)
            a(f'v_pk_add_f32 v[{AC+2*j}:{AC+2*j+1}], v[{AC+2*j}:{AC+2*j+1}], v[{84+2*(j&1)}:{85+2*(j&1)}]')
    a(f"""
    v_lshlrev_b32 v4, 5, v0          ; rg*512 + c*32
    ds_write_b128 v4, v[{AC}:{AC+3}]
    ds_write_b128 v4, v[{AC+4}:{AC+7}] offset:16
    v_lshlrev_b32 v5, 2, v0
    s_waitcnt lgkmcnt(0)
    s_barrier
    v_cmp_gt_u32 vcc, 128, v0
    s_and_saveexec_b64 s[14:15], vcc
    s_cbranch_execz K1_end
    """)
    for i in range(32):
        a(f'ds_read_b32 v{8+i}, v5 offset:{512*i}')
    ws_ptr(8, 4, 'CS')
    a('s_lshl_b32 s3, s3, 9')
    a('v_add_u32 v5, s3, v5')
    a('s_waitcnt lgkmcnt(0)')
    for st in (16, 8, 4, 2, 1):
        for i in range(st):
            a(f'v_add_f32 v{8+i}, v{8+i}, v{8+i+st}')
    a('global_store_dword v5, v8, s[8:9]')
    a('s_branch K1_end')

    a.label('K1_kgen')
    a(f"""
    s_load_dwordx4 s[8:11], s[0:1], {KA['Are']}
    s_load_dwordx4 s[12:15], s[0:1], {KA['Bre']}
    s_load_dwordx4 s[16:19], s[0:1], {KA['Cre']}
    s_load_dwordx2 s[20:21], s[0:1], {KA['ldt']}
    s_load_dwordx2 s[6:7], s[0:1], {KA['x']}
    s_lshl_b32 s3, s2, 1             ; d0
    v_lshrrev_b32 v1, 8, v0
    v_add_u32 v1, s3, v1             ; d
    v_lshrrev_b32 v2, 6, v0          ; wave
    v_and_b32 v3, 31, v0
    v_lshl_add_u32 v3, v2, 5, v3     ; (ch*128 + n)
    s_lshl_b32 s26, s3, 8
    v_lshlrev_b32 v14, 4, v3
    v_lshl_add_u32 v3, v3, 1, s26    ; d*256 + n*2
    v_lshlrev_b32 v4, 1, v1
    v_and_b32 v5, 15, v0             ; idx
    v_bfe_u32 v6, v0, 4, 2           ; nn
    s_lshl_b32 s26, s2, 13
    v_lshl_add_u32 v92, v0, 4, s26   ; (8wg + wave)*1024 + lane*16
    s_waitcnt lgkmcnt(0)
    global_load_ushort v7, v4, s[20:21]
    global_load_ushort v8, v3, s[8:9]
    global_load_ushort v9, v3, s[10:11]
    global_load_ushort v10, v3, s[12:13]
    global_load_ushort v11, v3, s[14:15]
    global_load_ushort v12, v3, s[16:17]
    global_load_ushort v13, v3, s[18:19]
    global_load_dwordx4 v[76:79], v92, s[6:7]
    """)
    ws_ptr(22, 4, 'KH'); ws_ptr(24, 4, 'KL')
    if PREFETCH:
        a(f"""
        s_load_dwordx4 s[28:31], s[0:1], {KA['w1']}
        s_load_dwordx4 s[32:35], s[0:1], {KA['w3']}
        s_mov_b32 s36, s2
        s_mul_i32 s37, s36, 7168
        v_min_u32 v44, 447, v0
        v_lshl_add_u32 v44, v44, 4, s37
        s_lshl_b32 s37, s36, 11
        v_and_b32 v45, 127, v0
        v_lshl_add_u32 v45, v45, 4, s37
        s_waitcnt lgkmcnt(0)
        global_load_dwordx4 v[72:75], v44, s[34:35]
        global_load_dwordx4 v[72:75], v44, s[32:33]
        global_load_dwordx4 v[72:75], v45, s[30:31]
        global_load_dwordx4 v[72:75], v45, s[28:29]
        """)
    code_prefetch('k2_kernel', 'k456_kernel' if MERGE456 else 'k4_kernel', 44, 72, 36)
    a("""
    v_lshrrev_b32 v40, 3, v5
    v_lshlrev_b32 v40, 7, v40
    v_and_or_b32 v32, v5, 7, v40
    v_bfe_u32 v40, v5, 2, 1
    v_lshlrev_b32 v40, 7, v40
    v_and_b32 v41, 3, v5
    v_lshl_add_u32 v40, v41, 1, v40
    v_add_u32 v40, 256, v40
    v_bfe_u32 v41, v5, 1, 2
    v_lshlrev_b32 v41, 7, v41
    v_and_b32 v33, 1, v5
    v_lshl_add_u32 v41, v33, 2, v41
    v_add_u32 v41, 512, v41
    v_cmp_gt_u32 vcc, 8, v5
    v_lshlrev_b32 v34, 7, v5
    v_add_u32 v34, 1024, v34
    v_cndmask_b32 v33, v41, v40, vcc
    v_lshlrev_b32 v35, 3, v5
    v_cvt_f32_u32 v32, v32
    v_cvt_f32_u32 v33, v33
    v_cvt_f32_u32 v34, v34
    v_cvt_f32_u32 v35, v35
    v_mul_u32_u24 v42, 3072, v2
    v_add_u32 v42, 4096, v42
    v_lshrrev_b32 v40, 1, v6
    v_lshlrev_b32 v40, 7, v40
    v_and_b32 v41, 1, v6
    v_lshl_add_u32 v40, v41, 2, v40
    v_lshl_add_u32 v40, v5, 3, v40
    v_lshl_add_u32 v36, v40, 2, v42
    v_lshlrev_b32 v40, 6, v6
    v_add_u32 v40, 256, v40
    v_lshl_add_u32 v41, v5, 2, v40
    v_lshl_add_u32 v40, v5, 1, v40
    v_cmp_gt_u32 vcc, 2, v6
    v_mov_b32 v43, 32
    s_nop 0
    v_cndmask_b32 v40, v40, v41, vcc
    v_cndmask_b32 v43, v43, 2, vcc
    v_lshl_add_u32 v37, v40, 2, v42
    v_lshl_add_u32 v38, v43, 2, v37
    v_lshlrev_b32 v40, 6, v6
    v_add_u32 v40, v40, v5
    v_add_u32 v40, 512, v40
    v_lshl_add_u32 v39, v40, 2, v42
    v_lshlrev_b32 v15, 9, v2
    v_lshl_add_u32 v15, v6, 4, v15
    """)
    stamp(SW, 1)
    a(f's_waitcnt vmcnt({5 + CODEPF})')
    a(f"""
    v_lshlrev_b32 v7, 16, v7
    v_mul_f32 v40, {hx(LOG2E_HI)}, v7
    s_mov_b32 s26, {hx(LOG2E_HI)}
    v_fma_f32 v41, v7, s26, -v40
    v_mov_b32 v43, {hx(LOG2E_LO)}
    v_fmac_f32 v41, v7, v43
    v_exp_f32 v40, v40
    v_mul_f32 v41, {hx(LN2)}, v41
    v_lshlrev_b32 v8, 16, v8
    v_fmac_f32 v40, v40, v41
    v_cvt_pk_bf16_f32 v40, v40, v40
    v_lshlrev_b32 v7, 16, v40         ; dt
    v_lshlrev_b32 v9, 16, v9
    v_lshlrev_b32 v10, 16, v10
    v_lshlrev_b32 v11, 16, v11
    v_lshlrev_b32 v12, 16, v12
    v_lshlrev_b32 v13, 16, v13
    v_mul_f32 v16, v7, v8
    v_mul_f32 v17, v7, v9
    v_mul_f32 v16, {hx(LOG2E)}, v16
    v_mul_f32 v17, {hx(INV2PI)}, v17
    v_mul_f32 v10, v7, v10
    v_mul_f32 v11, v7, v11
    v_mul_f32 v18, v12, v10
    v_mul_f32 v19, v12, v11
    v_fma_f32 v18, -v13, v11, v18
    v_fmac_f32 v19, v13, v10
    ds_write_b128 v14, v[16:19]
    """)
    def ln_block():
        LB = 32768
        F = 80
        ws_ptr(28, 4, 'UT'); ws_ptr(30, 4, 'XT')
        a(f"""
        v_and_b32 v95, 63, v0
        v_mul_u32_u24 v28, 1056, v2
        v_lshl_add_u32 v28, v95, 4, v28
        ds_write_b128 v28, v[76:79] offset:{LB+8448}
        """)
        for i in range(4):
            unpack(F+2*i, F+2*i+1, 76+i)
        def wave_allreduce(v, t):
            row16_allreduce(v)
            a(f'v_mov_b32 v{t}, v{v}')
            a('s_nop 1')
            a(f'v_permlane16_swap_b32 v{v}, v{t}')
            a('s_nop 1')
            a(f'v_add_f32 v{v}, v{v}, v{t}')
            a(f'v_mov_b32 v{t}, v{v}')
            a('s_nop 1')
            a(f'v_permlane32_swap_b32 v{v}, v{t}')
            a('s_nop 1')
            a(f'v_add_f32 v{v}, v{v}, v{t}')
        a(f"""
        v_pk_add_f32 v[88:89], v[{F}:{F+1}], v[{F+2}:{F+3}]
        v_pk_add_f32 v[90:91], v[{F+4}:{F+5}], v[{F+6}:{F+7}]
        v_pk_add_f32 v[88:89], v[88:89], v[90:91]
        v_add_f32 v88, v88, v89
        """)
        wave_allreduce(88, 89)
        a(f'v_mul_f32 v88, {hx(1/512)}, v88')
        a('v_mov_b32 v90, 0')
        a('v_mov_b32 v91, 0')
        for i in range(4):
            a(f'v_pk_add_f32 v[92:93], v[{F+2*i}:{F+2*i+1}], v[88:89] op_sel_hi:[1,0] neg_lo:[0,1] neg_hi:[0,1]')
            a('v_pk_fma_f32 v[90:91], v[92:93], v[92:93], v[90:91]')
        a('v_add_f32 v90, v90, v91')
        wave_allreduce(90, 91)
        a(f'v_mul_f32 v90, {hx(1/512)}, v90')
        ln_scalars(88, 90, 92)
        for i in range(4):
            f0 = F+2*i
            a(f'v_pk_add_f32 v[{f0}:{f0+1}], v[{f0}:{f0+1}], v[88:89] op_sel_hi:[1,0] neg_lo:[0,1] neg_hi:[0,1]')
            a(f'v_cvt_pk_bf16_f32 v92, v{f0}, v{f0+1}')
            unpack(f0, f0+1, 92)
            a(f'v_pk_mul_f32 v[{f0}:{f0+1}], v[{f0}:{f0+1}], v[90:91] op_sel_hi:[1,0]')
            a(f'v_cvt_pk_bf16_f32 v{76+i}, v{f0}, v{f0+1}')
            if F16:
                unpack(f0, f0+1, 76+i)
                a(f'v_cvt_pk_f16_f32 v{76+i}, v{f0}, v{f0+1}')
        a(f"""
        ds_write_b128 v28, v[76:79] offset:{LB}
        v_bfe_u32 v28, v0, 2, 2
        v_mul_u32_u24 v28, 1056, v28
        v_lshrrev_b32 v29, 4, v0
        v_lshlrev_b32 v29, 5, v29
        v_and_b32 v95, 3, v0
        v_lshlrev_b32 v95, 3, v95
        v_add3_u32 v28, v28, v29, v95
        v_lshrrev_b32 v94, 1, v0
        v_lshlrev_b32 v94, 13, v94
        v_and_b32 v95, 1, v0
        v_lshl_add_u32 v94, v95, 4, v94
        s_lshl_b32 s26, s2, 5
        v_add_u32 v94, s26, v94
        s_waitcnt lgkmcnt(0)
        s_barrier
        ds_read_b64_tr_b16 v[76:77], v28 offset:{LB}
        ds_read_b64_tr_b16 v[78:79], v28 offset:{LB+4224}
        ds_read_b64_tr_b16 v[80:81], v28 offset:{LB+8448}
        ds_read_b64_tr_b16 v[82:83], v28 offset:{LB+8448+4224}
        s_waitcnt lgkmcnt(2)
        global_store_dwordx4 v94, v[76:79], s[28:29]{USC}
        s_waitcnt lgkmcnt(0)
        global_store_dwordx4 v94, v[80:83], s[30:31]{USC}
        """)
    ACC = 60
    for i in range(12):
        a(f'v_mov_b32 v{ACC+i}, 0')
    a('s_waitcnt lgkmcnt(0)')
    a('ds_read_b128 v[16:19], v15')
    a('ds_read_b128 v[24:27], v15 offset:64')
    a('s_mov_b32 s27, 0')
    def split(H, L, R, t):
        a(f'v_cvt_pk_bf16_f32 v{H}, v{R}, v{R+1}')
        a(f'v_lshlrev_b32 v{t}, 16, v{H}')
        a(f'v_and_b32 v{t+1}, 0xffff0000, v{H}')
        a(f'v_pk_add_f32 v[{t}:{t+1}], v[{R}:{R+1}], v[{t}:{t+1}] neg_lo:[0,1] neg_hi:[0,1]')
        a(f'v_cvt_pk_bf16_f32 v{L}, v{t}, v{t+1}')
    for it in range(2):
        for u in range(4):
            P = 16 + 8*(u & 1)
            a(f's_waitcnt lgkmcnt({1})')
            a(f"""
            v_pk_mul_f32 v[44:45], v[{P}:{P+1}], v[34:35] op_sel:[0,1] op_sel_hi:[1,1]
            v_pk_mul_f32 v[46:47], v[{P}:{P+1}], v[32:33] op_sel:[0,0] op_sel_hi:[1,0]
            v_pk_mul_f32 v[48:49], v[{P}:{P+1}], v[32:33] op_sel:[0,1] op_sel_hi:[1,1]
            v_pk_mul_f32 v[50:51], v[{P}:{P+1}], v[34:35] op_sel:[0,0] op_sel_hi:[1,0]
            v_fract_f32 v45, v45
            v_fract_f32 v47, v47
            v_fract_f32 v49, v49
            v_fract_f32 v51, v51
            v_exp_f32 v44, v44
            v_cos_f32 v52, v45
            v_sin_f32 v53, v45
            v_exp_f32 v46, v46
            v_cos_f32 v54, v47
            v_sin_f32 v55, v47
            v_pk_mul_f32 v[52:53], v[52:53], v[44:45] op_sel_hi:[1,0]
            v_exp_f32 v48, v48
            v_cos_f32 v56, v49
            v_sin_f32 v57, v49
            v_pk_mul_f32 v[54:55], v[54:55], v[46:47] op_sel_hi:[1,0]
            v_pk_mul_f32 v[20:21], v[{P+2}:{P+3}], v[52:53] op_sel:[0,0] op_sel_hi:[0,1] neg_hi:[1,0]
            v_exp_f32 v50, v50
            v_cos_f32 v58, v51
            v_sin_f32 v59, v51
            v_pk_fma_f32 v[20:21], v[{P+2}:{P+3}], v[52:53], v[20:21] op_sel:[1,1,0] op_sel_hi:[1,0,1] neg_lo:[1,0,0] neg_hi:[1,0,0]
            v_pk_mul_f32 v[56:57], v[56:57], v[48:49] op_sel_hi:[1,0]
            v_pk_mul_f32 v[58:59], v[58:59], v[50:51] op_sel_hi:[1,0]
            ds_read_b128 v[{P}:{P+3}], v15 offset:{128+64*u}
            """)
            split(96+u, 100+u, 54, 44)
            split(120+u, 124+u, 20, 46)
            split(104+u, 108+u, 56, 48)
            split(112+u, 116+u, 58, 50)
        a('s_nop 1')
        a('v_add_u32 v15, 256, v15')
        for t in range(3):
            a(f'v_mfma_f32_16x16x32_bf16 v[{60+4*t}:{63+4*t}], v[{96+8*t}:{99+8*t}], v[120:123], v[{60+4*t}:{63+4*t}]')
        for t in range(3):
            a(f'v_mfma_f32_16x16x32_bf16 v[{60+4*t}:{63+4*t}], v[{96+8*t}:{99+8*t}], v[124:127], v[{60+4*t}:{63+4*t}]')
        for t in range(3):
            a(f'v_mfma_f32_16x16x32_bf16 v[{60+4*t}:{63+4*t}], v[{100+8*t}:{103+8*t}], v[120:123], v[{60+4*t}:{63+4*t}]')
        if it == 0:
            a(f's_waitcnt vmcnt({4 + CODEPF})')
            a('s_waitcnt lgkmcnt(0)')
            ln_block()
    a('s_waitcnt lgkmcnt(0)')
    a(f"""
    v_and_b32 v8, 63, v0
    v_bfe_u32 v9, v0, 6, 2
    v_lshlrev_b32 v8, 5, v8
    v_lshl_add_u32 v8, v9, 3, v8      ; s0 = 32a+8q
    v_cmp_gt_u32 vcc, 256, v8
    v_cvt_f32_u32 v9, v8
    v_lshrrev_b32 v11, 8, v0
    v_mul_u32_u24 v11, 12288, v11
    v_add_u32 v11, 4096, v11
    v_lshl_add_u32 v10, v8, 2, v11
    v_subrev_u32 v11, {4*(0x4380-256)}, v11
    """)
    for p in range(4):
        a(f'v_add_f32 v12, {hx(7.0-2*p)}, v9')
        a(f'v_add_f32 v13, {hx(6.0-2*p)}, v9')
        a('v_cvt_pk_bf16_f32 v12, v12, v13')
        a('v_lshrrev_b32 v13, 16, v12')
        a('v_and_b32 v12, 0xffff, v12')
        a('v_lshl_add_u32 v12, v12, 2, v11')
        a('v_lshl_add_u32 v13, v13, 2, v11')
        a(f'v_add_u32 v14, {4*(7-2*p)}, v10')
        a(f'v_add_u32 v16, {4*(6-2*p)}, v10')
        a(f'v_cndmask_b32 v{24+2*p}, v12, v14, vcc')
        a(f'v_cndmask_b32 v{25+2*p}, v13, v16, vcc')
    if F16:
        a("""
        v_max3_f32 v14, |v60|, |v61|, |v62|
        v_max3_f32 v16, |v63|, |v64|, |v65|
        v_max3_f32 v17, |v66|, |v67|, |v68|
        v_max3_f32 v18, |v69|, |v70|, |v71|
        v_max3_f32 v14, v14, v16, v17
        v_max_f32 v14, v14, v18
        """)
        for sh in (8, 4, 2, 1):
            a('s_nop 1')
            a(f'v_max_f32_dpp v14, v14, v14 row_ror:{sh} row_mask:0xf bank_mask:0xf')
        a("""
        v_mov_b32 v16, v14
        s_nop 1
        v_permlane16_swap_b32 v14, v16
        s_nop 1
        v_max_f32 v14, v14, v16
        v_mov_b32 v16, v14
        s_nop 1
        v_permlane32_swap_b32 v14, v16
        s_nop 1
        v_max_f32 v14, v14, v16
        v_lshlrev_b32 v16, 2, v2
        ds_write_b32 v16, v14 offset:28672
        """)
    for rr in range(4):
        a(f'ds_write_b32 v36, v{60+rr} offset:{4*rr}')
    for rr in range(4):
        a(f'ds_write_b32 v{37+(rr>>1)}, v{64+rr} offset:{4*(rr&1)}')
    for rr in range(4):
        a(f'ds_write_b32 v39, v{68+rr} offset:{64*rr}')
    a("""
    s_lshl_b32 s26, s3, 12
    v_lshl_add_u32 v12, v0, 4, s26    ; d0*4096 + tid*16
    s_waitcnt lgkmcnt(0)
    s_barrier
    """)
    if F16:
        a('v_lshrrev_b32 v15, 8, v0')
        a('v_lshlrev_b32 v15, 4, v15')
        a('ds_read_b128 v[16:19], v15 offset:28672')
    for kk in range(8):
        for w in range(4):
            a(f'ds_read_b32 v{32+4*kk+w}, v{24+kk} offset:{3072*w}')
    a('s_waitcnt lgkmcnt(0)')
    for kk in range(8):
        b = 32+4*kk
        a(f'v_add_f32 v{b}, v{b}, v{b+1}')
        a(f'v_add_f32 v{b+2}, v{b+2}, v{b+3}')
    for kk in range(8):
        b = 32+4*kk
        a(f'v_add_f32 v{b}, v{b}, v{b+2}')
    if F16:
        a("""
        v_add_f32 v14, v16, v17
        v_add_f32 v15, v18, v19
        v_add_f32 v14, v14, v15
        v_lshrrev_b32 v14, 23, v14
        v_max_u32 v14, 15, v14
        v_sub_u32 v15, 268, v14
        v_lshlrev_b32 v15, 23, v15         ; scale
        v_subrev_u32 v14, 14, v14
        v_lshlrev_b32 v14, 23, v14
        """)
        for kk in range(8):
            a(f'v_mul_f32 v{32+4*kk}, v{32+4*kk}, v15')
        for p in range(4):
            a(f'v_cvt_pk_f16_f32 v{64+p}, v{32+8*p}, v{36+8*p}')
        a(f'global_store_dwordx4 v12, v[64:67], s[22:23]{SC2}')
        ws_ptr(24, 4, 'SCL')
        a("""
        v_and_b32 v16, 255, v0
        v_cmp_eq_u32 vcc, 0, v16
        v_lshlrev_b32 v16, 2, v1
        s_and_saveexec_b64 s[26:27], vcc
        s_cbranch_execz K1_nosc
        global_store_dword v16, v14, s[24:25]
        """)
        a.label('K1_nosc')
        a('s_mov_b64 exec, s[26:27]')
    else:
        for p in range(4):
            k0, k1 = 32+8*p, 36+8*p
            a(f'v_cvt_pk_bf16_f32 v{64+p}, v{k0}, v{k1}')
            unpack(14, 15, 64+p)
            a(f'v_sub_f32 v{k0}, v{k0}, v14')
            a(f'v_sub_f32 v{k1}, v{k1}, v15')
            a(f'v_cvt_pk_bf16_f32 v{68+p}, v{k0}, v{k1}')
        a('global_store_dwordx4 v12, v[64:67], s[22:23]')
        a('global_store_dwordx4 v12, v[68:71], s[24:25]')
    a.label('K1_end')
    trace_end(0)
    a.label('K1_exit')
    a.end_kernel(name, (274,1,1), (512,1,1), 51200, 128)

def gen_k2():
    global SV
    SV = 128
    name = 'k2_kernel'
    CHB = 45568; KOFF = 33280; RED = 2 * CHB
    a.begin_kernel(name)
    a(f"""
    s_cmp_ge_u32 s2, 256
    s_cbranch_scc1 K2_exit
    s_load_dwordx2 s[4:5], s[0:1], {KA['ws']}
    s_load_dwordx2 s[6:7], s[0:1], {KA['Dsk']}
    s_load_dwordx4 s[40:43], s[0:1], {KA['w1']}
    s_load_dwordx2 s[44:45], s[0:1], {KA['w3']}
    """)
    trace_begin()
    a(f"""
    v_lshrrev_b32 v1, 6, v0            ; wave
    v_and_b32 v2, 63, v0               ; lane
    v_readfirstlane_b32 s30, v1
    s_and_b32 s3, s30, 3
    s_lshl_b32 s16, s2, 1              ; d0
    s_lshr_b32 s17, s3, 1              ; ch
    s_and_b32 s18, s3, 1
    s_add_u32 s19, s16, s17
    s_mul_i32 s20, s17, {CHB}
    s_lshl_b32 s26, s2, 13
    v_lshrrev_b32 v57, 1, v0           ; tau
    v_and_b32 v56, 1, v0               ; ch
    v_lshl_add_u32 v4, v0, 4, s26
    v_mul_u32_u24 v58, {CHB}, v56
    v_cmp_eq_u32 s[58:59], 0, v57
    v_subrev_u32 v5, 32, v4
    v_lshl_add_u32 v120, v57, 4, v58
    v_cndmask_b32 v5, v5, v4, s[58:59]
    v_add_u32 v120, 64, v120
    s_waitcnt lgkmcnt(0)
    """)
    ws_ptr(8, 4, 'UT')
    a("""
    global_load_dwordx4 v[8:11], v5, s[8:9]
    global_load_dwordx4 v[12:15], v4, s[8:9]
    s_cmp_ge_u32 s30, 4
    s_cbranch_scc1 K2_helper
    """)
    ws_ptr(10, 4, 'XT'); ws_ptr(22, 4, 'HT'); ws_ptr(32, 4, 'SCL')
    a(f"""
    v_and_b32 v6, 31, v2
    v_lshrrev_b32 v7, 5, v2
    v_lshlrev_b32 v40, 6, v6
    v_lshl_add_u32 v40, v7, 3, v40
    s_lshl_b32 s27, s18, 11
    v_add_u32 v122, s27, v40
    s_lshl_b32 s26, s18, 5
    v_add_u32 v121, s26, v6
    v_lshlrev_b32 v121, 7, v121
    v_lshl_add_u32 v121, v7, 3, v121
    s_lshl_b32 s26, s2, 13
    s_lshl_b32 s27, s17, 4
    s_add_u32 s26, s26, s27
    v_add_u32 v121, s26, v121
    global_load_dwordx2 v[112:113], v121, s[10:11]
    global_load_dwordx2 v[114:115], v121, s[10:11] offset:32
    global_load_dwordx2 v[116:117], v121, s[10:11] offset:64
    global_load_dwordx2 v[118:119], v121, s[10:11] offset:96
    s_lshl_b32 s26, s19, 1
    v_mov_b32 v42, s26
    global_load_ushort v125, v42, s[6:7]
    v_lshlrev_b32 v42, 1, v42
    global_load_dword v110, v42, s[32:33]
    v_and_b32 v45, 7, v6
    v_mul_u32_u24 v45, 4160, v45
    v_lshrrev_b32 v46, 3, v6
    v_lshl_add_u32 v45, v46, 4, v45
    v_lshlrev_b32 v46, 4, v7
    v_sub_u32 v45, v45, v46
    v_add_u32 v45, 32, v45
    v_add_u32 v126, s20, v45           ; vA'
    v_mul_u32_u24 v46, 1536, v7
    v_lshl_add_u32 v46, v6, 4, v46
    v_add_u32 v46, {KOFF + 512 - 16*63}, v46
    v_add_u32 v127, s20, v46           ; vB
    s_branch K2_copies
    """)
    a.label('K2_helper')
    ws_ptr(12, 4, 'KH')
    a(f"""
    s_mov_b32 s14, {4*MB}
    s_mov_b32 s15, 0x00020000
    """)
    if F16:
        a(f"""
        s_lshl_b32 s24, s18, 11
        s_lshl_b32 s25, s19, 12
        s_add_u32 s24, s24, s25
        s_mul_i32 s25, s18, 3072
        s_add_u32 s25, s25, s20
        s_add_u32 s25, s25, {KOFF+512}
        v_lshlrev_b32 v3, 4, v2
        """)
    else:
        a(f"""
        s_lshl_b32 s24, s18, 21
        s_lshl_b32 s25, s19, 12
        s_add_u32 s24, s24, s25
        s_mul_i32 s25, s18, 6144
        s_add_u32 s25, s25, s20
        s_add_u32 s25, s25, {KOFF+512}
        v_lshlrev_b32 v3, 4, v2
        """)
    nq = 2 if F16 else 4
    for q in range(nq):
        a('s_mov_b32 m0, s25')
        a('s_nop 0')
        a('buffer_load_dwordx4 v3, s[12:15], s24 offen lds')
        if q < nq-1:
            a('s_add_u32 s24, s24, 1024')
            a('s_add_u32 s25, s25, 1536')
    a(f"""
    v_mov_b32 v48, 0
    v_mov_b32 v49, 0
    v_mov_b32 v50, 0
    v_mov_b32 v51, 0
    v_bfe_u32 v45, v0, 5, 3
    v_mul_u32_u24 v45, 1536, v45
    v_and_b32 v46, 31, v0
    v_lshl_add_u32 v45, v46, 4, v45
    ds_write_b128 v45, v[48:51] offset:{KOFF}
    v_add_u32 v45, {CHB}, v45
    ds_write_b128 v45, v[48:51] offset:{KOFF}
    v_bfe_u32 v45, v0, 2, 3
    v_mul_u32_u24 v45, 4160, v45
    v_and_b32 v46, 3, v0
    v_lshl_add_u32 v45, v46, 4, v45
    ds_write_b128 v45, v[48:51]
    ds_write_b128 v45, v[48:51] offset:{CHB}
    """)
    a.label('K2_copies')
    E = 8
    a('s_waitcnt vmcnt(2)' if F16 else 's_waitcnt vmcnt(4)')
    for i in range(4):
        a(f'v_cndmask_b32 v{E+i}, v{E+i}, 0, s[58:59]')
    for i in range(7):
        a(f'v_alignbit_b32 v{52+i}, v{E+i+1}, v{E+i}, 16')
    for i in range(6):
        a(f'v_alignbit_b32 v{60+i}, v{E+i+2}, v{E+i+1}, 16')
    for i in range(6):
        a(f'v_mov_b32 v{66+i}, v{E+i+1}')
    src = {7: E+4, 5: 68, 3: E+2, 1: 66, 0: 52, 2: 60, 4: 54, 6: 62}
    for c in range(8):
        r = src[c]
        a(f'ds_write_b128 v120, v[{r}:{r+3}] offset:{4160*c}')
    ACC = [72, 88]
    for i in range(32):
        a(f'v_mov_b32 v{72+i}, 0')
    a('s_waitcnt vmcnt(0) lgkmcnt(0)')
    a('s_barrier')
    a('s_cmp_lt_u32 s30, 4')
    a('s_cbranch_scc1 K2_main')
    code_prefetch('k456_kernel' if MERGE456 else 'k4_kernel', 'K_code_end' if (MERGE56 or MERGE456) else 'k6_kernel', 60, 64, 28)
    a('v_and_b32 v0, 255, v0')
    ws_ptr(46, 4, 'W3P')
    a(f"""
    v_min_u32 v60, 223, v0
    v_mul_u32_u24 v61, 4682, v60
    v_lshrrev_b32 v61, 16, v61         ; ntile
    v_mul_u32_u24 v62, 14, v61
    v_sub_u32 v62, v60, v62            ; ch
    s_mul_i32 s28, s2, 7168
    v_lshl_add_u32 v60, v60, 4, s28
    global_load_dwordx4 v[64:67], v60, s[44:45]
    global_load_dwordx4 v[68:71], v60, s[44:45] offset:3584
    s_lshl_b32 s28, s2, 1              ; k
    s_and_b32 s29, s28, 0x1f3
    s_bfe_u32 s31, s28, 0x10002
    s_lshl_b32 s31, s31, 3
    s_or_b32 s29, s29, s31
    s_bfe_u32 s31, s28, 0x10003
    s_lshl_b32 s31, s31, 2
    s_or_b32 s29, s29, s31
    s_mul_i32 s29, s29, 224
    v_mul_u32_u24 v61, 114688, v61
    v_lshl_add_u32 v61, v62, 4, v61
    v_add_u32 v61, s29, v61
    """)
    if not NOPF2:
        l2_prefetch(40, 512*1024, 63, 72, 28)
        l2_prefetch(42, 512*1024, 63, 72, 28)
        a('s_waitcnt vmcnt(8)')
    else:
        a('s_waitcnt vmcnt(0)')
    a(f'global_store_dwordx4 v61, v[64:67], s[46:47]{SC2}')
    a(f'global_store_dwordx4 v61, v[68:71], s[46:47] offset:224{SC2}')
    a('s_endpgm')
    a.label('K2_main')
    a('s_cmp_eq_u32 s18, 1')
    a('s_cbranch_scc1 K2_roleB')
    def emit_units(units):
        def loads(u, setb):
            out = []; regs = []
            r = 8 + 24*setb if True else 0
            n = 0
            for (d, sl, tiles) in u:
                ra = r + 4*n; n += 1
                out.append(f'ds_read_b128 v[{ra}:{ra+3}], v126 offset:{64*d + 32*(1-sl)}')
                bs = []
                for T in tiles:
                    for arr in range(1 if F16 else 2):
                        rb = r + 4*n; n += 1
                        out.append(f'ds_read_b128 v[{rb}:{rb+3}], v127 offset:{sl*3072 + T*512 + 16*(63-d) + arr*6144}')
                        bs.append((T, rb))
                regs.append((ra, bs))
            assert n <= 6
            return out, regs
        cur_l, cur_r = loads(units[0], 0)
        for l in cur_l: a(l)
        for i, u in enumerate(units):
            if i + 1 < len(units):
                nl, nr = loads(units[i+1], (i+1) & 1)
                for l in nl: a(l)
                a(f's_waitcnt lgkmcnt({len(nl)})')
            else:
                a('s_waitcnt lgkmcnt(0)')
            for (ra, bs) in cur_r:
                for (T, rb) in bs:
                    c = ACC[T]
                    a(f'v_mfma_f32_32x32x16_{"f16" if F16 else "bf16"} v[{c}:{c+15}], v[{ra}:{ra+3}], v[{rb}:{rb+3}], v[{c}:{c+15}]')
            if i + 1 < len(units):
                cur_r = nr
    if F16:
        emit_units([[(d, 0, (0, 1)), (d, 1, (0, 1))] for d in range(24)])
    else:
        emit_units([[(d, sl, (0, 1))] for d in range(24) for sl in range(2)])
    a('s_nop 15')
    a('s_nop 3')
    a(f'v_lshlrev_b32 v123, 4, v0')
    a(f'v_add_u32 v123, {RED}, v123')
    for r4 in range(4):
        a(f'ds_write_b128 v123, v[{88+4*r4}:{91+4*r4}] offset:{4096*r4}')
    a('s_waitcnt lgkmcnt(0)')
    a('s_barrier')
    for r4 in range(4):
        a(f'ds_read_b128 v[{8+4*r4}:{11+4*r4}], v123 offset:{4096*r4 + 1024}')
    a('s_branch K2_fin')
    a.label('K2_roleB')
    if F16:
        emit_units([[(d, 0, (0, 1)), (d, 1, (0, 1))] for d in range(24, 32)] +
                   [[(d, 0, (1,)), (d, 1, (1,)), (d+1, 0, (1,))] if False else [(d, 0, (1,)), (d, 1, (1,))] for d in range(32, 64)])
    else:
        emit_units([[(d, sl, (0, 1))] for d in range(24, 32) for sl in range(2)] +
                   [[(d, 0, (1,)), (d, 1, (1,))] for d in range(32, 64)])
    a('s_nop 15')
    a('s_nop 3')
    a(f'v_lshlrev_b32 v123, 4, v0')
    a(f'v_add_u32 v123, {RED}, v123')
    for r4 in range(4):
        a(f'ds_write_b128 v123, v[{72+4*r4}:{75+4*r4}] offset:{4096*r4}')
    a('s_waitcnt lgkmcnt(0)')
    a('s_barrier')
    a('v_subrev_u32 v123, 1024, v123')
    for r4 in range(4):
        a(f'ds_read_b128 v[{8+4*r4}:{11+4*r4}], v123 offset:{4096*r4}')
    for i in range(16):
        a(f'v_mov_b32 v{72+i}, v{88+i}')
    a.label('K2_fin')
    a(f'v_add_u32 v122, s20, v122')
    for rq in range(4):
        a(f'ds_read_b64 v[{24+2*rq}:{25+2*rq}], v122 offset:{7*4160 + 64 + 16*rq}')
    a('v_lshlrev_b32 v124, 16, v125')
    a('s_waitcnt lgkmcnt(0)')
    for i in range(8):
        a(f'v_pk_add_f32 v[{72+2*i}:{73+2*i}], v[{72+2*i}:{73+2*i}], v[{8+2*i}:{9+2*i}]')
    if F16:
        for i in range(8):
            a(f'v_pk_mul_f32 v[{72+2*i}:{73+2*i}], v[{72+2*i}:{73+2*i}], v[110:111] op_sel_hi:[1,0]')
    for g0 in (0, 4):
        G = range(g0, g0+4)
        T1 = lambda i: 32 + (i & 3)
        T2 = lambda i: 36 + 2*(i & 3)
        for i in G: a(f'v_cvt_pk_bf16_f32 v{T1(i)}, v{72+2*i}, v{73+2*i}')
        for i in G: unpack(72+2*i, 73+2*i, T1(i))
        for i in G:
            if F16:
                a(f'v_cvt_f32_f16 v{T2(i)}, v{24+i}')
                a(f'v_cvt_f32_f16_sdwa v{T2(i)+1}, v{24+i} dst_sel:DWORD dst_unused:UNUSED_PAD src0_sel:WORD_1')
            else:
                unpack(T2(i), T2(i)+1, 24+i)
        for i in G: a(f'v_pk_mul_f32 v[{T2(i)}:{T2(i)+1}], v[{T2(i)}:{T2(i)+1}], v[124:125] op_sel_hi:[1,0]')
        for i in G: a(f'v_cvt_pk_bf16_f32 v{T1(i)}, v{T2(i)}, v{T2(i)+1}')
        for i in G: unpack(T2(i), T2(i)+1, T1(i))
        for i in G: a(f'v_pk_add_f32 v[{72+2*i}:{73+2*i}], v[{72+2*i}:{73+2*i}], v[{T2(i)}:{T2(i)+1}]')
        for i in G: a(f'v_cvt_pk_bf16_f32 v{T1(i)}, v{72+2*i}, v{73+2*i}')
        for i in G: unpack(72+2*i, 73+2*i, T1(i))
        for i in G: unpack(T2(i), T2(i)+1, 112+i)
        for i in G: a(f'v_pk_add_f32 v[{72+2*i}:{73+2*i}], v[{72+2*i}:{73+2*i}], v[{T2(i)}:{T2(i)+1}]')
        for i in G: a(f'v_cvt_pk_bf16_f32 v{104+i}, v{72+2*i}, v{73+2*i}')
    a(f"""
    s_lshl_b32 s26, s3, 11
    s_add_u32 s26, s26, {RED + 16384}
    v_lshlrev_b32 v120, 6, v6
    v_lshl_add_u32 v120, v7, 3, v120
    v_add_u32 v120, s26, v120
    v_lshl_add_u32 v123, v2, 4, s26
    s_lshl_b32 s26, s19, 12
    s_lshl_b32 s27, s18, 11
    s_add_u32 s26, s26, s27
    v_lshl_add_u32 v121, v2, 4, s26
    """)
    for rq in range(4):
        a(f'ds_write_b64 v120, v[{104+2*rq}:{105+2*rq}] offset:{16*rq}')
    a('s_waitcnt lgkmcnt(0)')
    a('ds_read_b128 v[8:11], v123')
    a('ds_read_b128 v[12:15], v123 offset:1024')
    a('s_waitcnt lgkmcnt(0)')
    a(f'global_store_dwordx4 v121, v[8:11], s[22:23]{SC2}')
    a(f'global_store_dwordx4 v121, v[12:15], s[22:23] offset:1024{SC2}')
    trace_end(1)
    a.label('K2_exit')
    a.end_kernel(name, (256,1,1), (512,1,1), RED + 16384 + 8192, 128+8)

GC1 = 2 * 0.7978845608028654 * LOG2E
GC2 = GC1 * 0.044715

def dma_lane_off(dst, lane, rs_sgpr_or_imm, t1, t2):
    a(f'v_lshrrev_b32 v{t1}, 5, v{lane}')
    a(f'v_lshlrev_b32 v{t1}, 3, v{t1}')
    a(f'v_bfe_u32 v{t2}, v{lane}, 3, 2')
    a(f'v_add_u32 v{t1}, v{t1}, v{t2}')
    a(f'v_mul_u32_u24 v{dst}, {rs_sgpr_or_imm}, v{t1}')
    a(f'v_bfe_u32 v{t1}, v{lane}, 1, 2')
    a(f'v_bfe_u32 v{t2}, v{lane}, 4, 2')
    a(f'v_xor_b32 v{t1}, v{t1}, v{t2}')
    a(f'v_lshl_add_u32 v{dst}, v{t1}, 5, v{dst}')
    a(f'v_and_b32 v{t1}, 1, v{lane}')
    a(f'v_lshl_add_u32 v{dst}, v{t1}, 4, v{dst}')

def tr_lane_base(dst, fdst, lane, t1, t2):
    a(f'v_lshrrev_b32 v{t1}, 5, v{lane}')
    a(f'v_lshlrev_b32 v{t1}, 4, v{t1}')
    a(f'v_bfe_u32 v{t2}, v{lane}, 2, 3')
    a(f'v_add_u32 v{t1}, v{t1}, v{t2}')
    a(f'v_lshlrev_b32 v{dst}, 7, v{t1}')
    a(f'v_and_b32 v{t1}, 3, v{lane}')
    a(f'v_lshl_add_u32 v{dst}, v{t1}, 3, v{dst}')
    a(f'v_lshrrev_b32 v{fdst}, 1, v{t2}')

def gelu_pairs(zs, CK, T, G=4):
    for i0 in range(0, len(zs), G):
        grp = list(enumerate(zs[i0:i0+G]))
        for i, z in grp:
            a(f'v_pk_mul_f32 v[{T+2*i}:{T+2*i+1}], v[{z}:{z+1}], v[{z}:{z+1}]')
        for i, z in grp:
            t = T+2*i
            a(f'v_pk_fma_f32 v[{t}:{t+1}], v[{t}:{t+1}], v[{CK}:{CK+1}], v[{CK}:{CK+1}] op_sel:[0,1,0] op_sel_hi:[1,1,0]')
        for i, z in grp:
            t = T+2*i
            a(f'v_pk_mul_f32 v[{t}:{t+1}], v[{t}:{t+1}], v[{z}:{z+1}]')
        for i, z in grp:
            t = T+2*i
            a(f'v_exp_f32 v{t}, -v{t}')
            a(f'v_exp_f32 v{t+1}, -v{t+1}')
        if len(grp) < 2: a('s_nop 0')
        for i, z in grp:
            t = T+2*i
            a(f'v_pk_add_f32 v[{t}:{t+1}], v[{t}:{t+1}], v[{CK+2}:{CK+3}]')
        for i, z in grp:
            t = T+2*i
            a(f'v_rcp_f32 v{t}, v{t}')
            a(f'v_rcp_f32 v{t+1}, v{t+1}')
        if len(grp) < 2: a('s_nop 0')
        for i, z in grp:
            t = T+2*i
            a(f'v_pk_mul_f32 v[{z}:{z+1}], v[{z}:{z+1}], v[{t}:{t+1}]')

def affine_round(zs, css, AB, T, G=4):
    for i0 in range(0, len(zs), G):
        grp = list(enumerate(zip(zs[i0:i0+G], css[i0:i0+G])))
        for i, (z, cs) in grp:
            a(f'v_pk_mul_f32 v[{T+2*i}:{T+2*i+1}], v[{cs}:{cs+1}], v[{AB}:{AB+1}] op_sel:[0,1] op_sel_hi:[1,1]')
        for i, (z, cs) in grp:
            a(f'v_pk_fma_f32 v[{z}:{z+1}], v[{z}:{z+1}], v[{AB}:{AB+1}], v[{T+2*i}:{T+2*i+1}] op_sel_hi:[1,0,1] neg_lo:[0,0,1] neg_hi:[0,0,1]')
        for i, (z, cs) in grp:
            a(f'v_cvt_pk_bf16_f32 v{T+2*i}, v{z}, v{z+1}')
        for i, (z, cs) in grp:
            unpack(z, z+1, T+2*i)

def round_pair(z, t):
    a(f'v_cvt_pk_bf16_f32 v{t}, v{z}, v{z+1}')
    unpack(z, z+1, t)

def gemm64_main(X, WF, ACC, vW, nsteps=16, st0=0):
    def loads(st, sb):
        for cb in range(4):
            for h in range(2):
                r = WF + 16*sb + 4*cb + 2*h
                a(f'ds_read_b64_tr_b16 v[{r}:{r+1}], v{vW+cb} offset:{(st0+st)*4096 + h*1024}')
    loads(0, 0)
    for st in range(nsteps):
        if st + 1 < nsteps:
            loads(st+1, (st+1) & 1)
            a('s_waitcnt lgkmcnt(8)')
        else:
            a('s_waitcnt lgkmcnt(0)')
        for cb in range(4):
            w = WF + 16*(st & 1) + 4*cb
            c = ACC + 4*cb
            a(f'v_mfma_f32_16x16x32_bf16 v[{c}:{c+3}], v[{w}:{w+3}], v[{X+4*st}:{X+4*st+3}], v[{c}:{c+3}]')

def dma_tile(srd, vOff, sOff, sM0, step_bytes, n=16):
    for ii in range(n):
        a(f's_mov_b32 m0, s{sM0}')
        a(f's_add_u32 s{sM0}, s{sM0}, 4096')
        a(f'buffer_load_dwordx4 v{vOff}, s[{srd}:{srd+3}], s{sOff} offen lds')
        if ii < n-1:
            a(f's_add_u32 s{sOff}, s{sOff}, {step_bytes}')

def mk_srd(dst, lo, nbytes):
    a(f's_mov_b32 s{dst}, s{lo}')
    a(f's_mov_b32 s{dst+1}, s{lo+1}')
    a(f's_mov_b32 s{dst+2}, {nbytes}')
    a(f's_mov_b32 s{dst+3}, 0x00020000')

def gen_k3():
    global SV
    SV = 160
    name = 'k3_kernel'
    a.begin_kernel(name)
    a(f"""
    s_cmp_ge_u32 s2, 256
    s_cbranch_scc1 K3_exit
    s_load_dwordx2 s[4:5], s[0:1], {KA['ws']}
    s_load_dwordx2 s[6:7], s[0:1], {KA['w1']}
    """)
    trace_begin()
    a(f"""
    v_lshrrev_b32 v1, 6, v0
    v_and_b32 v2, 63, v0
    v_readfirstlane_b32 s36, v1        ; wave 0..7
    s_and_b32 s3, s36, 3
    s_bfe_u32 s16, s2, 0x30003
    s_and_b32 s17, s2, 7
    s_lshl_b32 s17, s17, 2
    s_lshr_b32 s19, s2, 6
    s_add_u32 s17, s17, s19
    s_cmp_lt_u32 s36, 4
    s_cbranch_scc1 K3_comp
    s_lshr_b32 s18, s3, 1
    s_lshl_b32 s18, s18, 4
    s_and_b32 s19, s3, 1
    s_lshl_b32 s19, s19, 2
    s_add_u32 s18, s18, s19
    """)
    dma_lane_off(3, 2, 4096, 5, 6)
    dma_lane_off(4, 2, 1024, 5, 6)
    a('s_waitcnt lgkmcnt(0)')
    ws_ptr(8, 4, 'HT')
    a(f"""
    s_mov_b32 s10, {2*MB}
    s_mov_b32 s11, 0x00020000
    """)
    mk_srd(12, 6, 512*1024)
    a(f"""
    s_lshl_b32 s20, s18, 12
    s_lshl_b32 s21, s17, 7
    s_add_u32 s20, s20, s21
    s_lshl_b32 s22, s3, 10             ; m0 (HT)
    s_lshl_b32 s38, s18, 10
    s_lshl_b32 s21, s16, 7
    s_add_u32 s38, s38, s21            ; W1 soffset
    s_add_u32 s39, s22, 0x10000        ; m0 (W)
    """)
    def issue(c):
        for i in range(4):
            a('s_mov_b32 m0, s22')
            a('s_add_u32 s22, s22, 4096')
            a('buffer_load_dwordx4 v3, s[8:11], s20 offen lds')
            a(f's_add_u32 s20, s20, {32*4096}')
        for i in range(4):
            a('s_mov_b32 m0, s39')
            a('s_add_u32 s39, s39, 4096')
            a('buffer_load_dwordx4 v4, s[12:15], s38 offen lds')
            a(f's_add_u32 s38, s38, {32*1024}')
    issue(0); issue(1)
    for c in range(4):
        a(f's_waitcnt vmcnt({8 if c < 3 else 0})')
        a('s_barrier')
        if c + 2 < 4: issue(c + 2)
    a('s_endpgm')
    a.label('K3_comp')
    tr_lane_base(5, 6, 2, 7, 8)
    a('v_xor_b32 v7, s3, v6')
    a('v_lshl_add_u32 v9, v7, 5, v5')
    for cb in range(4):
        a(f'v_xor_b32 v7, {cb}, v6')
        a(f'v_lshl_add_u32 v{10+cb}, v7, 5, v5')
        a(f'v_add_u32 v{10+cb}, 0x10000, v{10+cb}')
    a(f"""
    v_and_b32 v14, 15, v2
    v_lshrrev_b32 v15, 4, v2
    s_lshl_b32 s21, s17, 6
    s_lshl_b32 s23, s3, 4
    s_add_u32 s21, s21, s23
    v_add_u32 v14, s21, v14            ; token
    v_lshlrev_b32 v16, 3, v14
    v_lshlrev_b32 v14, 10, v14
    s_lshl_b32 s23, s21, 10
    v_lshl_add_u32 v17, v2, 4, s23
    s_lshl_b32 s21, s16, 8
    v_lshl_add_u32 v18, v15, 4, s21
    s_waitcnt lgkmcnt(0)
    """)
    ws_ptr(24, 4, 'HR'); ws_ptr(26, 4, 'G1'); ws_ptr(28, 4, 'CS'); ws_ptr(30, 4, 'ST1')
    CSR = 20
    for cb in range(4):
        a(f'global_load_dwordx4 v[{CSR+4*cb}:{CSR+4*cb+3}], v18, s[28:29] offset:{64*cb}')
    X = 64
    WF = 128
    ACC = 36
    GR = 52; SU = 56; ONE = 60
    for i in range(24):
        a(f'v_mov_b32 v{36+i}, 0')
    for i in range(4):
        a(f'v_mov_b32 v{ONE+i}, 0x3f803f80')
    def ld_x(st):
        for h in range(2):
            a(f'ds_read_b64_tr_b16 v[{X+4*st+2*h}:{X+4*st+2*h+1}], v9 offset:{st*4096 + h*1024}')
    def ld_w(st, cb):
        for h in range(2):
            r = WF + 16*(st & 1) + 4*cb + 2*h
            a(f'ds_read_b64_tr_b16 v[{r}:{r+1}], v{10+cb} offset:{st*4096 + h*1024}')
    a('s_barrier')
    for st in range(2):
        ld_x(st)
        for cb in range(4): ld_w(st, cb)
    for st in range(16):
        a(f's_waitcnt lgkmcnt({10 if st < 15 else 0})')
        nx = st + 2
        if nx < 16 and nx % 4 == 0:
            a('s_barrier')
        x = X + 4*st
        for cb in range(4):
            w = WF + 16*(st & 1) + 4*cb
            c = ACC + 4*cb
            a(f'v_mfma_f32_16x16x32_bf16 v[{c}:{c+3}], v[{w}:{w+3}], v[{x}:{x+3}], v[{c}:{c+3}]')
            if nx < 16:
                if cb == 0: ld_x(nx)
                else: ld_w(nx, cb-1)
        a(f'v_mfma_f32_16x16x32_bf16 v[{GR}:{GR+3}], v[{x}:{x+3}], v[{x}:{x+3}], v[{GR}:{GR+3}]')
        if nx < 16: ld_w(nx, 3)
        a(f'v_mfma_f32_16x16x32_bf16 v[{SU}:{SU+3}], v[{ONE}:{ONE+3}], v[{x}:{x+3}], v[{SU}:{SU+3}]')
    for j in range(8):
        l = a.newlabel('K3_hr')
        a(f's_cmp_lg_u32 s16, {j}')
        a(f's_cbranch_scc1 {l}')
        a(f'v_add_u32 v17, {2048*j}, v17')
        for st in (2*j, 2*j+1):
            a(f'global_store_dwordx4 v17, v[{X+4*st}:{X+4*st+3}], s[24:25] offset:{1024*(st&1)}{SC3}')
        a.label(l)
    a('s_waitcnt vmcnt(2)')
    a(f"""
    v_and_b32 v7, 3, v2
    v_cmp_eq_u32 vcc, 1, v7
    v_cmp_eq_u32 s[32:33], 2, v7
    v_cmp_eq_u32 s[34:35], 3, v7
    v_and_b32 v8, 15, v2
    v_lshrrev_b32 v7, 2, v8
    v_cndmask_b32 v{GR}, v{GR}, v{GR+1}, vcc
    v_cndmask_b32 v{GR}, v{GR}, v{GR+2}, s[32:33]
    v_cndmask_b32 v{GR}, v{GR}, v{GR+3}, s[34:35]
    v_lshl_add_u32 v7, v7, 4, v8
    v_lshlrev_b32 v7, 2, v7
    ds_bpermute_b32 v{GR}, v7, v{GR}
    v_mul_f32 v{SU}, {hx(1/512)}, v{SU}          ; mean1
    s_waitcnt lgkmcnt(0)
    v_mul_f32 v{GR}, {hx(1/512)}, v{GR}
    v_fma_f32 v{GR}, -v{SU}, v{SU}, v{GR}        ; var1
    v_max_f32 v{GR}, 0, v{GR}
    v_mov_b32 v{SU+1}, v{SU}
    v_mov_b32 v{GR+1}, v{GR}
    """)
    ln_scalars(SU, GR, 7)
    a(f"""
    v_sub_f32 v{SU+1}, v{SU+1}, v{SU}
    v_mul_f32 v{SU+1}, v{SU+1}, v{GR}            ; mean2
    v_mul_f32 v{GR+1}, v{GR+1}, v{GR}
    v_mul_f32 v{GR+1}, v{GR+1}, v{GR}            ; var2
    """)
    ln_scalars(SU+1, GR+1, 7)
    a(f"""
    v_mul_f32 v{ONE}, v{GR}, v{GR+1}             ; alpha
    v_fma_f32 v{ONE+1}, v{GR}, v{SU}, v{SU+1}
    v_mul_f32 v{ONE+1}, v{ONE+1}, v{GR+1}        ; beta
    v_mov_b32 v{SU+2}, v{SU}
    v_mov_b32 v{SU+3}, v{GR}
    v_mov_b32 v128, {hx(GC1)}
    v_mov_b32 v129, {hx(GC2)}
    v_mov_b32 v130, 1.0
    v_mov_b32 v131, 1.0
    s_cmp_lg_u32 s16, 0
    s_cbranch_scc1 K3_nost
    v_cmp_gt_u32 vcc, 16, v2
    s_and_saveexec_b64 s[32:33], vcc
    global_store_dwordx2 v16, v[{SU+2}:{SU+3}], s[30:31]
    s_mov_b64 exec, s[32:33]
    """)
    a.label('K3_nost')
    affine_round([ACC+2*p for p in range(8)], [CSR+2*p for p in range(8)], ONE, 144)
    gelu_pairs([ACC+2*p for p in range(8)], 128, 144)
    O = 136
    for p in range(8):
        a(f'v_cvt_pk_bf16_f32 v{O+p}, v{ACC+2*p}, v{ACC+2*p+1}')
    a(f"""
    v_and_b32 v7, 1, v15
    v_lshrrev_b32 v8, 1, v15
    v_lshl_add_u32 v7, v7, 1, v8
    v_and_b32 v8, 15, v2
    v_lshl_add_u32 v7, v7, 4, v8
    s_lshl_b32 s21, s16, 11
    s_add_u32 s21, s21, s23
    v_lshl_add_u32 v7, v7, 4, s21
    """)
    for P in range(2):
        o = O + 4*P
        a(f'v_permlane16_swap_b32 v{o}, v{o+2}')
        a(f'v_permlane16_swap_b32 v{o+1}, v{o+3}')
    a('s_nop 1')
    for P in range(2):
        o = O + 4*P
        a(f'global_store_dwordx4 v7, v[{o}:{o+3}], s[26:27] offset:{1024*P}{SC3}')
    trace_end(2)
    a.label('K3_exit')
    a.end_kernel(name, (256,1,1), (512,1,1), 131072, 168)

class Ring:
    def __init__(self, TT, NT, nch, nslots, a_rs, w_rs, wfmt, vAsrc, vWsrc, vAr, vWr, FB, ACC, rot=False, shifts=None, vTmp=None):
        self.__dict__.update(locals())
        self.ABY = 4 * TT * 16 * 256
        self.WBY = 128 * (128 if wfmt == 128 else 224)
        self.SLOT = self.ABY + self.WBY
        self.na = TT * 4
        self.nw = 4 if wfmt == 128 else 7
    def setup_addrs(self, t1, t2, t3):
        r = self
        a(f'v_lshrrev_b32 v{t1}, 4, v2')
        a(f'v_and_b32 v{t2}, 15, v2')
        a(f'v_xor_b32 v{t2}, v{t2}, v{t1}')
        a(f'v_mul_u32_u24 v{t1}, {r.a_rs}, v{t1}')
        a(f'v_add_u32 v{t1}, v{t1}, v{r.vTmp}')
        for i in range(4):
            a(f'v_xor_b32 v{t3}, {4*i}, v{t2}')
            a(f'v_lshl_add_u32 v{r.vAsrc+i}, v{t3}, 4, v{t1}')
        a(f'v_and_b32 v{t1}, 15, v2')
        a(f'v_lshrrev_b32 v{t2}, 4, v2')
        a(f'v_xor_b32 v{t2}, v{t2}, v{t1}')
        a(f'v_lshlrev_b32 v{t1}, 8, v{t1}')
        a(f's_mul_i32 s21, s3, {r.TT*4096}')
        a(f'v_add_u32 v{t1}, s21, v{t1}')
        for i in range(4):
            a(f'v_xor_b32 v{t3}, {4*i}, v{t2}')
            a(f'v_lshl_add_u32 v{r.vAr+i}, v{t3}, 4, v{t1}')
        if r.wfmt == 128:
            dma_lane_off(r.vWsrc, 2, r.w_rs, t1, t2)
            tr_lane_base(t1, t2, 2, t3, r.vWr)
            for cb in range(4):
                a(f'v_xor_b32 v{t3}, {cb}, v{t2}')
                a(f'v_lshl_add_u32 v{r.vWr+cb}, v{t3}, 5, v{t1}')
                a(f'v_add_u32 v{r.vWr+cb}, {r.ABY}, v{r.vWr+cb}')
        else:
            for j in range(7):
                a(f'v_add_u32 v{t1}, {64*j}, v2')
                a(f'v_mul_u32_u24 v{t2}, 4682, v{t1}')
                a(f'v_lshrrev_b32 v{t2}, 16, v{t2}')
                a(f'v_mul_u32_u24 v{t3}, 14, v{t2}')
                a(f'v_sub_u32 v{t1}, v{t1}, v{t3}')
                a(f'v_and_b32 v{t3}, 0x13, v{t2}')
                a(f'v_bfe_u32 v{r.vWsrc+j}, v{t2}, 2, 1')
                a(f'v_lshl_or_b32 v{t3}, v{r.vWsrc+j}, 3, v{t3}')
                a(f'v_bfe_u32 v{r.vWsrc+j}, v{t2}, 3, 1')
                a(f'v_lshl_or_b32 v{t3}, v{r.vWsrc+j}, 2, v{t3}')
                a(f'v_mul_u32_u24 v{t3}, {r.w_rs}, v{t3}')
                a(f'v_lshl_add_u32 v{r.vWsrc+j}, v{t1}, 4, v{t3}')
            a(f'v_lshrrev_b32 v{t1}, 5, v2')
            a(f'v_lshlrev_b32 v{t1}, 4, v{t1}')
            a(f'v_bfe_u32 v{t2}, v2, 2, 3')
            a(f'v_add_u32 v{t1}, v{t1}, v{t2}')
            a(f'v_mul_u32_u24 v{t1}, 224, v{t1}')
            a(f'v_and_b32 v{t2}, 3, v2')
            a(f'v_lshl_add_u32 v{r.vWr}, v{t2}, 3, v{t1}')
            a(f'v_add_u32 v{r.vWr}, {r.ABY}, v{r.vWr}')
    def issue_groups(self, c):
        r = self
        G = []
        slot = c % r.nslots
        base = slot * r.SLOT
        pre = []
        if r.rot:
            pre += [f's_mul_i32 s35, s34, {128*r.w_rs}', 's_add_u32 s35, s35, s20', 's_lshl_b32 s36, s34, 8']
        else:
            pre += [f's_add_u32 s35, s20, {c*128*r.w_rs}', f's_movk_i32 s36, {c*256}']
        if r.wfmt == 128:
            pre += [f's_lshl_b32 s22, s3, 10', f's_add_u32 s22, s22, {base + r.ABY}']
            for i in range(4):
                g = ['s_mov_b32 m0, s22', 's_add_u32 s22, s22, 4096', f'buffer_load_dwordx4 v{r.vWsrc}, s[12:15], s35 offen lds']
                if i < 3: g.append(f's_add_u32 s35, s35, {32*r.w_rs}')
                G.append(pre + g); pre = []
        else:
            pre += [f's_mul_i32 s22, s3, 7168', f's_add_u32 s22, s22, {base + r.ABY}']
            for j in range(7):
                G.append(pre + ['s_mov_b32 m0, s22', 's_add_u32 s22, s22, 1024', f'buffer_load_dwordx4 v{r.vWsrc+j}, s[12:15], s35 offen lds']); pre = []
        pre = [f's_mul_i32 s22, s3, {r.TT*4096}']
        if base: pre.append(f's_add_u32 s22, s22, {base}')
        for i in range(r.na):
            g = ['s_mov_b32 m0, s22', 's_add_u32 s22, s22, 1024']
            if r.shifts:
                off = (4*i + r.shifts[c]) * r.a_rs
                if off >= 0: g.append(f'v_add_u32 v{r.vTmp}, {off}, v{r.vAsrc+(i&3)}')
                else: g.append(f'v_subrev_u32 v{r.vTmp}, {-off}, v{r.vAsrc+(i&3)}')
                g.append(f'buffer_load_dwordx4 v{r.vTmp}, s[8:11], s36 offen lds')
            else:
                g.append(f'buffer_load_dwordx4 v{r.vAsrc+(i&3)}, s[8:11], s36 offen lds')
                if i < r.na-1: g.append(f's_add_u32 s36, s36, {4*r.a_rs}')
            if i == r.na-1 and r.rot:
                g += ['s_add_u32 s34, s34, 1', f's_cmp_eq_u32 s34, {r.nch}', 's_cselect_b32 s34, 0, s34']
            G.append(pre + g); pre = []
        return G
    def issue(self, c):
        for g in self.issue_groups(c):
            for l in g: a(l)
    def compute(self, c, fillers):
        r = self
        FS = 4*(r.TT + r.NT)
        def loads(st, sb):
            f = r.FB + FS*sb
            for tt in range(r.TT):
                a(f'ds_read_b128 v[{f+4*tt}:{f+4*tt+3}], v{r.vAr+st} offset:{r.cur + tt*4096}')
            for cb in range(r.NT):
                for h in range(2):
                    d = f + 4*r.TT + 4*cb + 2*h
                    if r.wfmt == 128:
                        a(f'ds_read_b64_tr_b16 v[{d}:{d+1}], v{r.vWr+cb} offset:{r.cur + st*4096 + h*1024}')
                    else:
                        a(f'ds_read_b64_tr_b16 v[{d}:{d+1}], v{r.vWr} offset:{r.cur + st*7168 + h*1792 + 32*cb}')
        nl = r.TT + 2*r.NT
        nm = 4 * r.NT * r.TT
        fillers = list(fillers)
        every = max(1, nm // (len(fillers) + 1)) if fillers else 0
        loads(0, 0)
        loads(1, 1)
        for _ in range(min(2, len(fillers))):
            for l in fillers.pop(0): a(l)
        m = 0
        for st in range(4):
            a(f's_waitcnt lgkmcnt({min(15, nl) if st < 3 else 0})')
            f = r.FB + FS*(st & 1)
            for cb in range(r.NT):
                w = f + 4*r.TT + 4*cb
                for tt in range(r.TT):
                    cc = r.ACC + 4*r.NT*tt + 4*cb
                    a(f'v_mfma_f32_16x16x32_bf16 v[{cc}:{cc+3}], v[{w}:{w+3}], v[{f+4*tt}:{f+4*tt+3}], v[{cc}:{cc+3}]')
                    m += 1
                    if fillers and m % every == 0:
                        for l in fillers.pop(0): a(l)
            if st + 2 < 4:
                loads(st+2, st & 1)
        for g in fillers:
            for l in g: a(l)
    def bump(self, delta):
        r = self
        regs = [r.vAr+i for i in range(4)] + ([r.vWr+i for i in range(4)] if r.wfmt == 128 else [r.vWr])
        for v in regs:
            if delta > 0: a(f'v_add_u32 v{v}, {delta}, v{v}')
            else: a(f'v_subrev_u32 v{v}, {-delta}, v{v}')
    def prologue(self):
        r = self
        r.ahead = r.nslots if r.nch <= r.nslots else r.nslots - 1
        for c in range(min(r.nch, r.ahead)):
            r.issue(c)
    def run(self):
        r = self
        per = r.na + r.nw
        regbase = 0
        for c in range(r.nch):
            issued = min(r.nch, c + r.ahead)
            a(f's_waitcnt vmcnt({min(63, per*(issued - (c+1)))})')
            a('s_barrier')
            stamp([0,100,255], 1 + c)
            base = (c % r.nslots) * r.SLOT
            want = (base // 32768) * 32768 if r.SLOT * r.nslots > 65536 else 0
            if want != regbase:
                r.bump(want - regbase); regbase = want
            r.cur = base - regbase
            fill = r.issue_groups(c + r.ahead) if c + r.ahead < r.nch else []
            r.compute(c, fill)

class Ring3:
    def __init__(self, TT, NT, KC, nch, nslots, a_rs, w_rs, wfmt, FB, ACC, vAr, vWr, rot=False, shifts=None, LA=LA_DEF):
        self.__dict__.update(locals())
        self.RB = 64 * KC
        self.AW = TT * 16 * self.RB
        self.ABY = 4 * self.AW
        self.WBY = 32 * KC * (128 if wfmt == 128 else 224)
        self.SLOT = self.ABY + self.WBY
        self.na = self.AW // 1024
        self.nw = 4 if (wfmt == 128 or KC == 2) else 7
        self.rows_per = 1024 // self.RB
    def loader(self, tag):
        r = self
        vA, vW, vT = 8, 12, 24
        t1, t2, t3 = 3, 4, 5
        nv = 4 if r.KC == 4 else 2
        sh = 4 if r.KC == 4 else 3
        a(f'v_lshrrev_b32 v{t1}, {sh}, v2')
        a(f'v_mul_u32_u24 v{t1}, {r.a_rs}, v{t1}')
        a(f'v_add_u32 v{t1}, s38, v{t1}')
        a(f'v_and_b32 v{t2}, {(1 << sh) - 1}, v2')
        a(f'v_lshrrev_b32 v{t3}, 4, v2')
        a(f'v_xor_b32 v{t2}, v{t2}, v{t3}')
        for i in range(nv):
            a(f'v_xor_b32 v{t3}, {4*i}, v{t2}')
            a(f'v_lshl_add_u32 v{vA+i}, v{t3}, 4, v{t1}')
        if r.wfmt == 128:
            dma_lane_off(vW, 2, r.w_rs, t1, t2)
        else:
            assert r.KC == 2
            for i in range(4):
                a(f's_add_u32 s{60+i}, s3, {4*i}')
                a(f's_min_u32 s{60+i}, s{60+i}, 13')
                a(f's_cmp_ge_u32 s{60+i}, 7')
                a('s_cselect_b32 s21, 7, 0')
                a(f's_cselect_b32 s22, {32*r.w_rs}, 0')
                a(f's_sub_u32 s21, s{60+i}, s21')
                a('s_lshl_b32 s21, s21, 6')
                a(f'v_add_u32 v{t1}, s21, v2')
                a(f'v_mul_u32_u24 v{t2}, 4682, v{t1}')
                a(f'v_lshrrev_b32 v{t2}, 16, v{t2}')
                a(f'v_mul_u32_u24 v{t3}, 14, v{t2}')
                a(f'v_sub_u32 v{t1}, v{t1}, v{t3}')
                a(f'v_and_b32 v{t3}, 0x13, v{t2}')
                a(f'v_bfe_u32 v{vW+i}, v{t2}, 2, 1')
                a(f'v_lshl_or_b32 v{t3}, v{vW+i}, 3, v{t3}')
                a(f'v_bfe_u32 v{vW+i}, v{t2}, 3, 1')
                a(f'v_lshl_or_b32 v{t3}, v{vW+i}, 2, v{t3}')
                a(f'v_mul_u32_u24 v{t3}, {r.w_rs}, v{t3}')
                a(f'v_lshl_add_u32 v{vW+i}, v{t1}, 4, v{t3}')
                a(f'v_add_u32 v{vW+i}, s22, v{vW+i}')
                a(f's_lshl_b32 s{60+i}, s{60+i}, 10')
        def issue(c):
            base = (c % r.nslots) * r.SLOT
            if r.rot:
                a(f's_mul_i32 s35, s34, {32*r.KC*r.w_rs}')
                a('s_add_u32 s35, s35, s20')
                a(f's_mul_i32 s36, s34, {r.RB}')
            else:
                a(f's_add_u32 s35, s20, {c*32*r.KC*r.w_rs}')
                a(f's_movk_i32 s36, {c*r.RB}')
            a(f's_mul_i32 s22, s3, {r.AW}')
            if base: a(f's_add_u32 s22, s22, {base}')
            for i in range(r.na):
                a('s_mov_b32 m0, s22')
                a('s_add_u32 s22, s22, 1024')
                if r.shifts:
                    off = (r.rows_per*i + r.shifts[c]) * r.a_rs
                    if off >= 0: a(f'v_add_u32 v{vT}, {off}, v{vA+(i % nv)}')
                    else: a(f'v_subrev_u32 v{vT}, {-off}, v{vA+(i % nv)}')
                    a(f'buffer_load_dwordx4 v{vT}, s[8:11], s36 offen lds')
                else:
                    a(f'buffer_load_dwordx4 v{vA+(i % nv)}, s[8:11], s36 offen lds')
                    if i < r.na-1: a(f's_add_u32 s36, s36, {r.rows_per*r.a_rs}')
            if r.wfmt == 128:
                a(f's_lshl_b32 s22, s3, 10')
                a(f's_add_u32 s22, s22, {base + r.ABY}')
                for i in range(4):
                    a('s_mov_b32 m0, s22')
                    a('s_add_u32 s22, s22, 4096')
                    a(f'buffer_load_dwordx4 v{vW}, s[12:15], s35 offen lds')
                    if i < 3: a(f's_add_u32 s35, s35, {32*r.w_rs}')
            else:
                for i in range(4):
                    a(f's_add_u32 s22, s{60+i}, {base + r.ABY}')
                    a('s_mov_b32 m0, s22')
                    a('s_nop 0')
                    a(f'buffer_load_dwordx4 v{vW+i}, s[12:15], s35 offen lds')
            if r.rot:
                a('s_add_u32 s34, s34, 1')
                a(f's_cmp_eq_u32 s34, {r.nch}')
                a('s_cselect_b32 s34, 0, s34')
        per = r.na + r.nw
        issued = 0
        LA = r.LA
        for c in range(min(r.nch, LA0)):
            issue(c); issued += 1
        for c in range(r.nch):
            a(f's_waitcnt vmcnt({min(63, per*(issued - (c+1)))})')
            a('s_barrier')
            lim = min(r.nch - 1, c + LA, max(r.nslots - 1, c - 2 + r.nslots))
            while issued <= lim:
                issue(issued); issued += 1
    def comp_setup(self, t1, t2, t3):
        r = self
        a(f'v_and_b32 v{t1}, 15, v2')
        a(f'v_lshrrev_b32 v{t2}, 4, v2')
        if r.KC == 4:
            a(f'v_xor_b32 v{t2}, v{t2}, v{t1}')
        else:
            a(f'v_lshrrev_b32 v{t3}, 1, v{t1}')
            a(f'v_xor_b32 v{t2}, v{t2}, v{t3}')
        a(f'v_mul_u32_u24 v{t1}, {r.RB}, v{t1}')
        a(f's_mul_i32 s21, s3, {r.AW}')
        a(f'v_add_u32 v{t1}, s21, v{t1}')
        for i in range(r.KC):
            a(f'v_xor_b32 v{t3}, {4*i}, v{t2}')
            a(f'v_lshl_add_u32 v{r.vAr+i}, v{t3}, 4, v{t1}')
        if r.wfmt == 128:
            tr_lane_base(t1, t2, 2, t3, r.vWr)
            for cb in range(4):
                a(f'v_xor_b32 v{t3}, {cb}, v{t2}')
                a(f'v_lshl_add_u32 v{r.vWr+cb}, v{t3}, 5, v{t1}')
                a(f'v_add_u32 v{r.vWr+cb}, {r.ABY}, v{r.vWr+cb}')
        else:
            a(f'v_lshrrev_b32 v{t1}, 5, v2')
            a(f'v_lshlrev_b32 v{t1}, 4, v{t1}')
            a(f'v_bfe_u32 v{t2}, v2, 2, 3')
            a(f'v_add_u32 v{t1}, v{t1}, v{t2}')
            a(f'v_mul_u32_u24 v{t1}, 224, v{t1}')
            a(f'v_and_b32 v{t2}, 3, v2')
            a(f'v_lshl_add_u32 v{r.vWr}, v{t2}, 3, v{t1}')
            a(f'v_add_u32 v{r.vWr}, {r.ABY}, v{r.vWr}')
    def compute(self):
        r = self
        FS = 4*(r.TT + r.NT)
        nl = r.TT + 2*r.NT
        total = r.KC * r.nch
        state = dict(regbase=0)
        regs = [r.vAr+i for i in range(r.KC)] + ([r.vWr+i for i in range(4)] if r.wfmt == 128 else [r.vWr])
        def loads(s):
            c, st = divmod(s, r.KC)
            base = (c % r.nslots) * r.SLOT
            if st == 0:
                a('s_barrier')
                stamp([0,100,255], min(15, 1 + c))
                want = (base // 16384) * 16384
                d = want - state['regbase']
                if d:
                    for v in regs:
                        if d > 0: a(f'v_add_u32 v{v}, {d}, v{v}')
                        else: a(f'v_subrev_u32 v{v}, {-d}, v{v}')
                    state['regbase'] = want
            cur = base - state['regbase']
            f = r.FB + FS*(s & 1)
            for tt in range(r.TT):
                a(f'ds_read_b128 v[{f+4*tt}:{f+4*tt+3}], v{r.vAr+st} offset:{cur + tt*16*r.RB}')
            for cb in range(r.NT):
                for h in range(2):
                    d = f + 4*r.TT + 4*cb + 2*h
                    if r.wfmt == 128:
                        a(f'ds_read_b64_tr_b16 v[{d}:{d+1}], v{r.vWr+cb} offset:{cur + st*4096 + h*1024}')
                    else:
                        a(f'ds_read_b64_tr_b16 v[{d}:{d+1}], v{r.vWr} offset:{cur + st*7168 + h*1792 + 32*cb}')
        loads(0); loads(1)
        for s_ in range(total):
            a(f's_waitcnt lgkmcnt({min(15, nl) if s_ < total-1 else 0})')
            f = r.FB + FS*(s_ & 1)
            for cb in range(r.NT):
                w = f + 4*r.TT + 4*cb
                for tt in range(r.TT):
                    cc = r.ACC + 4*r.NT*tt + 4*cb
                    a(f'v_mfma_f32_16x16x32_bf16 v[{cc}:{cc+3}], v[{w}:{w+3}], v[{f+4*tt}:{f+4*tt+3}], v[{cc}:{cc+3}]')
            if s_ + 2 < total:
                loads(s_ + 2)

class Ring4:
    def __init__(self, TT, NT, nch, nslots, w_rs, wfmt, FB, ACC, vWr, X, XW, rot=False, LA=2, srd=12, soff=20, vW=12, bases=None):
        self.__dict__.update(locals())
        self.KC = 4
        self.SLOT = 128 * (128 if wfmt == 128 else 224)
        self.nw = 4 if wfmt == 128 else 7
    def base(self, c):
        return self.bases[c] if self.bases else (c % self.nslots) * self.SLOT
    def l_setup(self):
        r = self
        if r.wfmt == 128:
            dma_lane_off(r.vW, 2, r.w_rs, 3, 4)
        else:
            a(f'v_lshlrev_b32 v{r.vW}, 4, v2')
    def l_issue(self, c):
        r = self
        base = r.base(c)
        S = f's[{r.srd}:{r.srd+3}]'
        if r.rot:
            a(f's_mul_i32 s35, s34, {128*r.w_rs}')
            a(f's_add_u32 s35, s35, s{r.soff}')
        else:
            a(f's_add_u32 s35, s{r.soff}, {c*128*r.w_rs}')
        if r.wfmt == 128:
            a(f's_lshl_b32 s22, s3, 10')
            if base: a(f's_add_u32 s22, s22, {base}')
            for i in range(4):
                a('s_mov_b32 m0, s22')
                a('s_add_u32 s22, s22, 4096')
                a(f'buffer_load_dwordx4 v{r.vW}, {S}, s35 offen lds')
                if i < 3: a(f's_add_u32 s35, s35, {32*r.w_rs}')
        else:
            a(f's_mul_i32 s22, s3, 7168')
            if base: a(f's_add_u32 s22, s22, {base}')
            for j in range(7):
                a('s_mov_b32 m0, s22')
                a('s_add_u32 s22, s22, 1024')
                a(f'buffer_load_dwordx4 v{r.vW}, {S}, s35 offen lds')
                if j < 6: a('s_add_u32 s35, s35, 1024')
        if r.rot:
            a('s_add_u32 s34, s34, 1')
            a(f's_cmp_eq_u32 s34, {r.nch}')
            a('s_cselect_b32 s34, 0, s34')
    def loader(self, pre=None, bars=0):
        r = self
        r.l_setup()
        issue = r.l_issue
        per = r.nw
        issued = 0
        if pre is not None:
            for c in range(pre):
                issue(c); issued += 1
            a('s_barrier')
            for c in range(pre, r.nslots):
                issue(c); issued += 1
            a('s_barrier')
        for c in range(issued, min(r.nch, r.LA)):
            issue(c); issued += 1
        for c in range(r.nch):
            a(f's_waitcnt vmcnt({min(63, per*(issued - (c+1)))})')
            a('s_barrier')
            lim = min(r.nch - 1, c + r.LA, max(r.nslots - 1, c - 2 + r.nslots))
            while issued <= lim:
                issue(issued); issued += 1
    def comp_setup(self, t1, t2, t3):
        r = self
        if r.wfmt == 128:
            tr_lane_base(t1, t2, 2, t3, r.vWr)
            for cb in range(4):
                a(f'v_xor_b32 v{t3}, {cb}, v{t2}')
                a(f'v_lshl_add_u32 v{r.vWr+cb}, v{t3}, 5, v{t1}')
        else:
            a(f'v_lshrrev_b32 v{t1}, 5, v2')
            a(f'v_lshlrev_b32 v{t1}, 4, v{t1}')
            a(f'v_bfe_u32 v{t2}, v2, 2, 3')
            a(f'v_add_u32 v{t1}, v{t1}, v{t2}')
            a(f'v_mul_u32_u24 v{t1}, 224, v{t1}')
            a(f'v_and_b32 v{t2}, 3, v2')
            a(f'v_lshl_add_u32 v{r.vWr}, v{t2}, 3, v{t1}')
    def compute(self, aload, hook=None):
        r = self
        FS = 4*r.NT
        nl = 2*r.NT
        total = 4 * r.nch
        state = dict(regbase=0)
        regs = [r.vWr+i for i in range(4)] if r.wfmt == 128 else [r.vWr]
        def pre(s):
            c, st = divmod(s, 4)
            base = r.base(c)
            if st == 0:
                a('s_barrier')
                want = (base // 32768) * 32768
                d = want - state['regbase']
                if d:
                    for v in regs:
                        if d > 0: a(f'v_add_u32 v{v}, {d}, v{v}')
                        else: a(f'v_subrev_u32 v{v}, {-d}, v{v}')
                    state['regbase'] = want
        def load_cb(s, cb):
            c, st = divmod(s, 4)
            cur = r.base(c) - state['regbase']
            f = r.FB + FS*(s & 1)
            for h in range(2):
                d = f + 4*cb + 2*h
                if r.wfmt == 128:
                    a(f'ds_read_b64_tr_b16 v[{d}:{d+1}], v{r.vWr+cb} offset:{cur + st*4096 + h*1024}')
                else:
                    a(f'ds_read_b64_tr_b16 v[{d}:{d+1}], v{r.vWr} offset:{cur + st*7168 + h*1792 + 32*cb}')
        for s0 in range(2):
            pre(s0)
            for cb in range(r.NT): load_cb(s0, cb)
        for s_ in range(total):
            issued_steps = min(total, s_ + r.XW)
            a(f's_waitcnt vmcnt({min(63, r.TT*(issued_steps - (s_+1)))}) lgkmcnt({min(15, nl) if s_ < total-1 else 0})')
            if s_ + 2 < total:
                pre(s_ + 2)
            f = r.FB + FS*(s_ & 1)
            for cb in range(r.NT):
                w = f + 4*cb
                for tt in range(r.TT):
                    cc = r.ACC + 4*r.NT*tt + 4*cb
                    x = r.X + 4*(r.TT*(s_ % r.XW) + tt)
                    a(f'v_mfma_f32_16x16x32_bf16 v[{cc}:{cc+3}], v[{w}:{w+3}], v[{x}:{x+3}], v[{cc}:{cc+3}]')
                if s_ + 2 < total and cb > 0:
                    load_cb(s_ + 2, cb - 1)
            if s_ + 2 < total:
                load_cb(s_ + 2, r.NT - 1)
            if s_ + r.XW < total:
                aload(s_ + r.XW)
            if hook: hook(s_)

def store_tile64(O, vtok_row, sptr, scol, vt, lds_base_sgpr):
    a(f'v_and_b32 v{vt}, 15, v2')
    a(f'v_mul_u32_u24 v{vt}, 144, v{vt}')
    a(f'v_lshrrev_b32 v{vt+1}, 4, v2')
    a(f'v_lshl_add_u32 v{vt}, v{vt+1}, 3, v{vt}')
    a(f'v_add_u32 v{vt}, s{lds_base_sgpr}, v{vt}')
    for cb in range(4):
        a(f'ds_write_b64 v{vt}, v[{O+2*cb}:{O+2*cb+1}] offset:{32*cb}')
    a(f'v_lshrrev_b32 v{vt+1}, 3, v2')
    a(f'v_and_b32 v{vt+2}, 7, v2')
    a(f'v_mul_u32_u24 v{vt}, 144, v{vt+1}')
    a(f'v_lshl_add_u32 v{vt}, v{vt+2}, 4, v{vt}')
    a(f'v_add_u32 v{vt}, s{lds_base_sgpr}, v{vt}')
    a(f'v_lshlrev_b32 v{vt+1}, 10, v{vt+1}')
    a(f'v_lshl_add_u32 v{vt+1}, v{vt+2}, 4, v{vt+1}')
    a(f'v_add_u32 v{vt+1}, s{vtok_row}, v{vt+1}')
    a(f'v_add_u32 v{vt+1}, s{scol}, v{vt+1}')
    a(f'v_add_u32 v{vt+2}, 8192, v{vt+1}')
    a('s_waitcnt lgkmcnt(0)')
    a(f'ds_read_b128 v[{O}:{O+3}], v{vt}')
    a(f'ds_read_b128 v[{O+4}:{O+7}], v{vt} offset:{8*144}')
    a('s_waitcnt lgkmcnt(1)')
    a(f'global_store_dwordx4 v{vt+1}, v[{O}:{O+3}], s[{sptr}:{sptr+1}]')
    a('s_waitcnt lgkmcnt(0)')
    a(f'global_store_dwordx4 v{vt+2}, v[{O+4}:{O+7}], s[{sptr}:{sptr+1}]')

def wave_krow(dst):
    a(f"""
    s_lshr_b32 s{dst}, s3, 1
    s_lshl_b32 s{dst}, s{dst}, 4
    s_and_b32 s19, s3, 1
    s_lshl_b32 s19, s19, 2
    s_add_u32 s{dst}, s{dst}, s19
    """)

MAP64 = """
    s_bfe_u32 s16, s2, 0x30003
    s_and_b32 s17, s2, 7
    s_lshl_b32 s17, s17, 2
    s_lshr_b32 s19, s2, 6
    s_add_u32 s17, s17, s19
"""

def fra_epi_off(dst, t):
    a(f'v_lshrrev_b32 v{dst}, 1, v15')
    a(f'v_lshlrev_b32 v{dst}, 8, v{dst}')
    a(f'v_and_b32 v{t}, 15, v2')
    a(f'v_lshl_add_u32 v{dst}, v{t}, 4, v{dst}')
    a(f'v_and_b32 v{t}, 1, v15')
    a(f'v_lshl_add_u32 v{dst}, v{t}, 3, v{dst}')
    a('s_lshl_b32 s21, s16, 11')
    a('s_add_u32 s21, s21, s38')
    a(f'v_add_u32 v{dst}, s21, v{dst}')

def fra_store_off(dst, t):
    a(f"""
    v_and_b32 v{dst}, 1, v15
    v_lshrrev_b32 v{t}, 1, v15
    v_lshl_add_u32 v{dst}, v{dst}, 1, v{t}
    v_and_b32 v{t}, 15, v2
    v_lshl_add_u32 v{dst}, v{dst}, 4, v{t}
    s_lshl_b32 s21, s16, 11
    s_add_u32 s21, s21, s38
    v_lshl_add_u32 v{dst}, v{dst}, 4, s21
    """)

def gen_k4():
    global SV
    SV = 176
    name = 'k4_kernel'
    a.begin_kernel(name)
    a(f"""
    s_cmp_ge_u32 s2, 256
    s_cbranch_scc1 K4_exit
    s_load_dwordx2 s[4:5], s[0:1], {KA['ws']}
    s_load_dwordx2 s[6:7], s[0:1], {KA['w2']}
    s_load_dwordx2 s[44:45], s[0:1], {KA['w3']}
    """)
    trace_begin()
    a(f"""
    v_lshrrev_b32 v1, 6, v0
    v_and_b32 v2, 63, v0
    v_readfirstlane_b32 s24, v1
    s_and_b32 s3, s24, 3
    {MAP64}
    """)
    wave_krow(18)
    ACC = 36; FB = 64; X = 96
    R = Ring4(TT=1, NT=4, nch=4, nslots=4, w_rs=1024, wfmt=128, FB=FB, ACC=ACC, vWr=10, X=X, XW=16, LA=LA5)
    a(f"""
    s_lshl_b32 s39, s17, 6
    s_lshl_b32 s23, s3, 4
    s_add_u32 s39, s39, s23
    s_lshl_b32 s38, s39, 10
    s_lshl_b32 s20, s18, 10
    s_lshl_b32 s37, s16, 7
    s_add_u32 s20, s20, s37
    s_cmp_ge_u32 s24, 4
    s_cbranch_scc1 K4_loader
    v_and_b32 v14, 15, v2
    v_lshrrev_b32 v15, 4, v2
    v_add_u32 v14, s39, v14            ; token
    v_lshlrev_b32 v16, 3, v14
    v_lshlrev_b32 v19, 6, v14
    """)
    for q, sh in enumerate([-1, 1, -2, 2]):
        a(f'v_add_u32 v5, {sh}, v14')
        a('v_ashrrev_i32 v6, 4, v5')
        a('v_lshlrev_b32 v6, 14, v6')
        a('v_and_b32 v5, 15, v5')
        a('v_lshl_add_u32 v6, v5, 4, v6')
        a('v_lshl_add_u32 v6, v15, 8, v6')
        a(f'v_add_u32 v{52+q}, {4096*q}, v6')
    fra_epi_off(18, 5)
    a('s_waitcnt lgkmcnt(0)')
    ws_ptr(8, 4, 'G1')
    a(f's_mov_b32 s10, {2*MB}')
    a('s_mov_b32 s11, 0x00020000')
    ws_ptr(24, 4, 'HR'); ws_ptr(26, 4, 'X1'); ws_ptr(28, 4, 'ST3'); ws_ptr(30, 4, 'ST1')
    HRr = 20
    for cb in range(4):
        a(f'global_load_dwordx2 v[{HRr+2*cb}:{HRr+2*cb+1}], v18, s[24:25] offset:{512*cb}')
    a('global_load_dwordx2 v[28:29], v16, s[30:31]')
    for st in range(16):
        a(f'buffer_load_dwordx4 v[{X+4*st}:{X+4*st+3}], v{52+(st>>2)}, s[8:11], 0 offen offset:{1024*(st&3)}')
    R.comp_setup(5, 6, 7)
    for i in range(16):
        a(f'v_mov_b32 v{ACC+i}, 0')
    R.compute(None)
    a('v_mov_b32 v60, 0')
    a('v_mov_b32 v61, 0')
    a('v_mov_b32 v62, 0')
    a('v_mov_b32 v63, 0')
    a('s_nop 4')
    O = 168
    for g0 in (0, 4):
        G = range(g0, g0+4)
        T1 = lambda p: 64 + (p & 3)
        T2 = lambda p: 68 + 2*(p & 3)
        for p in G: a(f'v_cvt_pk_bf16_f32 v{T1(p)}, v{ACC+2*p}, v{ACC+2*p+1}')
        for p in G: unpack(ACC+2*p, ACC+2*p+1, T1(p))
        for p in G: unpack(T2(p), T2(p)+1, HRr+p)
        for p in G: a(f'v_pk_add_f32 v[{T2(p)}:{T2(p)+1}], v[{T2(p)}:{T2(p)+1}], v[28:29] op_sel_hi:[1,0] neg_lo:[0,1] neg_hi:[0,1]')
        for p in G: a(f'v_cvt_pk_bf16_f32 v{T1(p)}, v{T2(p)}, v{T2(p)+1}')
        for p in G: unpack(T2(p), T2(p)+1, T1(p))
        for p in G: a(f'v_pk_mul_f32 v[{T2(p)}:{T2(p)+1}], v[{T2(p)}:{T2(p)+1}], v[28:29] op_sel:[0,1] op_sel_hi:[1,1]')
        for p in G: a(f'v_cvt_pk_bf16_f32 v{T1(p)}, v{T2(p)}, v{T2(p)+1}')
        for p in G: unpack(T2(p), T2(p)+1, T1(p))
        for p in G: a(f'v_pk_add_f32 v[{ACC+2*p}:{ACC+2*p+1}], v[{ACC+2*p}:{ACC+2*p+1}], v[{T2(p)}:{T2(p)+1}]')
        for p in G: a(f'v_cvt_pk_bf16_f32 v{O+p}, v{ACC+2*p}, v{ACC+2*p+1}')
        for p in G: unpack(ACC+2*p, ACC+2*p+1, O+p)
        for p in G:
            a(f'v_pk_add_f32 v[60:61], v[60:61], v[{ACC+2*p}:{ACC+2*p+1}]')
            a(f'v_pk_fma_f32 v[62:63], v[{ACC+2*p}:{ACC+2*p+1}], v[{ACC+2*p}:{ACC+2*p+1}], v[62:63]')
    a('v_add_f32 v60, v60, v61')
    a('v_add_f32 v61, v62, v63')
    fra_store_off(7, 8)
    a('v_mov_b32 v62, v60')
    a('v_mov_b32 v63, v61')
    for P in range(2):
        o = O + 4*P
        a(f'v_permlane16_swap_b32 v{o}, v{o+2}')
        a(f'v_permlane16_swap_b32 v{o+1}, v{o+3}')
    a('v_permlane16_swap_b32 v60, v62')
    a('v_permlane16_swap_b32 v61, v63')
    for P in range(2):
        o = O + 4*P
        a(f'global_store_dwordx4 v7, v[{o}:{o+3}], s[26:27] offset:{1024*P}{SC3}')
    a(f"""
    v_pk_add_f32 v[60:61], v[60:61], v[62:63]
    s_nop 0
    v_mov_b32 v62, v60
    v_mov_b32 v63, v61
    s_nop 1
    v_permlane32_swap_b32 v60, v62
    v_permlane32_swap_b32 v61, v63
    s_nop 1
    v_pk_add_f32 v[60:61], v[60:61], v[62:63]
    s_lshl_b32 s21, s16, 3
    v_add_u32 v19, s21, v19
    v_cmp_gt_u32 vcc, 16, v2
    s_and_saveexec_b64 s[32:33], vcc
    global_store_dwordx2 v19, v[60:61], s[28:29]
    s_mov_b64 exec, s[32:33]
    """)
    trace_end(3)
    a('s_endpgm')
    a.label('K4_loader')
    a('s_waitcnt lgkmcnt(0)')
    mk_srd(12, 6, 512*1024)
    R.loader()
    code_prefetch('k56_kernel' if MERGE56 else 'k5_kernel', 'K_code_end', 30, 32, 40)
    if PF4:
        a('v_and_b32 v0, 255, v0')
        ws_ptr(44, 4, 'W3P')
        l2_prefetch(44, 512*3584, 24, 28, 21)
    a.label('K4_exit')
    a.end_kernel(name, (256,1,1), (512,1,1), 65536, 184)

def gen_k5():
    global SV
    SV = 200
    name = 'k5_kernel'
    a.begin_kernel(name)
    a(f"""
    s_cmp_ge_u32 s2, 256
    s_cbranch_scc1 K5_exit
    s_load_dwordx2 s[4:5], s[0:1], {KA['ws']}
    s_load_dwordx2 s[6:7], s[0:1], {KA['w3']}
    s_load_dwordx2 s[40:41], s[0:1], {KA['w4']}
    """)
    trace_begin()
    a(f"""
    v_lshrrev_b32 v1, 6, v0
    v_and_b32 v2, 63, v0
    v_readfirstlane_b32 s24, v1
    s_and_b32 s3, s24, 3
    s_bfe_u32 s16, s2, 0x40003
    s_and_b32 s17, s2, 7
    s_lshl_b32 s17, s17, 1
    s_lshr_b32 s19, s2, 7
    s_add_u32 s17, s17, s19
    """)
    ACC = 144; FB = 16; X = 72; XW = 8
    R = Ring4(TT=2, NT=7, nch=4, nslots=4, w_rs=224, wfmt=224, FB=FB, ACC=ACC, vWr=10, X=X, XW=XW, LA=LA5)
    a(f"""
    s_lshl_b32 s39, s17, 7
    s_lshl_b32 s23, s3, 5
    s_add_u32 s39, s39, s23
    s_lshl_b32 s38, s39, 10
    s_mul_i32 s20, s3, 7168
    s_mul_i32 s37, s16, 114688
    s_add_u32 s20, s20, s37
    s_cmp_ge_u32 s24, 4
    s_cbranch_scc1 K5_loader
    v_and_b32 v14, 15, v2
    v_lshrrev_b32 v15, 4, v2
    v_add_u32 v14, s39, v14
    v_lshlrev_b32 v13, 6, v14
    s_mul_i32 s21, s16, 448
    v_lshl_add_u32 v8, v15, 4, s21
    v_lshl_add_u32 v11, v2, 4, s38
    v_add_u32 v12, 0x4000, v11         ; tt1
    s_waitcnt lgkmcnt(0)
    """)
    SV = 232
    ws_ptr(8, 4, 'X1'); ws_ptr(24, 4, 'ST3'); ws_ptr(26, 4, 'HH'); ws_ptr(28, 4, 'CS', 2048)
    for tt in range(2):
        for q in range(4):
            r = ACC + 16*tt + 4*q
            a(f'global_load_dwordx4 v[{r}:{r+3}], v13, s[24:25] offset:{1024*tt + 16*q}')
    CSR = 204
    for cb in range(7):
        a(f'global_load_dwordx4 v[{CSR+4*cb}:{CSR+4*cb+3}], v8, s[28:29] offset:{64*cb}')
    def aload(st):
        if st % 4 == 0 and st:
            a('s_add_u32 s8, s8, 4096')
            a('s_addc_u32 s9, s9, 0')
        for tt in range(2):
            x = X + 4*(2*(st % XW) + tt)
            a(f'global_load_dwordx4 v[{x}:{x+3}], v{11+tt}, s[8:9] offset:{1024*(st&3)}')
    for st in range(XW):
        aload(st)
    R.comp_setup(3, 4, 5)
    a(f's_waitcnt vmcnt({7 + 2*XW})')
    for tt in range(2):
        b = ACC + 16*tt
        for i in (8, 4, 2):
            for j in range(0, i, 2):
                a(f'v_pk_add_f32 v[{b+j}:{b+j+1}], v[{b+j}:{b+j+1}], v[{b+j+i}:{b+j+i+1}]')
        a(f'v_mul_f32 v{b}, {hx(1/512)}, v{b}')
        a(f'v_mul_f32 v{b+1}, {hx(1/512)}, v{b+1}')
        a(f'v_fma_f32 v{b+1}, -v{b}, v{b}, v{b+1}')
        a(f'v_max_f32 v{b+1}, 0, v{b+1}')
        ln_scalars(b, b+1, 3)
        a(f'v_mov_b32 v{4+2*tt}, v{b+1}')
        a(f'v_mul_f32 v{5+2*tt}, v{b}, v{b+1}')
    for i in range(56):
        a(f'v_mov_b32 v{ACC+i}, 0')
    R.compute(aload)
    a(f"""
    v_mov_b32 v72, {hx(GC1)}
    v_mov_b32 v73, {hx(GC2)}
    v_mov_b32 v74, 1.0
    v_mov_b32 v75, 1.0
    s_mul_i32 s21, s39, 3584
    s_mul_i32 s22, s16, 3584
    s_add_u32 s21, s21, s22
    v_and_b32 v3, 1, v15
    v_lshrrev_b32 v13, 1, v15
    v_and_b32 v8, 15, v2
    v_lshl_add_u32 v8, v8, 4, s21
    v_lshl_add_u32 v12, v3, 1, v13
    v_lshl_add_u32 v12, v12, 8, v8
    v_add_u32 v11, 57344, v12          ; tt1
    v_mul_u32_u24 v3, 57344, v3
    v_lshl_add_u32 v10, v13, 8, v8
    v_add_u32 v10, v10, v3
    """)
    O = 80
    for tt in range(2):
        zs = [ACC + 28*tt + 2*p for p in range(14)]
        affine_round(zs, [CSR + 2*p for p in range(14)], 4+2*tt, 64)
        gelu_pairs(zs, 72, 64)
        for p in range(14):
            d = O + 16*tt + p if p < 12 else 112 + 2*tt + (p - 12)
            a(f'v_cvt_pk_bf16_f32 v{d}, v{zs[p]}, v{zs[p]+1}')
        a('s_nop 1')
        for P in range(3):
            o = O + 16*tt + 4*P
            a(f'v_permlane16_swap_b32 v{o}, v{o+2}')
            a(f'v_permlane16_swap_b32 v{o+1}, v{o+3}')
        a('s_nop 1')
        for P in range(3):
            o = O + 16*tt + 4*P
            a(f'global_store_dwordx4 v{12-tt}, v[{o}:{o+3}], s[26:27] offset:{1024*P}{SC3}')
    a('v_permlane16_swap_b32 v112, v114')
    a('v_permlane16_swap_b32 v113, v115')
    a('s_nop 1')
    a(f'global_store_dwordx4 v10, v[112:115], s[26:27] offset:3072{SC3}')
    trace_end(4)
    a('s_endpgm')
    a.label('K5_loader')
    a('s_waitcnt lgkmcnt(0)')
    ws_ptr(12, 4, 'W3P')
    a(f's_mov_b32 s14, {512*3584}')
    a('s_mov_b32 s15, 0x00020000')
    R.loader()
    if PF5:
        a('v_and_b32 v0, 255, v0')
        l2_prefetch(40, 1792*1024, 24, 28, 21)
    a.label('K5_exit')
    a.end_kernel(name, (256,1,1), (512,1,1), 4*R.SLOT, 240)

def gen_k6():
    global SV
    SV = 176
    name = 'k6_kernel'
    a.begin_kernel(name)
    a(f"""
    s_cmp_ge_u32 s2, 256
    s_cbranch_scc1 K6_exit
    s_load_dwordx2 s[4:5], s[0:1], {KA['ws']}
    s_load_dwordx2 s[6:7], s[0:1], {KA['w4']}
    s_load_dwordx2 s[26:27], s[0:1], {KA['out']}
    """)
    trace_begin()
    a(f"""
    v_lshrrev_b32 v1, 6, v0
    v_and_b32 v2, 63, v0
    v_readfirstlane_b32 s24, v1
    s_and_b32 s3, s24, 3
    {MAP64}
    """)
    wave_krow(18)
    ACC = 36; FB = 64; X = 96; XW = 16
    R = Ring4(TT=1, NT=4, nch=14, nslots=8, w_rs=1024, wfmt=128, FB=FB, ACC=ACC, vWr=10, X=X, XW=XW, rot=True, LA=LA6)
    a(f"""
    s_lshl_b32 s39, s17, 6
    s_lshl_b32 s23, s3, 4
    s_add_u32 s39, s39, s23
    s_lshl_b32 s38, s39, 10
    s_lshl_b32 s20, s18, 10
    s_lshl_b32 s37, s16, 7
    s_add_u32 s20, s20, s37
    s_lshl_b32 s34, s17, 1
    s_add_u32 s34, s34, s16
    s_mul_hi_u32 s35, s34, 0x24924925
    s_mul_i32 s35, s35, 7
    s_sub_u32 s34, s34, s35
    s_lshl_b32 s34, s34, 1
    s_cmp_ge_u32 s24, 4
    s_cbranch_scc1 K6_loader
    v_lshrrev_b32 v15, 4, v2
    s_mul_i32 s21, s39, 3584
    v_lshl_add_u32 v17, v2, 4, s21
    s_lshl_b32 s36, s34, 12
    """)
    fra_epi_off(18, 5)
    a('s_waitcnt lgkmcnt(0)')
    ws_ptr(8, 4, 'HH'); ws_ptr(24, 4, 'HR'); ws_ptr(28, 4, 'X1')
    a(f's_mov_b32 s10, {2048*3584}')
    a('s_mov_b32 s11, 0x00020000')
    for cb in range(4):
        a(f'global_load_dwordx2 v[{20+2*cb}:{21+2*cb}], v18, s[24:25] offset:{512*cb}')
    for cb in range(4):
        a(f'global_load_dwordx2 v[{28+2*cb}:{29+2*cb}], v18, s[28:29] offset:{512*cb}')
    def aload(st):
        x = X + 4*(st % XW)
        a(f'buffer_load_dwordx4 v[{x}:{x+3}], v17, s[8:11], s36 offen offset:{1024*(st&3)}')
        if st % 4 == 3:
            a('s_add_u32 s36, s36, 4096')
            a('s_cmp_eq_u32 s36, 57344')
            a('s_cselect_b32 s36, 0, s36')
    for st in range(XW):
        aload(st)
    R.comp_setup(5, 6, 7)
    for i in range(16):
        a(f'v_mov_b32 v{ACC+i}, 0')
    R.compute(aload)
    a('s_nop 7')
    O = 168
    for g0 in (0, 4):
        G = range(g0, g0+4)
        T1 = lambda p: 64 + (p & 3)
        T2 = lambda p: 68 + 2*(p & 3)
        for p in G: a(f'v_cvt_pk_bf16_f32 v{T1(p)}, v{ACC+2*p}, v{ACC+2*p+1}')
        for p in G: unpack(ACC+2*p, ACC+2*p+1, T1(p))
        for p in G: unpack(T2(p), T2(p)+1, 28+p)
        for p in G: a(f'v_pk_add_f32 v[{ACC+2*p}:{ACC+2*p+1}], v[{ACC+2*p}:{ACC+2*p+1}], v[{T2(p)}:{T2(p)+1}]')
        for p in G: a(f'v_cvt_pk_bf16_f32 v{T1(p)}, v{ACC+2*p}, v{ACC+2*p+1}')
        for p in G: unpack(ACC+2*p, ACC+2*p+1, T1(p))
        for p in G: unpack(T2(p), T2(p)+1, 20+p)
        for p in G: a(f'v_pk_add_f32 v[{ACC+2*p}:{ACC+2*p+1}], v[{ACC+2*p}:{ACC+2*p+1}], v[{T2(p)}:{T2(p)+1}]')
        for p in G: a(f'v_cvt_pk_bf16_f32 v{O+p}, v{ACC+2*p}, v{ACC+2*p+1}')
    a(f's_mul_i32 s21, s3, 2560')
    a(f's_add_u32 s21, s21, {8*R.SLOT}')
    store_tile64(O, 38, 26, 37, 64, 21)
    trace_end(5)
    a('s_endpgm')
    a.label('K6_loader')
    a('s_waitcnt lgkmcnt(0)')
    mk_srd(12, 6, 1792*1024)
    R.loader()
    a.label('K6_exit')
    a.end_kernel(name, (256,1,1), (512,1,1), 8*R.SLOT + 10240, 184)
    a.label('K_code_end')

def signal_cnt(soff, vt):
    l = a.newlabel('SIG')
    a('v_cmp_eq_u32 vcc, 0, v0')
    a('s_and_saveexec_b64 s[48:49], vcc')
    a(f's_cbranch_execz {l}')
    a(f'v_mov_b32 v{vt}, s{soff}')
    a(f'v_mov_b32 v{vt+1}, 1')
    a(f'global_atomic_add v{vt}, v{vt+1}, s[46:47] sc1')
    a.label(l)
    a('s_mov_b64 exec, s[48:49]')

def poll_cnt(label, soff, target, vt):
    a(f'v_readfirstlane_b32 s50, v0')
    a(f'v_mov_b32 v{vt}, s{soff}')
    a('s_mov_b32 s51, 0')
    a('s_cmp_lg_u32 s50, 0')
    a(f's_cbranch_scc1 {label}_ok')
    a.label(label)
    a(f'global_load_dword v{vt+1}, v{vt}, s[46:47] sc1')
    a('s_waitcnt vmcnt(0)')
    a(f'v_readfirstlane_b32 s50, v{vt+1}')
    a('s_add_u32 s51, s51, 1')
    a(f's_cmp_ge_u32 s50, {target}')
    a(f's_cbranch_scc1 {label}_ok')
    a('s_cmp_lt_u32 s51, 0x8000')
    a(f's_cbranch_scc0 {label}_ok')
    a('s_sleep 1')
    a(f's_branch {label}')
    a.label(f'{label}_ok')

def gen_k56():
    global SV
    SV = 232
    name = 'k56_kernel'
    a.begin_kernel(name)
    a(f"""
    s_cmp_ge_u32 s2, 256
    s_cbranch_scc1 K56_exit
    s_load_dwordx2 s[4:5], s[0:1], {KA['ws']}
    s_load_dwordx2 s[6:7], s[0:1], {KA['w4']}
    s_load_dwordx2 s[52:53], s[0:1], {KA['out']}
    """)
    trace_begin()
    a(f"""
    v_lshrrev_b32 v1, 6, v0
    v_and_b32 v2, 63, v0
    v_readfirstlane_b32 s44, v1
    s_and_b32 s3, s44, 3
    s_bfe_u32 s16, s2, 0x40003
    s_and_b32 s17, s2, 7
    s_lshl_b32 s17, s17, 1
    s_lshr_b32 s19, s2, 7
    s_add_u32 s17, s17, s19
    """)
    ACC = 144; FB = 16; X = 72; XW = 8
    R = Ring4(TT=2, NT=7, nch=4, nslots=4, w_rs=224, wfmt=224, FB=FB, ACC=ACC, vWr=10, X=X, XW=XW, LA=LA5)
    a(f"""
    s_lshl_b32 s39, s17, 7
    s_lshl_b32 s23, s3, 5
    s_add_u32 s39, s39, s23
    s_lshl_b32 s38, s39, 10
    s_mul_i32 s20, s3, 7168
    s_mul_i32 s37, s16, 114688
    s_add_u32 s20, s20, s37
    s_lshl_b32 s45, s17, 7
    s_cmp_ge_u32 s44, 4
    s_cbranch_scc1 K56_loader
    v_and_b32 v14, 15, v2
    v_lshrrev_b32 v15, 4, v2
    v_add_u32 v14, s39, v14
    v_lshlrev_b32 v13, 6, v14
    s_mul_i32 s21, s16, 448
    v_lshl_add_u32 v8, v15, 4, s21
    v_lshl_add_u32 v11, v2, 4, s38
    v_add_u32 v12, 0x4000, v11
    s_waitcnt lgkmcnt(0)
    """)
    gstamp(0)
    ws_ptr(8, 4, 'X1'); ws_ptr(24, 4, 'ST3'); ws_ptr(26, 4, 'HH'); ws_ptr(28, 4, 'CS', 2048); ws_ptr(46, 4, 'CNT')
    for tt in range(2):
        for q in range(4):
            r = ACC + 16*tt + 4*q
            a(f'global_load_dwordx4 v[{r}:{r+3}], v13, s[24:25] offset:{1024*tt + 16*q}')
    CSR = 204
    for cb in range(7):
        a(f'global_load_dwordx4 v[{CSR+4*cb}:{CSR+4*cb+3}], v8, s[28:29] offset:{64*cb}')
    def aload(st):
        if st % 4 == 0 and st:
            a('s_add_u32 s8, s8, 4096')
            a('s_addc_u32 s9, s9, 0')
        for tt in range(2):
            x = X + 4*(2*(st % XW) + tt)
            a(f'global_load_dwordx4 v[{x}:{x+3}], v{11+tt}, s[8:9] offset:{1024*(st&3)}')
    for st in range(XW):
        aload(st)
    R.comp_setup(3, 4, 5)
    a(f's_waitcnt vmcnt({7 + 2*XW})')
    for tt in range(2):
        b = ACC + 16*tt
        for i in (8, 4, 2):
            for j in range(0, i, 2):
                a(f'v_pk_add_f32 v[{b+j}:{b+j+1}], v[{b+j}:{b+j+1}], v[{b+j+i}:{b+j+i+1}]')
        a(f'v_mul_f32 v{b}, {hx(1/512)}, v{b}')
        a(f'v_mul_f32 v{b+1}, {hx(1/512)}, v{b+1}')
        a(f'v_fma_f32 v{b+1}, -v{b}, v{b}, v{b+1}')
        a(f'v_max_f32 v{b+1}, 0, v{b+1}')
        ln_scalars(b, b+1, 3)
        a(f'v_mov_b32 v{4+2*tt}, v{b+1}')
        a(f'v_mul_f32 v{5+2*tt}, v{b}, v{b+1}')
    for i in range(56):
        a(f'v_mov_b32 v{ACC+i}, 0')
    R.compute(aload)
    gstamp(1)
    a('s_barrier')
    a(f"""
    v_mov_b32 v72, {hx(GC1)}
    v_mov_b32 v73, {hx(GC2)}
    v_mov_b32 v74, 1.0
    v_mov_b32 v75, 1.0
    s_mul_i32 s21, s39, 3584
    s_mul_i32 s22, s16, 3584
    s_add_u32 s21, s21, s22
    v_and_b32 v3, 1, v15
    v_lshrrev_b32 v13, 1, v15
    v_and_b32 v8, 15, v2
    v_lshl_add_u32 v8, v8, 4, s21
    v_lshl_add_u32 v12, v3, 1, v13
    v_lshl_add_u32 v12, v12, 8, v8
    v_add_u32 v11, 57344, v12
    v_mul_u32_u24 v3, 57344, v3
    v_lshl_add_u32 v10, v13, 8, v8
    v_add_u32 v10, v10, v3
    """)
    O = 80
    for tt in range(2):
        zs = [ACC + 28*tt + 2*p for p in range(14)]
        affine_round(zs, [CSR + 2*p for p in range(14)], 4+2*tt, 64)
        gelu_pairs(zs, 72, 64)
        for p in range(14):
            d = O + 16*tt + p if p < 12 else 112 + 2*tt + (p - 12)
            a(f'v_cvt_pk_bf16_f32 v{d}, v{zs[p]}, v{zs[p]+1}')
        a('s_nop 1')
        for P in range(3):
            o = O + 16*tt + 4*P
            a(f'v_permlane16_swap_b32 v{o}, v{o+2}')
            a(f'v_permlane16_swap_b32 v{o+1}, v{o+3}')
        a('s_nop 1')
        for P in range(3):
            o = O + 16*tt + 4*P
            a(f'global_store_dwordx4 v{12-tt}, v[{o}:{o+3}], s[26:27] offset:{1024*P} sc1')
    a('v_permlane16_swap_b32 v112, v114')
    a('v_permlane16_swap_b32 v113, v115')
    a('s_nop 1')
    a('global_store_dwordx4 v10, v[112:115], s[26:27] offset:3072 sc1')
    P6 = f"""
    {MAP64}
    s_lshr_b32 s18, s3, 1
    s_lshl_b32 s18, s18, 4
    s_and_b32 s19, s3, 1
    s_lshl_b32 s19, s19, 2
    s_add_u32 s18, s18, s19
    s_lshl_b32 s39, s17, 6
    s_lshl_b32 s23, s3, 4
    s_add_u32 s39, s39, s23
    s_lshl_b32 s38, s39, 10
    s_lshl_b32 s20, s18, 10
    s_lshl_b32 s37, s16, 7
    s_add_u32 s20, s20, s37
    s_lshl_b32 s34, s17, 1
    s_add_u32 s34, s34, s16
    s_mul_hi_u32 s35, s34, 0x24924925
    s_mul_i32 s35, s35, 7
    s_sub_u32 s34, s34, s35
    s_lshl_b32 s34, s34, 1
    """
    a(P6)
    ACC6 = 36; FB6 = 64; X6 = 96; XW6 = 16
    R6 = Ring4(TT=1, NT=4, nch=14, nslots=8, w_rs=1024, wfmt=128, FB=FB6, ACC=ACC6, vWr=10, X=X6, XW=XW6, rot=True, LA=6)
    a(f"""
    s_mul_i32 s21, s39, 3584
    v_lshl_add_u32 v17, v2, 4, s21
    s_lshl_b32 s36, s34, 12
    s_lshr_b32 s43, s17, 1
    s_lshl_b32 s43, s43, 7
    """)
    fra_epi_off(18, 5)
    gstamp(2)
    a('s_waitcnt vmcnt(0)')
    a('s_barrier')
    gstamp(3)
    signal_cnt(45, 60)
    ws_ptr(8, 4, 'HH'); ws_ptr(24, 4, 'HR'); ws_ptr(28, 4, 'X1')
    a(f's_mov_b32 s10, {2048*3584}')
    a('s_mov_b32 s11, 0x00020000')
    for cb in range(4):
        a(f'global_load_dwordx2 v[{20+2*cb}:{21+2*cb}], v18, s[24:25] offset:{512*cb}')
    for cb in range(4):
        a(f'global_load_dwordx2 v[{28+2*cb}:{29+2*cb}], v18, s[28:29] offset:{512*cb}')
    R6.comp_setup(5, 6, 7)
    for i in range(16):
        a(f'v_mov_b32 v{ACC6+i}, 0')
    poll_cnt('K56_poll', 43, 16, 60)
    gstamp(4)
    a('s_barrier')
    gstamp(5)
    def aload6(st):
        x = X6 + 4*(st % XW6)
        a(f'buffer_load_dwordx4 v[{x}:{x+3}], v17, s[8:11], s36 offen offset:{1024*(st&3)} sc1')
        if st % 4 == 3:
            a('s_add_u32 s36, s36, 4096')
            a('s_cmp_eq_u32 s36, 57344')
            a('s_cselect_b32 s36, 0, s36')
    for st in range(XW6):
        aload6(st)
    R6.compute(aload6)
    gstamp(6)
    a('s_nop 7')
    O = 168
    ACC = ACC6
    for g0 in (0, 4):
        G = range(g0, g0+4)
        T1 = lambda p: 64 + (p & 3)
        T2 = lambda p: 68 + 2*(p & 3)
        for p in G: a(f'v_cvt_pk_bf16_f32 v{T1(p)}, v{ACC+2*p}, v{ACC+2*p+1}')
        for p in G: unpack(ACC+2*p, ACC+2*p+1, T1(p))
        for p in G: unpack(T2(p), T2(p)+1, 28+p)
        for p in G: a(f'v_pk_add_f32 v[{ACC+2*p}:{ACC+2*p+1}], v[{ACC+2*p}:{ACC+2*p+1}], v[{T2(p)}:{T2(p)+1}]')
        for p in G: a(f'v_cvt_pk_bf16_f32 v{T1(p)}, v{ACC+2*p}, v{ACC+2*p+1}')
        for p in G: unpack(ACC+2*p, ACC+2*p+1, T1(p))
        for p in G: unpack(T2(p), T2(p)+1, 20+p)
        for p in G: a(f'v_pk_add_f32 v[{ACC+2*p}:{ACC+2*p+1}], v[{ACC+2*p}:{ACC+2*p+1}], v[{T2(p)}:{T2(p)+1}]')
        for p in G: a(f'v_cvt_pk_bf16_f32 v{O+p}, v{ACC+2*p}, v{ACC+2*p+1}')
    a(f's_mul_i32 s21, s3, 2560')
    a(f's_add_u32 s21, s21, {8*R6.SLOT}')
    store_tile64(O, 38, 52, 37, 64, 21)
    trace_end(4)
    a('s_endpgm')
    a.label('K56_loader')
    a('s_waitcnt lgkmcnt(0)')
    ws_ptr(12, 4, 'W3P')
    a(f's_mov_b32 s14, {512*3584}')
    a('s_mov_b32 s15, 0x00020000')
    R.loader()
    a(P6)
    mk_srd(12, 6, 1792*1024)
    a('s_barrier')
    R6.loader(pre=3, bars=2)
    a.label('K56_exit')
    a.end_kernel(name, (256,1,1), (512,1,1), 8*R6.SLOT + 10240, 240)
    a.label('K_code_end')

def gen_k456():
    global SV
    SV = 232
    name = 'k456_kernel'
    a.begin_kernel(name)
    a(f"""
    s_cmp_ge_u32 s2, 256
    s_cbranch_scc1 K456_exit
    s_load_dwordx2 s[4:5], s[0:1], {KA['ws']}
    s_load_dwordx2 s[6:7], s[0:1], {KA['w4']}
    s_load_dwordx2 s[52:53], s[0:1], {KA['out']}
    s_load_dwordx2 s[60:61], s[0:1], {KA['w2']}
    """)
    trace_begin()
    a(f"""
    v_lshrrev_b32 v1, 6, v0
    v_and_b32 v2, 63, v0
    v_readfirstlane_b32 s44, v1
    s_and_b32 s3, s44, 3
    {MAP64}
    """)
    wave_krow(18)
    ACC = 36; FB = 64; X = 96
    R4 = Ring4(TT=1, NT=4, nch=4, nslots=4, w_rs=1024, wfmt=128, FB=FB, ACC=ACC, vWr=10, X=X, XW=16, LA=2)
    P5S = f"""
    s_bfe_u32 s16, s2, 0x40003
    s_and_b32 s17, s2, 7
    s_lshl_b32 s17, s17, 1
    s_lshr_b32 s19, s2, 7
    s_add_u32 s17, s17, s19
    s_lshl_b32 s39, s17, 7
    s_lshl_b32 s23, s3, 5
    s_add_u32 s39, s39, s23
    s_lshl_b32 s38, s39, 10
    s_mul_i32 s54, s3, 7168
    s_mul_i32 s37, s16, 114688
    s_add_u32 s54, s54, s37
    s_lshl_b32 s45, s17, 7
    """
    a(f"""
    s_lshl_b32 s39, s17, 6
    s_lshl_b32 s23, s3, 4
    s_add_u32 s39, s39, s23
    s_lshl_b32 s38, s39, 10
    s_lshl_b32 s20, s18, 10
    s_lshl_b32 s37, s16, 7
    s_add_u32 s20, s20, s37
    s_lshr_b32 s55, s17, 1
    s_lshl_b32 s55, s55, 7
    s_cmp_ge_u32 s44, 4
    s_cbranch_scc1 K456_loader
    """)
    a(f"""
    v_and_b32 v14, 15, v2
    v_lshrrev_b32 v15, 4, v2
    v_add_u32 v14, s39, v14            ; token
    v_lshlrev_b32 v16, 3, v14
    v_lshlrev_b32 v19, 6, v14
    """)
    for q, sh in enumerate([-1, 1, -2, 2]):
        a(f'v_add_u32 v5, {sh}, v14')
        a('v_ashrrev_i32 v6, 4, v5')
        a('v_lshlrev_b32 v6, 14, v6')
        a('v_and_b32 v5, 15, v5')
        a('v_lshl_add_u32 v6, v5, 4, v6')
        a('v_lshl_add_u32 v6, v15, 8, v6')
        a(f'v_add_u32 v{52+q}, {4096*q}, v6')
    fra_epi_off(18, 5)
    a('s_waitcnt lgkmcnt(0)')
    gstamp(0)
    ws_ptr(8, 4, 'G1')
    a(f's_mov_b32 s10, {2*MB}')
    a('s_mov_b32 s11, 0x00020000')
    ws_ptr(24, 4, 'HR'); ws_ptr(26, 4, 'X1'); ws_ptr(28, 4, 'ST3'); ws_ptr(30, 4, 'ST1')
    HRr = 20
    for cb in range(4):
        a(f'global_load_dwordx2 v[{HRr+2*cb}:{HRr+2*cb+1}], v18, s[24:25] offset:{512*cb}')
    a('global_load_dwordx2 v[28:29], v16, s[30:31]')
    for st in range(16):
        a(f'buffer_load_dwordx4 v[{X+4*st}:{X+4*st+3}], v{52+(st>>2)}, s[8:11], 0 offen offset:{1024*(st&3)}')
    R4.comp_setup(5, 6, 7)
    for i in range(16):
        a(f'v_mov_b32 v{ACC+i}, 0')
    R4.compute(None)
    gstamp(1)
    a('s_barrier')
    a('v_mov_b32 v60, 0')
    a('v_mov_b32 v61, 0')
    a('v_mov_b32 v62, 0')
    a('v_mov_b32 v63, 0')
    a('s_nop 4')
    O = 168
    for g0 in (0, 4):
        G = range(g0, g0+4)
        T1 = lambda p: 64 + (p & 3)
        T2 = lambda p: 68 + 2*(p & 3)
        for p in G: a(f'v_cvt_pk_bf16_f32 v{T1(p)}, v{ACC+2*p}, v{ACC+2*p+1}')
        for p in G: unpack(ACC+2*p, ACC+2*p+1, T1(p))
        for p in G: unpack(T2(p), T2(p)+1, HRr+p)
        for p in G: a(f'v_pk_add_f32 v[{T2(p)}:{T2(p)+1}], v[{T2(p)}:{T2(p)+1}], v[28:29] op_sel_hi:[1,0] neg_lo:[0,1] neg_hi:[0,1]')
        for p in G: a(f'v_cvt_pk_bf16_f32 v{T1(p)}, v{T2(p)}, v{T2(p)+1}')
        for p in G: unpack(T2(p), T2(p)+1, T1(p))
        for p in G: a(f'v_pk_mul_f32 v[{T2(p)}:{T2(p)+1}], v[{T2(p)}:{T2(p)+1}], v[28:29] op_sel:[0,1] op_sel_hi:[1,1]')
        for p in G: a(f'v_cvt_pk_bf16_f32 v{T1(p)}, v{T2(p)}, v{T2(p)+1}')
        for p in G: unpack(T2(p), T2(p)+1, T1(p))
        for p in G: a(f'v_pk_add_f32 v[{ACC+2*p}:{ACC+2*p+1}], v[{ACC+2*p}:{ACC+2*p+1}], v[{T2(p)}:{T2(p)+1}]')
        for p in G: a(f'v_cvt_pk_bf16_f32 v{O+p}, v{ACC+2*p}, v{ACC+2*p+1}')
        for p in G: unpack(ACC+2*p, ACC+2*p+1, O+p)
        for p in G:
            a(f'v_pk_add_f32 v[60:61], v[60:61], v[{ACC+2*p}:{ACC+2*p+1}]')
            a(f'v_pk_fma_f32 v[62:63], v[{ACC+2*p}:{ACC+2*p+1}], v[{ACC+2*p}:{ACC+2*p+1}], v[62:63]')
    a('v_add_f32 v60, v60, v61')
    a('v_add_f32 v61, v62, v63')
    fra_store_off(7, 8)
    a('v_mov_b32 v62, v60')
    a('v_mov_b32 v63, v61')
    for P in range(2):
        o = O + 4*P
        a(f'v_permlane16_swap_b32 v{o}, v{o+2}')
        a(f'v_permlane16_swap_b32 v{o+1}, v{o+3}')
    a('v_permlane16_swap_b32 v60, v62')
    a('v_permlane16_swap_b32 v61, v63')
    for P in range(2):
        o = O + 4*P
        a(f'global_store_dwordx4 v7, v[{o}:{o+3}], s[26:27] offset:{1024*P} sc1')
    a(f"""
    v_pk_add_f32 v[60:61], v[60:61], v[62:63]
    s_nop 0
    v_mov_b32 v62, v60
    v_mov_b32 v63, v61
    s_nop 1
    v_permlane32_swap_b32 v60, v62
    v_permlane32_swap_b32 v61, v63
    s_nop 1
    v_pk_add_f32 v[60:61], v[60:61], v[62:63]
    s_lshl_b32 s21, s16, 3
    v_add_u32 v19, s21, v19
    v_cmp_gt_u32 vcc, 16, v2
    s_and_saveexec_b64 s[32:33], vcc
    global_store_dwordx2 v19, v[60:61], s[28:29] sc1
    s_mov_b64 exec, s[32:33]
    """)
    ws_ptr(46, 4, 'CNT')
    gstamp(2)
    a('s_waitcnt vmcnt(0)')
    a('s_barrier')
    gstamp(3)
    signal_cnt(55, 60)
    a(P5S)
    ACC = 72; FB = 16; X = 128; XW = 16
    R = Ring4(TT=2, NT=7, nch=4, nslots=4, w_rs=224, wfmt=224, FB=FB, ACC=ACC, vWr=10, X=X, XW=XW, srd=56, soff=54, vW=13,
              bases=[65536, 65536+28672, 65536+2*28672, 0])
    a(f"""
    v_and_b32 v14, 15, v2
    v_lshrrev_b32 v15, 4, v2
    v_add_u32 v14, s39, v14
    v_lshlrev_b32 v13, 6, v14
    s_mul_i32 s21, s16, 448
    v_lshl_add_u32 v8, v15, 4, s21
    v_lshl_add_u32 v11, v2, 4, s38
    v_add_u32 v12, 0x4000, v11
    """)
    ws_ptr(8, 4, 'X1'); ws_ptr(24, 4, 'ST3'); ws_ptr(26, 4, 'HH'); ws_ptr(28, 4, 'CS', 2048)
    poll_cnt('K456_poll4', 45, 16, 60)
    a('s_barrier')
    gstamp(4)
    a('s_add_u32 s45, s45, 2048')
    for tt in range(2):
        for q in range(4):
            r = ACC + 16*tt + 4*q
            a(f'global_load_dwordx4 v[{r}:{r+3}], v13, s[24:25] offset:{1024*tt + 16*q} sc1')
    CSR = 128
    def cs_hook(st):
        if st == 8:
            for cb in range(7):
                a(f'global_load_dwordx4 v[{CSR+4*cb}:{CSR+4*cb+3}], v8, s[28:29] offset:{64*cb}')
    def aload(st):
        if st % 4 == 0 and st:
            a('s_add_u32 s8, s8, 4096')
            a('s_addc_u32 s9, s9, 0')
        for tt in range(2):
            x = X + 4*(2*(st % XW) + tt)
            a(f'global_load_dwordx4 v[{x}:{x+3}], v{11+tt}, s[8:9] offset:{1024*(st&3)} sc1')
    for st in range(XW):
        aload(st)
    R.comp_setup(3, 4, 5)
    a(f's_waitcnt vmcnt({2*XW})')
    for tt in range(2):
        b = ACC + 16*tt
        for i in (8, 4, 2):
            for j in range(0, i, 2):
                a(f'v_pk_add_f32 v[{b+j}:{b+j+1}], v[{b+j}:{b+j+1}], v[{b+j+i}:{b+j+i+1}]')
        a(f'v_mul_f32 v{b}, {hx(1/512)}, v{b}')
        a(f'v_mul_f32 v{b+1}, {hx(1/512)}, v{b+1}')
        a(f'v_fma_f32 v{b+1}, -v{b}, v{b}, v{b+1}')
        a(f'v_max_f32 v{b+1}, 0, v{b+1}')
        ln_scalars(b, b+1, 3)
        a(f'v_mov_b32 v{4+2*tt}, v{b+1}')
        a(f'v_mul_f32 v{5+2*tt}, v{b}, v{b+1}')
    for i in range(56):
        a(f'v_mov_b32 v{ACC+i}, 0')
    R.compute(aload, cs_hook)
    gstamp(5)
    a('s_barrier')
    a(f"""
    v_mov_b32 v160, {hx(GC1)}
    v_mov_b32 v161, {hx(GC2)}
    v_mov_b32 v162, 1.0
    v_mov_b32 v163, 1.0
    s_mul_i32 s21, s39, 3584
    s_mul_i32 s22, s16, 3584
    s_add_u32 s21, s21, s22
    v_and_b32 v3, 1, v15
    v_lshrrev_b32 v13, 1, v15
    v_and_b32 v8, 15, v2
    v_lshl_add_u32 v8, v8, 4, s21
    v_lshl_add_u32 v12, v3, 1, v13
    v_lshl_add_u32 v12, v12, 8, v8
    v_add_u32 v11, 57344, v12
    v_mul_u32_u24 v3, 57344, v3
    v_lshl_add_u32 v10, v13, 8, v8
    v_add_u32 v10, v10, v3
    """)
    O = 168
    for tt in range(2):
        zs = [ACC + 28*tt + 2*p for p in range(14)]
        affine_round(zs, [CSR + 2*p for p in range(14)], 4+2*tt, 64)
        gelu_pairs(zs, 160, 64)
        for p in range(14):
            d = O + 16*tt + p if p < 12 else 200 + 2*tt + (p - 12)
            a(f'v_cvt_pk_bf16_f32 v{d}, v{zs[p]}, v{zs[p]+1}')
        a('s_nop 1')
        for P in range(3):
            o = O + 16*tt + 4*P
            a(f'v_permlane16_swap_b32 v{o}, v{o+2}')
            a(f'v_permlane16_swap_b32 v{o+1}, v{o+3}')
        a('s_nop 1')
        for P in range(3):
            o = O + 16*tt + 4*P
            a(f'global_store_dwordx4 v{12-tt}, v[{o}:{o+3}], s[26:27] offset:{1024*P} sc1')
    a('v_permlane16_swap_b32 v200, v202')
    a('v_permlane16_swap_b32 v201, v203')
    a('s_nop 1')
    a('global_store_dwordx4 v10, v[200:203], s[26:27] offset:3072 sc1')
    P6 = f"""
    {MAP64}
    s_lshr_b32 s18, s3, 1
    s_lshl_b32 s18, s18, 4
    s_and_b32 s19, s3, 1
    s_lshl_b32 s19, s19, 2
    s_add_u32 s18, s18, s19
    s_lshl_b32 s39, s17, 6
    s_lshl_b32 s23, s3, 4
    s_add_u32 s39, s39, s23
    s_lshl_b32 s38, s39, 10
    s_lshl_b32 s20, s18, 10
    s_lshl_b32 s37, s16, 7
    s_add_u32 s20, s20, s37
    s_lshl_b32 s34, s17, 1
    s_add_u32 s34, s34, s16
    s_mul_hi_u32 s35, s34, 0x24924925
    s_mul_i32 s35, s35, 7
    s_sub_u32 s34, s34, s35
    s_lshl_b32 s34, s34, 1
    """
    a(P6)
    ACC6 = 36; FB6 = 64; X6 = 96; XW6 = 16
    R6 = Ring4(TT=1, NT=4, nch=14, nslots=8, w_rs=1024, wfmt=128, FB=FB6, ACC=ACC6, vWr=10, X=X6, XW=XW6, rot=True, LA=6)
    a(f"""
    s_mul_i32 s21, s39, 3584
    v_lshl_add_u32 v17, v2, 4, s21
    s_lshl_b32 s36, s34, 12
    s_lshr_b32 s43, s17, 1
    s_lshl_b32 s43, s43, 7
    s_add_u32 s43, s43, 2048
    """)
    fra_epi_off(18, 5)
    gstamp(6)
    a('s_waitcnt vmcnt(0)')
    a('s_barrier')
    gstamp(7)
    signal_cnt(45, 60)
    ws_ptr(8, 4, 'HH'); ws_ptr(24, 4, 'HR'); ws_ptr(28, 4, 'X1')
    a(f's_mov_b32 s10, {2048*3584}')
    a('s_mov_b32 s11, 0x00020000')
    for cb in range(4):
        a(f'global_load_dwordx2 v[{20+2*cb}:{21+2*cb}], v18, s[24:25] offset:{512*cb}')
    for cb in range(4):
        a(f'global_load_dwordx2 v[{28+2*cb}:{29+2*cb}], v18, s[28:29] offset:{512*cb} sc1')
    R6.comp_setup(5, 6, 7)
    for i in range(16):
        a(f'v_mov_b32 v{ACC6+i}, 0')
    poll_cnt('K456_poll5', 43, 16, 60)
    a('s_barrier')
    gstamp(8)
    def aload6(st):
        x = X6 + 4*(st % XW6)
        a(f'buffer_load_dwordx4 v[{x}:{x+3}], v17, s[8:11], s36 offen offset:{1024*(st&3)} sc1')
        if st % 4 == 3:
            a('s_add_u32 s36, s36, 4096')
            a('s_cmp_eq_u32 s36, 57344')
            a('s_cselect_b32 s36, 0, s36')
    for st in range(XW6):
        aload6(st)
    R6.compute(aload6)
    gstamp(9)
    a('s_nop 7')
    O = 168
    ACC = ACC6
    for g0 in (0, 4):
        G = range(g0, g0+4)
        T1 = lambda p: 64 + (p & 3)
        T2 = lambda p: 68 + 2*(p & 3)
        for p in G: a(f'v_cvt_pk_bf16_f32 v{T1(p)}, v{ACC+2*p}, v{ACC+2*p+1}')
        for p in G: unpack(ACC+2*p, ACC+2*p+1, T1(p))
        for p in G: unpack(T2(p), T2(p)+1, 28+p)
        for p in G: a(f'v_pk_add_f32 v[{ACC+2*p}:{ACC+2*p+1}], v[{ACC+2*p}:{ACC+2*p+1}], v[{T2(p)}:{T2(p)+1}]')
        for p in G: a(f'v_cvt_pk_bf16_f32 v{T1(p)}, v{ACC+2*p}, v{ACC+2*p+1}')
        for p in G: unpack(ACC+2*p, ACC+2*p+1, T1(p))
        for p in G: unpack(T2(p), T2(p)+1, 20+p)
        for p in G: a(f'v_pk_add_f32 v[{ACC+2*p}:{ACC+2*p+1}], v[{ACC+2*p}:{ACC+2*p+1}], v[{T2(p)}:{T2(p)+1}]')
        for p in G: a(f'v_cvt_pk_bf16_f32 v{O+p}, v{ACC+2*p}, v{ACC+2*p+1}')
    a(f's_mul_i32 s21, s3, 2560')
    a(f's_add_u32 s21, s21, {8*R6.SLOT}')
    store_tile64(O, 38, 52, 37, 64, 21)
    trace_end(4)
    a('s_endpgm')
    a.label('K456_loader')
    a('s_waitcnt lgkmcnt(0)')
    mk_srd(12, 60, 512*1024)
    R4.l_setup()
    R4.l_issue(0); R4.l_issue(1)
    a(P5S)
    ws_ptr(56, 4, 'W3P')
    a(f's_mov_b32 s58, {512*3584}')
    a('s_mov_b32 s59, 0x00020000')
    R.l_setup()
    a('s_waitcnt vmcnt(4)'); a('s_barrier'); R4.l_issue(2)
    a('s_waitcnt vmcnt(4)'); a('s_barrier'); R4.l_issue(3)
    a('s_waitcnt vmcnt(4)'); a('s_barrier'); R.l_issue(0)
    a('s_waitcnt vmcnt(7)'); a('s_barrier'); R.l_issue(1); R.l_issue(2)
    a('s_barrier')
    R.l_issue(3)
    a('s_barrier')
    a('s_barrier')
    for c in range(4):
        a(f's_waitcnt vmcnt({7*(3-c)})')
        a('s_barrier')
    a(P6)
    mk_srd(12, 6, 1792*1024)
    a('s_barrier')
    R6.loader(pre=3, bars=2)
    a.label('K456_exit')
    a.end_kernel(name, (256,1,1), (512,1,1), 151552, 256)
    a.label('K_code_end')

def main():
    gen_k1()
    gen_k2()
    gen_k3()
    if MERGE456:
        gen_k456()
    elif MERGE56:
        gen_k4()
        gen_k56()
    else:
        gen_k4()
        gen_k5()
        gen_k6()

if __name__ == '__main__':
    out = sys.argv[1] if len(sys.argv) > 1 else 'k.s'
    if 'stamps' in sys.argv[2:]:
        STAMPS = True
    if 'trace' in sys.argv[2:]:
        TRACE = True
    if 'gst' in sys.argv[2:]:
        GST = True
    main()
    open(out, 'w').write(a.text(HEADER))
```

```python
import sys, struct
from asmlib import *
from gen_ws import WS, MB

KA = dict(x=0, Are=8, Aim=16, Bre=24, Bim=32, Cre=40, Cim=48, ldt=56, Dsk=64, Bx=72, w1=80, w2=88, w3=96, w4=104, out=112, dbg=120, ws=128)

def f2u(f):
    return struct.unpack('<I', struct.pack('<f', f))[0]
def hx(f):
    return hex(f2u(f))

LOG2E = 1.4426950408889634
LOG2E_HI = struct.unpack('<f', struct.pack('<f', LOG2E))[0]
LOG2E_LO = LOG2E - LOG2E_HI
LN2 = 0.6931471805599453
INV2PI = 0.15915494309189535

a = Asm()

def ws_ptr(dst, wsreg, name, extra=0):
    off = WS[name] + extra
    a(f's_add_u32 s{dst}, s{wsreg}, {hex(off)}')
    a(f's_addc_u32 s{dst+1}, s{wsreg+1}, 0')

def row16_allreduce(v):
    for sh in (8, 4, 2, 1):
        a('s_nop 1')
        a(f'v_add_f32_dpp v{v}, v{v}, v{v} row_ror:{sh} row_mask:0xf bank_mask:0xf')

def unpack(dlo, dhi, src):
    a(f'v_lshlrev_b32 v{dlo}, 16, v{src}')
    a(f'v_and_b32 v{dhi}, 0xffff0000, v{src}')

STAMPS = False
PREFETCH = True
V456 = int([x[2:] for x in sys.argv if x.startswith('v_')][0]) if any(x.startswith('v_') for x in sys.argv) else 0
NZ6 = int([x[3:] for x in sys.argv if x.startswith('nz_')][0]) if any(x.startswith('nz_') for x in sys.argv) else 8
PRE6 = int([x[4:] for x in sys.argv if x.startswith('pre_')][0]) if any(x.startswith('pre_') for x in sys.argv) else 1
MERGE456 = 'm456' in sys.argv
MERGE56 = 'm56' in sys.argv
SC2 = ' sc1' if ('sc2' in sys.argv or 'sc3' in sys.argv) else ''
SC3 = ' sc1' if 'sc3' in sys.argv else ''
USC = '' if 'nousc' in sys.argv else ' sc1'
F16 = 'nof16' not in sys.argv
NOPF2 = 'nopf2' in sys.argv
PF2W3 = 'pf2w3' in sys.argv
PF4 = 'pf4' in sys.argv
LA5 = int([x[3:] for x in sys.argv if x.startswith('l5_')][0]) if any(x.startswith('l5_') for x in sys.argv) else 2
LA6 = int([x[3:] for x in sys.argv if x.startswith('l6_')][0]) if any(x.startswith('l6_') for x in sys.argv) else 3
LA0 = int([x[3:] for x in sys.argv if x.startswith('lb_')][0]) if any(x.startswith('lb_') for x in sys.argv) else 2
LA_DEF = int([x[2:] for x in sys.argv if x.startswith('la')][0]) if any(x.startswith('la') for x in sys.argv) else 2
PF2 = 'pf2' in sys.argv
PF5 = 'nopf5' not in sys.argv
SV = 124
def stamp_init():
    if not STAMPS: return
    a(f's_load_dwordx2 s[90:91], s[0:1], {KA["dbg"]}')
def stamp(wg_list, slot):
    if not STAMPS: return
    l = a.newlabel('STP')
    a('s_memtime s[92:93]')
    a('s_waitcnt lgkmcnt(0)')
    a('v_readfirstlane_b32 s95, v0')
    a('s_nop 3')
    a('s_cmp_lg_u32 s95, 0')
    a(f's_cbranch_scc1 {l}')
    for i, wg in enumerate(wg_list):
        l2 = a.newlabel('STQ')
        a(f's_cmp_lg_u32 s2, {wg}')
        a(f's_cbranch_scc1 {l2}')
        a(f'v_mov_b32 v{SV+1}, s92')
        a(f'v_mov_b32 v{SV}, {(i*16+slot+16)*4}')
        a(f'global_store_dword v{SV}, v{SV+1}, s[90:91]')
        a.label(l2)
    a.label(l)

TRACE = False
GST = False
def gstamp(slot):
    if not GST: return
    l = a.newlabel('GST')
    a('s_memrealtime s[92:93]')
    a('v_readfirstlane_b32 s95, v0')
    a('s_waitcnt lgkmcnt(0)')
    a('s_cmp_lg_u32 s95, 0')
    a(f's_cbranch_scc1 {l}')
    a(f'v_mov_b32 v{SV+1}, s92')
    a('s_lshl_b32 s95, s2, 6')
    a(f's_add_u32 s95, s95, {40*MB + slot*4}')
    a(f'v_mov_b32 v{SV}, s95')
    a(f'global_store_dword v{SV}, v{SV+1}, s[4:5]')
    a.label(l)
def trace_begin():
    if not TRACE: return
    a('s_memrealtime s[96:97]')
    a('s_getreg_b32 s98, hwreg(HW_REG_HW_ID)')
    a('s_getreg_b32 s99, hwreg(HW_REG_XCC_ID)')
def trace_end(kidx):
    if not TRACE: return
    l = a.newlabel('TRC')
    a('s_mov_b64 exec, -1')
    a('s_memrealtime s[100:101]')
    a('v_readfirstlane_b32 s95, v0')
    a('s_waitcnt lgkmcnt(0)')
    a('s_cmp_lg_u32 s95, 0')
    a(f's_cbranch_scc1 {l}')
    a(f'v_mov_b32 v{SV}, s96')
    a(f'v_mov_b32 v{SV+1}, s100')
    a(f'v_mov_b32 v{SV+2}, s98')
    a(f'v_mov_b32 v{SV+3}, s99')
    a('s_lshl_b32 s95, s2, 4')
    a(f's_add_u32 s95, s95, {hex(32*MB + kidx*65536)}')
    a(f'v_mov_b32 v{SV+4}, s95')
    a(f'global_store_dwordx4 v{SV+4}, v[{SV}:{SV+3}], s[4:5]')
    a.label(l)

def l2_prefetch(sptr, total_bytes, vtmp, vdst, stmp):
    per = total_bytes // 32
    assert per % 4096 == 0
    a(f's_lshr_b32 s{stmp}, s2, 3')
    a(f's_mul_i32 s{stmp}, s{stmp}, {per}')
    a(f'v_lshl_add_u32 v{vtmp}, v0, 4, s{stmp}')
    for i in range(per // 4096):
        a(f'global_load_dwordx4 v[{vdst}:{vdst+3}], v{vtmp}, s[{sptr}:{sptr+1}]')
        if i < per // 4096 - 1:
            a(f's_add_u32 s{sptr}, s{sptr}, 4096')
            a(f's_addc_u32 s{sptr+1}, s{sptr+1}, 0')

CODEPF = 'nocpf' not in sys.argv
def code_prefetch(first_label, last_label, vt, vdst, sp):
    if not CODEPF: return
    l = a.newlabel('CPF')
    a(f's_getpc_b64 s[{sp}:{sp+1}]')
    a.label(l)
    a(f's_add_u32 s{sp}, s{sp}, {first_label}-{l}')
    a(f's_addc_u32 s{sp+1}, s{sp+1}, 0')
    a(f's_bfe_u32 s{sp+2}, s2, 0x50003')
    a(f's_lshl_b32 s{sp+2}, s{sp+2}, 10')
    a(f'v_and_b32 v{vt}, 63, v0')
    a(f'v_lshl_add_u32 v{vt}, v{vt}, 4, s{sp+2}')
    a(f'v_min_u32 v{vt}, {last_label}-{first_label}-16, v{vt}')
    a(f'global_load_dwordx4 v[{vdst}:{vdst+3}], v{vt}, s[{sp}:{sp+1}]')

def ln_scalars(S, Q, T):
    a(f'v_cvt_pk_bf16_f32 v{T}, v{S}, v{Q}')
    unpack(S, Q, T)
    a(f'v_add_f32 v{Q}, {hx(1e-5)}, v{Q}')
    a(f'v_cvt_pk_bf16_f32 v{T}, v{Q}, v{Q}')
    a(f'v_lshlrev_b32 v{Q}, 16, v{T}')
    a(f'v_sqrt_f32 v{Q}, v{Q}')
    a('s_nop 0')
    a(f'v_cvt_pk_bf16_f32 v{T}, v{Q}, v{Q}')
    a(f'v_lshlrev_b32 v{Q}, 16, v{T}')
    a(f'v_rcp_f32 v{Q}, v{Q}')
    a('s_nop 0')

def gen_k1():
    global SV
    SV = 96
    name = 'k1_kernel'
    SW = [0, 64, 82]
    a.begin_kernel(name)
    a(f"""
    s_cmp_ge_u32 s2, 274
    s_cbranch_scc1 K1_exit
    s_load_dwordx2 s[4:5], s[0:1], {KA['ws']}
    """)
    stamp_init(); stamp(SW, 0); trace_begin()

    a(f"""
    s_cmp_lt_u32 s2, 256
    s_cbranch_scc1 K1_kgen
    """)
    a(f"""
    s_waitcnt lgkmcnt(0)
    s_add_u32 s20, s4, {hex(WS['CNT'])}
    s_addc_u32 s21, s5, 0
    v_lshlrev_b32 v1, 4, v0
    v_mov_b32 v4, 0
    v_mov_b32 v5, 0
    v_mov_b32 v6, 0
    v_mov_b32 v7, 0
    global_store_dwordx4 v1, v[4:7], s[20:21]
    s_sub_u32 s3, s2, 256            ; 0..17 : 0..3 -> w1 ; 4..17 -> w3
    s_load_dwordx2 s[6:7], s[0:1], {KA['w1']}
    s_load_dwordx2 s[8:9], s[0:1], {KA['w3']}
    s_movk_i32 s10, 1024
    s_lshl_b32 s11, s3, 8
    s_cmp_lt_u32 s3, 4
    s_waitcnt lgkmcnt(0)
    s_cbranch_scc1 K1_cs_w1
    s_mov_b32 s6, s8
    s_mov_b32 s7, s9
    s_movk_i32 s10, 3584
    s_sub_u32 s11, s11, 1024
    """)
    a.label('K1_cs_w1')
    a("""
    v_lshrrev_b32 v1, 4, v0          ; rg 0..31
    v_and_b32 v2, 15, v0
    v_mul_lo_u32 v3, v1, s10
    v_lshl_add_u32 v3, v2, 4, v3
    v_add_u32 v3, s11, v3
    s_lshl_b32 s12, s10, 5           ; 32 rows
    """)
    for i in range(16):
        a(f'global_load_dwordx4 v[{8+4*i}:{11+4*i}], v3, s[6:7]')
        if i < 15:
            a('s_add_u32 s6, s6, s12')
            a('s_addc_u32 s7, s7, 0')
    AC = 76
    for j in range(8):
        a(f'v_mov_b32 v{AC+j}, 0')
    for i in range(16):
        a(f's_waitcnt vmcnt({15-i})')
        for j in range(4):
            unpack(84+2*(j&1), 85+2*(j&1), 8+4*i+j)
            a(f'v_pk_add_f32 v[{AC+2*j}:{AC+2*j+1}], v[{AC+2*j}:{AC+2*j+1}], v[{84+2*(j&1)}:{85+2*(j&1)}]')
    a(f"""
    v_lshlrev_b32 v4, 5, v0          ; rg*512 + c*32
    ds_write_b128 v4, v[{AC}:{AC+3}]
    ds_write_b128 v4, v[{AC+4}:{AC+7}] offset:16
    v_lshlrev_b32 v5, 2, v0
    s_waitcnt lgkmcnt(0)
    s_barrier
    v_cmp_gt_u32 vcc, 128, v0
    s_and_saveexec_b64 s[14:15], vcc
    s_cbranch_execz K1_end
    """)
    for i in range(32):
        a(f'ds_read_b32 v{8+i}, v5 offset:{512*i}')
    ws_ptr(8, 4, 'CS')
    a('s_lshl_b32 s3, s3, 9')
    a('v_add_u32 v5, s3, v5')
    a('s_waitcnt lgkmcnt(0)')
    for st in (16, 8, 4, 2, 1):
        for i in range(st):
            a(f'v_add_f32 v{8+i}, v{8+i}, v{8+i+st}')
    a('global_store_dword v5, v8, s[8:9]')
    a('s_branch K1_end')

    a.label('K1_kgen')
    a(f"""
    s_load_dwordx4 s[8:11], s[0:1], {KA['Are']}
    s_load_dwordx4 s[12:15], s[0:1], {KA['Bre']}
    s_load_dwordx4 s[16:19], s[0:1], {KA['Cre']}
    s_load_dwordx2 s[20:21], s[0:1], {KA['ldt']}
    s_load_dwordx2 s[6:7], s[0:1], {KA['x']}
    s_lshl_b32 s3, s2, 1             ; d0
    v_lshrrev_b32 v1, 8, v0
    v_add_u32 v1, s3, v1             ; d
    v_lshrrev_b32 v2, 6, v0          ; wave
    v_and_b32 v3, 31, v0
    v_lshl_add_u32 v3, v2, 5, v3     ; (ch*128 + n)
    s_lshl_b32 s26, s3, 8
    v_lshlrev_b32 v14, 4, v3
    v_lshl_add_u32 v3, v3, 1, s26    ; d*256 + n*2
    v_lshlrev_b32 v4, 1, v1
    v_and_b32 v5, 15, v0             ; idx
    v_bfe_u32 v6, v0, 4, 2           ; nn
    s_lshl_b32 s26, s2, 13
    v_lshl_add_u32 v92, v0, 4, s26   ; (8wg + wave)*1024 + lane*16
    s_waitcnt lgkmcnt(0)
    global_load_ushort v7, v4, s[20:21]
    global_load_ushort v8, v3, s[8:9]
    global_load_ushort v9, v3, s[10:11]
    global_load_ushort v10, v3, s[12:13]
    global_load_ushort v11, v3, s[14:15]
    global_load_ushort v12, v3, s[16:17]
    global_load_ushort v13, v3, s[18:19]
    global_load_dwordx4 v[76:79], v92, s[6:7]
    """)
    ws_ptr(22, 4, 'KH'); ws_ptr(24, 4, 'KL')
    if PREFETCH:
        a(f"""
        s_load_dwordx4 s[28:31], s[0:1], {KA['w1']}
        s_load_dwordx4 s[32:35], s[0:1], {KA['w3']}
        s_mov_b32 s36, s2
        s_mul_i32 s37, s36, 7168
        v_min_u32 v44, 447, v0
        v_lshl_add_u32 v44, v44, 4, s37
        s_lshl_b32 s37, s36, 11
        v_and_b32 v45, 127, v0
        v_lshl_add_u32 v45, v45, 4, s37
        s_waitcnt lgkmcnt(0)
        global_load_dwordx4 v[72:75], v44, s[34:35]
        global_load_dwordx4 v[72:75], v44, s[32:33]
        global_load_dwordx4 v[72:75], v45, s[30:31]
        global_load_dwordx4 v[72:75], v45, s[28:29]
        """)
    code_prefetch('k2_kernel', 'k456_kernel' if MERGE456 else 'k4_kernel', 44, 72, 36)
    a("""
    v_lshrrev_b32 v40, 3, v5
    v_lshlrev_b32 v40, 7, v40
    v_and_or_b32 v32, v5, 7, v40
    v_bfe_u32 v40, v5, 2, 1
    v_lshlrev_b32 v40, 7, v40
    v_and_b32 v41, 3, v5
    v_lshl_add_u32 v40, v41, 1, v40
    v_add_u32 v40, 256, v40
    v_bfe_u32 v41, v5, 1, 2
    v_lshlrev_b32 v41, 7, v41
    v_and_b32 v33, 1, v5
    v_lshl_add_u32 v41, v33, 2, v41
    v_add_u32 v41, 512, v41
    v_cmp_gt_u32 vcc, 8, v5
    v_lshlrev_b32 v34, 7, v5
    v_add_u32 v34, 1024, v34
    v_cndmask_b32 v33, v41, v40, vcc
    v_lshlrev_b32 v35, 3, v5
    v_cvt_f32_u32 v32, v32
    v_cvt_f32_u32 v33, v33
    v_cvt_f32_u32 v34, v34
    v_cvt_f32_u32 v35, v35
    v_mul_u32_u24 v42, 3072, v2
    v_add_u32 v42, 4096, v42
    v_lshrrev_b32 v40, 1, v6
    v_lshlrev_b32 v40, 7, v40
    v_and_b32 v41, 1, v6
    v_lshl_add_u32 v40, v41, 2, v40
    v_lshl_add_u32 v40, v5, 3, v40
    v_lshl_add_u32 v36, v40, 2, v42
    v_lshlrev_b32 v40, 6, v6
    v_add_u32 v40, 256, v40
    v_lshl_add_u32 v41, v5, 2, v40
    v_lshl_add_u32 v40, v5, 1, v40
    v_cmp_gt_u32 vcc, 2, v6
    v_mov_b32 v43, 32
    s_nop 0
    v_cndmask_b32 v40, v40, v41, vcc
    v_cndmask_b32 v43, v43, 2, vcc
    v_lshl_add_u32 v37, v40, 2, v42
    v_lshl_add_u32 v38, v43, 2, v37
    v_lshlrev_b32 v40, 6, v6
    v_add_u32 v40, v40, v5
    v_add_u32 v40, 512, v40
    v_lshl_add_u32 v39, v40, 2, v42
    v_lshlrev_b32 v15, 9, v2
    v_lshl_add_u32 v15, v6, 4, v15
    """)
    stamp(SW, 1)
    a(f's_waitcnt vmcnt({5 + CODEPF})')
    a(f"""
    v_lshlrev_b32 v7, 16, v7
    v_mul_f32 v40, {hx(LOG2E_HI)}, v7
    s_mov_b32 s26, {hx(LOG2E_HI)}
    v_fma_f32 v41, v7, s26, -v40
    v_mov_b32 v43, {hx(LOG2E_LO)}
    v_fmac_f32 v41, v7, v43
    v_exp_f32 v40, v40
    v_mul_f32 v41, {hx(LN2)}, v41
    v_lshlrev_b32 v8, 16, v8
    v_fmac_f32 v40, v40, v41
    v_cvt_pk_bf16_f32 v40, v40, v40
    v_lshlrev_b32 v7, 16, v40         ; dt
    v_lshlrev_b32 v9, 16, v9
    v_lshlrev_b32 v10, 16, v10
    v_lshlrev_b32 v11, 16, v11
    v_lshlrev_b32 v12, 16, v12
    v_lshlrev_b32 v13, 16, v13
    v_mul_f32 v16, v7, v8
    v_mul_f32 v17, v7, v9
    v_mul_f32 v16, {hx(LOG2E)}, v16
    v_mul_f32 v17, {hx(INV2PI)}, v17
    v_mul_f32 v10, v7, v10
    v_mul_f32 v11, v7, v11
    v_mul_f32 v18, v12, v10
    v_mul_f32 v19, v12, v11
    v_fma_f32 v18, -v13, v11, v18
    v_fmac_f32 v19, v13, v10
    ds_write_b128 v14, v[16:19]
    """)
    def ln_block():
        LB = 32768
        F = 80
        ws_ptr(28, 4, 'UT'); ws_ptr(30, 4, 'XT')
        a(f"""
        v_and_b32 v95, 63, v0
        v_mul_u32_u24 v28, 1056, v2
        v_lshl_add_u32 v28, v95, 4, v28
        ds_write_b128 v28, v[76:79] offset:{LB+8448}
        """)
        for i in range(4):
            unpack(F+2*i, F+2*i+1, 76+i)
        def wave_allreduce(v, t):
            row16_allreduce(v)
            a(f'v_mov_b32 v{t}, v{v}')
            a('s_nop 1')
            a(f'v_permlane16_swap_b32 v{v}, v{t}')
            a('s_nop 1')
            a(f'v_add_f32 v{v}, v{v}, v{t}')
            a(f'v_mov_b32 v{t}, v{v}')
            a('s_nop 1')
            a(f'v_permlane32_swap_b32 v{v}, v{t}')
            a('s_nop 1')
            a(f'v_add_f32 v{v}, v{v}, v{t}')
        a(f"""
        v_pk_add_f32 v[88:89], v[{F}:{F+1}], v[{F+2}:{F+3}]
        v_pk_add_f32 v[90:91], v[{F+4}:{F+5}], v[{F+6}:{F+7}]
        v_pk_add_f32 v[88:89], v[88:89], v[90:91]
        v_add_f32 v88, v88, v89
        """)
        wave_allreduce(88, 89)
        a(f'v_mul_f32 v88, {hx(1/512)}, v88')
        a('v_mov_b32 v90, 0')
        a('v_mov_b32 v91, 0')
        for i in range(4):
            a(f'v_pk_add_f32 v[92:93], v[{F+2*i}:{F+2*i+1}], v[88:89] op_sel_hi:[1,0] neg_lo:[0,1] neg_hi:[0,1]')
            a('v_pk_fma_f32 v[90:91], v[92:93], v[92:93], v[90:91]')
        a('v_add_f32 v90, v90, v91')
        wave_allreduce(90, 91)
        a(f'v_mul_f32 v90, {hx(1/512)}, v90')
        ln_scalars(88, 90, 92)
        for i in range(4):
            f0 = F+2*i
            a(f'v_pk_add_f32 v[{f0}:{f0+1}], v[{f0}:{f0+1}], v[88:89] op_sel_hi:[1,0] neg_lo:[0,1] neg_hi:[0,1]')
            a(f'v_cvt_pk_bf16_f32 v92, v{f0}, v{f0+1}')
            unpack(f0, f0+1, 92)
            a(f'v_pk_mul_f32 v[{f0}:{f0+1}], v[{f0}:{f0+1}], v[90:91] op_sel_hi:[1,0]')
            a(f'v_cvt_pk_bf16_f32 v{76+i}, v{f0}, v{f0+1}')
            if F16:
                unpack(f0, f0+1, 76+i)
                a(f'v_cvt_pk_f16_f32 v{76+i}, v{f0}, v{f0+1}')
        a(f"""
        ds_write_b128 v28, v[76:79] offset:{LB}
        v_bfe_u32 v28, v0, 2, 2
        v_mul_u32_u24 v28, 1056, v28
        v_lshrrev_b32 v29, 4, v0
        v_lshlrev_b32 v29, 5, v29
        v_and_b32 v95, 3, v0
        v_lshlrev_b32 v95, 3, v95
        v_add3_u32 v28, v28, v29, v95
        v_lshrrev_b32 v94, 1, v0
        v_lshlrev_b32 v94, 13, v94
        v_and_b32 v95, 1, v0
        v_lshl_add_u32 v94, v95, 4, v94
        s_lshl_b32 s26, s2, 5
        v_add_u32 v94, s26, v94
        s_waitcnt lgkmcnt(0)
        s_barrier
        ds_read_b64_tr_b16 v[76:77], v28 offset:{LB}
        ds_read_b64_tr_b16 v[78:79], v28 offset:{LB+4224}
        ds_read_b64_tr_b16 v[80:81], v28 offset:{LB+8448}
        ds_read_b64_tr_b16 v[82:83], v28 offset:{LB+8448+4224}
        s_waitcnt lgkmcnt(2)
        global_store_dwordx4 v94, v[76:79], s[28:29]{USC}
        s_waitcnt lgkmcnt(0)
        global_store_dwordx4 v94, v[80:83], s[30:31]{USC}
        """)
    ACC = 60
    for i in range(12):
        a(f'v_mov_b32 v{ACC+i}, 0')
    a('s_waitcnt lgkmcnt(0)')
    a('ds_read_b128 v[16:19], v15')
    a('ds_read_b128 v[24:27], v15 offset:64')
    a('s_mov_b32 s27, 0')
    def split(H, L, R, t):
        a(f'v_cvt_pk_bf16_f32 v{H}, v{R}, v{R+1}')
        a(f'v_lshlrev_b32 v{t}, 16, v{H}')
        a(f'v_and_b32 v{t+1}, 0xffff0000, v{H}')
        a(f'v_pk_add_f32 v[{t}:{t+1}], v[{R}:{R+1}], v[{t}:{t+1}] neg_lo:[0,1] neg_hi:[0,1]')
        a(f'v_cvt_pk_bf16_f32 v{L}, v{t}, v{t+1}')
    for it in range(2):
        for u in range(4):
            P = 16 + 8*(u & 1)
            a(f's_waitcnt lgkmcnt({1})')
            a(f"""
            v_pk_mul_f32 v[44:45], v[{P}:{P+1}], v[34:35] op_sel:[0,1] op_sel_hi:[1,1]
            v_pk_mul_f32 v[46:47], v[{P}:{P+1}], v[32:33] op_sel:[0,0] op_sel_hi:[1,0]
            v_pk_mul_f32 v[48:49], v[{P}:{P+1}], v[32:33] op_sel:[0,1] op_sel_hi:[1,1]
            v_pk_mul_f32 v[50:51], v[{P}:{P+1}], v[34:35] op_sel:[0,0] op_sel_hi:[1,0]
            v_fract_f32 v45, v45
            v_fract_f32 v47, v47
            v_fract_f32 v49, v49
            v_fract_f32 v51, v51
            v_exp_f32 v44, v44
            v_cos_f32 v52, v45
            v_sin_f32 v53, v45
            v_exp_f32 v46, v46
            v_cos_f32 v54, v47
            v_sin_f32 v55, v47
            v_pk_mul_f32 v[52:53], v[52:53], v[44:45] op_sel_hi:[1,0]
            v_exp_f32 v48, v48
            v_cos_f32 v56, v49
            v_sin_f32 v57, v49
            v_pk_mul_f32 v[54:55], v[54:55], v[46:47] op_sel_hi:[1,0]
            v_pk_mul_f32 v[20:21], v[{P+2}:{P+3}], v[52:53] op_sel:[0,0] op_sel_hi:[0,1] neg_hi:[1,0]
            v_exp_f32 v50, v50
            v_cos_f32 v58, v51
            v_sin_f32 v59, v51
            v_pk_fma_f32 v[20:21], v[{P+2}:{P+3}], v[52:53], v[20:21] op_sel:[1,1,0] op_sel_hi:[1,0,1] neg_lo:[1,0,0] neg_hi:[1,0,0]
            v_pk_mul_f32 v[56:57], v[56:57], v[48:49] op_sel_hi:[1,0]
            v_pk_mul_f32 v[58:59], v[58:59], v[50:51] op_sel_hi:[1,0]
            ds_read_b128 v[{P}:{P+3}], v15 offset:{128+64*u}
            """)
            split(96+u, 100+u, 54, 44)
            split(120+u, 124+u, 20, 46)
            split(104+u, 108+u, 56, 48)
            split(112+u, 116+u, 58, 50)
        a('s_nop 1')
        a('v_add_u32 v15, 256, v15')
        for t in range(3):
            a(f'v_mfma_f32_16x16x32_bf16 v[{60+4*t}:{63+4*t}], v[{96+8*t}:{99+8*t}], v[120:123], v[{60+4*t}:{63+4*t}]')
        for t in range(3):
            a(f'v_mfma_f32_16x16x32_bf16 v[{60+4*t}:{63+4*t}], v[{96+8*t}:{99+8*t}], v[124:127], v[{60+4*t}:{63+4*t}]')
        for t in range(3):
            a(f'v_mfma_f32_16x16x32_bf16 v[{60+4*t}:{63+4*t}], v[{100+8*t}:{103+8*t}], v[120:123], v[{60+4*t}:{63+4*t}]')
        if it == 0:
            a(f's_waitcnt vmcnt({4 + CODEPF})')
            a('s_waitcnt lgkmcnt(0)')
            ln_block()
    a('s_waitcnt lgkmcnt(0)')
    a(f"""
    v_and_b32 v8, 63, v0
    v_bfe_u32 v9, v0, 6, 2
    v_lshlrev_b32 v8, 5, v8
    v_lshl_add_u32 v8, v9, 3, v8      ; s0 = 32a+8q
    v_cmp_gt_u32 vcc, 256, v8
    v_cvt_f32_u32 v9, v8
    v_lshrrev_b32 v11, 8, v0
    v_mul_u32_u24 v11, 12288, v11
    v_add_u32 v11, 4096, v11
    v_lshl_add_u32 v10, v8, 2, v11
    v_subrev_u32 v11, {4*(0x4380-256)}, v11
    """)
    for p in range(4):
        a(f'v_add_f32 v12, {hx(7.0-2*p)}, v9')
        a(f'v_add_f32 v13, {hx(6.0-2*p)}, v9')
        a('v_cvt_pk_bf16_f32 v12, v12, v13')
        a('v_lshrrev_b32 v13, 16, v12')
        a('v_and_b32 v12, 0xffff, v12')
        a('v_lshl_add_u32 v12, v12, 2, v11')
        a('v_lshl_add_u32 v13, v13, 2, v11')
        a(f'v_add_u32 v14, {4*(7-2*p)}, v10')
        a(f'v_add_u32 v16, {4*(6-2*p)}, v10')
        a(f'v_cndmask_b32 v{24+2*p}, v12, v14, vcc')
        a(f'v_cndmask_b32 v{25+2*p}, v13, v16, vcc')
    if F16:
        a("""
        v_max3_f32 v14, |v60|, |v61|, |v62|
        v_max3_f32 v16, |v63|, |v64|, |v65|
        v_max3_f32 v17, |v66|, |v67|, |v68|
        v_max3_f32 v18, |v69|, |v70|, |v71|
        v_max3_f32 v14, v14, v16, v17
        v_max_f32 v14, v14, v18
        """)
        for sh in (8, 4, 2, 1):
            a('s_nop 1')
            a(f'v_max_f32_dpp v14, v14, v14 row_ror:{sh} row_mask:0xf bank_mask:0xf')
        a("""
        v_mov_b32 v16, v14
        s_nop 1
        v_permlane16_swap_b32 v14, v16
        s_nop 1
        v_max_f32 v14, v14, v16
        v_mov_b32 v16, v14
        s_nop 1
        v_permlane32_swap_b32 v14, v16
        s_nop 1
        v_max_f32 v14, v14, v16
        v_lshlrev_b32 v16, 2, v2
        ds_write_b32 v16, v14 offset:28672
        """)
    for rr in range(4):
        a(f'ds_write_b32 v36, v{60+rr} offset:{4*rr}')
    for rr in range(4):
        a(f'ds_write_b32 v{37+(rr>>1)}, v{64+rr} offset:{4*(rr&1)}')
    for rr in range(4):
        a(f'ds_write_b32 v39, v{68+rr} offset:{64*rr}')
    a("""
    s_lshl_b32 s26, s3, 12
    v_lshl_add_u32 v12, v0, 4, s26    ; d0*4096 + tid*16
    s_waitcnt lgkmcnt(0)
    s_barrier
    """)
    if F16:
        a('v_lshrrev_b32 v15, 8, v0')
        a('v_lshlrev_b32 v15, 4, v15')
        a('ds_read_b128 v[16:19], v15 offset:28672')
    for kk in range(8):
        for w in range(4):
            a(f'ds_read_b32 v{32+4*kk+w}, v{24+kk} offset:{3072*w}')
    a('s_waitcnt lgkmcnt(0)')
    for kk in range(8):
        b = 32+4*kk
        a(f'v_add_f32 v{b}, v{b}, v{b+1}')
        a(f'v_add_f32 v{b+2}, v{b+2}, v{b+3}')
    for kk in range(8):
        b = 32+4*kk
        a(f'v_add_f32 v{b}, v{b}, v{b+2}')
    if F16:
        a("""
        v_add_f32 v14, v16, v17
        v_add_f32 v15, v18, v19
        v_add_f32 v14, v14, v15
        v_lshrrev_b32 v14, 23, v14
        v_max_u32 v14, 15, v14
        v_sub_u32 v15, 268, v14
        v_lshlrev_b32 v15, 23, v15         ; scale
        v_subrev_u32 v14, 14, v14
        v_lshlrev_b32 v14, 23, v14
        """)
        for kk in range(8):
            a(f'v_mul_f32 v{32+4*kk}, v{32+4*kk}, v15')
        for p in range(4):
            a(f'v_cvt_pk_f16_f32 v{64+p}, v{32+8*p}, v{36+8*p}')
        a(f'global_store_dwordx4 v12, v[64:67], s[22:23]{SC2}')
        ws_ptr(24, 4, 'SCL')
        a("""
        v_and_b32 v16, 255, v0
        v_cmp_eq_u32 vcc, 0, v16
        v_lshlrev_b32 v16, 2, v1
        s_and_saveexec_b64 s[26:27], vcc
        s_cbranch_execz K1_nosc
        global_store_dword v16, v14, s[24:25]
        """)
        a.label('K1_nosc')
        a('s_mov_b64 exec, s[26:27]')
    else:
        for p in range(4):
            k0, k1 = 32+8*p, 36+8*p
            a(f'v_cvt_pk_bf16_f32 v{64+p}, v{k0}, v{k1}')
            unpack(14, 15, 64+p)
            a(f'v_sub_f32 v{k0}, v{k0}, v14')
            a(f'v_sub_f32 v{k1}, v{k1}, v15')
            a(f'v_cvt_pk_bf16_f32 v{68+p}, v{k0}, v{k1}')
        a('global_store_dwordx4 v12, v[64:67], s[22:23]')
        a('global_store_dwordx4 v12, v[68:71], s[24:25]')
    a.label('K1_end')
    trace_end(0)
    a.label('K1_exit')
    a.end_kernel(name, (274,1,1), (512,1,1), 51200, 128)

def gen_k2():
    global SV
    SV = 128
    name = 'k2_kernel'
    CHB = 45568; KOFF = 33280; RED = 2 * CHB
    a.begin_kernel(name)
    a(f"""
    s_cmp_ge_u32 s2, 256
    s_cbranch_scc1 K2_exit
    s_load_dwordx2 s[4:5], s[0:1], {KA['ws']}
    s_load_dwordx2 s[6:7], s[0:1], {KA['Dsk']}
    s_load_dwordx4 s[40:43], s[0:1], {KA['w1']}
    s_load_dwordx2 s[44:45], s[0:1], {KA['w3']}
    """)
    trace_begin()
    a(f"""
    v_lshrrev_b32 v1, 6, v0            ; wave
    v_and_b32 v2, 63, v0               ; lane
    v_readfirstlane_b32 s30, v1
    s_and_b32 s3, s30, 3
    s_lshl_b32 s16, s2, 1              ; d0
    s_lshr_b32 s17, s3, 1              ; ch
    s_and_b32 s18, s3, 1
    s_add_u32 s19, s16, s17
    s_mul_i32 s20, s17, {CHB}
    s_lshl_b32 s26, s2, 13
    v_lshrrev_b32 v57, 1, v0           ; tau
    v_and_b32 v56, 1, v0               ; ch
    v_lshl_add_u32 v4, v0, 4, s26
    v_mul_u32_u24 v58, {CHB}, v56
    v_cmp_eq_u32 s[58:59], 0, v57
    v_subrev_u32 v5, 32, v4
    v_lshl_add_u32 v120, v57, 4, v58
    v_cndmask_b32 v5, v5, v4, s[58:59]
    v_add_u32 v120, 64, v120
    s_waitcnt lgkmcnt(0)
    """)
    ws_ptr(8, 4, 'UT')
    a("""
    global_load_dwordx4 v[8:11], v5, s[8:9]
    global_load_dwordx4 v[12:15], v4, s[8:9]
    s_cmp_ge_u32 s30, 4
    s_cbranch_scc1 K2_helper
    """)
    ws_ptr(10, 4, 'XT'); ws_ptr(22, 4, 'HT'); ws_ptr(32, 4, 'SCL')
    a(f"""
    v_and_b32 v6, 31, v2
    v_lshrrev_b32 v7, 5, v2
    v_lshlrev_b32 v40, 6, v6
    v_lshl_add_u32 v40, v7, 3, v40
    s_lshl_b32 s27, s18, 11
    v_add_u32 v122, s27, v40
    s_lshl_b32 s26, s18, 5
    v_add_u32 v121, s26, v6
    v_lshlrev_b32 v121, 7, v121
    v_lshl_add_u32 v121, v7, 3, v121
    s_lshl_b32 s26, s2, 13
    s_lshl_b32 s27, s17, 4
    s_add_u32 s26, s26, s27
    v_add_u32 v121, s26, v121
    global_load_dwordx2 v[112:113], v121, s[10:11]
    global_load_dwordx2 v[114:115], v121, s[10:11] offset:32
    global_load_dwordx2 v[116:117], v121, s[10:11] offset:64
    global_load_dwordx2 v[118:119], v121, s[10:11] offset:96
    s_lshl_b32 s26, s19, 1
    v_mov_b32 v42, s26
    global_load_ushort v125, v42, s[6:7]
    v_lshlrev_b32 v42, 1, v42
    global_load_dword v110, v42, s[32:33]
    v_and_b32 v45, 7, v6
    v_mul_u32_u24 v45, 4160, v45
    v_lshrrev_b32 v46, 3, v6
    v_lshl_add_u32 v45, v46, 4, v45
    v_lshlrev_b32 v46, 4, v7
    v_sub_u32 v45, v45, v46
    v_add_u32 v45, 32, v45
    v_add_u32 v126, s20, v45           ; vA'
    v_mul_u32_u24 v46, 1536, v7
    v_lshl_add_u32 v46, v6, 4, v46
    v_add_u32 v46, {KOFF + 512 - 16*63}, v46
    v_add_u32 v127, s20, v46           ; vB
    s_branch K2_copies
    """)
    a.label('K2_helper')
    ws_ptr(12, 4, 'KH')
    a(f"""
    s_mov_b32 s14, {4*MB}
    s_mov_b32 s15, 0x00020000
    """)
    if F16:
        a(f"""
        s_lshl_b32 s24, s18, 11
        s_lshl_b32 s25, s19, 12
        s_add_u32 s24, s24, s25
        s_mul_i32 s25, s18, 3072
        s_add_u32 s25, s25, s20
        s_add_u32 s25, s25, {KOFF+512}
        v_lshlrev_b32 v3, 4, v2
        """)
    else:
        a(f"""
        s_lshl_b32 s24, s18, 21
        s_lshl_b32 s25, s19, 12
        s_add_u32 s24, s24, s25
        s_mul_i32 s25, s18, 6144
        s_add_u32 s25, s25, s20
        s_add_u32 s25, s25, {KOFF+512}
        v_lshlrev_b32 v3, 4, v2
        """)
    nq = 2 if F16 else 4
    for q in range(nq):
        a('s_mov_b32 m0, s25')
        a('s_nop 0')
        a('buffer_load_dwordx4 v3, s[12:15], s24 offen lds')
        if q < nq-1:
            a('s_add_u32 s24, s24, 1024')
            a('s_add_u32 s25, s25, 1536')
    a(f"""
    v_mov_b32 v48, 0
    v_mov_b32 v49, 0
    v_mov_b32 v50, 0
    v_mov_b32 v51, 0
    v_bfe_u32 v45, v0, 5, 3
    v_mul_u32_u24 v45, 1536, v45
    v_and_b32 v46, 31, v0
    v_lshl_add_u32 v45, v46, 4, v45
    ds_write_b128 v45, v[48:51] offset:{KOFF}
    v_add_u32 v45, {CHB}, v45
    ds_write_b128 v45, v[48:51] offset:{KOFF}
    v_bfe_u32 v45, v0, 2, 3
    v_mul_u32_u24 v45, 4160, v45
    v_and_b32 v46, 3, v0
    v_lshl_add_u32 v45, v46, 4, v45
    ds_write_b128 v45, v[48:51]
    ds_write_b128 v45, v[48:51] offset:{CHB}
    """)
    a.label('K2_copies')
    E = 8
    a('s_waitcnt vmcnt(2)' if F16 else 's_waitcnt vmcnt(4)')
    for i in range(4):
        a(f'v_cndmask_b32 v{E+i}, v{E+i}, 0, s[58:59]')
    for i in range(7):
        a(f'v_alignbit_b32 v{52+i}, v{E+i+1}, v{E+i}, 16')
    for i in range(6):
        a(f'v_alignbit_b32 v{60+i}, v{E+i+2}, v{E+i+1}, 16')
    for i in range(6):
        a(f'v_mov_b32 v{66+i}, v{E+i+1}')
    src = {7: E+4, 5: 68, 3: E+2, 1: 66, 0: 52, 2: 60, 4: 54, 6: 62}
    for c in range(8):
        r = src[c]
        a(f'ds_write_b128 v120, v[{r}:{r+3}] offset:{4160*c}')
    ACC = [72, 88]
    for i in range(32):
        a(f'v_mov_b32 v{72+i}, 0')
    a('s_waitcnt vmcnt(0) lgkmcnt(0)')
    a('s_barrier')
    a('s_cmp_lt_u32 s30, 4')
    a('s_cbranch_scc1 K2_main')
    code_prefetch('k456_kernel' if MERGE456 else 'k4_kernel', 'K_code_end' if (MERGE56 or MERGE456) else 'k6_kernel', 60, 64, 28)
    a('v_and_b32 v0, 255, v0')
    ws_ptr(46, 4, 'W3P')
    a(f"""
    v_min_u32 v60, 223, v0
    v_mul_u32_u24 v61, 4682, v60
    v_lshrrev_b32 v61, 16, v61         ; ntile
    v_mul_u32_u24 v62, 14, v61
    v_sub_u32 v62, v60, v62            ; ch
    s_mul_i32 s28, s2, 7168
    v_lshl_add_u32 v60, v60, 4, s28
    global_load_dwordx4 v[64:67], v60, s[44:45]
    global_load_dwordx4 v[68:71], v60, s[44:45] offset:3584
    s_lshl_b32 s28, s2, 1              ; k
    s_and_b32 s29, s28, 0x1f3
    s_bfe_u32 s31, s28, 0x10002
    s_lshl_b32 s31, s31, 3
    s_or_b32 s29, s29, s31
    s_bfe_u32 s31, s28, 0x10003
    s_lshl_b32 s31, s31, 2
    s_or_b32 s29, s29, s31
    s_mul_i32 s29, s29, 224
    v_mul_u32_u24 v61, 114688, v61
    v_lshl_add_u32 v61, v62, 4, v61
    v_add_u32 v61, s29, v61
    """)
    if not NOPF2:
        l2_prefetch(40, 512*1024, 63, 72, 28)
        l2_prefetch(42, 512*1024, 63, 72, 28)
        a('s_waitcnt vmcnt(8)')
    else:
        a('s_waitcnt vmcnt(0)')
    a(f'global_store_dwordx4 v61, v[64:67], s[46:47]{SC2}')
    a(f'global_store_dwordx4 v61, v[68:71], s[46:47] offset:224{SC2}')
    a('s_endpgm')
    a.label('K2_main')
    a('s_cmp_eq_u32 s18, 1')
    a('s_cbranch_scc1 K2_roleB')
    def emit_units(units):
        def loads(u, setb):
            out = []; regs = []
            r = 8 + 24*setb if True else 0
            n = 0
            for (d, sl, tiles) in u:
                ra = r + 4*n; n += 1
                out.append(f'ds_read_b128 v[{ra}:{ra+3}], v126 offset:{64*d + 32*(1-sl)}')
                bs = []
                for T in tiles:
                    for arr in range(1 if F16 else 2):
                        rb = r + 4*n; n += 1
                        out.append(f'ds_read_b128 v[{rb}:{rb+3}], v127 offset:{sl*3072 + T*512 + 16*(63-d) + arr*6144}')
                        bs.append((T, rb))
                regs.append((ra, bs))
            assert n <= 6
            return out, regs
        cur_l, cur_r = loads(units[0], 0)
        for l in cur_l: a(l)
        for i, u in enumerate(units):
            if i + 1 < len(units):
                nl, nr = loads(units[i+1], (i+1) & 1)
                for l in nl: a(l)
                a(f's_waitcnt lgkmcnt({len(nl)})')
            else:
                a('s_waitcnt lgkmcnt(0)')
            for (ra, bs) in cur_r:
                for (T, rb) in bs:
                    c = ACC[T]
                    a(f'v_mfma_f32_32x32x16_{"f16" if F16 else "bf16"} v[{c}:{c+15}], v[{ra}:{ra+3}], v[{rb}:{rb+3}], v[{c}:{c+15}]')
            if i + 1 < len(units):
                cur_r = nr
    if F16:
        emit_units([[(d, 0, (0, 1)), (d, 1, (0, 1))] for d in range(24)])
    else:
        emit_units([[(d, sl, (0, 1))] for d in range(24) for sl in range(2)])
    a('s_nop 15')
    a('s_nop 3')
    a(f'v_lshlrev_b32 v123, 4, v0')
    a(f'v_add_u32 v123, {RED}, v123')
    for r4 in range(4):
        a(f'ds_write_b128 v123, v[{88+4*r4}:{91+4*r4}] offset:{4096*r4}')
    a('s_waitcnt lgkmcnt(0)')
    a('s_barrier')
    for r4 in range(4):
        a(f'ds_read_b128 v[{8+4*r4}:{11+4*r4}], v123 offset:{4096*r4 + 1024}')
    a('s_branch K2_fin')
    a.label('K2_roleB')
    if F16:
        emit_units([[(d, 0, (0, 1)), (d, 1, (0, 1))] for d in range(24, 32)] +
                   [[(d, 0, (1,)), (d, 1, (1,)), (d+1, 0, (1,))] if False else [(d, 0, (1,)), (d, 1, (1,))] for d in range(32, 64)])
    else:
        emit_units([[(d, sl, (0, 1))] for d in range(24, 32) for sl in range(2)] +
                   [[(d, 0, (1,)), (d, 1, (1,))] for d in range(32, 64)])
    a('s_nop 15')
    a('s_nop 3')
    a(f'v_lshlrev_b32 v123, 4, v0')
    a(f'v_add_u32 v123, {RED}, v123')
    for r4 in range(4):
        a(f'ds_write_b128 v123, v[{72+4*r4}:{75+4*r4}] offset:{4096*r4}')
    a('s_waitcnt lgkmcnt(0)')
    a('s_barrier')
    a('v_subrev_u32 v123, 1024, v123')
    for r4 in range(4):
        a(f'ds_read_b128 v[{8+4*r4}:{11+4*r4}], v123 offset:{4096*r4}')
    for i in range(16):
        a(f'v_mov_b32 v{72+i}, v{88+i}')
    a.label('K2_fin')
    a(f'v_add_u32 v122, s20, v122')
    for rq in range(4):
        a(f'ds_read_b64 v[{24+2*rq}:{25+2*rq}], v122 offset:{7*4160 + 64 + 16*rq}')
    a('v_lshlrev_b32 v124, 16, v125')
    a('s_waitcnt lgkmcnt(0)')
    for i in range(8):
        a(f'v_pk_add_f32 v[{72+2*i}:{73+2*i}], v[{72+2*i}:{73+2*i}], v[{8+2*i}:{9+2*i}]')
    if F16:
        for i in range(8):
            a(f'v_pk_mul_f32 v[{72+2*i}:{73+2*i}], v[{72+2*i}:{73+2*i}], v[110:111] op_sel_hi:[1,0]')
    for g0 in (0, 4):
        G = range(g0, g0+4)
        T1 = lambda i: 32 + (i & 3)
        T2 = lambda i: 36 + 2*(i & 3)
        for i in G: a(f'v_cvt_pk_bf16_f32 v{T1(i)}, v{72+2*i}, v{73+2*i}')
        for i in G: unpack(72+2*i, 73+2*i, T1(i))
        for i in G:
            if F16:
                a(f'v_cvt_f32_f16 v{T2(i)}, v{24+i}')
                a(f'v_cvt_f32_f16_sdwa v{T2(i)+1}, v{24+i} dst_sel:DWORD dst_unused:UNUSED_PAD src0_sel:WORD_1')
            else:
                unpack(T2(i), T2(i)+1, 24+i)
        for i in G: a(f'v_pk_mul_f32 v[{T2(i)}:{T2(i)+1}], v[{T2(i)}:{T2(i)+1}], v[124:125] op_sel_hi:[1,0]')
        for i in G: a(f'v_cvt_pk_bf16_f32 v{T1(i)}, v{T2(i)}, v{T2(i)+1}')
        for i in G: unpack(T2(i), T2(i)+1, T1(i))
        for i in G: a(f'v_pk_add_f32 v[{72+2*i}:{73+2*i}], v[{72+2*i}:{73+2*i}], v[{T2(i)}:{T2(i)+1}]')
        for i in G: a(f'v_cvt_pk_bf16_f32 v{T1(i)}, v{72+2*i}, v{73+2*i}')
        for i in G: unpack(72+2*i, 73+2*i, T1(i))
        for i in G: unpack(T2(i), T2(i)+1, 112+i)
        for i in G: a(f'v_pk_add_f32 v[{72+2*i}:{73+2*i}], v[{72+2*i}:{73+2*i}], v[{T2(i)}:{T2(i)+1}]')
        for i in G: a(f'v_cvt_pk_bf16_f32 v{104+i}, v{72+2*i}, v{73+2*i}')
    a(f"""
    s_lshl_b32 s26, s3, 11
    s_add_u32 s26, s26, {RED + 16384}
    v_lshlrev_b32 v120, 6, v6
    v_lshl_add_u32 v120, v7, 3, v120
    v_add_u32 v120, s26, v120
    v_lshl_add_u32 v123, v2, 4, s26
    s_lshl_b32 s26, s19, 12
    s_lshl_b32 s27, s18, 11
    s_add_u32 s26, s26, s27
    v_lshl_add_u32 v121, v2, 4, s26
    """)
    for rq in range(4):
        a(f'ds_write_b64 v120, v[{104+2*rq}:{105+2*rq}] offset:{16*rq}')
    a('s_waitcnt lgkmcnt(0)')
    a('ds_read_b128 v[8:11], v123')
    a('ds_read_b128 v[12:15], v123 offset:1024')
    a('s_waitcnt lgkmcnt(0)')
    a(f'global_store_dwordx4 v121, v[8:11], s[22:23]{SC2}')
    a(f'global_store_dwordx4 v121, v[12:15], s[22:23] offset:1024{SC2}')
    trace_end(1)
    a.label('K2_exit')
    a.end_kernel(name, (256,1,1), (512,1,1), RED + 16384 + 8192, 128+8)

GC1 = 2 * 0.7978845608028654 * LOG2E
GC2 = GC1 * 0.044715

def dma_lane_off(dst, lane, rs_sgpr_or_imm, t1, t2):
    a(f'v_lshrrev_b32 v{t1}, 5, v{lane}')
    a(f'v_lshlrev_b32 v{t1}, 3, v{t1}')
    a(f'v_bfe_u32 v{t2}, v{lane}, 3, 2')
    a(f'v_add_u32 v{t1}, v{t1}, v{t2}')
    a(f'v_mul_u32_u24 v{dst}, {rs_sgpr_or_imm}, v{t1}')
    a(f'v_bfe_u32 v{t1}, v{lane}, 1, 2')
    a(f'v_bfe_u32 v{t2}, v{lane}, 4, 2')
    a(f'v_xor_b32 v{t1}, v{t1}, v{t2}')
    a(f'v_lshl_add_u32 v{dst}, v{t1}, 5, v{dst}')
    a(f'v_and_b32 v{t1}, 1, v{lane}')
    a(f'v_lshl_add_u32 v{dst}, v{t1}, 4, v{dst}')

def tr_lane_base(dst, fdst, lane, t1, t2):
    a(f'v_lshrrev_b32 v{t1}, 5, v{lane}')
    a(f'v_lshlrev_b32 v{t1}, 4, v{t1}')
    a(f'v_bfe_u32 v{t2}, v{lane}, 2, 3')
    a(f'v_add_u32 v{t1}, v{t1}, v{t2}')
    a(f'v_lshlrev_b32 v{dst}, 7, v{t1}')
    a(f'v_and_b32 v{t1}, 3, v{lane}')
    a(f'v_lshl_add_u32 v{dst}, v{t1}, 3, v{dst}')
    a(f'v_lshrrev_b32 v{fdst}, 1, v{t2}')

def gelu_pairs(zs, CK, T, G=4):
    for i0 in range(0, len(zs), G):
        grp = list(enumerate(zs[i0:i0+G]))
        for i, z in grp:
            a(f'v_pk_mul_f32 v[{T+2*i}:{T+2*i+1}], v[{z}:{z+1}], v[{z}:{z+1}]')
        for i, z in grp:
            t = T+2*i
            a(f'v_pk_fma_f32 v[{t}:{t+1}], v[{t}:{t+1}], v[{CK}:{CK+1}], v[{CK}:{CK+1}] op_sel:[0,1,0] op_sel_hi:[1,1,0]')
        for i, z in grp:
            t = T+2*i
            a(f'v_pk_mul_f32 v[{t}:{t+1}], v[{t}:{t+1}], v[{z}:{z+1}]')
        for i, z in grp:
            t = T+2*i
            a(f'v_exp_f32 v{t}, -v{t}')
            a(f'v_exp_f32 v{t+1}, -v{t+1}')
        if len(grp) < 2: a('s_nop 0')
        for i, z in grp:
            t = T+2*i
            a(f'v_pk_add_f32 v[{t}:{t+1}], v[{t}:{t+1}], v[{CK+2}:{CK+3}]')
        for i, z in grp:
            t = T+2*i
            a(f'v_rcp_f32 v{t}, v{t}')
            a(f'v_rcp_f32 v{t+1}, v{t+1}')
        if len(grp) < 2: a('s_nop 0')
        for i, z in grp:
            t = T+2*i
            a(f'v_pk_mul_f32 v[{z}:{z+1}], v[{z}:{z+1}], v[{t}:{t+1}]')

def affine_round(zs, css, AB, T, G=4):
    for i0 in range(0, len(zs), G):
        grp = list(enumerate(zip(zs[i0:i0+G], css[i0:i0+G])))
        for i, (z, cs) in grp:
            a(f'v_pk_mul_f32 v[{T+2*i}:{T+2*i+1}], v[{cs}:{cs+1}], v[{AB}:{AB+1}] op_sel:[0,1] op_sel_hi:[1,1]')
        for i, (z, cs) in grp:
            a(f'v_pk_fma_f32 v[{z}:{z+1}], v[{z}:{z+1}], v[{AB}:{AB+1}], v[{T+2*i}:{T+2*i+1}] op_sel_hi:[1,0,1] neg_lo:[0,0,1] neg_hi:[0,0,1]')
        for i, (z, cs) in grp:
            a(f'v_cvt_pk_bf16_f32 v{T+2*i}, v{z}, v{z+1}')
        for i, (z, cs) in grp:
            unpack(z, z+1, T+2*i)

def round_pair(z, t):
    a(f'v_cvt_pk_bf16_f32 v{t}, v{z}, v{z+1}')
    unpack(z, z+1, t)

def gemm64_main(X, WF, ACC, vW, nsteps=16, st0=0):
    def loads(st, sb):
        for cb in range(4):
            for h in range(2):
                r = WF + 16*sb + 4*cb + 2*h
                a(f'ds_read_b64_tr_b16 v[{r}:{r+1}], v{vW+cb} offset:{(st0+st)*4096 + h*1024}')
    loads(0, 0)
    for st in range(nsteps):
        if st + 1 < nsteps:
            loads(st+1, (st+1) & 1)
            a('s_waitcnt lgkmcnt(8)')
        else:
            a('s_waitcnt lgkmcnt(0)')
        for cb in range(4):
            w = WF + 16*(st & 1) + 4*cb
            c = ACC + 4*cb
            a(f'v_mfma_f32_16x16x32_bf16 v[{c}:{c+3}], v[{w}:{w+3}], v[{X+4*st}:{X+4*st+3}], v[{c}:{c+3}]')

def dma_tile(srd, vOff, sOff, sM0, step_bytes, n=16):
    for ii in range(n):
        a(f's_mov_b32 m0, s{sM0}')
        a(f's_add_u32 s{sM0}, s{sM0}, 4096')
        a(f'buffer_load_dwordx4 v{vOff}, s[{srd}:{srd+3}], s{sOff} offen lds')
        if ii < n-1:
            a(f's_add_u32 s{sOff}, s{sOff}, {step_bytes}')

def mk_srd(dst, lo, nbytes):
    a(f's_mov_b32 s{dst}, s{lo}')
    a(f's_mov_b32 s{dst+1}, s{lo+1}')
    a(f's_mov_b32 s{dst+2}, {nbytes}')
    a(f's_mov_b32 s{dst+3}, 0x00020000')

def gen_k3():
    global SV
    SV = 160
    name = 'k3_kernel'
    a.begin_kernel(name)
    a(f"""
    s_cmp_ge_u32 s2, 256
    s_cbranch_scc1 K3_exit
    s_load_dwordx2 s[4:5], s[0:1], {KA['ws']}
    s_load_dwordx2 s[6:7], s[0:1], {KA['w1']}
    """)
    trace_begin()
    a(f"""
    v_lshrrev_b32 v1, 6, v0
    v_and_b32 v2, 63, v0
    v_readfirstlane_b32 s36, v1        ; wave 0..7
    s_and_b32 s3, s36, 3
    s_bfe_u32 s16, s2, 0x30003
    s_and_b32 s17, s2, 7
    s_lshl_b32 s17, s17, 2
    s_lshr_b32 s19, s2, 6
    s_add_u32 s17, s17, s19
    s_cmp_lt_u32 s36, 4
    s_cbranch_scc1 K3_comp
    s_lshr_b32 s18, s3, 1
    s_lshl_b32 s18, s18, 4
    s_and_b32 s19, s3, 1
    s_lshl_b32 s19, s19, 2
    s_add_u32 s18, s18, s19
    """)
    dma_lane_off(3, 2, 4096, 5, 6)
    dma_lane_off(4, 2, 1024, 5, 6)
    a('s_waitcnt lgkmcnt(0)')
    ws_ptr(8, 4, 'HT')
    a(f"""
    s_mov_b32 s10, {2*MB}
    s_mov_b32 s11, 0x00020000
    """)
    mk_srd(12, 6, 512*1024)
    a(f"""
    s_lshl_b32 s20, s18, 12
    s_lshl_b32 s21, s17, 7
    s_add_u32 s20, s20, s21
    s_lshl_b32 s22, s3, 10             ; m0 (HT)
    s_lshl_b32 s38, s18, 10
    s_lshl_b32 s21, s16, 7
    s_add_u32 s38, s38, s21            ; W1 soffset
    s_add_u32 s39, s22, 0x10000        ; m0 (W)
    """)
    def issue(c):
        for i in range(4):
            a('s_mov_b32 m0, s22')
            a('s_add_u32 s22, s22, 4096')
            a('buffer_load_dwordx4 v3, s[8:11], s20 offen lds')
            a(f's_add_u32 s20, s20, {32*4096}')
        for i in range(4):
            a('s_mov_b32 m0, s39')
            a('s_add_u32 s39, s39, 4096')
            a('buffer_load_dwordx4 v4, s[12:15], s38 offen lds')
            a(f's_add_u32 s38, s38, {32*1024}')
    issue(0); issue(1)
    for c in range(4):
        a(f's_waitcnt vmcnt({8 if c < 3 else 0})')
        a('s_barrier')
        if c + 2 < 4: issue(c + 2)
    a('s_endpgm')
    a.label('K3_comp')
    tr_lane_base(5, 6, 2, 7, 8)
    a('v_xor_b32 v7, s3, v6')
    a('v_lshl_add_u32 v9, v7, 5, v5')
    for cb in range(4):
        a(f'v_xor_b32 v7, {cb}, v6')
        a(f'v_lshl_add_u32 v{10+cb}, v7, 5, v5')
        a(f'v_add_u32 v{10+cb}, 0x10000, v{10+cb}')
    a(f"""
    v_and_b32 v14, 15, v2
    v_lshrrev_b32 v15, 4, v2
    s_lshl_b32 s21, s17, 6
    s_lshl_b32 s23, s3, 4
    s_add_u32 s21, s21, s23
    v_add_u32 v14, s21, v14            ; token
    v_lshlrev_b32 v16, 3, v14
    v_lshlrev_b32 v14, 10, v14
    s_lshl_b32 s23, s21, 10
    v_lshl_add_u32 v17, v2, 4, s23
    s_lshl_b32 s21, s16, 8
    v_lshl_add_u32 v18, v15, 4, s21
    s_waitcnt lgkmcnt(0)
    """)
    ws_ptr(24, 4, 'HR'); ws_ptr(26, 4, 'G1'); ws_ptr(28, 4, 'CS'); ws_ptr(30, 4, 'ST1')
    CSR = 20
    for cb in range(4):
        a(f'global_load_dwordx4 v[{CSR+4*cb}:{CSR+4*cb+3}], v18, s[28:29] offset:{64*cb}')
    X = 64
    WF = 128
    ACC = 36
    GR = 52; SU = 56; ONE = 60
    for i in range(24):
        a(f'v_mov_b32 v{36+i}, 0')
    for i in range(4):
        a(f'v_mov_b32 v{ONE+i}, 0x3f803f80')
    def ld_x(st):
        for h in range(2):
            a(f'ds_read_b64_tr_b16 v[{X+4*st+2*h}:{X+4*st+2*h+1}], v9 offset:{st*4096 + h*1024}')
    def ld_w(st, cb):
        for h in range(2):
            r = WF + 16*(st & 1) + 4*cb + 2*h
            a(f'ds_read_b64_tr_b16 v[{r}:{r+1}], v{10+cb} offset:{st*4096 + h*1024}')
    a('s_barrier')
    for st in range(2):
        ld_x(st)
        for cb in range(4): ld_w(st, cb)
    for st in range(16):
        a(f's_waitcnt lgkmcnt({10 if st < 15 else 0})')
        nx = st + 2
        if nx < 16 and nx % 4 == 0:
            a('s_barrier')
        x = X + 4*st
        for cb in range(4):
            w = WF + 16*(st & 1) + 4*cb
            c = ACC + 4*cb
            a(f'v_mfma_f32_16x16x32_bf16 v[{c}:{c+3}], v[{w}:{w+3}], v[{x}:{x+3}], v[{c}:{c+3}]')
            if nx < 16:
                if cb == 0: ld_x(nx)
                else: ld_w(nx, cb-1)
        a(f'v_mfma_f32_16x16x32_bf16 v[{GR}:{GR+3}], v[{x}:{x+3}], v[{x}:{x+3}], v[{GR}:{GR+3}]')
        if nx < 16: ld_w(nx, 3)
        a(f'v_mfma_f32_16x16x32_bf16 v[{SU}:{SU+3}], v[{ONE}:{ONE+3}], v[{x}:{x+3}], v[{SU}:{SU+3}]')
    for j in range(8):
        l = a.newlabel('K3_hr')
        a(f's_cmp_lg_u32 s16, {j}')
        a(f's_cbranch_scc1 {l}')
        a(f'v_add_u32 v17, {2048*j}, v17')
        for st in (2*j, 2*j+1):
            a(f'global_store_dwordx4 v17, v[{X+4*st}:{X+4*st+3}], s[24:25] offset:{1024*(st&1)}{SC3}')
        a.label(l)
    a('s_waitcnt vmcnt(2)')
    a(f"""
    v_and_b32 v7, 3, v2
    v_cmp_eq_u32 vcc, 1, v7
    v_cmp_eq_u32 s[32:33], 2, v7
    v_cmp_eq_u32 s[34:35], 3, v7
    v_and_b32 v8, 15, v2
    v_lshrrev_b32 v7, 2, v8
    v_cndmask_b32 v{GR}, v{GR}, v{GR+1}, vcc
    v_cndmask_b32 v{GR}, v{GR}, v{GR+2}, s[32:33]
    v_cndmask_b32 v{GR}, v{GR}, v{GR+3}, s[34:35]
    v_lshl_add_u32 v7, v7, 4, v8
    v_lshlrev_b32 v7, 2, v7
    ds_bpermute_b32 v{GR}, v7, v{GR}
    v_mul_f32 v{SU}, {hx(1/512)}, v{SU}          ; mean1
    s_waitcnt lgkmcnt(0)
    v_mul_f32 v{GR}, {hx(1/512)}, v{GR}
    v_fma_f32 v{GR}, -v{SU}, v{SU}, v{GR}        ; var1
    v_max_f32 v{GR}, 0, v{GR}
    v_mov_b32 v{SU+1}, v{SU}
    v_mov_b32 v{GR+1}, v{GR}
    """)
    ln_scalars(SU, GR, 7)
    a(f"""
    v_sub_f32 v{SU+1}, v{SU+1}, v{SU}
    v_mul_f32 v{SU+1}, v{SU+1}, v{GR}            ; mean2
    v_mul_f32 v{GR+1}, v{GR+1}, v{GR}
    v_mul_f32 v{GR+1}, v{GR+1}, v{GR}            ; var2
    """)
    ln_scalars(SU+1, GR+1, 7)
    a(f"""
    v_mul_f32 v{ONE}, v{GR}, v{GR+1}             ; alpha
    v_fma_f32 v{ONE+1}, v{GR}, v{SU}, v{SU+1}
    v_mul_f32 v{ONE+1}, v{ONE+1}, v{GR+1}        ; beta
    v_mov_b32 v{SU+2}, v{SU}
    v_mov_b32 v{SU+3}, v{GR}
    v_mov_b32 v128, {hx(GC1)}
    v_mov_b32 v129, {hx(GC2)}
    v_mov_b32 v130, 1.0
    v_mov_b32 v131, 1.0
    s_cmp_lg_u32 s16, 0
    s_cbranch_scc1 K3_nost
    v_cmp_gt_u32 vcc, 16, v2
    s_and_saveexec_b64 s[32:33], vcc
    global_store_dwordx2 v16, v[{SU+2}:{SU+3}], s[30:31]
    s_mov_b64 exec, s[32:33]
    """)
    a.label('K3_nost')
    affine_round([ACC+2*p for p in range(8)], [CSR+2*p for p in range(8)], ONE, 144)
    gelu_pairs([ACC+2*p for p in range(8)], 128, 144)
    O = 136
    for p in range(8):
        a(f'v_cvt_pk_bf16_f32 v{O+p}, v{ACC+2*p}, v{ACC+2*p+1}')
    a(f"""
    v_and_b32 v7, 1, v15
    v_lshrrev_b32 v8, 1, v15
    v_lshl_add_u32 v7, v7, 1, v8
    v_and_b32 v8, 15, v2
    v_lshl_add_u32 v7, v7, 4, v8
    s_lshl_b32 s21, s16, 11
    s_add_u32 s21, s21, s23
    v_lshl_add_u32 v7, v7, 4, s21
    """)
    for P in range(2):
        o = O + 4*P
        a(f'v_permlane16_swap_b32 v{o}, v{o+2}')
        a(f'v_permlane16_swap_b32 v{o+1}, v{o+3}')
    a('s_nop 1')
    for P in range(2):
        o = O + 4*P
        a(f'global_store_dwordx4 v7, v[{o}:{o+3}], s[26:27] offset:{1024*P}{SC3}')
    trace_end(2)
    a.label('K3_exit')
    a.end_kernel(name, (256,1,1), (512,1,1), 131072, 168)

class Ring:
    def __init__(self, TT, NT, nch, nslots, a_rs, w_rs, wfmt, vAsrc, vWsrc, vAr, vWr, FB, ACC, rot=False, shifts=None, vTmp=None):
        self.__dict__.update(locals())
        self.ABY = 4 * TT * 16 * 256
        self.WBY = 128 * (128 if wfmt == 128 else 224)
        self.SLOT = self.ABY + self.WBY
        self.na = TT * 4
        self.nw = 4 if wfmt == 128 else 7
    def setup_addrs(self, t1, t2, t3):
        r = self
        a(f'v_lshrrev_b32 v{t1}, 4, v2')
        a(f'v_and_b32 v{t2}, 15, v2')
        a(f'v_xor_b32 v{t2}, v{t2}, v{t1}')
        a(f'v_mul_u32_u24 v{t1}, {r.a_rs}, v{t1}')
        a(f'v_add_u32 v{t1}, v{t1}, v{r.vTmp}')
        for i in range(4):
            a(f'v_xor_b32 v{t3}, {4*i}, v{t2}')
            a(f'v_lshl_add_u32 v{r.vAsrc+i}, v{t3}, 4, v{t1}')
        a(f'v_and_b32 v{t1}, 15, v2')
        a(f'v_lshrrev_b32 v{t2}, 4, v2')
        a(f'v_xor_b32 v{t2}, v{t2}, v{t1}')
        a(f'v_lshlrev_b32 v{t1}, 8, v{t1}')
        a(f's_mul_i32 s21, s3, {r.TT*4096}')
        a(f'v_add_u32 v{t1}, s21, v{t1}')
        for i in range(4):
            a(f'v_xor_b32 v{t3}, {4*i}, v{t2}')
            a(f'v_lshl_add_u32 v{r.vAr+i}, v{t3}, 4, v{t1}')
        if r.wfmt == 128:
            dma_lane_off(r.vWsrc, 2, r.w_rs, t1, t2)
            tr_lane_base(t1, t2, 2, t3, r.vWr)
            for cb in range(4):
                a(f'v_xor_b32 v{t3}, {cb}, v{t2}')
                a(f'v_lshl_add_u32 v{r.vWr+cb}, v{t3}, 5, v{t1}')
                a(f'v_add_u32 v{r.vWr+cb}, {r.ABY}, v{r.vWr+cb}')
        else:
            for j in range(7):
                a(f'v_add_u32 v{t1}, {64*j}, v2')
                a(f'v_mul_u32_u24 v{t2}, 4682, v{t1}')
                a(f'v_lshrrev_b32 v{t2}, 16, v{t2}')
                a(f'v_mul_u32_u24 v{t3}, 14, v{t2}')
                a(f'v_sub_u32 v{t1}, v{t1}, v{t3}')
                a(f'v_and_b32 v{t3}, 0x13, v{t2}')
                a(f'v_bfe_u32 v{r.vWsrc+j}, v{t2}, 2, 1')
                a(f'v_lshl_or_b32 v{t3}, v{r.vWsrc+j}, 3, v{t3}')
                a(f'v_bfe_u32 v{r.vWsrc+j}, v{t2}, 3, 1')
                a(f'v_lshl_or_b32 v{t3}, v{r.vWsrc+j}, 2, v{t3}')
                a(f'v_mul_u32_u24 v{t3}, {r.w_rs}, v{t3}')
                a(f'v_lshl_add_u32 v{r.vWsrc+j}, v{t1}, 4, v{t3}')
            a(f'v_lshrrev_b32 v{t1}, 5, v2')
            a(f'v_lshlrev_b32 v{t1}, 4, v{t1}')
            a(f'v_bfe_u32 v{t2}, v2, 2, 3')
            a(f'v_add_u32 v{t1}, v{t1}, v{t2}')
            a(f'v_mul_u32_u24 v{t1}, 224, v{t1}')
            a(f'v_and_b32 v{t2}, 3, v2')
            a(f'v_lshl_add_u32 v{r.vWr}, v{t2}, 3, v{t1}')
            a(f'v_add_u32 v{r.vWr}, {r.ABY}, v{r.vWr}')
    def issue_groups(self, c):
        r = self
        G = []
        slot = c % r.nslots
        base = slot * r.SLOT
        pre = []
        if r.rot:
            pre += [f's_mul_i32 s35, s34, {128*r.w_rs}', 's_add_u32 s35, s35, s20', 's_lshl_b32 s36, s34, 8']
        else:
            pre += [f's_add_u32 s35, s20, {c*128*r.w_rs}', f's_movk_i32 s36, {c*256}']
        if r.wfmt == 128:
            pre += [f's_lshl_b32 s22, s3, 10', f's_add_u32 s22, s22, {base + r.ABY}']
            for i in range(4):
                g = ['s_mov_b32 m0, s22', 's_add_u32 s22, s22, 4096', f'buffer_load_dwordx4 v{r.vWsrc}, s[12:15], s35 offen lds']
                if i < 3: g.append(f's_add_u32 s35, s35, {32*r.w_rs}')
                G.append(pre + g); pre = []
        else:
            pre += [f's_mul_i32 s22, s3, 7168', f's_add_u32 s22, s22, {base + r.ABY}']
            for j in range(7):
                G.append(pre + ['s_mov_b32 m0, s22', 's_add_u32 s22, s22, 1024', f'buffer_load_dwordx4 v{r.vWsrc+j}, s[12:15], s35 offen lds']); pre = []
        pre = [f's_mul_i32 s22, s3, {r.TT*4096}']
        if base: pre.append(f's_add_u32 s22, s22, {base}')
        for i in range(r.na):
            g = ['s_mov_b32 m0, s22', 's_add_u32 s22, s22, 1024']
            if r.shifts:
                off = (4*i + r.shifts[c]) * r.a_rs
                if off >= 0: g.append(f'v_add_u32 v{r.vTmp}, {off}, v{r.vAsrc+(i&3)}')
                else: g.append(f'v_subrev_u32 v{r.vTmp}, {-off}, v{r.vAsrc+(i&3)}')
                g.append(f'buffer_load_dwordx4 v{r.vTmp}, s[8:11], s36 offen lds')
            else:
                g.append(f'buffer_load_dwordx4 v{r.vAsrc+(i&3)}, s[8:11], s36 offen lds')
                if i < r.na-1: g.append(f's_add_u32 s36, s36, {4*r.a_rs}')
            if i == r.na-1 and r.rot:
                g += ['s_add_u32 s34, s34, 1', f's_cmp_eq_u32 s34, {r.nch}', 's_cselect_b32 s34, 0, s34']
            G.append(pre + g); pre = []
        return G
    def issue(self, c):
        for g in self.issue_groups(c):
            for l in g: a(l)
    def compute(self, c, fillers):
        r = self
        FS = 4*(r.TT + r.NT)
        def loads(st, sb):
            f = r.FB + FS*sb
            for tt in range(r.TT):
                a(f'ds_read_b128 v[{f+4*tt}:{f+4*tt+3}], v{r.vAr+st} offset:{r.cur + tt*4096}')
            for cb in range(r.NT):
                for h in range(2):
                    d = f + 4*r.TT + 4*cb + 2*h
                    if r.wfmt == 128:
                        a(f'ds_read_b64_tr_b16 v[{d}:{d+1}], v{r.vWr+cb} offset:{r.cur + st*4096 + h*1024}')
                    else:
                        a(f'ds_read_b64_tr_b16 v[{d}:{d+1}], v{r.vWr} offset:{r.cur + st*7168 + h*1792 + 32*cb}')
        nl = r.TT + 2*r.NT
        nm = 4 * r.NT * r.TT
        fillers = list(fillers)
        every = max(1, nm // (len(fillers) + 1)) if fillers else 0
        loads(0, 0)
        loads(1, 1)
        for _ in range(min(2, len(fillers))):
            for l in fillers.pop(0): a(l)
        m = 0
        for st in range(4):
            a(f's_waitcnt lgkmcnt({min(15, nl) if st < 3 else 0})')
            f = r.FB + FS*(st & 1)
            for cb in range(r.NT):
                w = f + 4*r.TT + 4*cb
                for tt in range(r.TT):
                    cc = r.ACC + 4*r.NT*tt + 4*cb
                    a(f'v_mfma_f32_16x16x32_bf16 v[{cc}:{cc+3}], v[{w}:{w+3}], v[{f+4*tt}:{f+4*tt+3}], v[{cc}:{cc+3}]')
                    m += 1
                    if fillers and m % every == 0:
                        for l in fillers.pop(0): a(l)
            if st + 2 < 4:
                loads(st+2, st & 1)
        for g in fillers:
            for l in g: a(l)
    def bump(self, delta):
        r = self
        regs = [r.vAr+i for i in range(4)] + ([r.vWr+i for i in range(4)] if r.wfmt == 128 else [r.vWr])
        for v in regs:
            if delta > 0: a(f'v_add_u32 v{v}, {delta}, v{v}')
            else: a(f'v_subrev_u32 v{v}, {-delta}, v{v}')
    def prologue(self):
        r = self
        r.ahead = r.nslots if r.nch <= r.nslots else r.nslots - 1
        for c in range(min(r.nch, r.ahead)):
            r.issue(c)
    def run(self):
        r = self
        per = r.na + r.nw
        regbase = 0
        for c in range(r.nch):
            issued = min(r.nch, c + r.ahead)
            a(f's_waitcnt vmcnt({min(63, per*(issued - (c+1)))})')
            a('s_barrier')
            stamp([0,100,255], 1 + c)
            base = (c % r.nslots) * r.SLOT
            want = (base // 32768) * 32768 if r.SLOT * r.nslots > 65536 else 0
            if want != regbase:
                r.bump(want - regbase); regbase = want
            r.cur = base - regbase
            fill = r.issue_groups(c + r.ahead) if c + r.ahead < r.nch else []
            r.compute(c, fill)

class Ring3:
    def __init__(self, TT, NT, KC, nch, nslots, a_rs, w_rs, wfmt, FB, ACC, vAr, vWr, rot=False, shifts=None, LA=LA_DEF):
        self.__dict__.update(locals())
        self.RB = 64 * KC
        self.AW = TT * 16 * self.RB
        self.ABY = 4 * self.AW
        self.WBY = 32 * KC * (128 if wfmt == 128 else 224)
        self.SLOT = self.ABY + self.WBY
        self.na = self.AW // 1024
        self.nw = 4 if (wfmt == 128 or KC == 2) else 7
        self.rows_per = 1024 // self.RB
    def loader(self, tag):
        r = self
        vA, vW, vT = 8, 12, 24
        t1, t2, t3 = 3, 4, 5
        nv = 4 if r.KC == 4 else 2
        sh = 4 if r.KC == 4 else 3
        a(f'v_lshrrev_b32 v{t1}, {sh}, v2')
        a(f'v_mul_u32_u24 v{t1}, {r.a_rs}, v{t1}')
        a(f'v_add_u32 v{t1}, s38, v{t1}')
        a(f'v_and_b32 v{t2}, {(1 << sh) - 1}, v2')
        a(f'v_lshrrev_b32 v{t3}, 4, v2')
        a(f'v_xor_b32 v{t2}, v{t2}, v{t3}')
        for i in range(nv):
            a(f'v_xor_b32 v{t3}, {4*i}, v{t2}')
            a(f'v_lshl_add_u32 v{vA+i}, v{t3}, 4, v{t1}')
        if r.wfmt == 128:
            dma_lane_off(vW, 2, r.w_rs, t1, t2)
        else:
            assert r.KC == 2
            for i in range(4):
                a(f's_add_u32 s{60+i}, s3, {4*i}')
                a(f's_min_u32 s{60+i}, s{60+i}, 13')
                a(f's_cmp_ge_u32 s{60+i}, 7')
                a('s_cselect_b32 s21, 7, 0')
                a(f's_cselect_b32 s22, {32*r.w_rs}, 0')
                a(f's_sub_u32 s21, s{60+i}, s21')
                a('s_lshl_b32 s21, s21, 6')
                a(f'v_add_u32 v{t1}, s21, v2')
                a(f'v_mul_u32_u24 v{t2}, 4682, v{t1}')
                a(f'v_lshrrev_b32 v{t2}, 16, v{t2}')
                a(f'v_mul_u32_u24 v{t3}, 14, v{t2}')
                a(f'v_sub_u32 v{t1}, v{t1}, v{t3}')
                a(f'v_and_b32 v{t3}, 0x13, v{t2}')
                a(f'v_bfe_u32 v{vW+i}, v{t2}, 2, 1')
                a(f'v_lshl_or_b32 v{t3}, v{vW+i}, 3, v{t3}')
                a(f'v_bfe_u32 v{vW+i}, v{t2}, 3, 1')
                a(f'v_lshl_or_b32 v{t3}, v{vW+i}, 2, v{t3}')
                a(f'v_mul_u32_u24 v{t3}, {r.w_rs}, v{t3}')
                a(f'v_lshl_add_u32 v{vW+i}, v{t1}, 4, v{t3}')
                a(f'v_add_u32 v{vW+i}, s22, v{vW+i}')
                a(f's_lshl_b32 s{60+i}, s{60+i}, 10')
        def issue(c):
            base = (c % r.nslots) * r.SLOT
            if r.rot:
                a(f's_mul_i32 s35, s34, {32*r.KC*r.w_rs}')
                a('s_add_u32 s35, s35, s20')
                a(f's_mul_i32 s36, s34, {r.RB}')
            else:
                a(f's_add_u32 s35, s20, {c*32*r.KC*r.w_rs}')
                a(f's_movk_i32 s36, {c*r.RB}')
            a(f's_mul_i32 s22, s3, {r.AW}')
            if base: a(f's_add_u32 s22, s22, {base}')
            for i in range(r.na):
                a('s_mov_b32 m0, s22')
                a('s_add_u32 s22, s22, 1024')
                if r.shifts:
                    off = (r.rows_per*i + r.shifts[c]) * r.a_rs
                    if off >= 0: a(f'v_add_u32 v{vT}, {off}, v{vA+(i % nv)}')
                    else: a(f'v_subrev_u32 v{vT}, {-off}, v{vA+(i % nv)}')
                    a(f'buffer_load_dwordx4 v{vT}, s[8:11], s36 offen lds')
                else:
                    a(f'buffer_load_dwordx4 v{vA+(i % nv)}, s[8:11], s36 offen lds')
                    if i < r.na-1: a(f's_add_u32 s36, s36, {r.rows_per*r.a_rs}')
            if r.wfmt == 128:
                a(f's_lshl_b32 s22, s3, 10')
                a(f's_add_u32 s22, s22, {base + r.ABY}')
                for i in range(4):
                    a('s_mov_b32 m0, s22')
                    a('s_add_u32 s22, s22, 4096')
                    a(f'buffer_load_dwordx4 v{vW}, s[12:15], s35 offen lds')
                    if i < 3: a(f's_add_u32 s35, s35, {32*r.w_rs}')
            else:
                for i in range(4):
                    a(f's_add_u32 s22, s{60+i}, {base + r.ABY}')
                    a('s_mov_b32 m0, s22')
                    a('s_nop 0')
                    a(f'buffer_load_dwordx4 v{vW+i}, s[12:15], s35 offen lds')
            if r.rot:
                a('s_add_u32 s34, s34, 1')
                a(f's_cmp_eq_u32 s34, {r.nch}')
                a('s_cselect_b32 s34, 0, s34')
        per = r.na + r.nw
        issued = 0
        LA = r.LA
        for c in range(min(r.nch, LA0)):
            issue(c); issued += 1
        for c in range(r.nch):
            a(f's_waitcnt vmcnt({min(63, per*(issued - (c+1)))})')
            a('s_barrier')
            lim = min(r.nch - 1, c + LA, max(r.nslots - 1, c - 2 + r.nslots))
            while issued <= lim:
                issue(issued); issued += 1
    def comp_setup(self, t1, t2, t3):
        r = self
        a(f'v_and_b32 v{t1}, 15, v2')
        a(f'v_lshrrev_b32 v{t2}, 4, v2')
        if r.KC == 4:
            a(f'v_xor_b32 v{t2}, v{t2}, v{t1}')
        else:
            a(f'v_lshrrev_b32 v{t3}, 1, v{t1}')
            a(f'v_xor_b32 v{t2}, v{t2}, v{t3}')
        a(f'v_mul_u32_u24 v{t1}, {r.RB}, v{t1}')
        a(f's_mul_i32 s21, s3, {r.AW}')
        a(f'v_add_u32 v{t1}, s21, v{t1}')
        for i in range(r.KC):
            a(f'v_xor_b32 v{t3}, {4*i}, v{t2}')
            a(f'v_lshl_add_u32 v{r.vAr+i}, v{t3}, 4, v{t1}')
        if r.wfmt == 128:
            tr_lane_base(t1, t2, 2, t3, r.vWr)
            for cb in range(4):
                a(f'v_xor_b32 v{t3}, {cb}, v{t2}')
                a(f'v_lshl_add_u32 v{r.vWr+cb}, v{t3}, 5, v{t1}')
                a(f'v_add_u32 v{r.vWr+cb}, {r.ABY}, v{r.vWr+cb}')
        else:
            a(f'v_lshrrev_b32 v{t1}, 5, v2')
            a(f'v_lshlrev_b32 v{t1}, 4, v{t1}')
            a(f'v_bfe_u32 v{t2}, v2, 2, 3')
            a(f'v_add_u32 v{t1}, v{t1}, v{t2}')
            a(f'v_mul_u32_u24 v{t1}, 224, v{t1}')
            a(f'v_and_b32 v{t2}, 3, v2')
            a(f'v_lshl_add_u32 v{r.vWr}, v{t2}, 3, v{t1}')
            a(f'v_add_u32 v{r.vWr}, {r.ABY}, v{r.vWr}')
    def compute(self):
        r = self
        FS = 4*(r.TT + r.NT)
        nl = r.TT + 2*r.NT
        total = r.KC * r.nch
        state = dict(regbase=0)
        regs = [r.vAr+i for i in range(r.KC)] + ([r.vWr+i for i in range(4)] if r.wfmt == 128 else [r.vWr])
        def loads(s):
            c, st = divmod(s, r.KC)
            base = (c % r.nslots) * r.SLOT
            if st == 0:
                a('s_barrier')
                stamp([0,100,255], min(15, 1 + c))
                want = (base // 16384) * 16384
                d = want - state['regbase']
                if d:
                    for v in regs:
                        if d > 0: a(f'v_add_u32 v{v}, {d}, v{v}')
                        else: a(f'v_subrev_u32 v{v}, {-d}, v{v}')
                    state['regbase'] = want
            cur = base - state['regbase']
            f = r.FB + FS*(s & 1)
            for tt in range(r.TT):
                a(f'ds_read_b128 v[{f+4*tt}:{f+4*tt+3}], v{r.vAr+st} offset:{cur + tt*16*r.RB}')
            for cb in range(r.NT):
                for h in range(2):
                    d = f + 4*r.TT + 4*cb + 2*h
                    if r.wfmt == 128:
                        a(f'ds_read_b64_tr_b16 v[{d}:{d+1}], v{r.vWr+cb} offset:{cur + st*4096 + h*1024}')
                    else:
                        a(f'ds_read_b64_tr_b16 v[{d}:{d+1}], v{r.vWr} offset:{cur + st*7168 + h*1792 + 32*cb}')
        loads(0); loads(1)
        for s_ in range(total):
            a(f's_waitcnt lgkmcnt({min(15, nl) if s_ < total-1 else 0})')
            f = r.FB + FS*(s_ & 1)
            for cb in range(r.NT):
                w = f + 4*r.TT + 4*cb
                for tt in range(r.TT):
                    cc = r.ACC + 4*r.NT*tt + 4*cb
                    a(f'v_mfma_f32_16x16x32_bf16 v[{cc}:{cc+3}], v[{w}:{w+3}], v[{f+4*tt}:{f+4*tt+3}], v[{cc}:{cc+3}]')
            if s_ + 2 < total:
                loads(s_ + 2)

class Ring4:
    def __init__(self, TT, NT, nch, nslots, w_rs, wfmt, FB, ACC, vWr, X, XW, rot=False, LA=2, srd=12, soff=20, vW=12, bases=None):
        self.__dict__.update(locals())
        self.KC = 4
        self.SLOT = 128 * (128 if wfmt == 128 else 224)
        self.nw = 4 if wfmt == 128 else 7
    def base(self, c):
        return self.bases[c] if self.bases else (c % self.nslots) * self.SLOT
    def l_setup(self):
        r = self
        if r.wfmt == 128:
            dma_lane_off(r.vW, 2, r.w_rs, 3, 4)
        else:
            a(f'v_lshlrev_b32 v{r.vW}, 4, v2')
    def l_issue(self, c):
        r = self
        base = r.base(c)
        S = f's[{r.srd}:{r.srd+3}]'
        if r.rot:
            a(f's_mul_i32 s35, s34, {128*r.w_rs}')
            a(f's_add_u32 s35, s35, s{r.soff}')
        else:
            a(f's_add_u32 s35, s{r.soff}, {c*128*r.w_rs}')
        if r.wfmt == 128:
            a(f's_lshl_b32 s22, s3, 10')
            if base: a(f's_add_u32 s22, s22, {base}')
            for i in range(4):
                a('s_mov_b32 m0, s22')
                a('s_add_u32 s22, s22, 4096')
                a(f'buffer_load_dwordx4 v{r.vW}, {S}, s35 offen lds')
                if i < 3: a(f's_add_u32 s35, s35, {32*r.w_rs}')
        else:
            a(f's_mul_i32 s22, s3, 7168')
            if base: a(f's_add_u32 s22, s22, {base}')
            for j in range(7):
                a('s_mov_b32 m0, s22')
                a('s_add_u32 s22, s22, 1024')
                a(f'buffer_load_dwordx4 v{r.vW}, {S}, s35 offen lds')
                if j < 6: a('s_add_u32 s35, s35, 1024')
        if r.rot:
            a('s_add_u32 s34, s34, 1')
            a(f's_cmp_eq_u32 s34, {r.nch}')
            a('s_cselect_b32 s34, 0, s34')
    def loader(self, pre=None, bars=0):
        r = self
        r.l_setup()
        issue = r.l_issue
        per = r.nw
        issued = 0
        if pre is not None:
            for c in range(pre):
                issue(c); issued += 1
            a('s_barrier')
            for c in range(pre, min(r.nslots, NZ6)):
                issue(c); issued += 1
            a('s_barrier')
        for c in range(issued, min(r.nch, r.LA)):
            issue(c); issued += 1
        for c in range(r.nch):
            a(f's_waitcnt vmcnt({min(63, per*(issued - (c+1)))})')
            a('s_barrier')
            lim = min(r.nch - 1, c + r.LA, max(r.nslots - 1, c - 2 + r.nslots))
            while issued <= lim:
                issue(issued); issued += 1
    def comp_setup(self, t1, t2, t3):
        r = self
        if r.wfmt == 128:
            tr_lane_base(t1, t2, 2, t3, r.vWr)
            for cb in range(4):
                a(f'v_xor_b32 v{t3}, {cb}, v{t2}')
                a(f'v_lshl_add_u32 v{r.vWr+cb}, v{t3}, 5, v{t1}')
        else:
            a(f'v_lshrrev_b32 v{t1}, 5, v2')
            a(f'v_lshlrev_b32 v{t1}, 4, v{t1}')
            a(f'v_bfe_u32 v{t2}, v2, 2, 3')
            a(f'v_add_u32 v{t1}, v{t1}, v{t2}')
            a(f'v_mul_u32_u24 v{t1}, 224, v{t1}')
            a(f'v_and_b32 v{t2}, 3, v2')
            a(f'v_lshl_add_u32 v{r.vWr}, v{t2}, 3, v{t1}')
    def compute(self, aload, hook=None):
        r = self
        FS = 4*r.NT
        nl = 2*r.NT
        total = 4 * r.nch
        state = dict(regbase=0)
        regs = [r.vWr+i for i in range(4)] if r.wfmt == 128 else [r.vWr]
        def pre(s):
            c, st = divmod(s, 4)
            base = r.base(c)
            if st == 0:
                a('s_barrier')
                want = (base // 32768) * 32768
                d = want - state['regbase']
                if d:
                    for v in regs:
                        if d > 0: a(f'v_add_u32 v{v}, {d}, v{v}')
                        else: a(f'v_subrev_u32 v{v}, {-d}, v{v}')
                    state['regbase'] = want
        def load_cb(s, cb):
            c, st = divmod(s, 4)
            cur = r.base(c) - state['regbase']
            f = r.FB + FS*(s & 1)
            for h in range(2):
                d = f + 4*cb + 2*h
                if r.wfmt == 128:
                    a(f'ds_read_b64_tr_b16 v[{d}:{d+1}], v{r.vWr+cb} offset:{cur + st*4096 + h*1024}')
                else:
                    a(f'ds_read_b64_tr_b16 v[{d}:{d+1}], v{r.vWr} offset:{cur + st*7168 + h*1792 + 32*cb}')
        for s0 in range(2):
            pre(s0)
            for cb in range(r.NT): load_cb(s0, cb)
        for s_ in range(total):
            issued_steps = min(total, s_ + r.XW)
            a(f's_waitcnt vmcnt({min(63, r.TT*(issued_steps - (s_+1)))}) lgkmcnt({min(15, nl) if s_ < total-1 else 0})')
            if s_ + 2 < total:
                pre(s_ + 2)
            f = r.FB + FS*(s_ & 1)
            for cb in range(r.NT):
                w = f + 4*cb
                for tt in range(r.TT):
                    cc = r.ACC + 4*r.NT*tt + 4*cb
                    x = r.X + 4*(r.TT*(s_ % r.XW) + tt)
                    a(f'v_mfma_f32_16x16x32_bf16 v[{cc}:{cc+3}], v[{w}:{w+3}], v[{x}:{x+3}], v[{cc}:{cc+3}]')
                if s_ + 2 < total and cb > 0:
                    load_cb(s_ + 2, cb - 1)
            if s_ + 2 < total:
                load_cb(s_ + 2, r.NT - 1)
            if s_ + r.XW < total:
                aload(s_ + r.XW)
            if hook: hook(s_)

def store_tile64(O, vtok_row, sptr, scol, vt, lds_base_sgpr):
    a(f'v_and_b32 v{vt}, 15, v2')
    a(f'v_mul_u32_u24 v{vt}, 144, v{vt}')
    a(f'v_lshrrev_b32 v{vt+1}, 4, v2')
    a(f'v_lshl_add_u32 v{vt}, v{vt+1}, 3, v{vt}')
    a(f'v_add_u32 v{vt}, s{lds_base_sgpr}, v{vt}')
    for cb in range(4):
        a(f'ds_write_b64 v{vt}, v[{O+2*cb}:{O+2*cb+1}] offset:{32*cb}')
    a(f'v_lshrrev_b32 v{vt+1}, 3, v2')
    a(f'v_and_b32 v{vt+2}, 7, v2')
    a(f'v_mul_u32_u24 v{vt}, 144, v{vt+1}')
    a(f'v_lshl_add_u32 v{vt}, v{vt+2}, 4, v{vt}')
    a(f'v_add_u32 v{vt}, s{lds_base_sgpr}, v{vt}')
    a(f'v_lshlrev_b32 v{vt+1}, 10, v{vt+1}')
    a(f'v_lshl_add_u32 v{vt+1}, v{vt+2}, 4, v{vt+1}')
    a(f'v_add_u32 v{vt+1}, s{vtok_row}, v{vt+1}')
    a(f'v_add_u32 v{vt+1}, s{scol}, v{vt+1}')
    a(f'v_add_u32 v{vt+2}, 8192, v{vt+1}')
    a('s_waitcnt lgkmcnt(0)')
    a(f'ds_read_b128 v[{O}:{O+3}], v{vt}')
    a(f'ds_read_b128 v[{O+4}:{O+7}], v{vt} offset:{8*144}')
    a('s_waitcnt lgkmcnt(1)')
    a(f'global_store_dwordx4 v{vt+1}, v[{O}:{O+3}], s[{sptr}:{sptr+1}]')
    a('s_waitcnt lgkmcnt(0)')
    a(f'global_store_dwordx4 v{vt+2}, v[{O+4}:{O+7}], s[{sptr}:{sptr+1}]')

def wave_krow(dst):
    a(f"""
    s_lshr_b32 s{dst}, s3, 1
    s_lshl_b32 s{dst}, s{dst}, 4
    s_and_b32 s19, s3, 1
    s_lshl_b32 s19, s19, 2
    s_add_u32 s{dst}, s{dst}, s19
    """)

MAP64 = """
    s_bfe_u32 s16, s2, 0x30003
    s_and_b32 s17, s2, 7
    s_lshl_b32 s17, s17, 2
    s_lshr_b32 s19, s2, 6
    s_add_u32 s17, s17, s19
"""

def fra_epi_off(dst, t):
    a(f'v_lshrrev_b32 v{dst}, 1, v15')
    a(f'v_lshlrev_b32 v{dst}, 8, v{dst}')
    a(f'v_and_b32 v{t}, 15, v2')
    a(f'v_lshl_add_u32 v{dst}, v{t}, 4, v{dst}')
    a(f'v_and_b32 v{t}, 1, v15')
    a(f'v_lshl_add_u32 v{dst}, v{t}, 3, v{dst}')
    a('s_lshl_b32 s21, s16, 11')
    a('s_add_u32 s21, s21, s38')
    a(f'v_add_u32 v{dst}, s21, v{dst}')

def fra_store_off(dst, t):
    a(f"""
    v_and_b32 v{dst}, 1, v15
    v_lshrrev_b32 v{t}, 1, v15
    v_lshl_add_u32 v{dst}, v{dst}, 1, v{t}
    v_and_b32 v{t}, 15, v2
    v_lshl_add_u32 v{dst}, v{dst}, 4, v{t}
    s_lshl_b32 s21, s16, 11
    s_add_u32 s21, s21, s38
    v_lshl_add_u32 v{dst}, v{dst}, 4, s21
    """)

def gen_k4():
    global SV
    SV = 176
    name = 'k4_kernel'
    a.begin_kernel(name)
    a(f"""
    s_cmp_ge_u32 s2, 256
    s_cbranch_scc1 K4_exit
    s_load_dwordx2 s[4:5], s[0:1], {KA['ws']}
    s_load_dwordx2 s[6:7], s[0:1], {KA['w2']}
    s_load_dwordx2 s[44:45], s[0:1], {KA['w3']}
    """)
    trace_begin()
    a(f"""
    v_lshrrev_b32 v1, 6, v0
    v_and_b32 v2, 63, v0
    v_readfirstlane_b32 s24, v1
    s_and_b32 s3, s24, 3
    {MAP64}
    """)
    wave_krow(18)
    ACC = 36; FB = 64; X = 96
    R = Ring4(TT=1, NT=4, nch=4, nslots=4, w_rs=1024, wfmt=128, FB=FB, ACC=ACC, vWr=10, X=X, XW=16, LA=LA5)
    a(f"""
    s_lshl_b32 s39, s17, 6
    s_lshl_b32 s23, s3, 4
    s_add_u32 s39, s39, s23
    s_lshl_b32 s38, s39, 10
    s_lshl_b32 s20, s18, 10
    s_lshl_b32 s37, s16, 7
    s_add_u32 s20, s20, s37
    s_cmp_ge_u32 s24, 4
    s_cbranch_scc1 K4_loader
    v_and_b32 v14, 15, v2
    v_lshrrev_b32 v15, 4, v2
    v_add_u32 v14, s39, v14            ; token
    v_lshlrev_b32 v16, 3, v14
    v_lshlrev_b32 v19, 6, v14
    """)
    for q, sh in enumerate([-1, 1, -2, 2]):
        a(f'v_add_u32 v5, {sh}, v14')
        a('v_ashrrev_i32 v6, 4, v5')
        a('v_lshlrev_b32 v6, 14, v6')
        a('v_and_b32 v5, 15, v5')
        a('v_lshl_add_u32 v6, v5, 4, v6')
        a('v_lshl_add_u32 v6, v15, 8, v6')
        a(f'v_add_u32 v{52+q}, {4096*q}, v6')
    fra_epi_off(18, 5)
    a('s_waitcnt lgkmcnt(0)')
    ws_ptr(8, 4, 'G1')
    a(f's_mov_b32 s10, {2*MB}')
    a('s_mov_b32 s11, 0x00020000')
    ws_ptr(24, 4, 'HR'); ws_ptr(26, 4, 'X1'); ws_ptr(28, 4, 'ST3'); ws_ptr(30, 4, 'ST1')
    HRr = 20
    for cb in range(4):
        a(f'global_load_dwordx2 v[{HRr+2*cb}:{HRr+2*cb+1}], v18, s[24:25] offset:{512*cb}')
    a('global_load_dwordx2 v[28:29], v16, s[30:31]')
    for st in range(16):
        a(f'buffer_load_dwordx4 v[{X+4*st}:{X+4*st+3}], v{52+(st>>2)}, s[8:11], 0 offen offset:{1024*(st&3)}')
    R.comp_setup(5, 6, 7)
    for i in range(16):
        a(f'v_mov_b32 v{ACC+i}, 0')
    R.compute(None)
    a('v_mov_b32 v60, 0')
    a('v_mov_b32 v61, 0')
    a('v_mov_b32 v62, 0')
    a('v_mov_b32 v63, 0')
    a('s_nop 4')
    O = 168
    for g0 in (0, 4):
        G = range(g0, g0+4)
        T1 = lambda p: 64 + (p & 3)
        T2 = lambda p: 68 + 2*(p & 3)
        for p in G: a(f'v_cvt_pk_bf16_f32 v{T1(p)}, v{ACC+2*p}, v{ACC+2*p+1}')
        for p in G: unpack(ACC+2*p, ACC+2*p+1, T1(p))
        for p in G: unpack(T2(p), T2(p)+1, HRr+p)
        for p in G: a(f'v_pk_add_f32 v[{T2(p)}:{T2(p)+1}], v[{T2(p)}:{T2(p)+1}], v[28:29] op_sel_hi:[1,0] neg_lo:[0,1] neg_hi:[0,1]')
        for p in G: a(f'v_cvt_pk_bf16_f32 v{T1(p)}, v{T2(p)}, v{T2(p)+1}')
        for p in G: unpack(T2(p), T2(p)+1, T1(p))
        for p in G: a(f'v_pk_mul_f32 v[{T2(p)}:{T2(p)+1}], v[{T2(p)}:{T2(p)+1}], v[28:29] op_sel:[0,1] op_sel_hi:[1,1]')
        for p in G: a(f'v_cvt_pk_bf16_f32 v{T1(p)}, v{T2(p)}, v{T2(p)+1}')
        for p in G: unpack(T2(p), T2(p)+1, T1(p))
        for p in G: a(f'v_pk_add_f32 v[{ACC+2*p}:{ACC+2*p+1}], v[{ACC+2*p}:{ACC+2*p+1}], v[{T2(p)}:{T2(p)+1}]')
        for p in G: a(f'v_cvt_pk_bf16_f32 v{O+p}, v{ACC+2*p}, v{ACC+2*p+1}')
        for p in G: unpack(ACC+2*p, ACC+2*p+1, O+p)
        for p in G:
            a(f'v_pk_add_f32 v[60:61], v[60:61], v[{ACC+2*p}:{ACC+2*p+1}]')
            a(f'v_pk_fma_f32 v[62:63], v[{ACC+2*p}:{ACC+2*p+1}], v[{ACC+2*p}:{ACC+2*p+1}], v[62:63]')
    a('v_add_f32 v60, v60, v61')
    a('v_add_f32 v61, v62, v63')
    fra_store_off(7, 8)
    a('v_mov_b32 v62, v60')
    a('v_mov_b32 v63, v61')
    for P in range(2):
        o = O + 4*P
        a(f'v_permlane16_swap_b32 v{o}, v{o+2}')
        a(f'v_permlane16_swap_b32 v{o+1}, v{o+3}')
    a('v_permlane16_swap_b32 v60, v62')
    a('v_permlane16_swap_b32 v61, v63')
    for P in range(2):
        o = O + 4*P
        a(f'global_store_dwordx4 v7, v[{o}:{o+3}], s[26:27] offset:{1024*P}{SC3}')
    a(f"""
    v_pk_add_f32 v[60:61], v[60:61], v[62:63]
    s_nop 0
    v_mov_b32 v62, v60
    v_mov_b32 v63, v61
    s_nop 1
    v_permlane32_swap_b32 v60, v62
    v_permlane32_swap_b32 v61, v63
    s_nop 1
    v_pk_add_f32 v[60:61], v[60:61], v[62:63]
    s_lshl_b32 s21, s16, 3
    v_add_u32 v19, s21, v19
    v_cmp_gt_u32 vcc, 16, v2
    s_and_saveexec_b64 s[32:33], vcc
    global_store_dwordx2 v19, v[60:61], s[28:29]
    s_mov_b64 exec, s[32:33]
    """)
    trace_end(3)
    a('s_endpgm')
    a.label('K4_loader')
    a('s_waitcnt lgkmcnt(0)')
    mk_srd(12, 6, 512*1024)
    R.loader()
    code_prefetch('k56_kernel' if MERGE56 else 'k5_kernel', 'K_code_end', 30, 32, 40)
    if PF4:
        a('v_and_b32 v0, 255, v0')
        ws_ptr(44, 4, 'W3P')
        l2_prefetch(44, 512*3584, 24, 28, 21)
    a.label('K4_exit')
    a.end_kernel(name, (256,1,1), (512,1,1), 65536, 184)

def gen_k5():
    global SV
    SV = 200
    name = 'k5_kernel'
    a.begin_kernel(name)
    a(f"""
    s_cmp_ge_u32 s2, 256
    s_cbranch_scc1 K5_exit
    s_load_dwordx2 s[4:5], s[0:1], {KA['ws']}
    s_load_dwordx2 s[6:7], s[0:1], {KA['w3']}
    s_load_dwordx2 s[40:41], s[0:1], {KA['w4']}
    """)
    trace_begin()
    a(f"""
    v_lshrrev_b32 v1, 6, v0
    v_and_b32 v2, 63, v0
    v_readfirstlane_b32 s24, v1
    s_and_b32 s3, s24, 3
    s_bfe_u32 s16, s2, 0x40003
    s_and_b32 s17, s2, 7
    s_lshl_b32 s17, s17, 1
    s_lshr_b32 s19, s2, 7
    s_add_u32 s17, s17, s19
    """)
    ACC = 144; FB = 16; X = 72; XW = 8
    R = Ring4(TT=2, NT=7, nch=4, nslots=4, w_rs=224, wfmt=224, FB=FB, ACC=ACC, vWr=10, X=X, XW=XW, LA=LA5)
    a(f"""
    s_lshl_b32 s39, s17, 7
    s_lshl_b32 s23, s3, 5
    s_add_u32 s39, s39, s23
    s_lshl_b32 s38, s39, 10
    s_mul_i32 s20, s3, 7168
    s_mul_i32 s37, s16, 114688
    s_add_u32 s20, s20, s37
    s_cmp_ge_u32 s24, 4
    s_cbranch_scc1 K5_loader
    v_and_b32 v14, 15, v2
    v_lshrrev_b32 v15, 4, v2
    v_add_u32 v14, s39, v14
    v_lshlrev_b32 v13, 6, v14
    s_mul_i32 s21, s16, 448
    v_lshl_add_u32 v8, v15, 4, s21
    v_lshl_add_u32 v11, v2, 4, s38
    v_add_u32 v12, 0x4000, v11         ; tt1
    s_waitcnt lgkmcnt(0)
    """)
    SV = 232
    ws_ptr(8, 4, 'X1'); ws_ptr(24, 4, 'ST3'); ws_ptr(26, 4, 'HH'); ws_ptr(28, 4, 'CS', 2048)
    for tt in range(2):
        for q in range(4):
            r = ACC + 16*tt + 4*q
            a(f'global_load_dwordx4 v[{r}:{r+3}], v13, s[24:25] offset:{1024*tt + 16*q}')
    CSR = 204
    for cb in range(7):
        a(f'global_load_dwordx4 v[{CSR+4*cb}:{CSR+4*cb+3}], v8, s[28:29] offset:{64*cb}')
    def aload(st):
        if st % 4 == 0 and st:
            a('s_add_u32 s8, s8, 4096')
            a('s_addc_u32 s9, s9, 0')
        for tt in range(2):
            x = X + 4*(2*(st % XW) + tt)
            a(f'global_load_dwordx4 v[{x}:{x+3}], v{11+tt}, s[8:9] offset:{1024*(st&3)}')
    for st in range(XW):
        aload(st)
    R.comp_setup(3, 4, 5)
    a(f's_waitcnt vmcnt({7 + 2*XW})')
    for tt in range(2):
        b = ACC + 16*tt
        for i in (8, 4, 2):
            for j in range(0, i, 2):
                a(f'v_pk_add_f32 v[{b+j}:{b+j+1}], v[{b+j}:{b+j+1}], v[{b+j+i}:{b+j+i+1}]')
        a(f'v_mul_f32 v{b}, {hx(1/512)}, v{b}')
        a(f'v_mul_f32 v{b+1}, {hx(1/512)}, v{b+1}')
        a(f'v_fma_f32 v{b+1}, -v{b}, v{b}, v{b+1}')
        a(f'v_max_f32 v{b+1}, 0, v{b+1}')
        ln_scalars(b, b+1, 3)
        a(f'v_mov_b32 v{4+2*tt}, v{b+1}')
        a(f'v_mul_f32 v{5+2*tt}, v{b}, v{b+1}')
    for i in range(56):
        a(f'v_mov_b32 v{ACC+i}, 0')
    R.compute(aload)
    a(f"""
    v_mov_b32 v72, {hx(GC1)}
    v_mov_b32 v73, {hx(GC2)}
    v_mov_b32 v74, 1.0
    v_mov_b32 v75, 1.0
    s_mul_i32 s21, s39, 3584
    s_mul_i32 s22, s16, 3584
    s_add_u32 s21, s21, s22
    v_and_b32 v3, 1, v15
    v_lshrrev_b32 v13, 1, v15
    v_and_b32 v8, 15, v2
    v_lshl_add_u32 v8, v8, 4, s21
    v_lshl_add_u32 v12, v3, 1, v13
    v_lshl_add_u32 v12, v12, 8, v8
    v_add_u32 v11, 57344, v12          ; tt1
    v_mul_u32_u24 v3, 57344, v3
    v_lshl_add_u32 v10, v13, 8, v8
    v_add_u32 v10, v10, v3
    """)
    O = 80
    for tt in range(2):
        zs = [ACC + 28*tt + 2*p for p in range(14)]
        affine_round(zs, [CSR + 2*p for p in range(14)], 4+2*tt, 64)
        gelu_pairs(zs, 72, 64)
        for p in range(14):
            d = O + 16*tt + p if p < 12 else 112 + 2*tt + (p - 12)
            a(f'v_cvt_pk_bf16_f32 v{d}, v{zs[p]}, v{zs[p]+1}')
        a('s_nop 1')
        for P in range(3):
            o = O + 16*tt + 4*P
            a(f'v_permlane16_swap_b32 v{o}, v{o+2}')
            a(f'v_permlane16_swap_b32 v{o+1}, v{o+3}')
        a('s_nop 1')
        for P in range(3):
            o = O + 16*tt + 4*P
            a(f'global_store_dwordx4 v{12-tt}, v[{o}:{o+3}], s[26:27] offset:{1024*P}{SC3}')
    a('v_permlane16_swap_b32 v112, v114')
    a('v_permlane16_swap_b32 v113, v115')
    a('s_nop 1')
    a(f'global_store_dwordx4 v10, v[112:115], s[26:27] offset:3072{SC3}')
    trace_end(4)
    a('s_endpgm')
    a.label('K5_loader')
    a('s_waitcnt lgkmcnt(0)')
    ws_ptr(12, 4, 'W3P')
    a(f's_mov_b32 s14, {512*3584}')
    a('s_mov_b32 s15, 0x00020000')
    R.loader()
    if PF5:
        a('v_and_b32 v0, 255, v0')
        l2_prefetch(40, 1792*1024, 24, 28, 21)
    a.label('K5_exit')
    a.end_kernel(name, (256,1,1), (512,1,1), 4*R.SLOT, 240)

def gen_k6():
    global SV
    SV = 176
    name = 'k6_kernel'
    a.begin_kernel(name)
    a(f"""
    s_cmp_ge_u32 s2, 256
    s_cbranch_scc1 K6_exit
    s_load_dwordx2 s[4:5], s[0:1], {KA['ws']}
    s_load_dwordx2 s[6:7], s[0:1], {KA['w4']}
    s_load_dwordx2 s[26:27], s[0:1], {KA['out']}
    """)
    trace_begin()
    a(f"""
    v_lshrrev_b32 v1, 6, v0
    v_and_b32 v2, 63, v0
    v_readfirstlane_b32 s24, v1
    s_and_b32 s3, s24, 3
    {MAP64}
    """)
    wave_krow(18)
    ACC = 36; FB = 64; X = 96; XW = 16
    R = Ring4(TT=1, NT=4, nch=14, nslots=8, w_rs=1024, wfmt=128, FB=FB, ACC=ACC, vWr=10, X=X, XW=XW, rot=True, LA=LA6)
    a(f"""
    s_lshl_b32 s39, s17, 6
    s_lshl_b32 s23, s3, 4
    s_add_u32 s39, s39, s23
    s_lshl_b32 s38, s39, 10
    s_lshl_b32 s20, s18, 10
    s_lshl_b32 s37, s16, 7
    s_add_u32 s20, s20, s37
    s_lshl_b32 s34, s17, 1
    s_add_u32 s34, s34, s16
    s_mul_hi_u32 s35, s34, 0x24924925
    s_mul_i32 s35, s35, 7
    s_sub_u32 s34, s34, s35
    s_lshl_b32 s34, s34, 1
    s_cmp_ge_u32 s24, 4
    s_cbranch_scc1 K6_loader
    v_lshrrev_b32 v15, 4, v2
    s_mul_i32 s21, s39, 3584
    v_lshl_add_u32 v17, v2, 4, s21
    s_lshl_b32 s36, s34, 12
    """)
    fra_epi_off(18, 5)
    a('s_waitcnt lgkmcnt(0)')
    ws_ptr(8, 4, 'HH'); ws_ptr(24, 4, 'HR'); ws_ptr(28, 4, 'X1')
    a(f's_mov_b32 s10, {2048*3584}')
    a('s_mov_b32 s11, 0x00020000')
    for cb in range(4):
        a(f'global_load_dwordx2 v[{20+2*cb}:{21+2*cb}], v18, s[24:25] offset:{512*cb}')
    for cb in range(4):
        a(f'global_load_dwordx2 v[{28+2*cb}:{29+2*cb}], v18, s[28:29] offset:{512*cb}')
    def aload(st):
        x = X + 4*(st % XW)
        a(f'buffer_load_dwordx4 v[{x}:{x+3}], v17, s[8:11], s36 offen offset:{1024*(st&3)}')
        if st % 4 == 3:
            a('s_add_u32 s36, s36, 4096')
            a('s_cmp_eq_u32 s36, 57344')
            a('s_cselect_b32 s36, 0, s36')
    for st in range(XW):
        aload(st)
    R.comp_setup(5, 6, 7)
    for i in range(16):
        a(f'v_mov_b32 v{ACC+i}, 0')
    R.compute(aload)
    a('s_nop 7')
    O = 168
    for g0 in (0, 4):
        G = range(g0, g0+4)
        T1 = lambda p: 64 + (p & 3)
        T2 = lambda p: 68 + 2*(p & 3)
        for p in G: a(f'v_cvt_pk_bf16_f32 v{T1(p)}, v{ACC+2*p}, v{ACC+2*p+1}')
        for p in G: unpack(ACC+2*p, ACC+2*p+1, T1(p))
        for p in G: unpack(T2(p), T2(p)+1, 28+p)
        for p in G: a(f'v_pk_add_f32 v[{ACC+2*p}:{ACC+2*p+1}], v[{ACC+2*p}:{ACC+2*p+1}], v[{T2(p)}:{T2(p)+1}]')
        for p in G: a(f'v_cvt_pk_bf16_f32 v{T1(p)}, v{ACC+2*p}, v{ACC+2*p+1}')
        for p in G: unpack(ACC+2*p, ACC+2*p+1, T1(p))
        for p in G: unpack(T2(p), T2(p)+1, 20+p)
        for p in G: a(f'v_pk_add_f32 v[{ACC+2*p}:{ACC+2*p+1}], v[{ACC+2*p}:{ACC+2*p+1}], v[{T2(p)}:{T2(p)+1}]')
        for p in G: a(f'v_cvt_pk_bf16_f32 v{O+p}, v{ACC+2*p}, v{ACC+2*p+1}')
    a(f's_mul_i32 s21, s3, 2560')
    a(f's_add_u32 s21, s21, {8*R.SLOT}')
    store_tile64(O, 38, 26, 37, 64, 21)
    trace_end(5)
    a('s_endpgm')
    a.label('K6_loader')
    a('s_waitcnt lgkmcnt(0)')
    mk_srd(12, 6, 1792*1024)
    R.loader()
    a.label('K6_exit')
    a.end_kernel(name, (256,1,1), (512,1,1), 8*R.SLOT + 10240, 184)
    a.label('K_code_end')

def signal_cnt(soff, vt):
    l = a.newlabel('SIG')
    a('v_cmp_eq_u32 vcc, 0, v0')
    a('s_and_saveexec_b64 s[48:49], vcc')
    a(f's_cbranch_execz {l}')
    a(f'v_mov_b32 v{vt}, s{soff}')
    a(f'v_mov_b32 v{vt+1}, 1')
    a(f'global_atomic_add v{vt}, v{vt+1}, s[46:47] sc1')
    a.label(l)
    a('s_mov_b64 exec, s[48:49]')

def poll_cnt(label, soff, target, vt):
    a(f'v_readfirstlane_b32 s50, v0')
    a(f'v_mov_b32 v{vt}, s{soff}')
    a('s_mov_b32 s51, 0')
    a('s_cmp_lg_u32 s50, 0')
    a(f's_cbranch_scc1 {label}_ok')
    a.label(label)
    a(f'global_load_dword v{vt+1}, v{vt}, s[46:47] sc1')
    a('s_waitcnt vmcnt(0)')
    a(f'v_readfirstlane_b32 s50, v{vt+1}')
    a('s_add_u32 s51, s51, 1')
    a(f's_cmp_ge_u32 s50, {target}')
    a(f's_cbranch_scc1 {label}_ok')
    a('s_cmp_lt_u32 s51, 0x8000')
    a(f's_cbranch_scc0 {label}_ok')
    a('s_sleep 1')
    a(f's_branch {label}')
    a.label(f'{label}_ok')

def gen_k56():
    global SV
    SV = 232
    name = 'k56_kernel'
    a.begin_kernel(name)
    a(f"""
    s_cmp_ge_u32 s2, 256
    s_cbranch_scc1 K56_exit
    s_load_dwordx2 s[4:5], s[0:1], {KA['ws']}
    s_load_dwordx2 s[6:7], s[0:1], {KA['w4']}
    s_load_dwordx2 s[52:53], s[0:1], {KA['out']}
    """)
    trace_begin()
    a(f"""
    v_lshrrev_b32 v1, 6, v0
    v_and_b32 v2, 63, v0
    v_readfirstlane_b32 s44, v1
    s_and_b32 s3, s44, 3
    s_bfe_u32 s16, s2, 0x40003
    s_and_b32 s17, s2, 7
    s_lshl_b32 s17, s17, 1
    s_lshr_b32 s19, s2, 7
    s_add_u32 s17, s17, s19
    """)
    ACC = 144; FB = 16; X = 72; XW = 8
    R = Ring4(TT=2, NT=7, nch=4, nslots=4, w_rs=224, wfmt=224, FB=FB, ACC=ACC, vWr=10, X=X, XW=XW, LA=LA5)
    a(f"""
    s_lshl_b32 s39, s17, 7
    s_lshl_b32 s23, s3, 5
    s_add_u32 s39, s39, s23
    s_lshl_b32 s38, s39, 10
    s_mul_i32 s20, s3, 7168
    s_mul_i32 s37, s16, 114688
    s_add_u32 s20, s20, s37
    s_lshl_b32 s45, s17, 7
    s_cmp_ge_u32 s44, 4
    s_cbranch_scc1 K56_loader
    v_and_b32 v14, 15, v2
    v_lshrrev_b32 v15, 4, v2
    v_add_u32 v14, s39, v14
    v_lshlrev_b32 v13, 6, v14
    s_mul_i32 s21, s16, 448
    v_lshl_add_u32 v8, v15, 4, s21
    v_lshl_add_u32 v11, v2, 4, s38
    v_add_u32 v12, 0x4000, v11
    s_waitcnt lgkmcnt(0)
    """)
    gstamp(0)
    ws_ptr(8, 4, 'X1'); ws_ptr(24, 4, 'ST3'); ws_ptr(26, 4, 'HH'); ws_ptr(28, 4, 'CS', 2048); ws_ptr(46, 4, 'CNT')
    for tt in range(2):
        for q in range(4):
            r = ACC + 16*tt + 4*q
            a(f'global_load_dwordx4 v[{r}:{r+3}], v13, s[24:25] offset:{1024*tt + 16*q}')
    CSR = 204
    for cb in range(7):
        a(f'global_load_dwordx4 v[{CSR+4*cb}:{CSR+4*cb+3}], v8, s[28:29] offset:{64*cb}')
    def aload(st):
        if st % 4 == 0 and st:
            a('s_add_u32 s8, s8, 4096')
            a('s_addc_u32 s9, s9, 0')
        for tt in range(2):
            x = X + 4*(2*(st % XW) + tt)
            a(f'global_load_dwordx4 v[{x}:{x+3}], v{11+tt}, s[8:9] offset:{1024*(st&3)}')
    for st in range(XW):
        aload(st)
    R.comp_setup(3, 4, 5)
    a(f's_waitcnt vmcnt({7 + 2*XW})')
    for tt in range(2):
        b = ACC + 16*tt
        for i in (8, 4, 2):
            for j in range(0, i, 2):
                a(f'v_pk_add_f32 v[{b+j}:{b+j+1}], v[{b+j}:{b+j+1}], v[{b+j+i}:{b+j+i+1}]')
        a(f'v_mul_f32 v{b}, {hx(1/512)}, v{b}')
        a(f'v_mul_f32 v{b+1}, {hx(1/512)}, v{b+1}')
        a(f'v_fma_f32 v{b+1}, -v{b}, v{b}, v{b+1}')
        a(f'v_max_f32 v{b+1}, 0, v{b+1}')
        ln_scalars(b, b+1, 3)
        a(f'v_mov_b32 v{4+2*tt}, v{b+1}')
        a(f'v_mul_f32 v{5+2*tt}, v{b}, v{b+1}')
    for i in range(56):
        a(f'v_mov_b32 v{ACC+i}, 0')
    R.compute(aload)
    gstamp(1)
    a('s_barrier')
    a(f"""
    v_mov_b32 v72, {hx(GC1)}
    v_mov_b32 v73, {hx(GC2)}
    v_mov_b32 v74, 1.0
    v_mov_b32 v75, 1.0
    s_mul_i32 s21, s39, 3584
    s_mul_i32 s22, s16, 3584
    s_add_u32 s21, s21, s22
    v_and_b32 v3, 1, v15
    v_lshrrev_b32 v13, 1, v15
    v_and_b32 v8, 15, v2
    v_lshl_add_u32 v8, v8, 4, s21
    v_lshl_add_u32 v12, v3, 1, v13
    v_lshl_add_u32 v12, v12, 8, v8
    v_add_u32 v11, 57344, v12
    v_mul_u32_u24 v3, 57344, v3
    v_lshl_add_u32 v10, v13, 8, v8
    v_add_u32 v10, v10, v3
    """)
    O = 80
    for tt in range(2):
        zs = [ACC + 28*tt + 2*p for p in range(14)]
        affine_round(zs, [CSR + 2*p for p in range(14)], 4+2*tt, 64)
        gelu_pairs(zs, 72, 64)
        for p in range(14):
            d = O + 16*tt + p if p < 12 else 112 + 2*tt + (p - 12)
            a(f'v_cvt_pk_bf16_f32 v{d}, v{zs[p]}, v{zs[p]+1}')
        a('s_nop 1')
        for P in range(3):
            o = O + 16*tt + 4*P
            a(f'v_permlane16_swap_b32 v{o}, v{o+2}')
            a(f'v_permlane16_swap_b32 v{o+1}, v{o+3}')
        a('s_nop 1')
        for P in range(3):
            o = O + 16*tt + 4*P
            a(f'global_store_dwordx4 v{12-tt}, v[{o}:{o+3}], s[26:27] offset:{1024*P} sc1')
    a('v_permlane16_swap_b32 v112, v114')
    a('v_permlane16_swap_b32 v113, v115')
    a('s_nop 1')
    a('global_store_dwordx4 v10, v[112:115], s[26:27] offset:3072 sc1')
    P6 = f"""
    {MAP64}
    s_lshr_b32 s18, s3, 1
    s_lshl_b32 s18, s18, 4
    s_and_b32 s19, s3, 1
    s_lshl_b32 s19, s19, 2
    s_add_u32 s18, s18, s19
    s_lshl_b32 s39, s17, 6
    s_lshl_b32 s23, s3, 4
    s_add_u32 s39, s39, s23
    s_lshl_b32 s38, s39, 10
    s_lshl_b32 s20, s18, 10
    s_lshl_b32 s37, s16, 7
    s_add_u32 s20, s20, s37
    s_lshl_b32 s34, s17, 1
    s_add_u32 s34, s34, s16
    s_mul_hi_u32 s35, s34, 0x24924925
    s_mul_i32 s35, s35, 7
    s_sub_u32 s34, s34, s35
    s_lshl_b32 s34, s34, 1
    """
    a(P6)
    ACC6 = 36; FB6 = 64; X6 = 96; XW6 = 16
    R6 = Ring4(TT=1, NT=4, nch=14, nslots=8, w_rs=1024, wfmt=128, FB=FB6, ACC=ACC6, vWr=10, X=X6, XW=XW6, rot=True, LA=6)
    a(f"""
    s_mul_i32 s21, s39, 3584
    v_lshl_add_u32 v17, v2, 4, s21
    s_lshl_b32 s36, s34, 12
    s_lshr_b32 s43, s17, 1
    s_lshl_b32 s43, s43, 7
    """)
    fra_epi_off(18, 5)
    gstamp(2)
    a('s_waitcnt vmcnt(0)')
    a('s_barrier')
    gstamp(3)
    signal_cnt(45, 60)
    ws_ptr(8, 4, 'HH'); ws_ptr(24, 4, 'HR'); ws_ptr(28, 4, 'X1')
    a(f's_mov_b32 s10, {2048*3584}')
    a('s_mov_b32 s11, 0x00020000')
    for cb in range(4):
        a(f'global_load_dwordx2 v[{20+2*cb}:{21+2*cb}], v18, s[24:25] offset:{512*cb}')
    for cb in range(4):
        a(f'global_load_dwordx2 v[{28+2*cb}:{29+2*cb}], v18, s[28:29] offset:{512*cb}')
    R6.comp_setup(5, 6, 7)
    for i in range(16):
        a(f'v_mov_b32 v{ACC6+i}, 0')
    poll_cnt('K56_poll', 43, 16, 60)
    gstamp(4)
    a('s_barrier')
    gstamp(5)
    def aload6(st):
        x = X6 + 4*(st % XW6)
        a(f'buffer_load_dwordx4 v[{x}:{x+3}], v17, s[8:11], s36 offen offset:{1024*(st&3)} sc1')
        if st % 4 == 3:
            a('s_add_u32 s36, s36, 4096')
            a('s_cmp_eq_u32 s36, 57344')
            a('s_cselect_b32 s36, 0, s36')
    for st in range(XW6):
        aload6(st)
    R6.compute(aload6)
    gstamp(6)
    a('s_nop 7')
    O = 168
    ACC = ACC6
    for g0 in (0, 4):
        G = range(g0, g0+4)
        T1 = lambda p: 64 + (p & 3)
        T2 = lambda p: 68 + 2*(p & 3)
        for p in G: a(f'v_cvt_pk_bf16_f32 v{T1(p)}, v{ACC+2*p}, v{ACC+2*p+1}')
        for p in G: unpack(ACC+2*p, ACC+2*p+1, T1(p))
        for p in G: unpack(T2(p), T2(p)+1, 28+p)
        for p in G: a(f'v_pk_add_f32 v[{ACC+2*p}:{ACC+2*p+1}], v[{ACC+2*p}:{ACC+2*p+1}], v[{T2(p)}:{T2(p)+1}]')
        for p in G: a(f'v_cvt_pk_bf16_f32 v{T1(p)}, v{ACC+2*p}, v{ACC+2*p+1}')
        for p in G: unpack(ACC+2*p, ACC+2*p+1, T1(p))
        for p in G: unpack(T2(p), T2(p)+1, 20+p)
        for p in G: a(f'v_pk_add_f32 v[{ACC+2*p}:{ACC+2*p+1}], v[{ACC+2*p}:{ACC+2*p+1}], v[{T2(p)}:{T2(p)+1}]')
        for p in G: a(f'v_cvt_pk_bf16_f32 v{O+p}, v{ACC+2*p}, v{ACC+2*p+1}')
    a(f's_mul_i32 s21, s3, 2560')
    a(f's_add_u32 s21, s21, {8*R6.SLOT}')
    store_tile64(O, 38, 52, 37, 64, 21)
    trace_end(4)
    a('s_endpgm')
    a.label('K56_loader')
    a('s_waitcnt lgkmcnt(0)')
    ws_ptr(12, 4, 'W3P')
    a(f's_mov_b32 s14, {512*3584}')
    a('s_mov_b32 s15, 0x00020000')
    R.loader()
    a(P6)
    mk_srd(12, 6, 1792*1024)
    a('s_barrier')
    R6.loader(pre=PRE6, bars=2)
    a.label('K56_exit')
    a.end_kernel(name, (256,1,1), (512,1,1), 8*R6.SLOT + 10240, 240)
    a.label('K_code_end')

def gen_k456():
    global SV
    SV = 232
    name = 'k456_kernel'
    a.begin_kernel(name)
    a(f"""
    s_cmp_ge_u32 s2, 256
    s_cbranch_scc1 K456_exit
    s_load_dwordx2 s[4:5], s[0:1], {KA['ws']}
    s_load_dwordx2 s[6:7], s[0:1], {KA['w4']}
    s_load_dwordx2 s[52:53], s[0:1], {KA['out']}
    s_load_dwordx2 s[60:61], s[0:1], {KA['w2']}
    """)
    trace_begin()
    a(f"""
    v_lshrrev_b32 v1, 6, v0
    v_and_b32 v2, 63, v0
    v_readfirstlane_b32 s44, v1
    s_and_b32 s3, s44, 3
    {MAP64}
    """)
    wave_krow(18)
    ACC = 36; FB = 64; X = 96
    R4 = Ring4(TT=1, NT=4, nch=4, nslots=4, w_rs=1024, wfmt=128, FB=FB, ACC=ACC, vWr=10, X=X, XW=16, LA=2)
    P5S = f"""
    s_bfe_u32 s16, s2, 0x40003
    s_and_b32 s17, s2, 7
    s_lshl_b32 s17, s17, 1
    s_lshr_b32 s19, s2, 7
    s_add_u32 s17, s17, s19
    s_lshl_b32 s39, s17, 7
    s_lshl_b32 s23, s3, 5
    s_add_u32 s39, s39, s23
    s_lshl_b32 s38, s39, 10
    s_mul_i32 s54, s3, 7168
    s_mul_i32 s37, s16, 114688
    s_add_u32 s54, s54, s37
    s_lshl_b32 s45, s17, 7
    """
    a(f"""
    s_lshl_b32 s39, s17, 6
    s_lshl_b32 s23, s3, 4
    s_add_u32 s39, s39, s23
    s_lshl_b32 s38, s39, 10
    s_lshl_b32 s20, s18, 10
    s_lshl_b32 s37, s16, 7
    s_add_u32 s20, s20, s37
    s_lshr_b32 s55, s17, 1
    s_lshl_b32 s55, s55, 7
    s_cmp_ge_u32 s44, 4
    s_cbranch_scc1 K456_loader
    """)
    a(f"""
    v_and_b32 v14, 15, v2
    v_lshrrev_b32 v15, 4, v2
    v_add_u32 v14, s39, v14            ; token
    v_lshlrev_b32 v16, 3, v14
    v_lshlrev_b32 v19, 6, v14
    """)
    for q, sh in enumerate([-1, 1, -2, 2]):
        a(f'v_add_u32 v5, {sh}, v14')
        a('v_ashrrev_i32 v6, 4, v5')
        a('v_lshlrev_b32 v6, 14, v6')
        a('v_and_b32 v5, 15, v5')
        a('v_lshl_add_u32 v6, v5, 4, v6')
        a('v_lshl_add_u32 v6, v15, 8, v6')
        a(f'v_add_u32 v{52+q}, {4096*q}, v6')
    fra_epi_off(18, 5)
    a('s_waitcnt lgkmcnt(0)')
    gstamp(0)
    ws_ptr(8, 4, 'G1')
    a(f's_mov_b32 s10, {2*MB}')
    a('s_mov_b32 s11, 0x00020000')
    ws_ptr(24, 4, 'HR'); ws_ptr(26, 4, 'X1'); ws_ptr(28, 4, 'ST3'); ws_ptr(30, 4, 'ST1')
    HRr = 20
    for cb in range(4):
        a(f'global_load_dwordx2 v[{HRr+2*cb}:{HRr+2*cb+1}], v18, s[24:25] offset:{512*cb}')
    a('global_load_dwordx2 v[28:29], v16, s[30:31]')
    for st in range(16):
        a(f'buffer_load_dwordx4 v[{X+4*st}:{X+4*st+3}], v{52+(st>>2)}, s[8:11], 0 offen offset:{1024*(st&3)}')
    R4.comp_setup(5, 6, 7)
    for i in range(16):
        a(f'v_mov_b32 v{ACC+i}, 0')
    R4.compute(None)
    gstamp(1)
    a('s_barrier')
    a('v_mov_b32 v60, 0')
    a('v_mov_b32 v61, 0')
    a('v_mov_b32 v62, 0')
    a('v_mov_b32 v63, 0')
    a('s_nop 4')
    O = 168
    for g0 in (0, 4):
        G = range(g0, g0+4)
        T1 = lambda p: 64 + (p & 3)
        T2 = lambda p: 68 + 2*(p & 3)
        for p in G: a(f'v_cvt_pk_bf16_f32 v{T1(p)}, v{ACC+2*p}, v{ACC+2*p+1}')
        for p in G: unpack(ACC+2*p, ACC+2*p+1, T1(p))
        for p in G: unpack(T2(p), T2(p)+1, HRr+p)
        for p in G: a(f'v_pk_add_f32 v[{T2(p)}:{T2(p)+1}], v[{T2(p)}:{T2(p)+1}], v[28:29] op_sel_hi:[1,0] neg_lo:[0,1] neg_hi:[0,1]')
        for p in G: a(f'v_cvt_pk_bf16_f32 v{T1(p)}, v{T2(p)}, v{T2(p)+1}')
        for p in G: unpack(T2(p), T2(p)+1, T1(p))
        for p in G: a(f'v_pk_mul_f32 v[{T2(p)}:{T2(p)+1}], v[{T2(p)}:{T2(p)+1}], v[28:29] op_sel:[0,1] op_sel_hi:[1,1]')
        for p in G: a(f'v_cvt_pk_bf16_f32 v{T1(p)}, v{T2(p)}, v{T2(p)+1}')
        for p in G: unpack(T2(p), T2(p)+1, T1(p))
        for p in G: a(f'v_pk_add_f32 v[{ACC+2*p}:{ACC+2*p+1}], v[{ACC+2*p}:{ACC+2*p+1}], v[{T2(p)}:{T2(p)+1}]')
        for p in G: a(f'v_cvt_pk_bf16_f32 v{O+p}, v{ACC+2*p}, v{ACC+2*p+1}')
        for p in G: unpack(ACC+2*p, ACC+2*p+1, O+p)
        for p in G:
            a(f'v_pk_add_f32 v[60:61], v[60:61], v[{ACC+2*p}:{ACC+2*p+1}]')
            a(f'v_pk_fma_f32 v[62:63], v[{ACC+2*p}:{ACC+2*p+1}], v[{ACC+2*p}:{ACC+2*p+1}], v[62:63]')
    a('v_add_f32 v60, v60, v61')
    a('v_add_f32 v61, v62, v63')
    fra_store_off(7, 8)
    a('v_mov_b32 v62, v60')
    a('v_mov_b32 v63, v61')
    for P in range(2):
        o = O + 4*P
        a(f'v_permlane16_swap_b32 v{o}, v{o+2}')
        a(f'v_permlane16_swap_b32 v{o+1}, v{o+3}')
    a('v_permlane16_swap_b32 v60, v62')
    a('v_permlane16_swap_b32 v61, v63')
    for P in range(2):
        o = O + 4*P
        a(f'global_store_dwordx4 v7, v[{o}:{o+3}], s[26:27] offset:{1024*P} sc1')
    a(f"""
    v_pk_add_f32 v[60:61], v[60:61], v[62:63]
    s_nop 0
    v_mov_b32 v62, v60
    v_mov_b32 v63, v61
    s_nop 1
    v_permlane32_swap_b32 v60, v62
    v_permlane32_swap_b32 v61, v63
    s_nop 1
    v_pk_add_f32 v[60:61], v[60:61], v[62:63]
    s_lshl_b32 s21, s16, 3
    v_add_u32 v19, s21, v19
    v_cmp_gt_u32 vcc, 16, v2
    s_and_saveexec_b64 s[32:33], vcc
    global_store_dwordx2 v19, v[60:61], s[28:29] sc1
    s_mov_b64 exec, s[32:33]
    """)
    ws_ptr(46, 4, 'CNT')
    gstamp(2)
    a('s_waitcnt vmcnt(0)')
    a('s_barrier')
    gstamp(3)
    signal_cnt(55, 60)
    a(P5S)
    ACC = 72; FB = 16; X = 128; XW = 16
    R = Ring4(TT=2, NT=7, nch=4, nslots=4, w_rs=224, wfmt=224, FB=FB, ACC=ACC, vWr=10, X=X, XW=XW, srd=56, soff=54, vW=13,
              bases=[65536, 65536+28672, 65536+2*28672, 0])
    a(f"""
    v_and_b32 v14, 15, v2
    v_lshrrev_b32 v15, 4, v2
    v_add_u32 v14, s39, v14
    v_lshlrev_b32 v13, 6, v14
    s_mul_i32 s21, s16, 448
    v_lshl_add_u32 v8, v15, 4, s21
    v_lshl_add_u32 v11, v2, 4, s38
    v_add_u32 v12, 0x4000, v11
    """)
    ws_ptr(8, 4, 'X1'); ws_ptr(24, 4, 'ST3'); ws_ptr(26, 4, 'HH'); ws_ptr(28, 4, 'CS', 2048)
    poll_cnt('K456_poll4', 45, 16, 60)
    a('s_barrier')
    gstamp(4)
    a('s_add_u32 s45, s45, 2048')
    for tt in range(2):
        for q in range(4):
            r = ACC + 16*tt + 4*q
            a(f'global_load_dwordx4 v[{r}:{r+3}], v13, s[24:25] offset:{1024*tt + 16*q} sc1')
    CSR = 128
    def cs_hook(st):
        if st == 8:
            for cb in range(7):
                a(f'global_load_dwordx4 v[{CSR+4*cb}:{CSR+4*cb+3}], v8, s[28:29] offset:{64*cb}')
    def aload(st):
        if st % 4 == 0 and st:
            a('s_add_u32 s8, s8, 4096')
            a('s_addc_u32 s9, s9, 0')
        for tt in range(2):
            x = X + 4*(2*(st % XW) + tt)
            a(f'global_load_dwordx4 v[{x}:{x+3}], v{11+tt}, s[8:9] offset:{1024*(st&3)} sc1')
    for st in range(XW):
        aload(st)
    R.comp_setup(3, 4, 5)
    a(f's_waitcnt vmcnt({2*XW})')
    for tt in range(2):
        b = ACC + 16*tt
        for i in (8, 4, 2):
            for j in range(0, i, 2):
                a(f'v_pk_add_f32 v[{b+j}:{b+j+1}], v[{b+j}:{b+j+1}], v[{b+j+i}:{b+j+i+1}]')
        a(f'v_mul_f32 v{b}, {hx(1/512)}, v{b}')
        a(f'v_mul_f32 v{b+1}, {hx(1/512)}, v{b+1}')
        a(f'v_fma_f32 v{b+1}, -v{b}, v{b}, v{b+1}')
        a(f'v_max_f32 v{b+1}, 0, v{b+1}')
        ln_scalars(b, b+1, 3)
        a(f'v_mov_b32 v{4+2*tt}, v{b+1}')
        a(f'v_mul_f32 v{5+2*tt}, v{b}, v{b+1}')
    for i in range(56):
        a(f'v_mov_b32 v{ACC+i}, 0')
    R.compute(aload, cs_hook)
    gstamp(5)
    a('s_barrier')
    a(f"""
    v_mov_b32 v160, {hx(GC1)}
    v_mov_b32 v161, {hx(GC2)}
    v_mov_b32 v162, 1.0
    v_mov_b32 v163, 1.0
    s_mul_i32 s21, s39, 3584
    s_mul_i32 s22, s16, 3584
    s_add_u32 s21, s21, s22
    v_and_b32 v3, 1, v15
    v_lshrrev_b32 v13, 1, v15
    v_and_b32 v8, 15, v2
    v_lshl_add_u32 v8, v8, 4, s21
    v_lshl_add_u32 v12, v3, 1, v13
    v_lshl_add_u32 v12, v12, 8, v8
    v_add_u32 v11, 57344, v12
    v_mul_u32_u24 v3, 57344, v3
    v_lshl_add_u32 v10, v13, 8, v8
    v_add_u32 v10, v10, v3
    """)
    O = 168
    for tt in range(2):
        zs = [ACC + 28*tt + 2*p for p in range(14)]
        affine_round(zs, [CSR + 2*p for p in range(14)], 4+2*tt, 64)
        gelu_pairs(zs, 160, 64)
        for p in range(14):
            d = O + 16*tt + p if p < 12 else 200 + 2*tt + (p - 12)
            a(f'v_cvt_pk_bf16_f32 v{d}, v{zs[p]}, v{zs[p]+1}')
        a('s_nop 1')
        for P in range(3):
            o = O + 16*tt + 4*P
            a(f'v_permlane16_swap_b32 v{o}, v{o+2}')
            a(f'v_permlane16_swap_b32 v{o+1}, v{o+3}')
        a('s_nop 1')
        for P in range(3):
            o = O + 16*tt + 4*P
            a(f'global_store_dwordx4 v{12-tt}, v[{o}:{o+3}], s[26:27] offset:{1024*P} sc1')
    a('v_permlane16_swap_b32 v200, v202')
    a('v_permlane16_swap_b32 v201, v203')
    a('s_nop 1')
    a('global_store_dwordx4 v10, v[200:203], s[26:27] offset:3072 sc1')
    P6 = f"""
    {MAP64}
    s_lshr_b32 s18, s3, 1
    s_lshl_b32 s18, s18, 4
    s_and_b32 s19, s3, 1
    s_lshl_b32 s19, s19, 2
    s_add_u32 s18, s18, s19
    s_lshl_b32 s39, s17, 6
    s_lshl_b32 s23, s3, 4
    s_add_u32 s39, s39, s23
    s_lshl_b32 s38, s39, 10
    s_lshl_b32 s20, s18, 10
    s_lshl_b32 s37, s16, 7
    s_add_u32 s20, s20, s37
    s_lshl_b32 s34, s17, 1
    s_add_u32 s34, s34, s16
    s_mul_hi_u32 s35, s34, 0x24924925
    s_mul_i32 s35, s35, 7
    s_sub_u32 s34, s34, s35
    s_lshl_b32 s34, s34, 1
    """
    a(P6)
    ACC6 = 36; FB6 = 64; X6 = 96; XW6 = 16
    R6 = Ring4(TT=1, NT=4, nch=14, nslots=8, w_rs=1024, wfmt=128, FB=FB6, ACC=ACC6, vWr=10, X=X6, XW=XW6, rot=True, LA=6)
    a(f"""
    s_mul_i32 s21, s39, 3584
    v_lshl_add_u32 v17, v2, 4, s21
    s_lshl_b32 s36, s34, 12
    s_lshr_b32 s43, s17, 1
    s_lshl_b32 s43, s43, 7
    s_add_u32 s43, s43, 2048
    """)
    fra_epi_off(18, 5)
    gstamp(6)
    a('s_waitcnt vmcnt(0)')
    a('s_barrier')
    gstamp(7)
    signal_cnt(45, 60)
    ws_ptr(8, 4, 'HH'); ws_ptr(24, 4, 'HR'); ws_ptr(28, 4, 'X1')
    a(f's_mov_b32 s10, {2048*3584}')
    a('s_mov_b32 s11, 0x00020000')
    for cb in range(4):
        a(f'global_load_dwordx2 v[{20+2*cb}:{21+2*cb}], v18, s[24:25] offset:{512*cb}')
    for cb in range(4):
        a(f'global_load_dwordx2 v[{28+2*cb}:{29+2*cb}], v18, s[28:29] offset:{512*cb} sc1')
    R6.comp_setup(5, 6, 7)
    for i in range(16):
        a(f'v_mov_b32 v{ACC6+i}, 0')
    poll_cnt('K456_poll5', 43, 16, 60)
    a('s_barrier')
    gstamp(8)
    def aload6(st):
        x = X6 + 4*(st % XW6)
        a(f'buffer_load_dwordx4 v[{x}:{x+3}], v17, s[8:11], s36 offen offset:{1024*(st&3)} sc1')
        if st % 4 == 3:
            a('s_add_u32 s36, s36, 4096')
            a('s_cmp_eq_u32 s36, 57344')
            a('s_cselect_b32 s36, 0, s36')
    for st in range(XW6):
        aload6(st)
    R6.compute(aload6)
    gstamp(9)
    a('s_nop 7')
    O = 168
    ACC = ACC6
    for g0 in (0, 4):
        G = range(g0, g0+4)
        T1 = lambda p: 64 + (p & 3)
        T2 = lambda p: 68 + 2*(p & 3)
        for p in G: a(f'v_cvt_pk_bf16_f32 v{T1(p)}, v{ACC+2*p}, v{ACC+2*p+1}')
        for p in G: unpack(ACC+2*p, ACC+2*p+1, T1(p))
        for p in G: unpack(T2(p), T2(p)+1, 28+p)
        for p in G: a(f'v_pk_add_f32 v[{ACC+2*p}:{ACC+2*p+1}], v[{ACC+2*p}:{ACC+2*p+1}], v[{T2(p)}:{T2(p)+1}]')
        for p in G: a(f'v_cvt_pk_bf16_f32 v{T1(p)}, v{ACC+2*p}, v{ACC+2*p+1}')
        for p in G: unpack(ACC+2*p, ACC+2*p+1, T1(p))
        for p in G: unpack(T2(p), T2(p)+1, 20+p)
        for p in G: a(f'v_pk_add_f32 v[{ACC+2*p}:{ACC+2*p+1}], v[{ACC+2*p}:{ACC+2*p+1}], v[{T2(p)}:{T2(p)+1}]')
        for p in G: a(f'v_cvt_pk_bf16_f32 v{O+p}, v{ACC+2*p}, v{ACC+2*p+1}')
    a(f's_mul_i32 s21, s3, 2560')
    a(f's_add_u32 s21, s21, {8*R6.SLOT}')
    store_tile64(O, 38, 52, 37, 64, 21)
    trace_end(4)
    a('s_endpgm')
    a.label('K456_loader')
    a('s_waitcnt lgkmcnt(0)')
    mk_srd(12, 60, 512*1024)
    R4.l_setup()
    R4.l_issue(0); R4.l_issue(1)
    a(P5S)
    ws_ptr(56, 4, 'W3P')
    a(f's_mov_b32 s58, {512*3584}')
    a('s_mov_b32 s59, 0x00020000')
    R.l_setup()
    a('s_waitcnt vmcnt(4)'); a('s_barrier'); R4.l_issue(2)
    a('s_waitcnt vmcnt(4)'); a('s_barrier'); R4.l_issue(3)
    if V456 == 0:
        a('s_waitcnt vmcnt(4)'); a('s_barrier'); R.l_issue(0)
        a('s_waitcnt vmcnt(7)'); a('s_barrier'); R.l_issue(1); R.l_issue(2)
        a('s_barrier')
        R.l_issue(3)
        a('s_barrier')
        a('s_barrier')
    elif V456 == 1:
        a('s_waitcnt vmcnt(4)'); a('s_barrier')
        a('s_waitcnt vmcnt(0)'); a('s_barrier'); R.l_issue(0)
        a('s_barrier')
        a('s_barrier')
        R.l_issue(1); R.l_issue(2); R.l_issue(3)
        a('s_barrier')
    else:
        a('s_waitcnt vmcnt(4)'); a('s_barrier')
        a('s_waitcnt vmcnt(0)'); a('s_barrier')
        a('s_barrier')
        a('s_barrier')
        R.l_issue(0); R.l_issue(1); R.l_issue(2); R.l_issue(3)
        a('s_barrier')
    for c in range(4):
        a(f's_waitcnt vmcnt({7*(3-c)})')
        a('s_barrier')
    a(P6)
    mk_srd(12, 6, 1792*1024)
    a('s_barrier')
    R6.loader(pre=PRE6, bars=2)
    a.label('K456_exit')
    a.end_kernel(name, (256,1,1), (512,1,1), 151552, 256)
    a.label('K_code_end')

def main():
    gen_k1()
    gen_k2()
    gen_k3()
    if MERGE456:
        gen_k456()
    elif MERGE56:
        gen_k4()
        gen_k56()
    else:
        gen_k4()
        gen_k5()
        gen_k6()

if __name__ == '__main__':
    out = sys.argv[1] if len(sys.argv) > 1 else 'k.s'
    if 'stamps' in sys.argv[2:]:
        STAMPS = True
    if 'trace' in sys.argv[2:]:
        TRACE = True
    if 'gst' in sys.argv[2:]:
        GST = True
    main()
    open(out, 'w').write(a.text(HEADER))
```
